```python
import torch

def _softmax(x, axis=-1):
    return torch.softmax(x, dim=axis)

def _gelu(x):
    return torch.nn.functional.gelu(x, approximate='tanh')

def _silu(x):
    return torch.nn.functional.silu(x)

def _sigmoid(x):
    return torch.sigmoid(x)

def _layernorm(x, axis=-1, eps=1e-05):
    m = x.mean(dim=axis, keepdim=True)
    v = x.var(dim=axis, keepdim=True, unbiased=False)
    return (x - m) / torch.sqrt(v + eps)

def _scatter_add(tgt, idx, src, axis=0):
    return tgt.clone().index_add_(axis, idx, src)

def _segment_sum(src, seg, n):
    out = torch.zeros((n,) + src.shape[1:], dtype=src.dtype)
    return out.index_add_(0, seg, src)

def _pad(x, pw):
    flat = tuple((v for pair in reversed(pw) for v in pair))
    return torch.nn.functional.pad(x, flat)
kernel_name = 'adaLN_cond__sliding_block_cached__swiglu_ffn__decode'

def setup_inputs():

    _w = lambda a: (lambda t: t.to(torch.bfloat16) if t.is_floating_point() else t)(torch.as_tensor(a))

    def _A_setup():
        B, Sq, D = (8, 1, 1024)
        Hq, Hkv, Sk, Dh = (32, 4, 4096, 128)
        assert Hq % Hkv == 0, (Hq, Hkv)
        return {'x': _w((lambda *s: torch.randn(*s, dtype=torch.bfloat16) * 0.05)(B, Sq, D)), 'k_cache': _w((lambda *s: torch.randn(*s, dtype=torch.bfloat16) * 3.2)(B, Hkv, Sk, Dh)), 'v_cache': _w((lambda *s: torch.randn(*s, dtype=torch.bfloat16) * 0.4)(B, Hkv, Sk, Dh)), 'wq': _w((lambda *s: torch.randn(*s, dtype=torch.bfloat16) * 3.2)(D, Hq * Dh) * D ** (-0.5)), 'wo': _w((lambda *s: torch.randn(*s, dtype=torch.bfloat16) * 0.4)(Hq * Dh, D) * (Hq * Dh) ** (-0.5))}
    _A_in = _A_setup()

    def _B_setup():
        B, S, D, F = (8, 1, 1024, 3584)
        return {'x': _w((lambda *s: torch.randn(*s, dtype=torch.bfloat16) * 0.05)(B, S, D)), 'w_gate': _w((lambda *s: torch.randn(*s, dtype=torch.bfloat16) * 0.05)(D, F)), 'w_up': _w((lambda *s: torch.randn(*s, dtype=torch.bfloat16) * 0.05)(D, F)), 'w_down': _w((lambda *s: torch.randn(*s, dtype=torch.bfloat16) * 0.05)(F, D))}
    _B_in = _B_setup()
    return {'A_x': _A_in['x'], 'A_k_cache': _A_in['k_cache'], 'A_v_cache': _A_in['v_cache'], 'A_wq': _A_in['wq'], 'A_wo': _A_in['wo'], 'B_x': _B_in['x'], 'B_w_gate': _B_in['w_gate'], 'B_w_up': _B_in['w_up'], 'B_w_down': _B_in['w_down'], 'c': _w((lambda *s: torch.randn(*s, dtype=torch.bfloat16) * 0.1)(8, 1024) * 8.0), 'w_mod': _w((lambda *s: torch.randn(*s, dtype=torch.bfloat16) * 0.1)(1024, 6 * 1024) * 1024 ** (-0.5) * 8.0)}

def reference(A_x, A_k_cache, A_v_cache, A_wq, A_wo, B_x, B_w_gate, B_w_up, B_w_down, c, w_mod):

    def _A_ref(x, k_cache, v_cache, wq, wo):
        B, Sq, D = x.shape
        Hq, Dh = (32, 128)
        Hkv, Sk = (k_cache.shape[1], k_cache.shape[2])
        W = min(4096, max(256, Sk // 4))
        rep = Hq // Hkv
        q = (lambda x, *d: x.permute(*d))((x @ wq).reshape(B, Sq, Hq, Dh), 0, 2, 1, 3)
        k = (lambda x, n, axis: torch.repeat_interleave(x, n, dim=axis))(k_cache[:, :, Sk - W:, :], rep, axis=1)
        v = (lambda x, n, axis: torch.repeat_interleave(x, n, dim=axis))(v_cache[:, :, Sk - W:, :], rep, axis=1)
        scores = torch.einsum('bhqd,bhkd->bhqk', q, k) * Dh ** (-0.5)
        p = _softmax(scores, axis=-1)
        o = torch.einsum('bhqk,bhkd->bhqd', p, v)
        return (lambda x, *d: x.permute(*d))(o, 0, 2, 1, 3).reshape(B, Sq, Hq * Dh) @ wo

    def _B_ref(x, w_gate, w_up, w_down):
        g = _silu(x @ w_gate)
        u = x @ w_up
        return g * u @ w_down
    x = A_x
    mod = (_silu(c) @ w_mod).reshape(c.shape[0], 6, 1, -1)
    sa, ca, ga, sb, cb, gb = (mod[:, 0].clone(), mod[:, 1].clone(), mod[:, 2].clone(), mod[:, 3].clone(), mod[:, 4].clone(), mod[:, 5].clone())
    h = _layernorm(x, axis=-1) * (1 + ca) + sa
    x = x + ga * _A_ref(h, A_k_cache, A_v_cache, A_wq, A_wo)
    h = _layernorm(x, axis=-1) * (1 + cb) + sb
    x = x + gb * _B_ref(h, B_w_gate, B_w_up, B_w_down)
    return x
```

```python
import re

TRANS = ("v_exp_f32", "v_log_f32", "v_rcp_f32", "v_rsq_f32", "v_sqrt_f32", "v_sin_f32", "v_cos_f32")
_reg_re = re.compile(r"^(-?)(abs\()?([vsa])(\d+|\[(\d+):(\d+)\])\)?$")


def regs_of(tok):
    tok = tok.strip()
    if tok in ("vcc",):
        return {("s", 106), ("s", 107)}
    if tok == "vcc_lo":
        return {("s", 106)}
    if tok == "vcc_hi":
        return {("s", 107)}
    if tok == "exec":
        return {("s", 126), ("s", 127)}
    if tok == "m0":
        return {("s", 124)}
    m = _reg_re.match(tok)
    if not m:
        return set()
    k = m.group(3)
    if m.group(5) is not None:
        return {(k, i) for i in range(int(m.group(5)), int(m.group(6)) + 1)}
    return {(k, int(m.group(4)))}


class Ins:
    pass


def parse(text):
    t = text.split(";")[0].strip()
    sp = t.split(None, 1)
    op = sp[0]
    rest = sp[1] if len(sp) > 1 else ""
    ops, cur, depth = [], "", 0
    for ch in rest:
        if ch == "[":
            depth += 1
        if ch == "]":
            depth -= 1
        if ch == "," and depth == 0:
            ops.append(cur.strip())
            cur = ""
        else:
            cur += ch
    if cur.strip():
        ops.append(cur.strip())
    mods = ""
    if ops:
        parts = ops[-1].split(None, 1)
        ops[-1] = parts[0]
        if len(parts) > 1:
            mods = parts[1]
    I = Ins()
    I.text = text
    I.op = op
    I.dpp = op.endswith("_dpp")
    I.srcc = set()
    I.dtuple = None
    I.stdata = set()
    I.states = 1
    R = [regs_of(o) for o in ops]
    allr = set().union(*R) if R else set()
    if op == "s_nop":
        I.kind = "nop"
        I.states = int(ops[0], 0) + 1
        I.wr, I.rd = set(), set()
    elif op.startswith("v_mfma"):
        I.kind = "mfma"
        I.wr = R[0]
        I.rd = R[1] | R[2] | R[3]
        I.srcc = R[3]
        I.dtuple = ops[0]
        I.dpp = False
    elif op.startswith("v_permlane"):
        I.kind = "perml"
        I.wr = R[0] | R[1]
        I.rd = R[0] | R[1]
    elif op.startswith("v_cmp"):
        I.kind = "valu"
        I.wr = R[0]
        I.rd = set().union(*R[1:])
    elif op.startswith("v_readfirstlane") or op.startswith("v_readlane"):
        I.kind = "rdlane"
        I.wr = R[0]
        I.rd = set().union(*R[1:])
    elif op.startswith("v_"):
        I.kind = "trans" if op.replace("_e32", "").replace("_e64", "") in TRANS else "valu"
        I.wr = R[0]
        I.rd = set().union(*R[1:]) if len(R) > 1 else set()
        if op.startswith(("v_fmac", "v_pk_fmac")) or I.dpp:
            I.rd = I.rd | R[0]
        if op.startswith("v_cndmask") and len(ops) == 3:
            I.rd = I.rd | regs_of("vcc")
        if "_co_" in op:
            I.wr = R[0] | R[1]
            I.rd = set().union(*R[2:])
    elif op.startswith(("buffer_store", "global_store")):
        I.kind = "vmem"
        I.wr = set()
        I.rd = allr
        if "x4" in op or "x3" in op:
            I.stdata = R[0] if op.startswith("buffer") else R[1]
    elif op.startswith(("buffer_load", "global_load")):
        I.kind = "vmem"
        I.wr = R[0]
        I.rd = set().union(*R[1:])
    elif op.startswith("buffer_atomic"):
        I.kind = "vmem"
        I.wr = R[0] if "sc0" in mods else set()
        I.rd = allr
    elif op.startswith("ds_read") or op.startswith("ds_bpermute") or op.startswith("ds_swizzle"):
        I.kind = "ds"
        I.wr = R[0]
        I.rd = set().union(*R[1:])
    elif op.startswith("ds_"):
        I.kind = "ds"
        I.wr = set()
        I.rd = allr
    elif op.startswith("s_"):
        I.kind = "salu"
        if op.startswith(("s_cmp", "s_cbranch", "s_branch", "s_waitcnt", "s_barrier", "s_endpgm", "s_setprio", "s_setpc", "s_bitcmp")):
            I.wr = set()
            I.rd = allr
        else:
            I.wr = R[0] if R else set()
            I.rd = set().union(*R[1:]) if len(R) > 1 else set()
            if "saveexec" in op:
                I.wr = I.wr | regs_of("exec")
    else:
        raise ValueError("unknown op " + text)
    I.srcc_text = ops[3] if I.kind == "mfma" else None
    return I


def is_valu(I):
    return I.kind in ("valu", "trans", "perml", "rdlane")


def need(P, C):
    n = 0
    vw = {r for r in P.wr if r[0] == "v"}
    sw = {r for r in P.wr if r[0] == "s"}
    if is_valu(P):
        if C.kind == "mfma" and vw & C.rd:
            n = max(n, 2)
        if C.dpp and vw & C.rd:
            n = max(n, 2)
        if C.kind == "perml" and vw & C.rd:
            n = max(n, 2)
        if C.kind == "rdlane" and vw & C.rd:
            n = max(n, 1)
        if P.kind == "trans" and is_valu(C) and vw & C.rd:
            n = max(n, 1)
        if sw:
            if is_valu(C) and sw & C.rd:
                n = max(n, 4 if C.kind == "rdlane" else 2)
            if C.kind == "vmem" and sw & C.rd:
                n = max(n, 5)
            if C.kind == "salu" and sw & C.rd:
                n = max(n, 1)
    if P.kind == "mfma":
        if C.kind == "mfma":
            ab = C.rd - C.srcc
            if vw & ab:
                n = max(n, 8)
            if vw & C.srcc and C.srcc_text != P.dtuple:
                n = max(n, 8)
            if vw & C.wr and C.dtuple != P.dtuple:
                n = max(n, 8)
        else:
            if vw & (C.rd | C.wr):
                n = max(n, 8)
            if is_valu(C) and P.srcc & C.wr:
                n = max(n, 3)
    if P.stdata and (C.wr & P.stdata):
        n = max(n, 2)
    if P.kind == "salu" and ("s", 124) in P.wr and C.kind in ("vmem", "ds"):
        n = max(n, 1)
    return n


class Asm:
    def __init__(self):
        self.out = []
        self.hist = []
        self.nlab = 0

    def raw(self, s):
        self.out.append(s)

    def __call__(self, text):
        for t in text.split("\n"):
            t = t.strip()
            if not t:
                continue
            if t.startswith(";"):
                self.out.append("    " + t)
                continue
            self._emit(t)

    def _emit(self, t):
        I = parse(t)
        dist = 0
        pad = 0
        for P in reversed(self.hist):
            if dist >= 9:
                break
            r = need(P, I)
            if r > dist:
                pad = max(pad, r - dist)
            dist += P.states
        if pad:
            N = parse(f"s_nop {pad-1}")
            self.hist.append(N)
            self.out.append(f"    s_nop {pad-1}")
        self.hist.append(I)
        if len(self.hist) > 12:
            self.hist = self.hist[-12:]
        self.out.append("    " + t)

    def label(self, name):
        self.out.append(name + ":")

    def newlabel(self, base="L"):
        self.nlab += 1
        return f"{base}_{self.nlab}"

    def text(self):
        return "\n".join(self.out) + "\n"
```

```python
import sys, os, struct
sys.path.insert(0, os.path.dirname(os.path.abspath(__file__)))
from asmlib import Asm

NAME = "adaLN_cond__sliding_block_cached__swiglu_ffn__decode"

WS_MODP = 4096
WS_MODR = WS_MODP + 2 * 8 * 2048 * 4
WS_QP = WS_MODR + 8 * 4096 * 4
WS_OP = WS_QP + 4 * 8 * 4096 * 4
WS_LSE = WS_OP + 8 * 4 * 32 * 128 * 4
WS_AP = WS_LSE + 128 * 128
WS_X1 = WS_AP + 16 * 8 * 1024 * 4
WS_GU = WS_X1 + 8 * 1024 * 4
WS_DP = WS_GU + 2 * 8 * 3584 * 4
WS_STAMP = WS_DP + 16 * 8 * 1024 * 4
WS_END = WS_STAMP + 256 * 8 * 64 * 4

X_, K_, V_, WQ_, WO_, WG_, WU_, WD_, C_, WM_, OUT_, WS_, DBG_, W_ = [f"s[{8+4*i}:{11+4*i}]" for i in range(14)]
SRD_INFO = [
    (8, 0, 16384), (12, 8, 33554432), (16, 16, 33554432), (20, 24, 8388608), (24, 32, 8388608),
    (28, 48, 7340032), (32, 56, 7340032), (36, 64, 7340032), (40, 72, 16384), (44, 80, 12582912),
    (48, 88, 16384), (52, 104, WS_END), (56, 96, 256)]

sW, sT, sLB, sSEL0, sSEL1 = "s3", "s4", "s5", "s6", "s7"
sEP, sTASK = "s64", "s65"
sPOLL = "s80"
sMHI = "s[86:87]"
LDS_HALF = 40960
L_RED = 0
L_AUX = 34816

RAW, TB, ACC, BB, RES = 64, 128, 192, 224, 232
vLANE, vG, vI, vB, vHI, vFF = "v1", "v2", "v3", "v4", "v5", "v6"
vSTAMP = "v31"
LOG2E = 0x3FB8AA3B
SCALE = struct.unpack("<I", struct.pack("<f", 128 ** -0.5))[0]
EPS = struct.unpack("<I", struct.pack("<f", 1e-5))[0]


def v(n, cnt=1):
    return f"v{n}" if cnt == 1 else f"v[{n}:{n+cnt-1}]"


class Gen:
    def __init__(self, cfg):
        self.cfg = cfg
        self.a = Asm()
        self.stamps = cfg.get("stamps", False)
        self.nstamp = 0
        self.poll_limit = cfg.get("poll_limit", 20000)

    def stamp(self, slot):
        if not self.stamps:
            return
        a = self.a
        a("s_memrealtime s[90:91]")
        a("s_waitcnt lgkmcnt(0)")
        a(f"v_writelane_b32 {vSTAMP}, s90, {slot}")

    def bf16r_pairs(self, regs, tmp):
        a = self.a
        for i in range(0, len(regs), 2):
            a(f"v_cvt_pk_bf16_f32 v{tmp}, v{regs[i]}, v{regs[i+1]}")
            a(f"v_lshlrev_b32 v{regs[i]}, 16, v{tmp}")
            a(f"v_and_b32 v{regs[i+1]}, 0xffff0000, v{tmp}")

    def unpack_bf16(self, src, dst, n):
        a = self.a
        for i in range(n):
            a(f"v_lshlrev_b32 v{dst+2*i}, 16, v{src+i}")
            a(f"v_and_b32 v{dst+2*i+1}, 0xffff0000, v{src+i}")

    def allred_rows(self, regs, op, tmp):
        a = self.a
        for r, t in zip(regs, tmp):
            a(f"{op}_dpp v{t}, v{r}, v{r} row_ror:8 row_mask:0xf bank_mask:0xf")
        for r, t in zip(regs, tmp):
            a(f"v_mov_b32 v{r}, v{t}")
        for r, t in zip(regs, tmp):
            a(f"v_permlane16_swap_b32 v{r}, v{t}")
        for r, t in zip(regs, tmp):
            a(f"{op} v{t}, v{r}, v{t}")
        for r, t in zip(regs, tmp):
            a(f"v_mov_b32 v{r}, v{t}")
        for r, t in zip(regs, tmp):
            a(f"v_permlane32_swap_b32 v{r}, v{t}")
        for r, t in zip(regs, tmp):
            a(f"{op} v{r}, v{r}, v{t}")

    def allred_wave(self, r, t, op="v_add_f32"):
        a = self.a
        a(f"{op}_dpp v{t}, v{r}, v{r} quad_perm:[1,0,3,2] row_mask:0xf bank_mask:0xf")
        a(f"{op}_dpp v{r}, v{t}, v{t} quad_perm:[2,3,0,1] row_mask:0xf bank_mask:0xf")
        a(f"{op}_dpp v{t}, v{r}, v{r} row_half_mirror row_mask:0xf bank_mask:0xf")
        a(f"v_mov_b32 v{r}, v{t}")
        self.allred_rows([r], op, [t])

    def poll(self, loads, acc):
        a = self.a
        L = a.newlabel("L_poll")
        D = a.newlabel("L_pdone")
        a(f"s_mov_b32 {sPOLL}, {self.poll_limit}")
        a.label(L)
        for t, _, _ in loads:
            a(t)
        first = True
        for n, (t, r, cnt) in enumerate(loads):
            a(f"s_waitcnt vmcnt({len(loads)-1-n})")
            for i in range(cnt):
                if first:
                    a(f"v_xor_b32 v{acc}, {sT}, v{r+i}")
                    first = False
                else:
                    a(f"v_bitop3_b32 v{acc}, v{r+i}, v{acc}, {sT} bitop3:0xde")
        a(f"v_and_b32 v{acc}, {vFF}, v{acc}")
        a(f"v_cmp_ne_u32 vcc, 0, v{acc}")
        a(f"s_sub_u32 {sPOLL}, {sPOLL}, 1")
        a(f"s_cbranch_vccz {D}")
        a(f"s_cmp_lg_u32 {sPOLL}, 0")
        a(f"s_cbranch_scc1 {L}")
        a.label(D)

    def tag(self, regs):
        for r in regs:
            self.a(f"v_bfi_b32 v{r}, {vFF}, {sT}, v{r}")

    def perms(self, raw, tb):
        a = self.a
        for jj in range(8):
            for p in range(4):
                a(f"v_perm_b32 v{tb+4*jj+p}, v{raw+4*(2*p+1)+(jj>>1)}, v{raw+4*(2*p)+(jj>>1)}, {sSEL1 if jj & 1 else sSEL0}")

    def stream(self, loads, D, after):
        a = self.a
        n = len(loads)
        pend = sorted(after.keys())
        done = -1

        def run_ready():
            while pend and pend[0] <= done:
                after[pend.pop(0)]()
        for i, (pre, ld) in enumerate(loads):
            if i >= D:
                a(f"s_waitcnt vmcnt({D-1})")
                done = i - D
            if pre:
                a(pre)
            a(ld)
            run_ready()
        while pend:
            k = pend[0]
            a(f"s_waitcnt vmcnt({n-1-k})")
            done = k
            run_ready()

    def gemm_stream(self, srd, RS, U, urows, D):
        loads, after = [], {}
        for u in range(U):
            for r in range(8):
                pre = None
                if (u, r) != (0, 0):
                    step = RS if r else (urows - 7) * RS
                    pre = f"s_add_u32 s66, s66, {step}"
                d = RAW + 32 * u + 4 * r
                loads.append((pre, f"buffer_load_dwordx4 {v(d,4)}, v10, {srd}, s66 offen nt"))
            after[8 * u + 7] = (lambda u=u: self.perms(RAW + 32 * u, TB + 32 * u))
        self.stream(loads, D, after)

    def woff_u64(self, RS):
        a = self.a
        a(f"v_and_b32 v8, 1, {vI}")
        a(f"v_lshlrev_b32 v8, 2, v8")
        a(f"v_add_u32 v8, v8, {vG}")
        a(f"s_mov_b32 s67, {8*RS}")
        a(f"v_mul_lo_u32 v10, v8, s67")
        a(f"v_lshrrev_b32 v8, 1, {vI}")
        a(f"v_lshl_add_u32 v10, v8, 4, v10")

    def woff_u128(self, RS):
        a = self.a
        a(f"s_mov_b32 s67, {8*RS}")
        a(f"v_mul_lo_u32 v10, {vG}, s67")
        a(f"v_lshl_add_u32 v10, {vI}, 4, v10")

    def mfma_units(self, U):
        a = self.a
        for jj in range(8):
            for u in range(U):
                c = "0" if u == 0 else v(ACC + 4 * jj, 4)
                a(f"v_mfma_f32_16x16x32_bf16 {v(ACC+4*jj,4)}, {v(TB+32*u+4*jj,4)}, {v(BB+4*u,4)}, {c}")

    def merge64(self, acc, res):
        a = self.a
        for jj in range(8):
            A = acc + 4 * jj
            a(f"v_add_f32_dpp v{res+jj}, v{A+1}, v{A} row_ror:8 row_mask:0xf bank_mask:0x3")
        for jj in range(8):
            A = acc + 4 * jj
            a(f"v_add_f32_dpp v{res+jj}, v{A+2}, v{A+3} row_ror:8 row_mask:0xf bank_mask:0xc")

    def red_addr(self, NC):
        a = self.a
        st = NC + 4
        a(f"s_lshl_b32 s67, {sW}, 3")
        a(f"v_add_u32 v8, s67, {vB}")
        a(f"v_mul_u32_u24 v8, {st*4}, v8")
        a(f"v_lshl_add_u32 v9, {vG}, 1, {vHI}")
        a(f"v_lshl_add_u32 v11, v9, {5 if NC == 64 else 6}, v8")
        a(f"v_add_u32 v11, {sLB}, v11")
        sh = 4 if NC == 64 else 5
        a(f"v_lshrrev_b32 v8, {sh}, v0")
        a(f"v_mul_u32_u24 v8, {st*4}, v8")
        a(f"v_and_b32 v9, {(1<<sh)-1}, v0")
        a(f"v_lshl_add_u32 v12, v9, 4, v8")
        a(f"v_add_u32 v12, {sLB}, v12")

    def gemm_tail(self, NC, U, nw, epilogue, skip_wave_ge=None):
        a = self.a
        st = NC + 4
        Lskip = a.newlabel("L_nomm")
        if nw < 8:
            a(f"s_cmp_ge_u32 {sW}, {nw}")
            a(f"s_cbranch_scc1 {Lskip}")
        self.mfma_units(U)
        if NC == 64:
            self.merge64(ACC, RES)
            nq = 2
        else:
            for rp in range(2):
                for jj in range(8):
                    A = ACC + 4 * jj
                    a(f"v_cndmask_b32 v{RES+8*rp+jj}, v{A+rp}, v{A+rp+2}, {sMHI}")
            nq = 4
        for q in range(nq):
            a(f"ds_write_b128 v11, {v(RES+4*q,4)} offset:{L_RED+16*q}")
        a("s_waitcnt lgkmcnt(0)")
        a.label(Lskip)
        a("s_barrier")
        Lend = a.newlabel("L_tailend")
        a(f"s_cmp_ge_u32 {sW}, {2*NC//64}")
        a(f"s_cbranch_scc1 {Lend}")
        for w in range(nw):
            a(f"ds_read_b128 {v(64+4*w,4)}, v12 offset:{L_RED+w*8*st*4}")
        for w in range(1, nw):
            a(f"s_waitcnt lgkmcnt({nw-1-w})")
            for i in range(4):
                a(f"v_add_f32 v{64+i}, v{64+i}, v{64+4*w+i}")
        epilogue()
        a.label(Lend)
        a(f"s_xor_b32 {sLB}, {sLB}, {LDS_HALF}")

    def publish4(self, voff, soff):
        self.tag([64, 65, 66, 67])
        self.a(f"buffer_store_dwordx4 v[64:67], {voff}, {WS_}, {soff} offen sc1")

    def out_off(self, NC, rowbytes):
        a = self.a
        sh = 4 if NC == 64 else 5
        a(f"v_lshrrev_b32 v8, {sh}, v0")
        a(f"s_mov_b32 s67, {rowbytes}")
        a(f"v_mul_lo_u32 v13, v8, s67")
        a(f"v_and_b32 v9, {(1<<sh)-1}, v0")
        a(f"v_lshl_add_u32 v13, v9, 4, v13")

    def get_tag(self):
        a = self.a
        a("s_waitcnt lgkmcnt(0)")
        a(f"s_add_u32 {sT}, {sEP}, 1")
        a(f"s_and_b32 {sT}, {sT}, 0xff")

    def role_mod(self, rest, sb):
        a = self.a
        RS = 12288
        U = 2 if rest else 1
        D = self.cfg["D_rm" if rest else "D_p0"]
        self.stamp(sb)
        if rest:
            a(f"s_lshl_b32 s68, {sW}, 7")
            a(f"s_lshl_b32 s69, {sTASK}, 7")
            a(f"s_add_u32 s69, s69, 4096")
            a(f"s_lshl_b32 s70, {sTASK}, 8")
            a(f"s_add_u32 s70, s70, {WS_MODR}")
        else:
            a(f"s_lshr_b32 s71, {sTASK}, 5")
            a(f"s_and_b32 s72, {sTASK}, 31")
            a(f"s_lshl_b32 s68, s71, 9")
            a(f"s_lshl_b32 s67, {sW}, 6")
            a(f"s_add_u32 s68, s68, s67")
            a(f"s_lshl_b32 s69, s72, 7")
            a(f"s_lshl_b32 s70, s72, 8")
            a(f"s_lshl_b32 s71, s71, 16")
            a(f"s_add_u32 s70, s70, s71")
            a(f"s_add_u32 s70, s70, {WS_MODP}")
        a(f"v_lshlrev_b32 v8, 11, {vB}")
        a(f"v_lshl_add_u32 v8, {vHI}, 6, v8")
        a(f"v_lshl_add_u32 v8, {vG}, 4, v8")
        a(f"s_lshl_b32 s67, s68, 1")
        for u in range(U):
            a(f"buffer_load_dwordx4 {v(32+4*u,4)}, v8, {C_}, s67 offen offset:{128*u}")
        self.woff_u64(RS)
        a(f"s_mul_i32 s66, s68, {RS}")
        a(f"s_add_u32 s66, s66, s69")
        self.red_addr(64)
        self.out_off(64, 16384 if rest else 8192)

        def silu_c():
            for u in range(U):
                self.unpack_bf16(32 + 4 * u, 40, 4)
                for e in range(8):
                    a(f"v_mul_f32 v{48+e}, 0x{LOG2E ^ 0x80000000:x}, v{40+e}")
                for e in range(8):
                    a(f"v_exp_f32 v{48+e}, v{48+e}")
                for e in range(8):
                    a(f"v_add_f32 v{48+e}, 1.0, v{48+e}")
                for e in range(8):
                    a(f"v_rcp_f32 v{48+e}, v{48+e}")
                for e in range(8):
                    a(f"v_mul_f32 v{40+e}, v{40+e}, v{48+e}")
                for p in range(4):
                    a(f"v_cvt_pk_bf16_f32 v{BB+4*u+p}, v{40+2*p}, v{40+2*p+1}")
        loads, after = [], {}
        for u in range(U):
            for r in range(8):
                pre = None
                if (u, r) != (0, 0):
                    step = RS if r else (64 - 7) * RS
                    pre = f"s_add_u32 s66, s66, {step}"
                d = RAW + 32 * u + 4 * r
                loads.append((pre, f"buffer_load_dwordx4 {v(d,4)}, v10, {WM_}, s66 offen nt"))
            after[8 * u + 7] = (lambda u=u: self.perms(RAW + 32 * u, TB + 32 * u))
        after[0] = silu_c
        self.stream(loads, D, after)
        self.get_tag()
        self.stamp(sb + 1)

        def epi():
            if rest:
                self.bf16r_pairs([64, 65, 66, 67], 68)
            self.publish4("v13", "s70")
        self.gemm_tail(64, U, 8, epi)
        self.stamp(sb + 3)

    def role_p1(self, sb):
        a = self.a
        RS = 8192
        self.stamp(sb)
        a(f"s_lshr_b32 s71, {sTASK}, 5")
        a(f"s_and_b32 s72, {sTASK}, 31")
        a(f"s_lshl_b32 s68, s71, 8")
        a(f"s_lshl_b32 s67, {sW}, 5")
        a(f"s_add_u32 s68, s68, s67")
        a(f"v_lshlrev_b32 v8, 4, {vLANE}")
        a(f"s_lshl_b32 s67, {sW}, 11")
        a(f"buffer_load_dwordx4 v[32:35], v8, {X_}, s67 offen")
        a(f"buffer_load_dwordx4 v[36:39], v8, {X_}, s67 offen offset:1024")
        a(f"v_lshlrev_b32 v8, 11, {vB}")
        a(f"v_lshl_add_u32 v8, {vG}, 4, v8")
        a(f"s_lshl_b32 s67, s68, 1")
        a(f"buffer_load_dwordx4 v[248:251], v8, {X_}, s67 offen")
        self.woff_u128(RS)
        a(f"s_mul_i32 s66, s68, {RS}")
        a(f"s_lshl_b32 s67, s72, 8")
        a(f"s_add_u32 s66, s66, s67")
        self.red_addr(128)
        self.out_off(128, 16384)
        a(f"s_lshl_b32 s70, s71, 17")
        a(f"s_lshl_b32 s67, s72, 9")
        a(f"s_add_u32 s70, s70, s67")
        a(f"s_add_u32 s70, s70, {WS_QP}")

        def stats():
            self.unpack_bf16(32, 40, 8)
            a("v_add_f32 v14, v40, v41")
            for e in range(2, 16):
                a(f"v_add_f32 v14, v14, v{40+e}")
            self.allred_wave(14, 15)
            a("v_mul_f32 v14, 0x3a800000, v14")
            a("v_mov_b32 v16, 0")
            for e in range(16):
                a(f"v_sub_f32 v17, v{40+e}, v14")
                a(f"v_fmac_f32 v16, v17, v17")
            self.allred_wave(16, 15)
            a("v_mul_f32 v15, 0x3a800000, v16")
            self.ln_consts(14, 15, 16)
            a(f"s_lshl_b32 s67, {sW}, 3")
            a(f"s_add_u32 s67, s67, {sLB}")
            a("v_mov_b32 v16, s67")
            a(f"ds_write_b64 v16, v[14:15] offset:{L_AUX}")
        loads, after = [], {}
        for r in range(8):
            pre = f"s_add_u32 s66, s66, {RS}" if r else None
            loads.append((pre, f"buffer_load_dwordx4 {v(RAW+4*r,4)}, v10, {WQ_}, s66 offen nt"))
        after[7] = lambda: self.perms(RAW, TB)
        after[0] = stats
        self.stream(loads, self.cfg["D_p1"], after)
        self.get_tag()
        a("s_barrier")
        a(f"v_lshl_add_u32 v16, {vB}, 3, {sLB}")
        a(f"ds_read_b64 v[14:15], v16 offset:{L_AUX}")
        self.unpack_bf16(248, 16, 4)
        a("s_waitcnt lgkmcnt(0)")
        for e in range(8):
            a(f"v_sub_f32 v{16+e}, v{16+e}, v14")
        self.bf16r_pairs(list(range(16, 24)), 24)
        for e in range(8):
            a(f"v_mul_f32 v{16+e}, v{16+e}, v15")
        self.bf16r_pairs(list(range(16, 24)), 24)
        a(f"v_lshlrev_b32 v8, 13, {vB}")
        a(f"v_lshl_add_u32 v8, {vHI}, 12, v8")
        a(f"v_lshl_add_u32 v8, {vG}, 5, v8")
        a(f"s_lshl_b32 s73, s68, 2")
        a(f"s_add_u32 s73, s73, {WS_MODP}")
        a(f"s_add_u32 s74, s73, 65536")
        self.stamp(sb + 1)
        self.poll([(f"buffer_load_dwordx4 v[32:35], v8, {WS_}, s73 offen sc1", 32, 4),
                   (f"buffer_load_dwordx4 v[36:39], v8, {WS_}, s73 offen offset:16 sc1", 36, 4),
                   (f"buffer_load_dwordx4 v[40:43], v8, {WS_}, s74 offen sc1", 40, 4),
                   (f"buffer_load_dwordx4 v[44:47], v8, {WS_}, s74 offen offset:16 sc1", 44, 4)], 24)
        self.stamp(sb + 2)
        for e in range(8):
            a(f"v_add_f32 v{32+e}, v{32+e}, v{40+e}")
        self.bf16r_pairs(list(range(32, 40)), 24)
        for e in range(8):
            a(f"v_add_f32 v{40+e}, 1.0, v{32+e}")
        self.bf16r_pairs(list(range(40, 48)), 24)
        for e in range(8):
            a(f"v_mov_b32_dpp v{40+e}, v{40+e} row_ror:8 row_mask:0xf bank_mask:0x3")
        for e in range(8):
            a(f"v_mov_b32_dpp v{32+e}, v{32+e} row_ror:8 row_mask:0xf bank_mask:0xc")
        for e in range(8):
            a(f"v_mul_f32 v{16+e}, v{16+e}, v{40+e}")
        self.bf16r_pairs(list(range(16, 24)), 24)
        for e in range(8):
            a(f"v_add_f32 v{16+e}, v{16+e}, v{32+e}")
        for p in range(4):
            a(f"v_cvt_pk_bf16_f32 v{BB+p}, v{16+2*p}, v{16+2*p+1}")
        self.gemm_tail(128, 1, 8, lambda: self.publish4("v13", "s70"))
        self.stamp(sb + 3)

    def ln_consts(self, m, var, t):
        a = self.a
        self.bf16r_pairs([m, var], t)
        a(f"v_add_f32 v{var}, 0x{EPS:x}, v{var}")
        a(f"v_cvt_pk_bf16_f32 v{t}, v{var}, v{var}")
        a(f"v_lshlrev_b32 v{var}, 16, v{t}")
        a(f"v_sqrt_f32 v{var}, v{var}")
        a(f"v_cvt_pk_bf16_f32 v{t}, v{var}, v{var}")
        a(f"v_lshlrev_b32 v{var}, 16, v{t}")
        a(f"v_rcp_f32 v{var}, v{var}")

    def role_att(self, sb):
        a = self.a
        self.stamp(sb)
        Lq = a.newlabel("L_attq")
        Lb1 = a.newlabel("L_attb1")
        Lb2 = a.newlabel("L_attb2")
        Lend = a.newlabel("L_attend")
        a(f"s_lshr_b32 s71, {sTASK}, 2")
        a(f"s_and_b32 s72, {sTASK}, 3")
        a(f"s_lshr_b32 s73, s71, 2")
        a(f"s_and_b32 s74, s71, 3")
        a(f"s_cmp_ge_u32 {sW}, 4")
        a(f"s_cbranch_scc1 {Lq}")
        a(f"s_lshl_b32 s66, s71, 20")
        a(f"s_lshl_b32 s67, s72, 16")
        a(f"s_add_u32 s66, s66, s67")
        a(f"s_lshl_b32 s67, {sW}, 14")
        a(f"s_add_u32 s66, s66, s67")
        a(f"s_add_u32 s66, s66, {3072*256}")
        a(f"s_mov_b32 s68, s66")
        a(f"v_and_b32 v8, 1, {vI}")
        a(f"v_lshrrev_b32 v9, 1, {vI}")
        a(f"v_lshl_add_u32 v10, v8, 2, {vG}")
        a(f"v_lshlrev_b32 v10, 4, v10")
        a(f"v_lshl_add_u32 v10, v9, 8, v10")
        a(f"v_lshl_add_u32 v14, {vG}, 1, v8")
        a(f"v_lshlrev_b32 v14, 8, v14")
        a(f"v_lshl_add_u32 v14, v9, 4, v14")
        loads, after = [], {}
        for t in range(8):
            for hs in range(2):
                pre = "s_add_u32 s66, s66, 2048" if (t and not hs) else None
                loads.append((pre, f"buffer_load_dwordx4 {v(64+8*t+4*hs,4)}, v10, {K_}, s66 offen offset:{128*hs} nt"))
        for r in range(8):
            for dh in range(2):
                pre = "s_add_u32 s68, s68, 2048" if (r and not dh) else None
                loads.append((pre, f"buffer_load_dwordx4 {v(128+32*dh+4*r,4)}, v14, {V_}, s68 offen offset:{128*dh} nt"))

        def vperm():
            self.perms(128, 192)
            self.perms(160, 224)
        after[31] = vperm
        self.stream(loads, self.cfg["D_att"], after)
        self.get_tag()
        self.stamp(sb + 1)
        a(f"s_branch {Lb1}")
        a.label(Lq)
        self.get_tag()
        a("v_subrev_u32 v8, 256, v0")
        a("v_lshlrev_b32 v9, 4, v8")
        a(f"s_lshl_b32 s66, s73, 14")
        a(f"s_lshl_b32 s67, s74, 12")
        a(f"s_add_u32 s66, s66, s67")
        a(f"s_add_u32 s66, s66, {WS_QP}")
        for k in range(1, 4):
            a(f"s_add_u32 s{66+k}, s66, {k*131072}")
        self.poll([(f"buffer_load_dwordx4 {v(32+4*k,4)}, v9, {WS_}, s{66+k} offen sc1", 32 + 4 * k, 4) for k in range(4)], 24)
        self.stamp(sb + 2)
        for i in range(4):
            a(f"v_add_f32 v{32+i}, v{32+i}, v{36+i}")
            a(f"v_add_f32 v{40+i}, v{40+i}, v{44+i}")
        for i in range(4):
            a(f"v_add_f32 v{32+i}, v{32+i}, v{40+i}")
        a("v_cvt_pk_bf16_f32 v32, v32, v33")
        a("v_cvt_pk_bf16_f32 v33, v34, v35")
        a(f"v_lshl_add_u32 v8, v8, 3, {sLB}")
        a(f"ds_write_b64 v8, v[32:33] offset:{L_AUX}")
        a("s_waitcnt lgkmcnt(0)")
        a.label(Lb1)
        a("s_barrier")
        a(f"s_cmp_ge_u32 {sW}, 4")
        a(f"s_cbranch_scc1 {Lb2}")
        a(f"v_lshl_add_u32 v8, {vHI}, 2, {vG}")
        a(f"v_lshlrev_b32 v8, 4, v8")
        a(f"v_lshl_add_u32 v8, {vB}, 8, v8")
        a(f"v_add_u32 v8, {sLB}, v8")
        a(f"ds_read_b128 v[24:27], v8 offset:{L_AUX}")
        a(f"ds_read_b128 v[12:15], v8 offset:{L_AUX+128}")
        a("s_waitcnt lgkmcnt(0)")
        for t in range(8):
            a(f"v_mfma_f32_16x16x32_bf16 {v(32+4*t,4)}, {v(64+8*t,4)}, v[24:27], 0")
            a(f"v_mfma_f32_16x16x32_bf16 {v(32+4*t,4)}, {v(64+8*t+4,4)}, v[12:15], {v(32+4*t,4)}")
        self.merge64(32, 16)
        Z = list(range(16, 24))
        self.bf16r_pairs(Z, 24)
        for z in Z:
            a(f"v_mul_f32 v{z}, 0x{SCALE:x}, v{z}")
        self.bf16r_pairs(Z, 24)
        for z in Z:
            a(f"v_mul_f32 v{z}, 0x{LOG2E:x}, v{z}")
        a("v_max3_f32 v12, v16, v17, v18")
        a("v_max3_f32 v12, v12, v19, v20")
        a("v_max3_f32 v12, v12, v21, v22")
        a("v_max_f32 v12, v12, v23")
        self.allred_rows([12], "v_max_f32", [13])
        for z in Z:
            a(f"v_sub_f32 v{z}, v{z}, v12")
        for z in Z:
            a(f"v_exp_f32 v{z}, v{z}")
        for p in range(4):
            a(f"v_cvt_pk_bf16_f32 v{24+p}, v{16+2*p}, v{16+2*p+1}")
        for dh in range(2):
            for jj in range(8):
                a(f"v_mfma_f32_16x16x32_bf16 {v(128+32*dh+4*jj,4)}, {v(192+32*dh+4*jj,4)}, v[24:27], 0")
        a("v_add_f32 v13, v16, v17")
        for z in Z[2:]:
            a(f"v_add_f32 v13, v13, v{z}")
        self.allred_rows([13], "v_add_f32", [14])
        a(f"s_lshl_b32 s67, {sW}, 3")
        a(f"v_add_u32 v8, s67, {vB}")
        a(f"v_lshl_add_u32 v9, v8, 3, {sLB}")
        a(f"ds_write_b64 v9, v[12:13] offset:{L_AUX+2048}")
        a(f"v_mul_u32_u24 v8, {132*4}, v8")
        a(f"v_lshl_add_u32 v9, {vG}, 1, {vHI}")
        a(f"v_lshl_add_u32 v8, v9, 5, v8")
        a(f"v_add_u32 v8, {sLB}, v8")
        self.merge64(128, 32)
        self.merge64(160, 40)
        for dh in range(2):
            for q in range(2):
                a(f"ds_write_b128 v8, {v(32+8*dh+4*q,4)} offset:{L_RED+256*dh+16*q}")
        a("s_waitcnt lgkmcnt(0)")
        a.label(Lb2)
        a("s_barrier")
        a(f"s_cmp_ge_u32 {sW}, 5")
        a(f"s_cbranch_scc1 {Lend}")
        a("v_lshrrev_b32 v8, 5, v0")
        a(f"s_cmp_eq_u32 {sW}, 4")
        a("s_cselect_b64 vcc, -1, 0")
        a(f"v_cndmask_b32 v8, v8, {vB}, vcc")
        a(f"v_lshl_add_u32 v9, v8, 3, {sLB}")
        for w in range(4):
            a(f"ds_read_b64 {v(16+2*w,2)}, v9 offset:{L_AUX+2048+64*w}")
        a(f"v_mul_u32_u24 v9, {132*4}, v8")
        a("v_and_b32 v10, 31, v0")
        a("v_lshl_add_u32 v9, v10, 4, v9")
        a(f"v_add_u32 v9, {sLB}, v9")
        for w in range(4):
            a(f"ds_read_b128 {v(32+4*w,4)}, v9 offset:{L_RED+w*8*132*4}")
        a("s_waitcnt lgkmcnt(4)")
        a("v_max3_f32 v12, v16, v18, v20")
        a("v_max_f32 v12, v12, v22")
        for w in range(4):
            a(f"v_sub_f32 v{16+2*w}, v{16+2*w}, v12")
        for w in range(4):
            a(f"v_exp_f32 v{16+2*w}, v{16+2*w}")
        a("v_mul_f32 v13, v16, v17")
        for w in range(1, 4):
            a(f"v_fmac_f32 v13, v{16+2*w}, v{17+2*w}")
        Lw4 = a.newlabel("L_attw4")
        a(f"s_cmp_eq_u32 {sW}, 4")
        a(f"s_cbranch_scc1 {Lw4}")
        a("v_rcp_f32 v14, v13")
        for w in range(4):
            a(f"v_mul_f32 v{16+2*w}, v{16+2*w}, v14")
        a("s_waitcnt lgkmcnt(0)")
        for i in range(4):
            a(f"v_mul_f32 v{64+i}, v16, v{32+i}")
        for w in range(1, 4):
            for i in range(4):
                a(f"v_fmac_f32 v{64+i}, v{16+2*w}, v{32+4*w+i}")
        a(f"s_lshl_b32 s66, s73, 2")
        a(f"s_add_u32 s66, s66, s72")
        a(f"s_lshl_b32 s66, s66, 14")
        a(f"s_lshl_b32 s67, s74, 12")
        a(f"s_add_u32 s66, s66, s67")
        a(f"s_add_u32 s66, s66, {WS_OP}")
        a("v_lshlrev_b32 v13, 4, v0")
        self.publish4("v13", "s66")
        a(f"s_branch {Lend}")
        a.label(Lw4)
        a("v_log_f32 v13, v13")
        a("s_waitcnt lgkmcnt(0)")
        a("v_add_f32 v13, v12, v13")
        a("v_and_b32 v64, 0xffffff00, v13")
        a("v_sub_f32 v65, v13, v64")
        self.tag([64, 65])
        a(f"s_lshl_b32 s66, s73, 2")
        a(f"s_add_u32 s66, s66, s72")
        a(f"s_lshl_b32 s66, s66, 2")
        a(f"s_add_u32 s66, s66, s74")
        a(f"s_lshl_b32 s66, s66, 7")
        a(f"s_add_u32 s66, s66, {WS_LSE}")
        a(f"v_lshlrev_b32 v13, 3, {vB}")
        a("s_mov_b64 exec, 0xff")
        a(f"buffer_store_dwordx2 v[64:65], v13, {WS_}, s66 offen sc1")
        a("s_mov_b64 exec, -1")
        a.label(Lend)
        a(f"s_xor_b32 {sLB}, {sLB}, {LDS_HALF}")
        self.stamp(sb + 3)

    def role_p3(self, sb):
        a = self.a
        RS = 2048
        self.stamp(sb)
        a(f"s_lshr_b32 s71, {sTASK}, 3")
        a(f"s_and_b32 s72, {sTASK}, 7")
        a(f"s_lshl_b32 s68, s71, 8")
        a(f"s_lshl_b32 s67, {sW}, 5")
        a(f"s_add_u32 s68, s68, s67")
        self.woff_u128(RS)
        a(f"s_lshl_b32 s66, s68, 11")
        a(f"s_lshl_b32 s67, s72, 8")
        a(f"s_add_u32 s66, s66, s67")
        self.red_addr(128)
        self.out_off(128, 4096)
        a(f"s_lshl_b32 s70, s71, 15")
        a(f"s_lshl_b32 s67, s72, 9")
        a(f"s_add_u32 s70, s70, s67")
        a(f"s_add_u32 s70, s70, {WS_AP}")
        self.gemm_stream(WO_, RS, 1, 32, self.cfg["D_p3"])
        self.get_tag()
        a(f"v_lshl_add_u32 v9, {vB}, 1, {vHI}")
        a(f"v_lshlrev_b32 v8, 15, v9")
        a(f"v_lshl_add_u32 v8, {vG}, 5, v8")
        a(f"v_lshlrev_b32 v9, 10, v9")
        a(f"s_lshl_b32 s73, s68, 2")
        a(f"s_add_u32 s73, s73, {WS_OP}")
        a(f"s_add_u32 s74, s73, 16384")
        a(f"s_lshr_b32 s75, s68, 7")
        a(f"s_lshr_b32 s76, s75, 3")
        a(f"s_lshl_b32 s76, s76, 7")
        a(f"s_and_b32 s75, s75, 7")
        a(f"s_lshl_b32 s75, s75, 3")
        a(f"s_add_u32 s75, s75, s76")
        a(f"s_add_u32 s75, s75, {WS_LSE}")
        self.stamp(sb + 1)
        self.poll([(f"buffer_load_dwordx2 v[48:49], v9, {WS_}, s75 offen sc1", 48, 2),
                   (f"buffer_load_dwordx2 v[50:51], v9, {WS_}, s75 offen offset:512 sc1", 50, 2),
                   (f"buffer_load_dwordx4 v[32:35], v8, {WS_}, s73 offen sc1", 32, 4),
                   (f"buffer_load_dwordx4 v[36:39], v8, {WS_}, s73 offen offset:16 sc1", 36, 4),
                   (f"buffer_load_dwordx4 v[40:43], v8, {WS_}, s74 offen sc1", 40, 4),
                   (f"buffer_load_dwordx4 v[44:47], v8, {WS_}, s74 offen offset:16 sc1", 44, 4)], 24)
        self.stamp(sb + 2)
        a("v_and_b32 v48, 0xffffff00, v48")
        a("v_and_b32 v50, 0xffffff00, v50")
        a("v_add_f32 v48, v48, v49")
        a("v_add_f32 v50, v50, v51")
        a("v_max_f32 v14, v48, v50")
        a("v_max_f32_dpp v15, v14, v14 row_ror:8 row_mask:0xf bank_mask:0xf")
        a("v_sub_f32 v48, v48, v15")
        a("v_sub_f32 v50, v50, v15")
        a("v_exp_f32 v48, v48")
        a("v_exp_f32 v50, v50")
        a("v_add_f32 v14, v48, v50")
        a("v_add_f32_dpp v15, v14, v14 row_ror:8 row_mask:0xf bank_mask:0xf")
        a("v_rcp_f32 v15, v15")
        a("v_mul_f32 v48, v48, v15")
        a("v_mul_f32 v50, v50, v15")
        for e in range(8):
            a(f"v_mul_f32 v{32+e}, v48, v{32+e}")
        for e in range(8):
            a(f"v_fmac_f32 v{32+e}, v50, v{40+e}")
        for e in range(8):
            a(f"v_add_f32_dpp v{40+e}, v{32+e}, v{32+e} row_ror:8 row_mask:0xf bank_mask:0xf")
        for p in range(4):
            a(f"v_cvt_pk_bf16_f32 v{BB+p}, v{40+2*p}, v{40+2*p+1}")
        self.gemm_tail(128, 1, 8, lambda: self.publish4("v13", "s70"))
        self.stamp(sb + 3)

    def role_red(self, final, sb):
        a = self.a
        self.stamp(sb)
        self.get_tag()
        src = WS_DP if final else WS_AP
        a(f"v_lshrrev_b32 v8, 3, {vLANE}")
        a(f"v_lshlrev_b32 v8, 15, v8")
        a(f"v_lshl_add_u32 v8, {vB}, 4, v8")
        a(f"v_lshlrev_b32 v9, 4, {vB}")
        a(f"s_lshl_b32 s68, {sTASK}, 7")
        a(f"s_lshl_b32 s67, {sW}, 12")
        a(f"s_add_u32 s69, s68, s67")
        a(f"s_add_u32 s73, s69, {src}")
        a(f"s_add_u32 s74, s73, {8*32768}")
        a(f"s_lshl_b32 s67, {sW}, 14")
        a(f"s_add_u32 s75, s68, s67")
        a(f"s_add_u32 s75, s75, {WS_MODR + (3072*4 if final else 0)}")
        a(f"s_add_u32 s76, s69, {WS_X1}")
        pre = [(f"buffer_load_dwordx4 v[40:43], v9, {WS_}, s75 offen sc1", 40, 4)]
        if final:
            pre.append((f"buffer_load_dwordx4 v[44:47], v9, {WS_}, s76 offen sc1", 44, 4))
        else:
            a(f"v_lshlrev_b32 v10, 3, {vB}")
            a(f"s_lshr_b32 s67, s69, 1")
            a(f"buffer_load_dwordx2 v[48:49], v10, {X_}, s67 offen")
        self.poll(pre, 24)
        if not final:
            self.unpack_bf16(48, 44, 2)
        for i in range(8):
            a(f"v_and_b32 v{40+i}, 0xffff0000, v{40+i}")
        self.stamp(sb + 1)
        self.poll([(f"buffer_load_dwordx4 v[32:35], v8, {WS_}, s73 offen sc1", 32, 4),
                   (f"buffer_load_dwordx4 v[36:39], v8, {WS_}, s74 offen sc1", 36, 4)], 24)
        self.stamp(sb + 2)
        for i in range(4):
            a(f"v_add_f32 v{32+i}, v{32+i}, v{36+i}")
        self.allred_rows([32, 33, 34, 35], "v_add_f32", [36, 37, 38, 39])
        self.bf16r_pairs([32, 33, 34, 35], 24)
        for i in range(4):
            a(f"v_mul_f32 v{32+i}, v{32+i}, v{40+i}")
        self.bf16r_pairs([32, 33, 34, 35], 24)
        for i in range(4):
            a(f"v_add_f32 v{64+i}, v{32+i}, v{44+i}")
        if final:
            a("v_cvt_pk_bf16_f32 v64, v64, v65")
            a("v_cvt_pk_bf16_f32 v65, v66, v67")
            a(f"v_lshlrev_b32 v10, 3, {vB}")
            a(f"s_lshr_b32 s67, s69, 1")
            a("s_mov_b64 exec, 0xff")
            a(f"buffer_store_dwordx2 v[64:65], v10, {OUT_}, s67 offen")
            a("s_mov_b64 exec, -1")
            Lnb = a.newlabel("L_nobump")
            a(f"s_or_b32 s67, {sTASK}, {sW}")
            a("s_cmp_lg_u32 s67, 0")
            a(f"s_cbranch_scc1 {Lnb}")
            a(f"s_add_u32 s67, {sEP}, 1")
            a("v_mov_b32 v66, s67")
            a("v_mov_b32 v67, 0")
            a("s_mov_b64 exec, 1")
            a(f"buffer_store_dword v66, v67, {WS_}, 0 offen")
            a("s_mov_b64 exec, -1")
            a.label(Lnb)
        else:
            self.bf16r_pairs([64, 65, 66, 67], 24)
            self.tag([64, 65, 66, 67])
            a("s_mov_b64 exec, 0xff")
            a(f"buffer_store_dwordx4 v[64:67], v9, {WS_}, s76 offen sc1")
            a("s_mov_b64 exec, -1")
        self.stamp(sb + 3)

    def role_p4(self, sb):
        a = self.a
        RS = 7168
        self.stamp(sb)
        a(f"s_lshr_b32 s72, {sTASK}, 1")
        a(f"s_and_b32 s71, {sTASK}, 1")
        a("s_cselect_b32 s60, s32, s28")
        a("s_cselect_b32 s61, s33, s29")
        a("s_mov_b32 s62, 7340032")
        a("s_mov_b32 s63, 0x20000")
        self.woff_u64(RS)
        a(f"s_mul_i32 s66, {sW}, {128*RS}")
        a(f"s_lshl_b32 s67, s72, 7")
        a(f"s_add_u32 s66, s66, s67")
        self.red_addr(64)
        self.out_off(64, 3584 * 4)
        a(f"s_mul_i32 s70, s71, {8*3584*4}")
        a(f"s_lshl_b32 s67, s72, 8")
        a(f"s_add_u32 s70, s70, s67")
        a(f"s_add_u32 s70, s70, {WS_GU}")
        self.gemm_stream(W_, RS, 2, 64, self.cfg["D_p4"])
        self.get_tag()
        a(f"v_lshlrev_b32 v9, 7, {vHI}")
        a(f"v_lshl_add_u32 v9, {vG}, 5, v9")
        a(f"v_lshl_add_u32 v8, {vB}, 14, v9")
        a(f"v_lshl_add_u32 v9, {vB}, 12, v9")
        a(f"s_lshl_b32 s67, {sW}, 9")
        a(f"s_add_u32 s73, s67, {WS_MODR+4096}")
        a(f"s_add_u32 s74, s67, {WS_MODR+8192}")
        a(f"s_add_u32 s75, s67, {WS_X1}")
        pl = []
        for m, so in enumerate(("s73", "s74")):
            for u in range(2):
                for q in range(2):
                    r = 32 + 16 * m + 8 * u + 4 * q
                    pl.append((f"buffer_load_dwordx4 {v(r,4)}, v8, {WS_}, {so} offen offset:{256*u+16*q} sc1", r, 4))
        self.poll(pl, 24)
        for e in range(16):
            a(f"v_and_b32 v{32+e}, 0xffff0000, v{32+e}")
            a(f"v_and_b32 v{48+e}, 0xffff0000, v{48+e}")
        for e in range(16):
            a(f"v_add_f32 v{48+e}, 1.0, v{48+e}")
        self.bf16r_pairs(list(range(48, 64)), 24)
        a(f"v_lshlrev_b32 v14, 6, {vB}")
        a(f"v_add_u32 v14, {sLB}, v14")
        a(f"s_lshl_b32 s67, {sW}, 3")
        a(f"v_add_u32 v15, s67, v14")
        self.stamp(sb + 1)
        X0 = 64
        pl = []
        for u in range(2):
            for q in range(2):
                r = X0 + 8 * u + 4 * q
                pl.append((f"buffer_load_dwordx4 {v(r,4)}, v9, {WS_}, s75 offen offset:{256*u+16*q} sc1", r, 4))
        self.poll(pl, 24)
        self.stamp(sb + 2)
        for e in range(16):
            a(f"v_and_b32 v{X0+e}, 0xffff0000, v{X0+e}")
        a(f"v_add_f32 v16, v{X0}, v{X0+1}")
        a(f"v_mul_f32 v17, v{X0}, v{X0}")
        for e in range(2, 16):
            a(f"v_add_f32 v16, v16, v{X0+e}")
        for e in range(1, 16):
            a(f"v_fmac_f32 v17, v{X0+e}, v{X0+e}")
        self.allred_rows([16, 17], "v_add_f32", [18, 19])
        a(f"ds_write_b64 v15, v[16:17] offset:{L_AUX}")
        a("s_waitcnt lgkmcnt(0)")
        a("s_barrier")
        for q in range(4):
            a(f"ds_read_b128 {v(80+4*q,4)}, v14 offset:{L_AUX+16*q}")
        a("s_waitcnt lgkmcnt(0)")
        a("v_add_f32 v16, v80, v82")
        a("v_add_f32 v17, v81, v83")
        for w in range(2, 8):
            a(f"v_add_f32 v16, v16, v{80+2*w}")
            a(f"v_add_f32 v17, v17, v{81+2*w}")
        a("v_mul_f32 v16, 0x3a800000, v16")
        a("v_mul_f32 v17, 0x3a800000, v17")
        a("v_fma_f32 v17, -v16, v16, v17")
        a("v_max_f32 v17, 0, v17")
        self.ln_consts(16, 17, 18)
        XS = list(range(X0, X0 + 16))
        for x in XS:
            a(f"v_sub_f32 v{x}, v{x}, v16")
        self.bf16r_pairs(XS, 24)
        for x in XS:
            a(f"v_mul_f32 v{x}, v{x}, v17")
        self.bf16r_pairs(XS, 24)
        for e in range(16):
            a(f"v_mul_f32 v{X0+e}, v{X0+e}, v{48+e}")
        self.bf16r_pairs(XS, 24)
        for e in range(16):
            a(f"v_add_f32 v{X0+e}, v{X0+e}, v{32+e}")
        for p in range(8):
            a(f"v_cvt_pk_bf16_f32 v{BB+p}, v{X0+2*p}, v{X0+2*p+1}")

        def epi():
            self.bf16r_pairs([64, 65, 66, 67], 68)
            Lu = a.newlabel("L_p4up")
            a("s_cmp_lg_u32 s71, 0")
            a(f"s_cbranch_scc1 {Lu}")
            for i in range(4):
                a(f"v_mul_f32 v{68+i}, 0x{LOG2E ^ 0x80000000:x}, v{64+i}")
            for i in range(4):
                a(f"v_exp_f32 v{68+i}, v{68+i}")
            for i in range(4):
                a(f"v_add_f32 v{68+i}, 1.0, v{68+i}")
            for i in range(4):
                a(f"v_rcp_f32 v{68+i}, v{68+i}")
            for i in range(4):
                a(f"v_mul_f32 v{64+i}, v{64+i}, v{68+i}")
            self.bf16r_pairs([64, 65, 66, 67], 68)
            a.label(Lu)
            self.publish4("v13", "s70")
        self.gemm_tail(64, 2, 8, epi)
        self.stamp(sb + 3)

    def role_p5(self, sb):
        a = self.a
        RS = 2048
        self.stamp(sb)
        a(f"s_lshr_b32 s71, {sTASK}, 3")
        a(f"s_and_b32 s72, {sTASK}, 7")
        a(f"s_mul_i32 s68, s71, 224")
        a(f"s_lshl_b32 s67, {sW}, 5")
        a(f"s_add_u32 s68, s68, s67")
        self.woff_u128(RS)
        a(f"s_lshl_b32 s66, s68, 11")
        a(f"s_lshl_b32 s67, s72, 8")
        a(f"s_add_u32 s66, s66, s67")
        self.red_addr(128)
        self.out_off(128, 4096)
        a(f"s_lshl_b32 s70, s71, 15")
        a(f"s_lshl_b32 s67, s72, 9")
        a(f"s_add_u32 s70, s70, s67")
        a(f"s_add_u32 s70, s70, {WS_DP}")
        self.get_tag()
        Lsk = a.newlabel("L_p5skip")
        a(f"s_cmp_ge_u32 {sW}, 7")
        a(f"s_cbranch_scc1 {Lsk}")
        self.gemm_stream(WD_, RS, 1, 32, self.cfg["D_p5"])
        a(f"v_lshl_add_u32 v8, {vHI}, 3, {vB}")
        a(f"s_mov_b32 s67, {3584*4}")
        a(f"v_mul_lo_u32 v8, v8, s67")
        a(f"v_lshl_add_u32 v8, {vG}, 5, v8")
        a(f"s_lshl_b32 s73, s68, 2")
        a(f"s_add_u32 s73, s73, {WS_GU}")
        self.stamp(sb + 1)
        self.poll([(f"buffer_load_dwordx4 v[32:35], v8, {WS_}, s73 offen sc1", 32, 4),
                   (f"buffer_load_dwordx4 v[36:39], v8, {WS_}, s73 offen offset:16 sc1", 36, 4)], 24)
        self.stamp(sb + 2)
        for e in range(8):
            a(f"v_and_b32 v{32+e}, 0xffff0000, v{32+e}")
        for e in range(8):
            a(f"v_mul_f32_dpp v{40+e}, v{32+e}, v{32+e} row_ror:8 row_mask:0xf bank_mask:0xf")
        for p in range(4):
            a(f"v_cvt_pk_bf16_f32 v{BB+p}, v{40+2*p}, v{40+2*p+1}")
        a.label(Lsk)
        self.gemm_tail(128, 1, 7, lambda: self.publish4("v13", "s70"))
        self.stamp(sb + 3)

    def build(self):
        a = self.a
        cfg = self.cfg
        hdr = open(os.path.join(os.path.dirname(os.path.abspath(__file__)), "..", "cdna_kernels", NAME + ".s.ref")).read()
        top = []
        for line in hdr.split("\n"):
            if line.startswith("; @launch"):
                break
            top.append(line)
        for t in top:
            a.raw(t)
        a.raw(f"; @launch grid=(256,1,1) block=(512,1,1) lds={2*LDS_HALF}")
        a.raw('.amdgcn_target "amdgcn-amd-amdhsa--gfx950"')
        a.raw(".text")
        a.raw(f".globl {NAME}_kernel")
        a.raw(".p2align 8")
        a.raw(f".type {NAME}_kernel,@function")
        a.raw(f"{NAME}_kernel:")
        a("s_cmp_ge_u32 s2, 256")
        a("s_cbranch_scc1 L_exit")
        for (s0, ko, nb) in SRD_INFO:
            a(f"s_load_dwordx2 s[{s0}:{s0+1}], s[0:1], {ko}")
        for (s0, ko, nb) in SRD_INFO:
            a(f"s_mov_b32 s{s0+2}, {nb}")
            a(f"s_mov_b32 s{s0+3}, 0x20000")
        a(f"v_and_b32 {vLANE}, 63, v0")
        a("v_lshrrev_b32 v7, 6, v0")
        a(f"v_lshrrev_b32 {vG}, 4, {vLANE}")
        a(f"v_readfirstlane_b32 {sW}, v7")
        a(f"v_and_b32 {vI}, 15, v0")
        a(f"v_and_b32 {vB}, 7, v0")
        a(f"v_bfe_u32 {vHI}, v0, 3, 1")
        a(f"v_mov_b32 {vFF}, 0xff")
        a(f"v_mov_b32 {vSTAMP}, 0")
        a(f"s_mov_b32 {sLB}, 0")
        a(f"s_mov_b32 {sSEL0}, 0x05040100")
        a(f"s_mov_b32 {sSEL1}, 0x07060302")
        a("s_mov_b32 s86, 0xff00ff00")
        a("s_mov_b32 s87, 0xff00ff00")
        a("s_waitcnt lgkmcnt(0)")
        a(f"s_load_dword {sEP}, s[52:53], 0")
        roles = {
            "P0A": lambda sb: self.role_mod(False, sb), "RM": lambda sb: self.role_mod(True, sb),
            "P1": self.role_p1, "ATT": self.role_att, "P3": self.role_p3,
            "R3": lambda sb: self.role_red(False, sb), "P4": self.role_p4, "P5": self.role_p5,
            "R5": lambda sb: self.role_red(True, sb)}
        for idx, (rname, ranges) in enumerate(cfg["sched"]):
            Lrun = a.newlabel("L_run" + rname)
            Lnext = a.newlabel("L_next" + rname)
            a(f"; ======== {rname}")
            for (lo, hi, base) in ranges:
                a(f"s_sub_u32 s81, s2, {lo}")
                a(f"s_add_u32 {sTASK}, s81, {base}")
                a(f"s_cmp_lt_u32 s81, {hi-lo}")
                a(f"s_cbranch_scc1 {Lrun}")
            a(f"s_branch {Lnext}")
            a.label(Lrun)
            roles[rname](4 * idx)
            a.label(Lnext)
        if self.stamps:
            a(f"s_lshl_b32 s66, s2, 3")
            a(f"s_add_u32 s66, s66, {sW}")
            a(f"s_lshl_b32 s66, s66, 8")
            a(f"s_add_u32 s66, s66, {WS_STAMP}")
            a(f"v_lshlrev_b32 v8, 2, {vLANE}")
            a(f"buffer_store_dword {vSTAMP}, v8, {WS_}, s66 offen")
        a.label("L_exit")
        a("s_endpgm")
        a.raw('.section .rodata,"a"')
        a.raw(".p2align 6")
        a.raw(f".amdhsa_kernel {NAME}_kernel")
        a.raw("  .amdhsa_next_free_vgpr 256")
        a.raw("  .amdhsa_next_free_sgpr 102")
        a.raw("  .amdhsa_accum_offset 256")
        a.raw("  .amdhsa_group_segment_fixed_size 0")
        a.raw("  .amdhsa_kernarg_size 112")
        a.raw("  .amdhsa_user_sgpr_count 2")
        a.raw("  .amdhsa_user_sgpr_kernarg_segment_ptr 1")
        a.raw("  .amdhsa_system_sgpr_workgroup_id_x 1")
        a.raw(".end_amdhsa_kernel")
        return a.text()


DEFAULT = dict(
    D_p0=8, D_rm=4, D_p1=4, D_att=8, D_p3=4, D_p4=4, D_p5=4,
    sched=[
        ("P0A", [(0, 64, 0)]),
        ("P1", [(128, 256, 0)]),
        ("ATT", [(0, 128, 0)]),
        ("RM", [(192, 256, 0)]),
        ("P3", [(128, 256, 0)]),
        ("R3", [(128, 160, 0)]),
        ("P4", [(64, 176, 0)]),
        ("P5", [(0, 64, 0), (192, 256, 64)]),
        ("R5", [(160, 192, 0)]),
    ])

if __name__ == "__main__":
    cfg = dict(DEFAULT)
    out = sys.argv[1] if len(sys.argv) > 1 else os.path.join(os.path.dirname(os.path.abspath(__file__)), "..", "cdna_kernels", NAME + ".s")
    if len(sys.argv) > 2 and sys.argv[2] == "stamps":
        cfg["stamps"] = True
    open(out, "w").write(Gen(cfg).build())
    print("wrote", out)
```

```python
import re

TRANS = ("v_exp_f32", "v_log_f32", "v_rcp_f32", "v_rsq_f32", "v_sqrt_f32", "v_sin_f32", "v_cos_f32")
_reg_re = re.compile(r"^(-?)(abs\()?([vsa])(\d+|\[(\d+):(\d+)\])\)?$")


def regs_of(tok):
    tok = tok.strip()
    if tok in ("vcc",):
        return {("s", 106), ("s", 107)}
    if tok == "vcc_lo":
        return {("s", 106)}
    if tok == "vcc_hi":
        return {("s", 107)}
    if tok == "exec":
        return {("s", 126), ("s", 127)}
    if tok == "exec_lo":
        return {("s", 126)}
    if tok == "exec_hi":
        return {("s", 127)}
    if tok == "m0":
        return {("s", 124)}
    m = _reg_re.match(tok)
    if not m:
        return set()
    k = m.group(3)
    if m.group(5) is not None:
        return {(k, i) for i in range(int(m.group(5)), int(m.group(6)) + 1)}
    return {(k, int(m.group(4)))}


class Ins:
    pass


def parse(text):
    t = text.split(";")[0].strip()
    sp = t.split(None, 1)
    op = sp[0]
    rest = sp[1] if len(sp) > 1 else ""
    ops, cur, depth = [], "", 0
    for ch in rest:
        if ch == "[":
            depth += 1
        if ch == "]":
            depth -= 1
        if ch == "," and depth == 0:
            ops.append(cur.strip())
            cur = ""
        else:
            cur += ch
    if cur.strip():
        ops.append(cur.strip())
    mods = ""
    if ops:
        parts = ops[-1].split(None, 1)
        ops[-1] = parts[0]
        if len(parts) > 1:
            mods = parts[1]
    I = Ins()
    I.text = text
    I.op = op
    I.dpp = op.endswith("_dpp")
    I.srcc = set()
    I.dtuple = None
    I.stdata = set()
    I.states = 1
    R = [regs_of(o) for o in ops]
    allr = set().union(*R) if R else set()
    if op == "s_nop":
        I.kind = "nop"
        I.states = int(ops[0], 0) + 1
        I.wr, I.rd = set(), set()
    elif op.startswith("v_mfma"):
        I.kind = "mfma"
        I.wr = R[0]
        I.rd = R[1] | R[2] | R[3]
        I.srcc = R[3]
        I.dtuple = ops[0]
        I.dpp = False
    elif op.startswith("v_permlane"):
        I.kind = "perml"
        I.wr = R[0] | R[1]
        I.rd = R[0] | R[1]
    elif op.startswith("v_cmp"):
        I.kind = "valu"
        I.wr = R[0]
        I.rd = set().union(*R[1:])
    elif op.startswith("v_readfirstlane") or op.startswith("v_readlane"):
        I.kind = "rdlane"
        I.wr = R[0]
        I.rd = set().union(*R[1:])
    elif op.startswith("v_"):
        I.kind = "trans" if op.replace("_e32", "").replace("_e64", "") in TRANS else "valu"
        I.wr = R[0]
        I.rd = set().union(*R[1:]) if len(R) > 1 else set()
        if op.startswith(("v_fmac", "v_pk_fmac")) or I.dpp:
            I.rd = I.rd | R[0]
        if op.startswith("v_cndmask") and len(ops) == 3:
            I.rd = I.rd | regs_of("vcc")
        if "_co_" in op:
            I.wr = R[0] | R[1]
            I.rd = set().union(*R[2:])
    elif op.startswith(("buffer_store", "global_store")):
        I.kind = "vmem"
        I.wr = set()
        I.rd = allr
        if "x4" in op or "x3" in op:
            I.stdata = R[0] if op.startswith("buffer") else R[1]
    elif op.startswith(("buffer_load", "global_load")):
        I.kind = "vmem"
        I.wr = R[0]
        I.rd = set().union(*R[1:])
        if mods.split()[-1:] == ["lds"]:
            I.wr = set()
            I.rd = allr
    elif op.startswith("buffer_atomic"):
        I.kind = "vmem"
        I.wr = R[0] if "sc0" in mods else set()
        I.rd = allr
    elif op.startswith("ds_read") or op.startswith("ds_bpermute") or op.startswith("ds_swizzle"):
        I.kind = "ds"
        I.wr = R[0]
        I.rd = set().union(*R[1:])
    elif op.startswith("ds_"):
        I.kind = "ds"
        I.wr = set()
        I.rd = allr
    elif op.startswith("s_"):
        I.kind = "salu"
        if op.startswith(("s_cmp", "s_cbranch", "s_branch", "s_waitcnt", "s_barrier", "s_endpgm", "s_setprio", "s_setpc", "s_bitcmp")):
            I.wr = set()
            I.rd = allr
        else:
            I.wr = R[0] if R else set()
            I.rd = set().union(*R[1:]) if len(R) > 1 else set()
            if "saveexec" in op:
                I.wr = I.wr | regs_of("exec")
    else:
        raise ValueError("unknown op " + text)
    I.srcc_text = ops[3] if I.kind == "mfma" else None
    return I


def is_valu(I):
    return I.kind in ("valu", "trans", "perml", "rdlane")


def need(P, C):
    n = 0
    vw = {r for r in P.wr if r[0] == "v"}
    sw = {r for r in P.wr if r[0] == "s"}
    if is_valu(P):
        if C.kind == "mfma" and vw & C.rd:
            n = max(n, 2)
        if C.dpp and vw & C.rd:
            n = max(n, 2)
        if C.kind == "perml" and vw & C.rd:
            n = max(n, 2)
        if C.kind == "rdlane" and vw & C.rd:
            n = max(n, 1)
        if P.kind == "trans" and is_valu(C) and vw & C.rd:
            n = max(n, 1)
        if sw:
            if is_valu(C) and sw & C.rd:
                n = max(n, 4 if C.kind == "rdlane" else 2)
            if C.kind == "vmem" and sw & C.rd:
                n = max(n, 5)
            if C.kind == "salu" and sw & C.rd:
                n = max(n, 1)
    if P.kind == "mfma":
        if C.kind == "mfma":
            ab = C.rd - C.srcc
            if vw & ab:
                n = max(n, 8)
            if vw & C.srcc and C.srcc_text != P.dtuple:
                n = max(n, 8)
            if vw & C.wr and C.dtuple != P.dtuple:
                n = max(n, 8)
        else:
            if vw & (C.rd | C.wr):
                n = max(n, 8)
            if is_valu(C) and P.srcc & C.wr:
                n = max(n, 3)
    if P.stdata and (C.wr & P.stdata):
        n = max(n, 2)
    if P.kind == "salu" and ("s", 124) in P.wr and C.kind in ("vmem", "ds"):
        n = max(n, 1)
    return n


class Asm:
    def __init__(self):
        self.out = []
        self.hist = []
        self.nlab = 0

    def raw(self, s):
        self.out.append(s)

    def __call__(self, text):
        for t in text.split("\n"):
            t = t.strip()
            if not t:
                continue
            if t.startswith(";"):
                self.out.append("    " + t)
                continue
            self._emit(t)

    def _emit(self, t):
        I = parse(t)
        dist = 0
        pad = 0
        for P in reversed(self.hist):
            if dist >= 9:
                break
            r = need(P, I)
            if r > dist:
                pad = max(pad, r - dist)
            dist += P.states
        if pad:
            N = parse(f"s_nop {pad-1}")
            self.hist.append(N)
            self.out.append(f"    s_nop {pad-1}")
        self.hist.append(I)
        if len(self.hist) > 12:
            self.hist = self.hist[-12:]
        self.out.append("    " + t)

    def label(self, name):
        self.out.append(name + ":")

    def newlabel(self, base="L"):
        self.nlab += 1
        return f"{base}_{self.nlab}"

    def text(self):
        return "\n".join(self.out) + "\n"
```

```python
import sys, os, struct
sys.path.insert(0, os.path.dirname(os.path.abspath(__file__)))
from asmlib import Asm

NAME = "adaLN_cond__sliding_block_cached__swiglu_ffn__decode"

WS_MODP = 4096
WS_MODR = WS_MODP + 2 * 8 * 2048 * 4
WS_QP = WS_MODR + 8 * 4096 * 4
WS_OP = WS_QP + 2 * 8 * 4096 * 4
WS_LSE = WS_OP + 8 * 4 * 32 * 128 * 4
WS_AP = WS_LSE + 128 * 128
WS_X1 = WS_AP + 8 * 8 * 1024 * 4
WS_GU = WS_X1 + 8 * 1024 * 4
WS_DP = WS_GU + 2 * 8 * 3584 * 4
WS_STAMP = WS_DP + 8 * 8 * 1024 * 4
WS_END = WS_STAMP + 256 * 8 * 64 * 4

X_, K_, V_, WQ_, WO_, WG_, WU_, WD_, C_, WM_, OUT_, WS_, DBG_, W_ = [f"s[{8+4*i}:{11+4*i}]" for i in range(14)]
SRD_INFO = [
    (8, 0, 16384), (12, 8, 33554432), (16, 16, 33554432), (20, 24, 8388608), (24, 32, 8388608),
    (28, 48, 7340032), (32, 56, 7340032), (36, 64, 7340032), (40, 72, 16384), (44, 80, 12582912),
    (48, 88, 16384), (52, 104, WS_END), (56, 96, 256)]

sW, sT, sLB, sSEL0, sSEL1 = "s3", "s4", "s5", "s6", "s7"
sEP, sTASK = "s64", "s65"
sPOLL = "s80"
sMHI = "s[86:87]"
LDS_HALF = 40960
L_RED = 0
L_AUX = 34816

RAW, TB, ACC, BB, RES = 64, 128, 192, 224, 232
vLANE, vG, vI, vB, vHI, vFF = "v1", "v2", "v3", "v4", "v5", "v6"
vSTAMP = "v31"
LOG2E = 0x3FB8AA3B
SCALE = struct.unpack("<I", struct.pack("<f", 128 ** -0.5))[0]
EPS = struct.unpack("<I", struct.pack("<f", 1e-5))[0]


def v(n, cnt=1):
    return f"v{n}" if cnt == 1 else f"v[{n}:{n+cnt-1}]"


class Gen:
    def __init__(self, cfg):
        self.cfg = cfg
        self.a = Asm()
        self.stamps = cfg.get("stamps", False)
        self.nstamp = 0
        self.poll_limit = cfg.get("poll_limit", 20000)

    def stamp(self, slot):
        if not self.stamps:
            return
        a = self.a
        a("s_memrealtime s[90:91]")
        a("s_waitcnt lgkmcnt(0)")
        a(f"v_writelane_b32 {vSTAMP}, s90, {slot}")

    def bf16r_pairs(self, regs, tmp):
        a = self.a
        for i in range(0, len(regs), 2):
            a(f"v_cvt_pk_bf16_f32 v{tmp}, v{regs[i]}, v{regs[i+1]}")
            a(f"v_lshlrev_b32 v{regs[i]}, 16, v{tmp}")
            a(f"v_and_b32 v{regs[i+1]}, 0xffff0000, v{tmp}")

    def unpack_bf16(self, src, dst, n):
        a = self.a
        for i in range(n):
            a(f"v_lshlrev_b32 v{dst+2*i}, 16, v{src+i}")
            a(f"v_and_b32 v{dst+2*i+1}, 0xffff0000, v{src+i}")

    def allred_rows(self, regs, op, tmp):
        a = self.a
        for r, t in zip(regs, tmp):
            a(f"{op}_dpp v{t}, v{r}, v{r} row_ror:8 row_mask:0xf bank_mask:0xf")
        for r, t in zip(regs, tmp):
            a(f"v_mov_b32 v{r}, v{t}")
        for r, t in zip(regs, tmp):
            a(f"v_permlane16_swap_b32 v{r}, v{t}")
        for r, t in zip(regs, tmp):
            a(f"{op} v{t}, v{r}, v{t}")
        for r, t in zip(regs, tmp):
            a(f"v_mov_b32 v{r}, v{t}")
        for r, t in zip(regs, tmp):
            a(f"v_permlane32_swap_b32 v{r}, v{t}")
        for r, t in zip(regs, tmp):
            a(f"{op} v{r}, v{r}, v{t}")

    def allred_wave(self, r, t, op="v_add_f32"):
        a = self.a
        a(f"{op}_dpp v{t}, v{r}, v{r} quad_perm:[1,0,3,2] row_mask:0xf bank_mask:0xf")
        a(f"{op}_dpp v{r}, v{t}, v{t} quad_perm:[2,3,0,1] row_mask:0xf bank_mask:0xf")
        a(f"{op}_dpp v{t}, v{r}, v{r} row_half_mirror row_mask:0xf bank_mask:0xf")
        a(f"v_mov_b32 v{r}, v{t}")
        self.allred_rows([r], op, [t])

    def poll(self, loads, acc, gate=None):
        a = self.a
        if gate is not None and self.cfg.get("gate", True):
            mask, idxs = gate
            gl = []
            for i in idxs:
                t, r, cnt = loads[i]
                parts = t.split(",", 1)
                gl.append((f"buffer_load_dword v{r},{parts[1]}", r, 1))
            a(f"s_mov_b32 exec_lo, 0x{mask & 0xffffffff:x}")
            a(f"s_mov_b32 exec_hi, 0x{mask >> 32:x}")
            self.poll(gl, acc)
            a("s_mov_b64 exec, -1")
        L = a.newlabel("L_poll")
        D = a.newlabel("L_pdone")
        a(f"s_mov_b32 {sPOLL}, {self.poll_limit}")
        a.label(L)
        for t, _, _ in loads:
            a(t)
        first = True
        for n, (t, r, cnt) in enumerate(loads):
            a(f"s_waitcnt vmcnt({len(loads)-1-n})")
            for i in range(cnt):
                if first:
                    a(f"v_xor_b32 v{acc}, {sT}, v{r+i}")
                    first = False
                else:
                    a(f"v_bitop3_b32 v{acc}, v{r+i}, v{acc}, {sT} bitop3:0xde")
        a(f"v_and_b32 v{acc}, {vFF}, v{acc}")
        a(f"v_cmp_ne_u32 vcc, 0, v{acc}")
        a(f"s_sub_u32 {sPOLL}, {sPOLL}, 1")
        a(f"s_cbranch_vccz {D}")
        a(f"s_cmp_lg_u32 {sPOLL}, 0")
        a(f"s_cbranch_scc1 {L}")
        a.label(D)

    def tag(self, regs):
        for r in regs:
            self.a(f"v_bfi_b32 v{r}, {vFF}, {sT}, v{r}")

    def perms(self, raw, tb):
        a = self.a
        for jj in range(8):
            for p in range(4):
                a(f"v_perm_b32 v{tb+4*jj+p}, v{raw+4*(2*p+1)+(jj>>1)}, v{raw+4*(2*p)+(jj>>1)}, {sSEL1 if jj & 1 else sSEL0}")

    def stream(self, loads, D, after):
        a = self.a
        n = len(loads)
        pend = sorted(after.keys())
        done = -1

        def run_ready():
            while pend and pend[0] <= done:
                after[pend.pop(0)]()
        for i, (pre, ld) in enumerate(loads):
            if i >= D:
                a(f"s_waitcnt vmcnt({D-1})")
                done = i - D
            if pre:
                a(pre)
            a(ld)
            run_ready()
        while pend:
            k = pend[0]
            a(f"s_waitcnt vmcnt({n-1-k})")
            done = k
            run_ready()

    def gemm_stream(self, srd, RS, U, urows, D, extra=None):
        loads, after = [], {}
        for u in range(U):
            for r in range(8):
                pre = None
                if (u, r) != (0, 0):
                    step = RS if r else (urows - 7) * RS
                    pre = f"s_add_u32 s66, s66, {step}"
                d = RAW + 32 * u + 4 * r
                loads.append((pre, f"buffer_load_dwordx4 {v(d,4)}, v10, {srd}, s66 offen nt"))
            after[8 * u + 7] = (lambda u=u: self.perms(RAW + 32 * u, TB + 32 * u))
        if extra:
            after.update(extra)
        self.stream(loads, D, after)

    def woff_u64(self, RS):
        a = self.a
        a(f"v_and_b32 v8, 1, {vI}")
        a(f"v_lshlrev_b32 v8, 2, v8")
        a(f"v_add_u32 v8, v8, {vG}")
        a(f"s_mov_b32 s67, {8*RS}")
        a(f"v_mul_lo_u32 v10, v8, s67")
        a(f"v_lshrrev_b32 v8, 1, {vI}")
        a(f"v_lshl_add_u32 v10, v8, 4, v10")

    def woff_u128(self, RS):
        a = self.a
        a(f"s_mov_b32 s67, {8*RS}")
        a(f"v_mul_lo_u32 v10, {vG}, s67")
        a(f"v_lshl_add_u32 v10, {vI}, 4, v10")

    def mfma_units(self, U):
        a = self.a
        for jj in range(8):
            for u in range(U):
                c = "0" if u == 0 else v(ACC + 4 * jj, 4)
                a(f"v_mfma_f32_16x16x32_bf16 {v(ACC+4*jj,4)}, {v(TB+32*u+4*jj,4)}, {v(BB+4*u,4)}, {c}")

    def merge64(self, acc, res):
        a = self.a
        for jj in range(8):
            A = acc + 4 * jj
            a(f"v_add_f32_dpp v{res+jj}, v{A+1}, v{A} row_ror:8 row_mask:0xf bank_mask:0x3")
        for jj in range(8):
            A = acc + 4 * jj
            a(f"v_add_f32_dpp v{res+jj}, v{A+2}, v{A+3} row_ror:8 row_mask:0xf bank_mask:0xc")

    def red_addr(self, NC):
        a = self.a
        st = NC + 4
        a(f"s_lshl_b32 s67, {sW}, 3")
        a(f"v_add_u32 v8, s67, {vB}")
        a(f"v_mul_u32_u24 v8, {st*4}, v8")
        a(f"v_lshl_add_u32 v9, {vG}, 1, {vHI}")
        a(f"v_lshl_add_u32 v11, v9, {5 if NC == 64 else 6}, v8")
        a(f"v_add_u32 v11, {sLB}, v11")
        sh = 4 if NC == 64 else 5
        a(f"v_lshrrev_b32 v8, {sh}, v0")
        a(f"v_mul_u32_u24 v8, {st*4}, v8")
        a(f"v_and_b32 v9, {(1<<sh)-1}, v0")
        a(f"v_lshl_add_u32 v12, v9, 4, v8")
        a(f"v_add_u32 v12, {sLB}, v12")

    def gemm_tail(self, NC, U, nw, epilogue, skip_wave_ge=None):
        a = self.a
        st = NC + 4
        Lskip = a.newlabel("L_nomm")
        if nw < 8:
            a(f"s_cmp_ge_u32 {sW}, {nw}")
            a(f"s_cbranch_scc1 {Lskip}")
        self.mfma_units(U)
        if NC == 64:
            self.merge64(ACC, RES)
            nq = 2
        else:
            for rp in range(2):
                for jj in range(8):
                    A = ACC + 4 * jj
                    a(f"v_cndmask_b32 v{RES+8*rp+jj}, v{A+rp}, v{A+rp+2}, {sMHI}")
            nq = 4
        for q in range(nq):
            a(f"ds_write_b128 v11, {v(RES+4*q,4)} offset:{L_RED+16*q}")
        a("s_waitcnt lgkmcnt(0)")
        a.label(Lskip)
        a("s_barrier")
        Lend = a.newlabel("L_tailend")
        a(f"s_cmp_ge_u32 {sW}, {2*NC//64}")
        a(f"s_cbranch_scc1 {Lend}")
        for w in range(nw):
            a(f"ds_read_b128 {v(64+4*w,4)}, v12 offset:{L_RED+w*8*st*4}")
        for w in range(1, nw):
            a(f"s_waitcnt lgkmcnt({nw-1-w})")
            for i in range(4):
                a(f"v_add_f32 v{64+i}, v{64+i}, v{64+4*w+i}")
        epilogue()
        a.label(Lend)
        a(f"s_xor_b32 {sLB}, {sLB}, {LDS_HALF}")

    def publish4(self, voff, soff):
        self.tag([64, 65, 66, 67])
        self.a(f"buffer_store_dwordx4 v[64:67], {voff}, {WS_}, {soff} offen sc1")

    def out_off(self, NC, rowbytes):
        a = self.a
        sh = 4 if NC == 64 else 5
        a(f"v_lshrrev_b32 v8, {sh}, v0")
        a(f"s_mov_b32 s67, {rowbytes}")
        a(f"v_mul_lo_u32 v13, v8, s67")
        a(f"v_and_b32 v9, {(1<<sh)-1}, v0")
        a(f"v_lshl_add_u32 v13, v9, 4, v13")

    def get_tag(self):
        a = self.a
        a("s_waitcnt lgkmcnt(0)")
        a(f"s_add_u32 {sT}, {sEP}, 1")
        a(f"s_and_b32 {sT}, {sT}, 0xff")

    def role_mod(self, rest, sb):
        a = self.a
        RS = 12288
        U = 2 if rest else 1
        D = self.cfg["D_rm" if rest else "D_p0"]
        self.stamp(sb)
        if rest:
            a(f"s_lshl_b32 s68, {sW}, 7")
            a(f"s_lshl_b32 s69, {sTASK}, 7")
            a(f"s_add_u32 s69, s69, 4096")
            a(f"s_lshl_b32 s70, {sTASK}, 8")
            a(f"s_add_u32 s70, s70, {WS_MODR}")
        else:
            a(f"s_lshr_b32 s71, {sTASK}, 5")
            a(f"s_and_b32 s72, {sTASK}, 31")
            a(f"s_lshl_b32 s68, s71, 9")
            a(f"s_lshl_b32 s67, {sW}, 6")
            a(f"s_add_u32 s68, s68, s67")
            a(f"s_lshl_b32 s69, s72, 7")
            a(f"s_lshl_b32 s70, s72, 8")
            a(f"s_lshl_b32 s71, s71, 16")
            a(f"s_add_u32 s70, s70, s71")
            a(f"s_add_u32 s70, s70, {WS_MODP}")
        a(f"v_lshlrev_b32 v8, 11, {vB}")
        a(f"v_lshl_add_u32 v8, {vHI}, 6, v8")
        a(f"v_lshl_add_u32 v8, {vG}, 4, v8")
        a(f"s_lshl_b32 s67, s68, 1")
        for u in range(U):
            a(f"buffer_load_dwordx4 {v(32+4*u,4)}, v8, {C_}, s67 offen offset:{128*u}")
        self.woff_u64(RS)
        a(f"s_mul_i32 s66, s68, {RS}")
        a(f"s_add_u32 s66, s66, s69")
        self.red_addr(64)
        self.out_off(64, 16384 if rest else 8192)

        def silu_c():
            for u in range(U):
                self.unpack_bf16(32 + 4 * u, 40, 4)
                for e in range(8):
                    a(f"v_mul_f32 v{48+e}, 0x{LOG2E ^ 0x80000000:x}, v{40+e}")
                for e in range(8):
                    a(f"v_exp_f32 v{48+e}, v{48+e}")
                for e in range(8):
                    a(f"v_add_f32 v{48+e}, 1.0, v{48+e}")
                for e in range(8):
                    a(f"v_rcp_f32 v{48+e}, v{48+e}")
                for e in range(8):
                    a(f"v_mul_f32 v{40+e}, v{40+e}, v{48+e}")
                for p in range(4):
                    a(f"v_cvt_pk_bf16_f32 v{BB+4*u+p}, v{40+2*p}, v{40+2*p+1}")
        loads, after = [], {}
        for u in range(U):
            for r in range(8):
                pre = None
                if (u, r) != (0, 0):
                    step = RS if r else (64 - 7) * RS
                    pre = f"s_add_u32 s66, s66, {step}"
                d = RAW + 32 * u + 4 * r
                loads.append((pre, f"buffer_load_dwordx4 {v(d,4)}, v10, {WM_}, s66 offen nt"))
            after[8 * u + 7] = (lambda u=u: self.perms(RAW + 32 * u, TB + 32 * u))
        after[0] = silu_c
        self.stream(loads, D, after)
        self.get_tag()
        self.stamp(sb + 1)

        def epi():
            if rest:
                self.bf16r_pairs([64, 65, 66, 67], 68)
            self.publish4("v13", "s70")
        self.gemm_tail(64, U, 8, epi)
        self.stamp(sb + 3)

    def role_p1(self, sb):
        a = self.a
        RS = 8192
        self.stamp(sb)
        a(f"s_lshr_b32 s71, {sTASK}, 5")
        a(f"s_and_b32 s72, {sTASK}, 31")
        a(f"s_lshl_b32 s68, s71, 9")
        a(f"s_lshl_b32 s67, {sW}, 6")
        a(f"s_add_u32 s68, s68, s67")
        a(f"v_lshlrev_b32 v8, 4, {vLANE}")
        a(f"s_lshl_b32 s67, {sW}, 11")
        a(f"buffer_load_dwordx4 v[32:35], v8, {X_}, s67 offen")
        a(f"buffer_load_dwordx4 v[36:39], v8, {X_}, s67 offen offset:1024")
        a(f"v_lshlrev_b32 v8, 11, {vB}")
        a(f"v_lshl_add_u32 v8, {vG}, 4, v8")
        a(f"v_lshl_add_u32 v8, {vHI}, 6, v8")
        a(f"s_lshl_b32 s67, s68, 1")
        a(f"buffer_load_dwordx4 v[248:251], v8, {X_}, s67 offen")
        self.woff_u128(RS)
        a(f"s_mul_i32 s66, s68, {RS}")
        a(f"s_lshl_b32 s67, s72, 8")
        a(f"s_add_u32 s66, s66, s67")
        self.red_addr(128)
        self.out_off(128, 16384)
        a(f"s_lshl_b32 s70, s71, 17")
        a(f"s_lshl_b32 s67, s72, 9")
        a(f"s_add_u32 s70, s70, s67")
        a(f"s_add_u32 s70, s70, {WS_QP}")

        def stats():
            self.unpack_bf16(32, 40, 8)
            a("v_add_f32 v14, v40, v41")
            for e in range(2, 16):
                a(f"v_add_f32 v14, v14, v{40+e}")
            self.allred_wave(14, 15)
            a("v_mul_f32 v14, 0x3a800000, v14")
            a("v_mov_b32 v16, 0")
            for e in range(16):
                a(f"v_sub_f32 v17, v{40+e}, v14")
                a(f"v_fmac_f32 v16, v17, v17")
            self.allred_wave(16, 15)
            a("v_mul_f32 v15, 0x3a800000, v16")
            self.ln_consts(14, 15, 16)
            a(f"s_lshl_b32 s67, {sW}, 3")
            a(f"s_add_u32 s67, s67, {sLB}")
            a("v_mov_b32 v16, s67")
            a(f"ds_write_b64 v16, v[14:15] offset:{L_AUX}")
        self.gemm_stream(WQ_, RS, 2, 32, self.cfg["D_p1"], extra={0: stats})
        self.get_tag()
        a("s_barrier")
        a(f"v_lshl_add_u32 v16, {vB}, 3, {sLB}")
        a(f"ds_read_b64 v[14:15], v16 offset:{L_AUX}")
        self.unpack_bf16(248, 16, 4)
        a("s_waitcnt lgkmcnt(0)")
        for e in range(8):
            a(f"v_sub_f32 v{16+e}, v{16+e}, v14")
        self.bf16r_pairs(list(range(16, 24)), 24)
        for e in range(8):
            a(f"v_mul_f32 v{16+e}, v{16+e}, v15")
        self.bf16r_pairs(list(range(16, 24)), 24)
        a(f"v_lshlrev_b32 v8, 13, {vB}")
        a(f"v_lshl_add_u32 v8, {vHI}, 7, v8")
        a(f"v_lshl_add_u32 v8, {vG}, 5, v8")
        a(f"s_lshl_b32 s73, s68, 2")
        a(f"s_add_u32 s73, s73, {WS_MODP}")
        a(f"s_add_u32 s74, s73, 65536")
        a(f"s_add_u32 s75, s73, 4096")
        a(f"s_add_u32 s76, s73, 65536+4096")
        self.stamp(sb + 1)
        pl = []
        for m, so in enumerate(("s73", "s74", "s75", "s76")):
            for q in range(2):
                r = 32 + 8 * m + 4 * q
                pl.append((f"buffer_load_dwordx4 {v(r,4)}, v8, {WS_}, {so} offen offset:{16*q} sc1", r, 4))
        self.poll(pl, 24, gate=(0x11, [0, 2, 4, 6]))
        self.stamp(sb + 2)
        for e in range(8):
            a(f"v_add_f32 v{48+e}, v{48+e}, v{56+e}")
        self.bf16r_pairs(list(range(48, 56)), 24)
        for e in range(8):
            a(f"v_add_f32 v{48+e}, 1.0, v{48+e}")
        self.bf16r_pairs(list(range(48, 56)), 24)
        for e in range(8):
            a(f"v_add_f32 v{32+e}, v{32+e}, v{40+e}")
        self.bf16r_pairs(list(range(32, 40)), 24)
        for e in range(8):
            a(f"v_mul_f32 v{16+e}, v{16+e}, v{48+e}")
        self.bf16r_pairs(list(range(16, 24)), 24)
        for e in range(8):
            a(f"v_add_f32 v{16+e}, v{16+e}, v{32+e}")
        self.pack_split(16)
        self.gemm_tail(128, 2, 8, lambda: self.publish4("v13", "s70"))
        self.stamp(sb + 3)

    def pack_split(self, src):
        a = self.a
        for p in range(4):
            a(f"v_cvt_pk_bf16_f32 v{BB+p}, v{src+2*p}, v{src+2*p+1}")
        for p in range(4):
            a(f"v_mov_b32 v{BB+4+p}, v{BB+p}")
        for p in range(4):
            a(f"v_mov_b32_dpp v{BB+p}, v{BB+4+p} row_ror:8 row_mask:0xf bank_mask:0xc")
        for p in range(4):
            a(f"v_mov_b32_dpp v{BB+4+p}, v{BB+4+p} row_ror:8 row_mask:0xf bank_mask:0x3")

    def ln_consts(self, m, var, t):
        a = self.a
        self.bf16r_pairs([m, var], t)
        a(f"v_add_f32 v{var}, 0x{EPS:x}, v{var}")
        a(f"v_cvt_pk_bf16_f32 v{t}, v{var}, v{var}")
        a(f"v_lshlrev_b32 v{var}, 16, v{t}")
        a(f"v_sqrt_f32 v{var}, v{var}")
        a(f"v_cvt_pk_bf16_f32 v{t}, v{var}, v{var}")
        a(f"v_lshlrev_b32 v{var}, 16, v{t}")
        a(f"v_rcp_f32 v{var}, v{var}")

    def role_att(self, sb):
        a = self.a
        self.stamp(sb)
        Lq = a.newlabel("L_attq")
        Lb1 = a.newlabel("L_attb1")
        Lb2 = a.newlabel("L_attb2")
        Lend = a.newlabel("L_attend")
        a(f"s_lshr_b32 s71, {sTASK}, 2")
        a(f"s_and_b32 s72, {sTASK}, 3")
        a(f"s_lshr_b32 s73, s71, 2")
        a(f"s_and_b32 s74, s71, 3")
        a(f"s_cmp_ge_u32 {sW}, 4")
        a(f"s_cbranch_scc1 {Lq}")
        a(f"s_lshl_b32 s66, s71, 20")
        a(f"s_lshl_b32 s67, s72, 16")
        a(f"s_add_u32 s66, s66, s67")
        a(f"s_lshl_b32 s67, {sW}, 14")
        a(f"s_add_u32 s66, s66, s67")
        a(f"s_add_u32 s66, s66, {3072*256}")
        a(f"s_mov_b32 s68, s66")
        a(f"v_and_b32 v8, 1, {vI}")
        a(f"v_lshrrev_b32 v9, 1, {vI}")
        a(f"v_lshl_add_u32 v10, v8, 2, {vG}")
        a(f"v_lshlrev_b32 v10, 4, v10")
        a(f"v_lshl_add_u32 v10, v9, 8, v10")
        a(f"v_lshl_add_u32 v14, {vG}, 1, v8")
        a(f"v_lshlrev_b32 v14, 8, v14")
        a(f"v_lshl_add_u32 v14, v9, 4, v14")
        loads, after = [], {}
        for t in range(8):
            for hs in range(2):
                pre = "s_add_u32 s66, s66, 2048" if (t and not hs) else None
                loads.append((pre, f"buffer_load_dwordx4 {v(64+8*t+4*hs,4)}, v10, {K_}, s66 offen offset:{128*hs} nt"))
        for r in range(8):
            for dh in range(2):
                pre = "s_add_u32 s68, s68, 2048" if (r and not dh) else None
                loads.append((pre, f"buffer_load_dwordx4 {v(128+32*dh+4*r,4)}, v14, {V_}, s68 offen offset:{128*dh} nt"))

        def vperm():
            self.perms(128, 192)
            self.perms(160, 224)
        after[31] = vperm
        self.stream(loads, self.cfg["D_att"], after)
        self.get_tag()
        self.stamp(sb + 1)
        a(f"s_branch {Lb1}")
        a.label(Lq)
        self.get_tag()
        a("v_subrev_u32 v8, 256, v0")
        a("v_lshlrev_b32 v9, 4, v8")
        a(f"s_lshl_b32 s66, s73, 14")
        a(f"s_lshl_b32 s67, s74, 12")
        a(f"s_add_u32 s66, s66, s67")
        a(f"s_add_u32 s66, s66, {WS_QP}")
        a(f"s_add_u32 s67, s66, 131072")
        self.poll([(f"buffer_load_dwordx4 {v(32+4*k,4)}, v9, {WS_}, s{66+k} offen sc1", 32 + 4 * k, 4) for k in range(2)], 24, gate=(0x100000001, [0, 1]))
        self.stamp(sb + 2)
        for i in range(4):
            a(f"v_add_f32 v{32+i}, v{32+i}, v{36+i}")
        a("v_cvt_pk_bf16_f32 v32, v32, v33")
        a("v_cvt_pk_bf16_f32 v33, v34, v35")
        a(f"v_lshl_add_u32 v8, v8, 3, {sLB}")
        a(f"ds_write_b64 v8, v[32:33] offset:{L_AUX}")
        a("s_waitcnt lgkmcnt(0)")
        a.label(Lb1)
        a("s_barrier")
        a(f"s_cmp_ge_u32 {sW}, 4")
        a(f"s_cbranch_scc1 {Lb2}")
        a(f"v_lshl_add_u32 v8, {vHI}, 2, {vG}")
        a(f"v_lshlrev_b32 v8, 4, v8")
        a(f"v_lshl_add_u32 v8, {vB}, 8, v8")
        a(f"v_add_u32 v8, {sLB}, v8")
        a(f"ds_read_b128 v[24:27], v8 offset:{L_AUX}")
        a(f"ds_read_b128 v[12:15], v8 offset:{L_AUX+128}")
        a("s_waitcnt lgkmcnt(0)")
        for t in range(8):
            a(f"v_mfma_f32_16x16x32_bf16 {v(32+4*t,4)}, {v(64+8*t,4)}, v[24:27], 0")
            a(f"v_mfma_f32_16x16x32_bf16 {v(32+4*t,4)}, {v(64+8*t+4,4)}, v[12:15], {v(32+4*t,4)}")
        self.merge64(32, 16)
        Z = list(range(16, 24))
        self.bf16r_pairs(Z, 24)
        for z in Z:
            a(f"v_mul_f32 v{z}, 0x{SCALE:x}, v{z}")
        self.bf16r_pairs(Z, 24)
        for z in Z:
            a(f"v_mul_f32 v{z}, 0x{LOG2E:x}, v{z}")
        a("v_max3_f32 v12, v16, v17, v18")
        a("v_max3_f32 v12, v12, v19, v20")
        a("v_max3_f32 v12, v12, v21, v22")
        a("v_max_f32 v12, v12, v23")
        self.allred_rows([12], "v_max_f32", [13])
        for z in Z:
            a(f"v_sub_f32 v{z}, v{z}, v12")
        for z in Z:
            a(f"v_exp_f32 v{z}, v{z}")
        for p in range(4):
            a(f"v_cvt_pk_bf16_f32 v{24+p}, v{16+2*p}, v{16+2*p+1}")
        for dh in range(2):
            for jj in range(8):
                a(f"v_mfma_f32_16x16x32_bf16 {v(128+32*dh+4*jj,4)}, {v(192+32*dh+4*jj,4)}, v[24:27], 0")
        a("v_add_f32 v13, v16, v17")
        for z in Z[2:]:
            a(f"v_add_f32 v13, v13, v{z}")
        self.allred_rows([13], "v_add_f32", [14])
        a(f"s_lshl_b32 s67, {sW}, 3")
        a(f"v_add_u32 v8, s67, {vB}")
        a(f"v_lshl_add_u32 v9, v8, 3, {sLB}")
        a(f"ds_write_b64 v9, v[12:13] offset:{L_AUX+2048}")
        a(f"v_mul_u32_u24 v8, {132*4}, v8")
        a(f"v_lshl_add_u32 v9, {vG}, 1, {vHI}")
        a(f"v_lshl_add_u32 v8, v9, 5, v8")
        a(f"v_add_u32 v8, {sLB}, v8")
        self.merge64(128, 32)
        self.merge64(160, 40)
        for dh in range(2):
            for q in range(2):
                a(f"ds_write_b128 v8, {v(32+8*dh+4*q,4)} offset:{L_RED+256*dh+16*q}")
        a("s_waitcnt lgkmcnt(0)")
        a.label(Lb2)
        a("s_barrier")
        a(f"s_cmp_ge_u32 {sW}, 5")
        a(f"s_cbranch_scc1 {Lend}")
        a("v_lshrrev_b32 v8, 5, v0")
        a(f"s_cmp_eq_u32 {sW}, 4")
        a("s_cselect_b64 vcc, -1, 0")
        a(f"v_cndmask_b32 v8, v8, {vB}, vcc")
        a(f"v_lshl_add_u32 v9, v8, 3, {sLB}")
        for w in range(4):
            a(f"ds_read_b64 {v(16+2*w,2)}, v9 offset:{L_AUX+2048+64*w}")
        a(f"v_mul_u32_u24 v9, {132*4}, v8")
        a("v_and_b32 v10, 31, v0")
        a("v_lshl_add_u32 v9, v10, 4, v9")
        a(f"v_add_u32 v9, {sLB}, v9")
        for w in range(4):
            a(f"ds_read_b128 {v(32+4*w,4)}, v9 offset:{L_RED+w*8*132*4}")
        a("s_waitcnt lgkmcnt(4)")
        a("v_max3_f32 v12, v16, v18, v20")
        a("v_max_f32 v12, v12, v22")
        for w in range(4):
            a(f"v_sub_f32 v{16+2*w}, v{16+2*w}, v12")
        for w in range(4):
            a(f"v_exp_f32 v{16+2*w}, v{16+2*w}")
        a("v_mul_f32 v13, v16, v17")
        for w in range(1, 4):
            a(f"v_fmac_f32 v13, v{16+2*w}, v{17+2*w}")
        Lw4 = a.newlabel("L_attw4")
        a(f"s_cmp_eq_u32 {sW}, 4")
        a(f"s_cbranch_scc1 {Lw4}")
        a("v_rcp_f32 v14, v13")
        for w in range(4):
            a(f"v_mul_f32 v{16+2*w}, v{16+2*w}, v14")
        a("s_waitcnt lgkmcnt(0)")
        for i in range(4):
            a(f"v_mul_f32 v{64+i}, v16, v{32+i}")
        for w in range(1, 4):
            for i in range(4):
                a(f"v_fmac_f32 v{64+i}, v{16+2*w}, v{32+4*w+i}")
        a(f"s_lshl_b32 s66, s73, 2")
        a(f"s_add_u32 s66, s66, s72")
        a(f"s_lshl_b32 s66, s66, 14")
        a(f"s_lshl_b32 s67, s74, 12")
        a(f"s_add_u32 s66, s66, s67")
        a(f"s_add_u32 s66, s66, {WS_OP}")
        a("v_lshlrev_b32 v13, 4, v0")
        self.publish4("v13", "s66")
        a(f"s_branch {Lend}")
        a.label(Lw4)
        a("v_log_f32 v13, v13")
        a("s_waitcnt lgkmcnt(0)")
        a("v_add_f32 v13, v12, v13")
        a("v_and_b32 v64, 0xffffff00, v13")
        a("v_sub_f32 v65, v13, v64")
        self.tag([64, 65])
        a(f"s_lshl_b32 s66, s73, 2")
        a(f"s_add_u32 s66, s66, s72")
        a(f"s_lshl_b32 s66, s66, 2")
        a(f"s_add_u32 s66, s66, s74")
        a(f"s_lshl_b32 s66, s66, 7")
        a(f"s_add_u32 s66, s66, {WS_LSE}")
        a(f"v_lshlrev_b32 v13, 3, {vB}")
        a("s_mov_b64 exec, 0xff")
        a(f"buffer_store_dwordx2 v[64:65], v13, {WS_}, s66 offen sc1")
        a("s_mov_b64 exec, -1")
        a.label(Lend)
        a(f"s_xor_b32 {sLB}, {sLB}, {LDS_HALF}")
        self.stamp(sb + 3)

    def role_p3(self, sb):
        a = self.a
        RS = 2048
        self.stamp(sb)
        a(f"s_lshr_b32 s71, {sTASK}, 3")
        a(f"s_and_b32 s72, {sTASK}, 7")
        a(f"s_lshl_b32 s68, s71, 9")
        a(f"s_lshl_b32 s67, {sW}, 6")
        a(f"s_add_u32 s68, s68, s67")
        self.woff_u128(RS)
        a(f"s_lshl_b32 s66, s68, 11")
        a(f"s_lshl_b32 s67, s72, 8")
        a(f"s_add_u32 s66, s66, s67")
        self.red_addr(128)
        self.out_off(128, 4096)
        a(f"s_lshl_b32 s70, s71, 15")
        a(f"s_lshl_b32 s67, s72, 9")
        a(f"s_add_u32 s70, s70, s67")
        a(f"s_add_u32 s70, s70, {WS_AP}")
        self.gemm_stream(WO_, RS, 2, 32, self.cfg["D_p3"])
        self.get_tag()
        a(f"v_lshlrev_b32 v8, 16, {vB}")
        a(f"v_lshl_add_u32 v8, {vHI}, 7, v8")
        a(f"v_lshl_add_u32 v8, {vG}, 5, v8")
        a(f"v_lshlrev_b32 v9, 11, {vB}")
        a(f"v_lshl_add_u32 v9, {vG}, 9, v9")
        a(f"s_lshl_b32 s73, s68, 2")
        a(f"s_add_u32 s73, s73, {WS_OP}")
        for k in range(1, 4):
            a(f"s_add_u32 s{73+k}, s73, {16384*k}")
        a(f"s_lshr_b32 s77, s68, 7")
        a(f"s_lshr_b32 s78, s77, 3")
        a(f"s_lshl_b32 s78, s78, 7")
        a(f"s_and_b32 s77, s77, 7")
        a(f"s_lshl_b32 s77, s77, 3")
        a(f"s_add_u32 s77, s77, s78")
        a(f"s_add_u32 s77, s77, {WS_LSE}")
        self.stamp(sb + 1)
        pl = [(f"buffer_load_dwordx2 v[26:27], v9, {WS_}, s77 offen sc1", 26, 2)]
        for sp in range(4):
            for q in range(2):
                r = 32 + 8 * sp + 4 * q
                pl.append((f"buffer_load_dwordx4 {v(r,4)}, v8, {WS_}, s{73+sp} offen offset:{16*q} sc1", r, 4))
        self.poll(pl, 24, gate=(0x00ff00ff00ff00ff, [0]))
        self.stamp(sb + 2)
        a("v_and_b32 v26, 0xffffff00, v26")
        a("v_add_f32 v26, v26, v27")
        a("v_mov_b32 v16, v26")
        a("v_mov_b32 v17, v26")
        a("v_permlane16_swap_b32 v16, v17")
        a("v_mov_b32 v18, v16")
        a("v_mov_b32 v19, v17")
        a("v_permlane32_swap_b32 v16, v18")
        a("v_permlane32_swap_b32 v17, v19")
        a("v_max3_f32 v14, v16, v17, v18")
        a("v_max_f32 v14, v14, v19")
        for k in range(4):
            a(f"v_sub_f32 v{16+k}, v{16+k}, v14")
        for k in range(4):
            a(f"v_exp_f32 v{16+k}, v{16+k}")
        a("v_add_f32 v14, v16, v17")
        a("v_add_f32 v15, v18, v19")
        a("v_add_f32 v14, v14, v15")
        a("v_rcp_f32 v14, v14")
        for k in range(4):
            a(f"v_mul_f32 v{16+k}, v{16+k}, v14")
        for e in range(8):
            a(f"v_mul_f32 v{32+e}, v16, v{32+e}")
        for sp in range(1, 4):
            for e in range(8):
                a(f"v_fmac_f32 v{32+e}, v{16+sp}, v{32+8*sp+e}")
        self.pack_split(32)
        self.gemm_tail(128, 2, 8, lambda: self.publish4("v13", "s70"))
        self.stamp(sb + 3)

    def role_red(self, final, sb):
        a = self.a
        self.stamp(sb)
        self.get_tag()
        src = WS_DP if final else WS_AP
        a(f"v_lshlrev_b32 v8, 15, {vG}")
        a(f"v_lshl_add_u32 v8, {vI}, 4, v8")
        a(f"v_lshlrev_b32 v9, 4, {vI}")
        a(f"s_lshl_b32 s68, {sTASK}, 8")
        a(f"s_lshl_b32 s67, {sW}, 12")
        a(f"s_add_u32 s69, s68, s67")
        a(f"s_add_u32 s73, s69, {src}")
        a(f"s_add_u32 s74, s73, {4*32768}")
        a(f"s_lshl_b32 s67, {sW}, 14")
        a(f"s_add_u32 s75, s68, s67")
        a(f"s_add_u32 s75, s75, {WS_MODR + (3072*4 if final else 0)}")
        a(f"s_add_u32 s76, s69, {WS_X1}")
        pre = [(f"buffer_load_dwordx4 v[40:43], v9, {WS_}, s75 offen sc1", 40, 4)]
        if final:
            pre.append((f"buffer_load_dwordx4 v[44:47], v9, {WS_}, s76 offen sc1", 44, 4))
        else:
            a(f"v_lshlrev_b32 v10, 3, {vI}")
            a(f"s_lshr_b32 s67, s69, 1")
            a(f"buffer_load_dwordx2 v[48:49], v10, {X_}, s67 offen")
        self.poll(pre, 24, gate=(1, list(range(len(pre)))))
        if not final:
            self.unpack_bf16(48, 44, 2)
        for i in range(8):
            a(f"v_and_b32 v{40+i}, 0xffff0000, v{40+i}")
        self.stamp(sb + 1)
        self.poll([(f"buffer_load_dwordx4 v[32:35], v8, {WS_}, s73 offen sc1", 32, 4),
                   (f"buffer_load_dwordx4 v[36:39], v8, {WS_}, s74 offen sc1", 36, 4)], 24, gate=(0x0001000100010001, [0, 1]))
        self.stamp(sb + 2)
        for i in range(4):
            a(f"v_add_f32 v{32+i}, v{32+i}, v{36+i}")
        for i in range(4):
            a(f"v_mov_b32 v{36+i}, v{32+i}")
        for i in range(4):
            a(f"v_permlane16_swap_b32 v{32+i}, v{36+i}")
        for i in range(4):
            a(f"v_add_f32 v{32+i}, v{32+i}, v{36+i}")
        for i in range(4):
            a(f"v_mov_b32 v{36+i}, v{32+i}")
        for i in range(4):
            a(f"v_permlane32_swap_b32 v{32+i}, v{36+i}")
        for i in range(4):
            a(f"v_add_f32 v{32+i}, v{32+i}, v{36+i}")
        self.bf16r_pairs([32, 33, 34, 35], 24)
        for i in range(4):
            a(f"v_mul_f32 v{32+i}, v{32+i}, v{40+i}")
        self.bf16r_pairs([32, 33, 34, 35], 24)
        for i in range(4):
            a(f"v_add_f32 v{64+i}, v{32+i}, v{44+i}")
        if final:
            a("v_cvt_pk_bf16_f32 v64, v64, v65")
            a("v_cvt_pk_bf16_f32 v65, v66, v67")
            a(f"v_lshlrev_b32 v10, 3, {vI}")
            a(f"s_lshr_b32 s67, s69, 1")
            a("s_mov_b64 exec, 0xffff")
            a(f"buffer_store_dwordx2 v[64:65], v10, {OUT_}, s67 offen")
            a("s_mov_b64 exec, -1")
            Lnb = a.newlabel("L_nobump")
            a(f"s_or_b32 s67, {sTASK}, {sW}")
            a("s_cmp_lg_u32 s67, 0")
            a(f"s_cbranch_scc1 {Lnb}")
            a(f"s_add_u32 s67, {sEP}, 1")
            a("v_mov_b32 v66, s67")
            a("v_mov_b32 v67, 0")
            a("s_mov_b64 exec, 1")
            a(f"buffer_store_dword v66, v67, {WS_}, 0 offen")
            a("s_mov_b64 exec, -1")
            a.label(Lnb)
        else:
            self.bf16r_pairs([64, 65, 66, 67], 24)
            self.tag([64, 65, 66, 67])
            a("s_mov_b64 exec, 0xffff")
            a(f"buffer_store_dwordx4 v[64:67], v9, {WS_}, s76 offen sc1")
            a("s_mov_b64 exec, -1")
        self.stamp(sb + 3)

    def role_p4(self, sb):
        a = self.a
        RS = 7168
        self.stamp(sb)
        a(f"s_lshr_b32 s72, {sTASK}, 1")
        a(f"s_and_b32 s71, {sTASK}, 1")
        a("s_cselect_b32 s60, s32, s28")
        a("s_cselect_b32 s61, s33, s29")
        a("s_mov_b32 s62, 7340032")
        a("s_mov_b32 s63, 0x20000")
        self.woff_u64(RS)
        a(f"s_mul_i32 s66, {sW}, {128*RS}")
        a(f"s_lshl_b32 s67, s72, 7")
        a(f"s_add_u32 s66, s66, s67")
        self.red_addr(64)
        self.out_off(64, 3584 * 4)
        a(f"s_mul_i32 s70, s71, {8*3584*4}")
        a(f"s_lshl_b32 s67, s72, 8")
        a(f"s_add_u32 s70, s70, s67")
        a(f"s_add_u32 s70, s70, {WS_GU}")
        self.gemm_stream(W_, RS, 2, 64, self.cfg["D_p4"])
        self.get_tag()
        a(f"v_lshlrev_b32 v9, 7, {vHI}")
        a(f"v_lshl_add_u32 v9, {vG}, 5, v9")
        a(f"v_lshl_add_u32 v8, {vB}, 14, v9")
        a(f"v_lshl_add_u32 v9, {vB}, 12, v9")
        a(f"s_lshl_b32 s67, {sW}, 9")
        a(f"s_add_u32 s73, s67, {WS_MODR+4096}")
        a(f"s_add_u32 s74, s67, {WS_MODR+8192}")
        a(f"s_add_u32 s75, s67, {WS_X1}")
        pl = []
        for m, so in enumerate(("s73", "s74")):
            for u in range(2):
                for q in range(2):
                    r = 32 + 16 * m + 8 * u + 4 * q
                    pl.append((f"buffer_load_dwordx4 {v(r,4)}, v8, {WS_}, {so} offen offset:{256*u+16*q} sc1", r, 4))
        self.poll(pl, 24, gate=(0x11, [0, 2, 4, 6]))
        for e in range(16):
            a(f"v_and_b32 v{32+e}, 0xffff0000, v{32+e}")
            a(f"v_and_b32 v{48+e}, 0xffff0000, v{48+e}")
        for e in range(16):
            a(f"v_add_f32 v{48+e}, 1.0, v{48+e}")
        self.bf16r_pairs(list(range(48, 64)), 24)
        a(f"v_lshlrev_b32 v14, 6, {vB}")
        a(f"v_add_u32 v14, {sLB}, v14")
        a(f"s_lshl_b32 s67, {sW}, 3")
        a(f"v_add_u32 v15, s67, v14")
        self.stamp(sb + 1)
        X0 = 64
        pl = []
        for u in range(2):
            for q in range(2):
                r = X0 + 8 * u + 4 * q
                pl.append((f"buffer_load_dwordx4 {v(r,4)}, v9, {WS_}, s75 offen offset:{256*u+16*q} sc1", r, 4))
        self.poll(pl, 24, gate=(0xff, [0, 2]))
        self.stamp(sb + 2)
        for e in range(16):
            a(f"v_and_b32 v{X0+e}, 0xffff0000, v{X0+e}")
        a(f"v_add_f32 v16, v{X0}, v{X0+1}")
        a(f"v_mul_f32 v17, v{X0}, v{X0}")
        for e in range(2, 16):
            a(f"v_add_f32 v16, v16, v{X0+e}")
        for e in range(1, 16):
            a(f"v_fmac_f32 v17, v{X0+e}, v{X0+e}")
        self.allred_rows([16, 17], "v_add_f32", [18, 19])
        a(f"ds_write_b64 v15, v[16:17] offset:{L_AUX}")
        a("s_waitcnt lgkmcnt(0)")
        a("s_barrier")
        for q in range(4):
            a(f"ds_read_b128 {v(80+4*q,4)}, v14 offset:{L_AUX+16*q}")
        a("s_waitcnt lgkmcnt(0)")
        a("v_add_f32 v16, v80, v82")
        a("v_add_f32 v17, v81, v83")
        for w in range(2, 8):
            a(f"v_add_f32 v16, v16, v{80+2*w}")
            a(f"v_add_f32 v17, v17, v{81+2*w}")
        a("v_mul_f32 v16, 0x3a800000, v16")
        a("v_mul_f32 v17, 0x3a800000, v17")
        a("v_fma_f32 v17, -v16, v16, v17")
        a("v_max_f32 v17, 0, v17")
        self.ln_consts(16, 17, 18)
        XS = list(range(X0, X0 + 16))
        for x in XS:
            a(f"v_sub_f32 v{x}, v{x}, v16")
        self.bf16r_pairs(XS, 24)
        for x in XS:
            a(f"v_mul_f32 v{x}, v{x}, v17")
        self.bf16r_pairs(XS, 24)
        for e in range(16):
            a(f"v_mul_f32 v{X0+e}, v{X0+e}, v{48+e}")
        self.bf16r_pairs(XS, 24)
        for e in range(16):
            a(f"v_add_f32 v{X0+e}, v{X0+e}, v{32+e}")
        for p in range(8):
            a(f"v_cvt_pk_bf16_f32 v{BB+p}, v{X0+2*p}, v{X0+2*p+1}")

        def epi():
            self.bf16r_pairs([64, 65, 66, 67], 68)
            Lu = a.newlabel("L_p4up")
            a("s_cmp_lg_u32 s71, 0")
            a(f"s_cbranch_scc1 {Lu}")
            for i in range(4):
                a(f"v_mul_f32 v{68+i}, 0x{LOG2E ^ 0x80000000:x}, v{64+i}")
            for i in range(4):
                a(f"v_exp_f32 v{68+i}, v{68+i}")
            for i in range(4):
                a(f"v_add_f32 v{68+i}, 1.0, v{68+i}")
            for i in range(4):
                a(f"v_rcp_f32 v{68+i}, v{68+i}")
            for i in range(4):
                a(f"v_mul_f32 v{64+i}, v{64+i}, v{68+i}")
            self.bf16r_pairs([64, 65, 66, 67], 68)
            a.label(Lu)
            self.publish4("v13", "s70")
        self.gemm_tail(64, 2, 8, epi)
        self.stamp(sb + 3)

    def role_p5(self, sb):
        a = self.a
        RS = 2048
        self.stamp(sb)
        a(f"s_lshr_b32 s71, {sTASK}, 3")
        a(f"s_and_b32 s72, {sTASK}, 7")
        a(f"s_mul_i32 s68, s71, 448")
        a(f"s_lshl_b32 s67, {sW}, 6")
        a(f"s_add_u32 s68, s68, s67")
        self.woff_u128(RS)
        a(f"s_lshl_b32 s66, s68, 11")
        a(f"s_lshl_b32 s67, s72, 8")
        a(f"s_add_u32 s66, s66, s67")
        self.red_addr(128)
        self.out_off(128, 4096)
        a(f"s_lshl_b32 s70, s71, 15")
        a(f"s_lshl_b32 s67, s72, 9")
        a(f"s_add_u32 s70, s70, s67")
        a(f"s_add_u32 s70, s70, {WS_DP}")
        self.get_tag()
        Lsk = a.newlabel("L_p5skip")
        a(f"s_cmp_ge_u32 {sW}, 7")
        a(f"s_cbranch_scc1 {Lsk}")
        self.gemm_stream(WD_, RS, 2, 32, self.cfg["D_p5"])
        a(f"s_mov_b32 s67, {3584*4}")
        a(f"v_mul_lo_u32 v8, {vB}, s67")
        a(f"v_lshl_add_u32 v8, {vHI}, 7, v8")
        a(f"v_lshl_add_u32 v8, {vG}, 5, v8")
        a(f"s_lshl_b32 s73, s68, 2")
        a(f"s_add_u32 s73, s73, {WS_GU}")
        a(f"s_add_u32 s74, s73, {8*3584*4}")
        self.stamp(sb + 1)
        pl = []
        for m, so in enumerate(("s73", "s74")):
            for q in range(2):
                r = 32 + 8 * m + 4 * q
                pl.append((f"buffer_load_dwordx4 {v(r,4)}, v8, {WS_}, {so} offen offset:{16*q} sc1", r, 4))
        self.poll(pl, 24, gate=(0x11, [0, 2]))
        self.stamp(sb + 2)
        for e in range(16):
            a(f"v_and_b32 v{32+e}, 0xffff0000, v{32+e}")
        for e in range(8):
            a(f"v_mul_f32 v{32+e}, v{32+e}, v{40+e}")
        self.pack_split(32)
        a.label(Lsk)
        self.gemm_tail(128, 2, 7, lambda: self.publish4("v13", "s70"))
        self.stamp(sb + 3)

    def build(self):
        a = self.a
        cfg = self.cfg
        hdr = open(os.path.join(os.path.dirname(os.path.abspath(__file__)), "..", "cdna_kernels", NAME + ".s.ref")).read()
        top = []
        for line in hdr.split("\n"):
            if line.startswith("; @launch"):
                break
            top.append(line)
        for t in top:
            a.raw(t)
        a.raw(f"; @launch grid=(256,1,1) block=(512,1,1) lds={2*LDS_HALF}")
        a.raw('.amdgcn_target "amdgcn-amd-amdhsa--gfx950"')
        a.raw(".text")
        a.raw(f".globl {NAME}_kernel")
        a.raw(".p2align 8")
        a.raw(f".type {NAME}_kernel,@function")
        a.raw(f"{NAME}_kernel:")
        a("s_cmp_ge_u32 s2, 256")
        a("s_cbranch_scc1 L_exit")
        for (s0, ko, nb) in SRD_INFO:
            a(f"s_load_dwordx2 s[{s0}:{s0+1}], s[0:1], {ko}")
        for (s0, ko, nb) in SRD_INFO:
            a(f"s_mov_b32 s{s0+2}, {nb}")
            a(f"s_mov_b32 s{s0+3}, 0x20000")
        a(f"v_and_b32 {vLANE}, 63, v0")
        a("v_lshrrev_b32 v7, 6, v0")
        a(f"v_lshrrev_b32 {vG}, 4, {vLANE}")
        a(f"v_readfirstlane_b32 {sW}, v7")
        a(f"v_and_b32 {vI}, 15, v0")
        a(f"v_and_b32 {vB}, 7, v0")
        a(f"v_bfe_u32 {vHI}, v0, 3, 1")
        a(f"v_mov_b32 {vFF}, 0xff")
        a(f"v_mov_b32 {vSTAMP}, 0")
        a(f"s_mov_b32 {sLB}, 0")
        a(f"s_mov_b32 {sSEL0}, 0x05040100")
        a(f"s_mov_b32 {sSEL1}, 0x07060302")
        a("s_mov_b32 s86, 0xff00ff00")
        a("s_mov_b32 s87, 0xff00ff00")
        a("s_waitcnt lgkmcnt(0)")
        a(f"s_load_dword {sEP}, s[52:53], 0")
        roles = {
            "P0A": lambda sb: self.role_mod(False, sb), "RM": lambda sb: self.role_mod(True, sb),
            "P1": self.role_p1, "ATT": self.role_att, "P3": self.role_p3,
            "R3": lambda sb: self.role_red(False, sb), "P4": self.role_p4, "P5": self.role_p5,
            "R5": lambda sb: self.role_red(True, sb)}
        for idx, (rname, ranges) in enumerate(cfg["sched"]):
            Lrun = a.newlabel("L_run" + rname)
            Lnext = a.newlabel("L_next" + rname)
            a(f"; ======== {rname}")
            for (lo, hi, base) in ranges:
                a(f"s_sub_u32 s81, s2, {lo}")
                a(f"s_add_u32 {sTASK}, s81, {base}")
                a(f"s_cmp_lt_u32 s81, {hi-lo}")
                a(f"s_cbranch_scc1 {Lrun}")
            a(f"s_branch {Lnext}")
            a.label(Lrun)
            roles[rname](4 * idx)
            a.label(Lnext)
        if self.stamps:
            a(f"s_lshl_b32 s66, s2, 3")
            a(f"s_add_u32 s66, s66, {sW}")
            a(f"s_lshl_b32 s66, s66, 8")
            a(f"s_add_u32 s66, s66, {WS_STAMP}")
            a(f"v_lshlrev_b32 v8, 2, {vLANE}")
            a(f"buffer_store_dword {vSTAMP}, v8, {WS_}, s66 offen")
        a.label("L_exit")
        a("s_endpgm")
        a.raw('.section .rodata,"a"')
        a.raw(".p2align 6")
        a.raw(f".amdhsa_kernel {NAME}_kernel")
        a.raw("  .amdhsa_next_free_vgpr 256")
        a.raw("  .amdhsa_next_free_sgpr 102")
        a.raw("  .amdhsa_accum_offset 256")
        a.raw("  .amdhsa_group_segment_fixed_size 0")
        a.raw("  .amdhsa_kernarg_size 112")
        a.raw("  .amdhsa_user_sgpr_count 2")
        a.raw("  .amdhsa_user_sgpr_kernarg_segment_ptr 1")
        a.raw("  .amdhsa_system_sgpr_workgroup_id_x 1")
        a.raw(".end_amdhsa_kernel")
        return a.text()


DEFAULT = dict(
    D_p0=8, D_rm=8, D_p1=16, D_att=4, D_p3=8, D_p4=8, D_p5=8,
    sched=[
        ("P0A", [(128, 192, 0)]),
        ("P1", [(192, 256, 0)]),
        ("ATT", [(0, 128, 0)]),
        ("RM", [(192, 256, 0)]),
        ("P3", [(128, 192, 0)]),
        ("R3", [(112, 128, 0)]),
        ("P4", [(0, 112, 0)]),
        ("P5", [(128, 192, 0)]),
        ("R5", [(112, 128, 0)]),
    ])

if __name__ == "__main__":
    cfg = dict(DEFAULT)
    out = sys.argv[1] if len(sys.argv) > 1 else os.path.join(os.path.dirname(os.path.abspath(__file__)), "..", "cdna_kernels", NAME + ".s")
    if len(sys.argv) > 2 and sys.argv[2] == "stamps":
        cfg["stamps"] = True
    open(out, "w").write(Gen(cfg).build())
    print("wrote", out)
```

```python
import sys, os, struct
sys.path.insert(0, os.path.dirname(os.path.abspath(__file__)))
from asmlib import Asm

NAME = "adaLN_cond__sliding_block_cached__swiglu_ffn__decode"

WS_SAC = 4096
WS_MODR = WS_SAC + 2 * 32 * 2048
WS_QP = WS_MODR + 2 * 8 * 3072 * 4
WS_OP = WS_QP + 2 * 8 * 4096 * 4
WS_LSE = WS_OP + 8 * 4 * 32 * 128 * 4
WS_AP = WS_LSE + 128 * 128
WS_X1 = WS_AP + 8 * 8 * 1024 * 4
WS_DP = WS_X1 + 8 * 8 * 1024 * 4
assert WS_DP + 8 * 8 * 1024 * 4 <= (2 << 20)
FS = 1 << 20
H2R = 4096 + 128
WS_H2 = 2 << 20
WS_GU = WS_H2 + 8 * 8 * H2R + 1024 * 8
assert WS_GU + 2 * 8 * 3584 * 4 <= (3 << 20)
WS_STAMP = 4 << 20
WS_END = WS_STAMP + 256 * 8 * 64 * 4

X_, K_, V_, WQ_, WO_, WG_, WU_, WD_, C_, WM_, OUT_, WS_, DBG_, W_ = [f"s[{8+4*i}:{11+4*i}]" for i in range(14)]
SRD_INFO = [
    (44, 80, 12582912), (20, 24, 8388608), (12, 8, 33554432), (40, 72, 16384), (8, 0, 16384), (52, 104, WS_END),
    (16, 16, 33554432), (24, 32, 8388608), (28, 48, 7340032), (32, 56, 7340032), (36, 64, 7340032),
    (48, 88, 16384)]

sW, sT, sX, sSEL0, sSEL1 = "s3", "s4", "s5", "s6", "s7"
sEP, sL = "s64", "s65"
sPOLL, sDRY, sWE = "s80", "s82", "s83"
sMHI = "s[86:87]"
RSZ = 17408
L_R = [0, RSZ, 2 * RSZ]
L_AUX = 3 * RSZ
LDS_BYTES = 65536
SB = 2064

A = [64, 96, 128, 160]
ACC, BB, RES = 192, 224, 232
vLANE, vG, vI, vB, vHI, vFF, vSTAMP = "v1", "v2", "v3", "v4", "v5", "v6", "v7"
vRW, vRR = "v11", "v12"
YREG = 248
LOG2E = 0x3FB8AA3B
SCALE = struct.unpack("<I", struct.pack("<f", 128 ** -0.5))[0]
EPS = struct.unpack("<I", struct.pack("<f", 1e-5))[0]
SLOT = dict(P0A=0, P1=4, ATT=8, RM=12, P3=16, R3=20, P4=24, P5=28, GB=32, R5=36)


def v(n, cnt=1):
    return f"v{n}" if cnt == 1 else f"v[{n}:{n+cnt-1}]"


class Gen:
    def __init__(self, cfg):
        self.cfg = cfg
        self.a = Asm()
        self.stamps = cfg.get("stamps", False)
        self.poll_limit = cfg.get("poll_limit", 20000)
        self.q = []

    def ld(self, text, tag):
        self.a(text)
        self.q.append(tag)

    def wait(self, tag):
        if tag not in self.q:
            return
        idx = len(self.q) - 1 - self.q[::-1].index(tag)
        self.a(f"s_waitcnt vmcnt({len(self.q)-1-idx})")
        self.q = self.q[idx + 1:]

    def window(self, D):
        if len(self.q) >= D:
            self.a(f"s_waitcnt vmcnt({D-1})")
            self.q = self.q[len(self.q) - (D - 1):] if D > 1 else []

    def stamp(self, slot):
        if not self.stamps:
            return
        a = self.a
        a("s_memrealtime s[90:91]")
        a("s_waitcnt lgkmcnt(0)")
        a(f"v_writelane_b32 {vSTAMP}, s90, {slot}")

    def bf16r_pairs(self, regs, tmp):
        a = self.a
        for i in range(0, len(regs), 2):
            a(f"v_cvt_pk_bf16_f32 v{tmp}, v{regs[i]}, v{regs[i+1]}")
            a(f"v_lshlrev_b32 v{regs[i]}, 16, v{tmp}")
            a(f"v_and_b32 v{regs[i+1]}, 0xffff0000, v{tmp}")

    def bf16r1(self, r):
        a = self.a
        a(f"v_cvt_pk_bf16_f32 v{r}, v{r}, v{r}")
        a(f"v_lshlrev_b32 v{r}, 16, v{r}")

    def unpack_bf16(self, src, dst, n):
        a = self.a
        for i in range(n):
            a(f"v_lshlrev_b32 v{dst+2*i}, 16, v{src+i}")
            a(f"v_and_b32 v{dst+2*i+1}, 0xffff0000, v{src+i}")

    def allred_rows(self, regs, op, tmp, start8=True):
        a = self.a
        for r, t in zip(regs, tmp):
            if start8:
                a(f"{op}_dpp v{t}, v{r}, v{r} row_ror:8 row_mask:0xf bank_mask:0xf")
            else:
                a(f"v_mov_b32 v{t}, v{r}")
        if start8:
            for r, t in zip(regs, tmp):
                a(f"v_mov_b32 v{r}, v{t}")
        for r, t in zip(regs, tmp):
            a(f"v_permlane16_swap_b32 v{r}, v{t}")
        for r, t in zip(regs, tmp):
            a(f"{op} v{t}, v{r}, v{t}")
        for r, t in zip(regs, tmp):
            a(f"v_mov_b32 v{r}, v{t}")
        for r, t in zip(regs, tmp):
            a(f"v_permlane32_swap_b32 v{r}, v{t}")
        for r, t in zip(regs, tmp):
            a(f"{op} v{r}, v{r}, v{t}")

    def allred_wave(self, regs, tmp, op="v_add_f32", n32=False):
        a = self.a
        for r, t in zip(regs, tmp):
            a(f"{op}_dpp v{t}, v{r}, v{r} quad_perm:[1,0,3,2] row_mask:0xf bank_mask:0xf")
        for r, t in zip(regs, tmp):
            a(f"{op}_dpp v{r}, v{t}, v{t} quad_perm:[2,3,0,1] row_mask:0xf bank_mask:0xf")
        for r, t in zip(regs, tmp):
            a(f"{op}_dpp v{t}, v{r}, v{r} row_half_mirror row_mask:0xf bank_mask:0xf")
        for r, t in zip(regs, tmp):
            a(f"{op}_dpp v{r}, v{t}, v{t} row_ror:8 row_mask:0xf bank_mask:0xf")
        for r, t in zip(regs, tmp):
            a(f"v_mov_b32 v{t}, v{r}")
        for r, t in zip(regs, tmp):
            a(f"v_permlane16_swap_b32 v{r}, v{t}")
        for r, t in zip(regs, tmp):
            a(f"{op} v{r}, v{r}, v{t}")
        if n32:
            return
        for r, t in zip(regs, tmp):
            a(f"v_mov_b32 v{t}, v{r}")
        for r, t in zip(regs, tmp):
            a(f"v_permlane32_swap_b32 v{r}, v{t}")
        for r, t in zip(regs, tmp):
            a(f"{op} v{r}, v{r}, v{t}")

    def poll(self, loads, acc, gate=None, fs=None, gs=None):
        a = self.a
        keep = False
        if gate is not None and self.cfg.get("gate", True):
            mask, greg, gsoff = gate
            a(f"s_mov_b32 exec_lo, 0x{mask & 0xffffffff:x}")
            a(f"s_mov_b32 exec_hi, 0x{mask >> 32:x}")
            self.poll([(f"buffer_load_dword v25, v{greg}, {WS_}, {gsoff} offen sc1", 25, 1)], acc, fs=fs)
            a("s_mov_b64 exec, -1")
            keep = True
            if gs is not None:
                self.stamp(gs)
        L = a.newlabel("L_poll")
        D = a.newlabel("L_pdone")
        a(f"s_mov_b32 {sPOLL}, {self.poll_limit | 7}")
        if fs and not keep:
            for so, base in fs:
                a(f"s_mov_b32 {so}, {base}")
        a.label(L)
        for t, _, _ in loads:
            a(t)
        first = True
        for n, (t, r, cnt) in enumerate(loads):
            a(f"s_waitcnt vmcnt({len(loads)-1-n})")
            for i in range(cnt):
                if first:
                    a(f"v_xor_b32 v{acc}, {sT}, v{r+i}")
                    first = False
                else:
                    a(f"v_bitop3_b32 v{acc}, v{r+i}, v{acc}, {sT} bitop3:0xde")
        a(f"v_and_b32 v{acc}, {vFF}, v{acc}")
        a(f"v_cmp_ne_u32 vcc, 0, v{acc}")
        a(f"s_sub_u32 {sPOLL}, {sPOLL}, 1")
        a(f"s_cbranch_vccz {D}")
        if fs:
            a(f"s_and_b32 s81, {sPOLL}, 7")
            a(f"s_cselect_b32 s81, 0, {FS}")
            for so, base in fs:
                a(f"s_add_u32 {so}, {base}, s81")
        a(f"s_cmp_lg_u32 {sPOLL}, 0")
        a(f"s_cbranch_scc1 {L}")
        a.label(D)
        if gs is not None and self.stamps:
            a(f"v_writelane_b32 {vSTAMP}, {sPOLL}, {gs+1}")
        self.q = []

    def tag(self, regs):
        for r in regs:
            self.a(f"v_bfi_b32 v{r}, {vFF}, {sT}, v{r}")

    def perms(self, raw, tb):
        a = self.a
        for jj in range(8):
            for p in range(4):
                a(f"v_perm_b32 v{tb+4*jj+p}, v{raw+4*(2*p+1)+(jj>>1)}, v{raw+4*(2*p)+(jj>>1)}, {sSEL1 if jj & 1 else sSEL0}")

    def woff_u64(self, RS):
        a = self.a
        a(f"v_and_b32 v8, 1, {vI}")
        a(f"v_lshl_add_u32 v8, v8, 2, {vG}")
        a(f"v_mul_u32_u24 v10, {8*RS}, v8")
        a(f"v_lshrrev_b32 v8, 1, {vI}")
        a(f"v_lshl_add_u32 v10, v8, 4, v10")

    def issue_unit(self, srd, RS, raw, D, tag, first):
        for r in range(8):
            self.window(D)
            if not (first and r == 0):
                step = RS if r else (64 - 7) * RS
                self.a(f"s_add_u32 s66, s66, {step}")
            self.ld(f"buffer_load_dwordx4 {v(raw+4*r,4)}, v10, {srd}, s66 offen nt", tag)

    def merge64(self, acc, res):
        a = self.a
        for jj in range(8):
            A_ = acc + 4 * jj
            a(f"v_add_f32_dpp v{res+jj}, v{A_+1}, v{A_} row_ror:8 row_mask:0xf bank_mask:0x3")
        for jj in range(8):
            A_ = acc + 4 * jj
            a(f"v_add_f32_dpp v{res+jj}, v{A_+2}, v{A_+3} row_ror:8 row_mask:0xf bank_mask:0xc")

    def red_addr(self, frag=False):
        a = self.a
        a(f"v_mul_u32_u24 v8, {SB}, {vB}")
        a(f"v_lshl_add_u32 v9, {vG}, 1, {vHI}")
        a(f"v_lshl_add_u32 v8, v9, 5, v8")
        a(f"s_lshl_b32 s67, {sW}, 8")
        a(f"v_add_u32 {vRW}, s67, v8")
        if not frag:
            a(f"s_mul_i32 s67, {sW}, {SB}")
            a(f"v_lshl_add_u32 {vRR}, {vLANE}, 2, s67")
            return
        a(f"v_bfe_u32 v8, v0, 2, 3")
        a(f"v_mul_u32_u24 v8, {SB}, v8")
        a(f"v_bfe_u32 v9, v0, 5, 1")
        a(f"v_lshl_add_u32 v8, v9, 7, v8")
        a(f"v_and_b32 v9, 3, v0")
        a(f"v_lshl_add_u32 v8, v9, 2, v8")
        a(f"v_bfe_u32 v9, v0, 6, 2")
        a(f"v_lshl_add_u32 v8, v9, 5, v8")
        a(f"v_bfe_u32 v9, v0, 8, 1")
        a(f"v_lshl_add_u32 {vRR}, v9, 4, v8")

    def frag_off(self, dst, src, t):
        a = self.a
        a(f"v_lshrrev_b32 v{dst}, 4, {src}")
        a(f"v_lshlrev_b32 v{dst}, 11, v{dst}")
        a(f"v_and_b32 v{t}, 1, {src}")
        a(f"v_lshl_add_u32 v{dst}, v{t}, 10, v{dst}")
        a(f"v_bfe_u32 v{t}, {src}, 1, 2")
        a(f"v_lshl_add_u32 v{dst}, v{t}, 8, v{dst}")
        a(f"v_bfe_u32 v{t}, {src}, 3, 1")
        a(f"v_lshl_add_u32 v{dst}, v{t}, 7, v{dst}")

    def tail(self, tbs, nw, lr, epilogue):
        a = self.a
        Lskip = a.newlabel("L_nomm")
        if nw < 8:
            a(f"s_cmp_ge_u32 {sW}, {nw}")
            a(f"s_cbranch_scc1 {Lskip}")
        for jj in range(8):
            for u, tb in enumerate(tbs):
                c = "0" if u == 0 else v(ACC + 4 * jj, 4)
                a(f"v_mfma_f32_16x16x32_bf16 {v(ACC+4*jj,4)}, {v(tb+4*jj,4)}, {v(BB+4*u,4)}, {c}")
        self.merge64(ACC, RES)
        for q in range(2):
            a(f"ds_write_b128 {vRW}, {v(RES+4*q,4)} offset:{lr+16*q}")
        a("s_waitcnt lgkmcnt(0)")
        a.label(Lskip)
        a("s_barrier")
        assert lr % 256 == 0
        np_ = (nw + 1) // 2
        for p in range(np_):
            if 2 * p + 1 < nw:
                a(f"ds_read2st64_b32 {v(16+2*p,2)}, {vRR} offset0:{lr//256+2*p} offset1:{lr//256+2*p+1}")
            else:
                a(f"ds_read_b32 v{16+2*p}, {vRR} offset:{lr+256*2*p}")
        for p in range(np_):
            a(f"s_waitcnt lgkmcnt({np_-1-p})")
            if p == 0:
                a("v_add_f32 v16, v16, v17")
            else:
                a(f"v_add_f32 v16, v16, v{16+2*p}")
                if 2 * p + 1 < nw:
                    a(f"v_add_f32 v16, v16, v{17+2*p}")
        epilogue()

    def publish1(self, voff, soff, fast=False):
        a = self.a
        self.tag([16])
        if fast:
            a(f"buffer_store_dword v16, {voff}, {WS_}, {soff} offen")
            a(f"s_add_u32 {soff}, {soff}, {FS}")
        a(f"buffer_store_dword v16, {voff}, {WS_}, {soff} offen sc1")

    def get_tag(self):
        a = self.a
        a("s_waitcnt lgkmcnt(0)")
        a(f"s_add_u32 {sT}, {sEP}, 1")
        a(f"s_and_b32 {sT}, {sT}, 0xff")

    def ln_consts(self, m, var, t):
        a = self.a
        self.bf16r_pairs([m, var], t)
        a(f"v_add_f32 v{var}, 0x{EPS:x}, v{var}")
        self.bf16r1(var)
        a(f"v_sqrt_f32 v{var}, v{var}")
        self.bf16r1(var)
        a(f"v_rcp_f32 v{var}, v{var}")

    def silu_c(self, src, dst):
        a = self.a
        self.unpack_bf16(src, 40, 4)
        for e in range(8):
            a(f"v_mul_f32 v{48+e}, 0x{LOG2E ^ 0x80000000:x}, v{40+e}")
        for e in range(8):
            a(f"v_exp_f32 v{48+e}, v{48+e}")
        for e in range(8):
            a(f"v_add_f32 v{48+e}, 1.0, v{48+e}")
        for e in range(8):
            a(f"v_rcp_f32 v{48+e}, v{48+e}")
        for e in range(8):
            a(f"v_mul_f32 v{40+e}, v{40+e}, v{48+e}")
        for p in range(4):
            a(f"v_cvt_pk_bf16_f32 v{dst+p}, v{40+2*p}, v{40+2*p+1}")

    def koff(self, dst, rowlog, esz_log):
        a = self.a
        a(f"v_lshlrev_b32 v{dst}, {rowlog}, {vB}")
        a(f"v_lshl_add_u32 v{dst}, {vHI}, {5+esz_log}, v{dst}")
        a(f"v_lshl_add_u32 v{dst}, {vG}, {3+esz_log}, v{dst}")

    def mod_issue(self, name, raw, D):
        a = self.a
        RS = 12288
        self.stamp(SLOT[name])
        a("s_and_b32 s71, s68, 1")
        a("s_lshl_b32 s69, s71, 9")
        a(f"s_lshl_b32 s67, {sW}, 6")
        a("s_add_u32 s69, s69, s67")
        self.woff_u64(RS)
        a(f"s_mul_i32 s66, s69, {RS}")
        a("s_lshr_b32 s72, s68, 1")
        a("s_lshl_b32 s67, s72, 7")
        a("s_add_u32 s66, s66, s67")
        self.koff(8, 11, 1)
        a("s_lshl_b32 s67, s69, 1")
        self.ld(f"buffer_load_dwordx4 v[60:63], v8, {C_}, s67 offen", name + "c")
        self.issue_unit(WM_, RS, raw, D + 1, name, True)
        if name == "P0A":
            a(f"s_lshl_b32 s70, s71, 16")
            a("s_lshl_b32 s67, s72, 11")
            a("s_add_u32 s70, s70, s67")
            a(f"s_lshl_b32 s67, {sW}, 8")
            a("s_add_u32 s70, s70, s67")
            a(f"s_add_u32 s70, s70, {WS_SAC}")
        else:
            a(f"s_mul_i32 s70, s71, {8*3072*4}")
            a("s_lshl_b32 s67, s72, 8")
            a("s_add_u32 s70, s70, s67")
            a(f"s_mul_i32 s67, {sW}, {3072*4}")
            a("s_add_u32 s70, s70, s67")
            a(f"s_add_u32 s70, s70, {WS_MODR-32*256}")

    def mod_exec(self, name, raw, tb, lr):
        a = self.a
        self.wait(name + "c")
        self.silu_c(60, BB)
        self.get_tag()
        a(f"v_lshlrev_b32 v13, 2, {vLANE}")
        self.wait(name)
        self.stamp(SLOT[name] + 1)
        self.perms(raw, tb)
        self.tail([tb], 8, lr, lambda: self.publish1("v13", "s70"))
        self.stamp(SLOT[name] + 3)

    def p1(self, raw, tb, lr, D):
        a = self.a
        RS = 8192
        sb = SLOT["P1"]
        self.stamp(sb)
        a(f"s_and_b32 s71, {sX}, 1")
        a(f"s_lshr_b32 s72, {sX}, 1")
        a(f"s_lshl_b32 s72, s72, 4")
        a(f"s_add_u32 s72, s72, s68")
        a(f"s_lshl_b32 s69, s71, 9")
        a(f"s_lshl_b32 s67, {sW}, 6")
        a(f"s_add_u32 s69, s69, s67")
        self.woff_u64(RS)
        a(f"s_lshl_b32 s66, s69, 13")
        a(f"s_lshl_b32 s67, s72, 7")
        a(f"s_add_u32 s66, s66, s67")
        a(f"v_lshlrev_b32 v8, 4, {vLANE}")
        a(f"s_lshl_b32 s67, {sW}, 11")
        self.ld(f"buffer_load_dwordx4 v[32:35], v8, {X_}, s67 offen", "x")
        self.ld(f"buffer_load_dwordx4 v[36:39], v8, {X_}, s67 offen offset:1024", "x")
        self.koff(8, 11, 1)
        a(f"s_lshl_b32 s67, s69, 1")
        self.ld(f"buffer_load_dwordx4 v[60:63], v8, {X_}, s67 offen", "x")
        self.issue_unit(WQ_, RS, raw, D + 3, "P1", True)
        a(f"s_lshl_b32 s70, s71, 17")
        a(f"s_lshl_b32 s67, s72, 8")
        a(f"s_add_u32 s70, s70, s67")
        a(f"s_lshl_b32 s67, {sW}, 14")
        a(f"s_add_u32 s70, s70, s67")
        a(f"s_add_u32 s70, s70, {WS_QP}")
        self.red_addr()
        self.wait("x")
        self.unpack_bf16(32, 40, 8)
        a("v_add_f32 v14, v40, v41")
        for e in range(2, 16):
            a(f"v_add_f32 v14, v14, v{40+e}")
        self.allred_wave([14], [15])
        a("v_mul_f32 v14, 0x3a800000, v14")
        a("v_mov_b32 v16, 0")
        for e in range(16):
            a(f"v_sub_f32 v17, v{40+e}, v14")
            a(f"v_fmac_f32 v16, v17, v17")
        self.allred_wave([16], [15])
        a("v_mul_f32 v15, 0x3a800000, v16")
        self.ln_consts(14, 15, 16)
        a(f"s_lshl_b32 s67, {sW}, 3")
        a("v_mov_b32 v16, s67")
        a(f"ds_write_b64 v16, v[14:15] offset:{L_AUX}")
        self.get_tag()
        a("s_barrier")
        a(f"v_lshlrev_b32 v16, 3, {vB}")
        a(f"ds_read_b64 v[14:15], v16 offset:{L_AUX}")
        Y = list(range(YREG, YREG + 8))
        self.unpack_bf16(60, YREG, 4)
        a("s_waitcnt lgkmcnt(0)")
        for y in Y:
            a(f"v_sub_f32 v{y}, v{y}, v14")
        self.bf16r_pairs(Y, 24)
        for y in Y:
            a(f"v_mul_f32 v{y}, v{y}, v15")
        self.bf16r_pairs(Y, 24)
        a(f"v_lshlrev_b32 v8, 4, {vLANE}")
        a(f"s_lshl_b32 s73, s69, 5")
        a(f"s_add_u32 s73, s73, {WS_SAC}")
        a(f"s_add_u32 s74, s73, 65536")
        a(f"s_add_u32 s75, s73, 32768")
        a(f"s_add_u32 s76, s74, 32768")
        a(f"v_lshlrev_b32 v13, 2, {vLANE}")
        a(f"v_lshlrev_b32 v26, 15, {vLANE}")
        a(f"s_lshl_b32 s67, s68, 7")
        a(f"s_add_u32 s77, s67, s73")
        self.wait("P1")
        self.perms(raw, tb)
        self.stamp(sb + 1)
        pl = []
        for m, so in enumerate(("s73", "s74", "s75", "s76")):
            for q in range(2):
                r = 32 + 8 * m + 4 * q
                pl.append((f"buffer_load_dwordx4 {v(r,4)}, v8, {WS_}, {so} offen offset:{1024*q} sc1", r, 4))
        self.poll(pl, 24, gate=(0xf, 26, "s77"), gs=40)
        self.stamp(sb + 2)
        for e in range(8):
            a(f"v_add_f32 v{48+e}, v{48+e}, v{56+e}")
        self.bf16r_pairs(list(range(48, 56)), 24)
        for e in range(8):
            a(f"v_add_f32 v{48+e}, 1.0, v{48+e}")
        self.bf16r_pairs(list(range(48, 56)), 24)
        for e in range(8):
            a(f"v_add_f32 v{32+e}, v{32+e}, v{40+e}")
        self.bf16r_pairs(list(range(32, 40)), 24)
        for e in range(8):
            a(f"v_mul_f32 v{48+e}, v{YREG+e}, v{48+e}")
        self.bf16r_pairs(list(range(48, 56)), 24)
        for e in range(8):
            a(f"v_add_f32 v{48+e}, v{48+e}, v{32+e}")
        for p in range(4):
            a(f"v_cvt_pk_bf16_f32 v{BB+p}, v{48+2*p}, v{49+2*p}")
        self.tail([tb], 8, lr, lambda: self.publish1("v13", "s70"))
        self.stamp(sb + 3)

    def att(self, lr, D):
        a = self.a
        sb = SLOT["ATT"]
        self.stamp(sb)
        Lq = a.newlabel("L_attq")
        Lb1 = a.newlabel("L_attb1")
        Lb2 = a.newlabel("L_attb2")
        Lend = a.newlabel("L_attend")
        a(f"s_and_b32 s72, s68, 3")
        a(f"s_and_b32 s73, {sX}, 1")
        a(f"s_lshl_b32 s73, s73, 2")
        a(f"s_lshr_b32 s67, s68, 2")
        a(f"s_add_u32 s73, s73, s67")
        a(f"s_lshr_b32 s74, {sX}, 1")
        a(f"s_lshl_b32 s71, s73, 2")
        a(f"s_add_u32 s71, s71, s74")
        a("v_lshlrev_b32 v11, 4, v0")
        a(f"s_cmp_ge_u32 {sW}, 4")
        a(f"s_cbranch_scc1 {Lq}")
        q0 = list(self.q)
        a(f"s_lshl_b32 s66, s71, 20")
        a(f"s_lshl_b32 s67, s72, 16")
        a(f"s_add_u32 s66, s66, s67")
        a(f"s_lshl_b32 s67, {sW}, 14")
        a(f"s_add_u32 s66, s66, s67")
        a(f"s_add_u32 s66, s66, {3072*256}")
        a(f"s_mov_b32 s69, s66")
        a(f"v_and_b32 v8, 1, {vI}")
        a(f"v_lshrrev_b32 v9, 1, {vI}")
        a(f"v_lshl_add_u32 v10, v8, 2, {vG}")
        a(f"v_lshlrev_b32 v10, 4, v10")
        a(f"v_lshl_add_u32 v10, v9, 8, v10")
        a(f"v_lshl_add_u32 v14, {vG}, 1, v8")
        a(f"v_lshlrev_b32 v14, 8, v14")
        a(f"v_lshl_add_u32 v14, v9, 4, v14")
        for t in range(8):
            for hs in range(2):
                self.window(D)
                if t and not hs:
                    a("s_add_u32 s66, s66, 2048")
                self.ld(f"buffer_load_dwordx4 {v(64+8*t+4*hs,4)}, v10, {K_}, s66 offen offset:{128*hs} nt", "K")
        for r in range(8):
            for dh in range(2):
                self.window(D)
                if r and not dh:
                    a("s_add_u32 s69, s69, 2048")
                self.ld(f"buffer_load_dwordx4 {v(128+32*dh+4*r,4)}, v14, {V_}, s69 offen offset:{128*dh} nt", "V")
        self.get_tag()
        a(f"s_lshl_b32 s75, s73, 2")
        a(f"s_add_u32 s75, s75, s72")
        a(f"s_lshl_b32 s75, s75, 14")
        a(f"s_lshl_b32 s67, s74, 12")
        a(f"s_add_u32 s75, s75, s67")
        a(f"s_add_u32 s75, s75, {WS_OP}")
        a(f"v_lshl_add_u32 v8, {vHI}, 2, {vG}")
        a(f"v_lshlrev_b32 v8, 4, v8")
        a(f"v_lshl_add_u32 v8, {vB}, 8, v8")
        self.wait("K")
        qkv = list(self.q)
        a(f"s_branch {Lb1}")
        a.label(Lq)
        self.q = q0
        self.get_tag()
        a("v_subrev_u32 v8, 256, v0")
        a("v_lshlrev_b32 v9, 4, v8")
        a(f"s_lshl_b32 s66, s73, 14")
        a(f"s_lshl_b32 s67, s74, 12")
        a(f"s_add_u32 s66, s66, s67")
        a(f"s_add_u32 s66, s66, {WS_QP}")
        a(f"s_add_u32 s67, s66, 131072")
        self.poll([(f"buffer_load_dwordx4 {v(32+4*k,4)}, v9, {WS_}, s{66+k} offen sc1", 32 + 4 * k, 4) for k in range(2)], 24)
        self.stamp(sb + 2)
        for i in range(4):
            a(f"v_add_f32 v{32+i}, v{32+i}, v{36+i}")
        a("v_cvt_pk_bf16_f32 v32, v32, v33")
        a("v_cvt_pk_bf16_f32 v33, v34, v35")
        a(f"v_lshlrev_b32 v8, 3, v8")
        a(f"ds_write_b64 v8, v[32:33] offset:{L_AUX}")
        a("s_waitcnt lgkmcnt(0)")
        a.label(Lb1)
        a("s_barrier")
        a(f"s_cmp_ge_u32 {sW}, 4")
        a(f"s_cbranch_scc1 {Lb2}")
        self.q = qkv
        a(f"ds_read_b128 v[24:27], v8 offset:{L_AUX}")
        a(f"ds_read_b128 v[12:15], v8 offset:{L_AUX+128}")
        a("s_waitcnt lgkmcnt(0)")
        for t in range(8):
            a(f"v_mfma_f32_16x16x32_bf16 {v(32+4*t,4)}, {v(64+8*t,4)}, v[24:27], 0")
            a(f"v_mfma_f32_16x16x32_bf16 {v(32+4*t,4)}, {v(64+8*t+4,4)}, v[12:15], {v(32+4*t,4)}")
        self.merge64(32, 16)
        Z = list(range(16, 24))
        self.bf16r_pairs(Z, 24)
        for z in Z:
            a(f"v_mul_f32 v{z}, 0x{SCALE:x}, v{z}")
        self.bf16r_pairs(Z, 24)
        for z in Z:
            a(f"v_mul_f32 v{z}, 0x{LOG2E:x}, v{z}")
        a("v_max3_f32 v12, v16, v17, v18")
        a("v_max3_f32 v12, v12, v19, v20")
        a("v_max3_f32 v12, v12, v21, v22")
        a("v_max_f32 v12, v12, v23")
        self.allred_rows([12], "v_max_f32", [13])
        for z in Z:
            a(f"v_sub_f32 v{z}, v{z}, v12")
        for z in Z:
            a(f"v_exp_f32 v{z}, v{z}")
        for p in range(4):
            a(f"v_cvt_pk_bf16_f32 v{24+p}, v{16+2*p}, v{16+2*p+1}")
        a("v_add_f32 v13, v16, v17")
        for z in Z[2:]:
            a(f"v_add_f32 v13, v13, v{z}")
        self.allred_rows([13], "v_add_f32", [14])
        a(f"s_lshl_b32 s67, {sW}, 3")
        a(f"v_add_u32 v8, s67, {vB}")
        a(f"v_lshlrev_b32 v9, 3, v8")
        a(f"ds_write_b64 v9, v[12:13] offset:{L_AUX+2048}")
        a(f"v_mul_u32_u24 v8, {132*4}, v8")
        a(f"v_lshl_add_u32 v9, {vG}, 1, {vHI}")
        a(f"v_lshl_add_u32 v8, v9, 5, v8")
        self.wait("V")
        self.stamp(sb + 1)
        for dh in range(2):
            self.perms(128 + 32 * dh, 192 + 32 * dh)
            for jj in range(8):
                a(f"v_mfma_f32_16x16x32_bf16 {v(64+32*dh+4*jj,4)}, {v(192+32*dh+4*jj,4)}, v[24:27], 0")
        self.merge64(64, 32)
        self.merge64(96, 40)
        for dh in range(2):
            for q in range(2):
                a(f"ds_write_b128 v8, {v(32+8*dh+4*q,4)} offset:{lr+256*dh+16*q}")
        a("s_waitcnt lgkmcnt(0)")
        a.label(Lb2)
        self.q = []
        a("s_barrier")
        a(f"s_cmp_ge_u32 {sW}, 5")
        a(f"s_cbranch_scc1 {Lend}")
        a("v_lshrrev_b32 v8, 5, v0")
        a(f"s_cmp_eq_u32 {sW}, 4")
        a("s_cselect_b64 vcc, -1, 0")
        a(f"v_cndmask_b32 v8, v8, {vB}, vcc")
        a(f"v_lshlrev_b32 v9, 3, v8")
        for w in range(4):
            a(f"ds_read_b64 {v(16+2*w,2)}, v9 offset:{L_AUX+2048+64*w}")
        a(f"v_mul_u32_u24 v9, {132*4}, v8")
        a("v_and_b32 v10, 31, v0")
        a("v_lshl_add_u32 v9, v10, 4, v9")
        for w in range(4):
            a(f"ds_read_b128 {v(32+4*w,4)}, v9 offset:{lr+w*8*132*4}")
        a("s_waitcnt lgkmcnt(4)")
        a("v_max3_f32 v12, v16, v18, v20")
        a("v_max_f32 v12, v12, v22")
        for w in range(4):
            a(f"v_sub_f32 v{16+2*w}, v{16+2*w}, v12")
        for w in range(4):
            a(f"v_exp_f32 v{16+2*w}, v{16+2*w}")
        a("v_mul_f32 v13, v16, v17")
        for w in range(1, 4):
            a(f"v_fmac_f32 v13, v{16+2*w}, v{17+2*w}")
        Lw4 = a.newlabel("L_attw4")
        a(f"s_cmp_eq_u32 {sW}, 4")
        a(f"s_cbranch_scc1 {Lw4}")
        a("v_rcp_f32 v14, v13")
        for w in range(4):
            a(f"v_mul_f32 v{16+2*w}, v{16+2*w}, v14")
        a("s_waitcnt lgkmcnt(0)")
        for i in range(4):
            a(f"v_mul_f32 v{24+i}, v16, v{32+i}")
        for w in range(1, 4):
            for i in range(4):
                a(f"v_fmac_f32 v{24+i}, v{16+2*w}, v{32+4*w+i}")
        self.tag([24, 25, 26, 27])
        a(f"buffer_store_dwordx4 v[24:27], v11, {WS_}, s75 offen sc1")
        a(f"s_branch {Lend}")
        a.label(Lw4)
        a("v_log_f32 v13, v13")
        a("s_waitcnt lgkmcnt(0)")
        a("v_add_f32 v13, v12, v13")
        a("v_and_b32 v24, 0xffffff00, v13")
        a("v_sub_f32 v25, v13, v24")
        self.tag([24, 25])
        a(f"s_lshl_b32 s66, s73, 2")
        a(f"s_add_u32 s66, s66, s72")
        a(f"s_lshl_b32 s66, s66, 3")
        a(f"s_lshl_b32 s67, s74, 11")
        a(f"s_add_u32 s66, s66, s67")
        a(f"s_add_u32 s66, s66, {WS_LSE}")
        a(f"v_lshlrev_b32 v13, 8, {vB}")
        a("s_mov_b64 exec, 0xff")
        a(f"buffer_store_dwordx2 v[24:25], v13, {WS_}, s66 offen sc1")
        a("s_mov_b64 exec, -1")
        a.label(Lend)
        self.stamp(sb + 3)

    def p3_issue(self, raw, D):
        a = self.a
        RS = 2048
        self.stamp(SLOT["P3"])
        self.woff_u64(RS)
        a(f"s_lshl_b32 s66, {sX}, 20")
        a(f"s_lshl_b32 s67, {sW}, 17")
        a(f"s_add_u32 s66, s66, s67")
        a(f"s_lshl_b32 s67, s68, 7")
        a(f"s_add_u32 s66, s66, s67")
        self.issue_unit(WO_, RS, raw, D, "P3", True)

    def p3_exec(self, tb, lr, lt):
        a = self.a
        sb = SLOT["P3"]
        a(f"s_lshl_b32 s69, {sX}, 9")
        a(f"s_lshl_b32 s67, {sW}, 6")
        a(f"s_add_u32 s69, s69, s67")
        a(f"s_lshl_b32 s70, {sX}, 15")
        a(f"s_lshl_b32 s67, s68, 8")
        a(f"s_add_u32 s70, s70, s67")
        a(f"s_lshl_b32 s67, {sW}, 12")
        a(f"s_add_u32 s70, s70, s67")
        a(f"s_add_u32 s70, s70, {WS_AP}")
        a(f"v_lshlrev_b32 v8, 14, {vG}")
        a(f"v_lshl_add_u32 v8, {vI}, 4, v8")
        a(f"v_lshlrev_b32 v9, 5, {vB}")
        a(f"v_lshl_add_u32 v9, {vG}, 3, v9")
        a(f"s_lshl_b32 s72, s69, 2")
        a(f"s_add_u32 s72, s72, {WS_OP}")
        for k in range(1, 8):
            a(f"s_add_u32 s{72+k}, s72, {65536*k}")
        a(f"s_lshr_b32 s71, s69, 7")
        a(f"s_lshl_b32 s71, s71, 8")
        a(f"s_add_u32 s71, s71, {WS_LSE}")
        a(f"v_lshlrev_b32 v13, 2, {vLANE}")
        a(f"v_lshl_add_u32 v28, {vLANE}, 3, s71")
        a(f"s_lshl_b32 s67, s68, 15")
        a(f"s_add_u32 s67, s67, s72")
        a(f"v_bfe_u32 v29, v0, 1, 1")
        a(f"v_lshl_add_u32 v29, v29, 14, s67")
        a(f"v_and_b32 v30, 1, v0")
        a(f"v_lshl_add_u32 v29, v30, 7, v29")
        a(f"v_cmp_gt_u32 vcc, 32, {vLANE}")
        a(f"v_cndmask_b32 v28, v29, v28, vcc")
        a(f"s_mul_i32 s67, {sW}, 1152")
        a(f"v_mul_u32_u24 v29, 288, {vG}")
        a(f"v_lshl_add_u32 v29, {vI}, 3, v29")
        a(f"v_add_u32 v29, s67, v29")
        a(f"v_mul_u32_u24 v30, 144, {vB}")
        a(f"v_lshl_add_u32 v30, {vHI}, 6, v30")
        a(f"v_lshl_add_u32 v30, {vG}, 4, v30")
        a(f"v_add_u32 v30, s67, v30")
        self.stamp(sb + 1)
        pl = [(f"buffer_load_dwordx2 v[26:27], v9, {WS_}, s71 offen sc1", 26, 2)]
        for b in range(8):
            r = 32 + 4 * b
            pl.append((f"buffer_load_dwordx4 {v(r,4)}, v8, {WS_}, s{72+b} offen sc1", r, 4))
        self.poll(pl, 24, gate=(0xfffffffff, 28, "0"), gs=42)
        self.stamp(sb + 2)
        a("v_and_b32 v26, 0xffffff00, v26")
        a("v_add_f32 v26, v26, v27")
        a("v_mov_b32 v16, v26")
        self.allred_rows([16], "v_max_f32", [17], start8=False)
        a("v_sub_f32 v26, v26, v16")
        a("v_exp_f32 v26, v26")
        a("v_mov_b32 v16, v26")
        self.allred_rows([16], "v_add_f32", [17], start8=False)
        a("v_rcp_f32 v16, v16")
        a("v_mul_f32 v26, v26, v16")
        for b in range(8):
            for e in range(4):
                r = 32 + 4 * b + e
                a(f"v_mul_f32_dpp v{r}, v26, v{r} row_newbcast:{b} row_mask:0xf bank_mask:0xf")
        for r in range(32, 48):
            a(f"v_permlane32_swap_b32 v{r}, v{r+16}")
        for r in range(32, 48):
            a(f"v_add_f32 v{r}, v{r}, v{r+16}")
        for r in range(32, 40):
            a(f"v_permlane16_swap_b32 v{r}, v{r+8}")
        for r in range(32, 40):
            a(f"v_add_f32 v{r}, v{r}, v{r+8}")
        for p in range(4):
            a(f"v_cvt_pk_bf16_f32 v{16+p}, v{32+2*p}, v{33+2*p}")
        a(f"ds_write_b64 v29, v[16:17] offset:{lt}")
        a(f"ds_write_b64 v29, v[18:19] offset:{lt+144}")
        a("s_waitcnt lgkmcnt(0)")
        a(f"ds_read_b128 {v(BB,4)}, v30 offset:{lt}")
        a("s_waitcnt lgkmcnt(0)")
        self.tail([tb], 8, lr, lambda: self.publish1("v13", "s70"))
        self.stamp(sb + 3)

    def r3(self):
        a = self.a
        sb = SLOT["R3"]
        self.stamp(sb)
        a(f"v_and_b32 v9, 31, {vLANE}")
        a(f"v_lshlrev_b32 v9, 4, v9")
        a(f"v_lshrrev_b32 v8, 5, {vLANE}")
        a(f"v_mul_u32_u24 v10, {8*3072*4}, v8")
        a(f"v_add_u32 v10, v10, v9")
        a(f"v_lshl_add_u32 v8, v8, 17, v9")
        a(f"s_lshl_b32 s67, {sW}, 9")
        a(f"s_lshl_b32 s71, s69, 12")
        a(f"s_add_u32 s71, s71, s67")
        a(f"s_mul_i32 s72, s69, {3072*4}")
        a(f"s_add_u32 s72, s72, s67")
        a(f"s_add_u32 s72, s72, {WS_MODR}")
        a(f"s_add_u32 s73, s72, 4096")
        a(f"s_add_u32 s74, s72, 8192")
        a(f"v_lshrrev_b32 v14, 1, v9")
        a(f"s_lshr_b32 s67, s71, 1")
        self.ld(f"buffer_load_dwordx2 v[28:29], v14, {X_}, s67 offen", "x")
        self.poll([(f"buffer_load_dwordx4 {v(48+4*m,4)}, v10, {WS_}, s{72+m} offen sc1", 48 + 4 * m, 4) for m in range(3)], 24)
        M = list(range(48, 60))
        T = list(range(32, 44))
        for r, t in zip(M, T):
            a(f"v_mov_b32 v{t}, v{r}")
        for r, t in zip(M, T):
            a(f"v_permlane32_swap_b32 v{r}, v{t}")
        for r, t in zip(M, T):
            a(f"v_add_f32 v{r}, v{r}, v{t}")
        self.bf16r_pairs(M, 24)
        for i in range(4):
            a(f"v_add_f32 v{56+i}, 1.0, v{56+i}")
        self.bf16r_pairs([56, 57, 58, 59], 24)
        self.unpack_bf16(28, 60, 2)
        a(f"s_add_u32 s72, s71, {WS_AP}")
        for k in range(1, 4):
            a(f"s_add_u32 s{72+k}, s72, {32768*k}")
        a(f"s_lshl_b32 s67, {sX}, 15")
        a(f"s_add_u32 s71, s71, s67")
        a(f"s_lshl_b32 s70, {sX}, 3")
        a(f"s_add_u32 s70, s70, s69")
        a(f"s_mul_i32 s70, s70, {H2R}")
        a(f"s_lshl_b32 s67, {sW}, 9")
        a(f"s_add_u32 s70, s70, s67")
        a(f"s_add_u32 s70, s70, {WS_H2}")
        a(f"s_add_u32 s76, s70, {FS}")
        a(f"s_add_u32 s71, s71, {WS_X1}")
        a(f"s_lshl_b32 s67, {sW}, 3")
        a("v_mov_b32 v14, s67")
        a("v_mov_b32 v15, 0")
        self.stamp(sb + 1)
        self.poll([(f"buffer_load_dwordx4 {v(32+4*k,4)}, v8, {WS_}, s{72+k} offen sc1", 32 + 4 * k, 4) for k in range(4)], 24)
        self.stamp(sb + 2)
        for i in range(4):
            a(f"v_add_f32 v{32+i}, v{32+i}, v{36+i}")
            a(f"v_add_f32 v{40+i}, v{40+i}, v{44+i}")
        for i in range(4):
            a(f"v_add_f32 v{32+i}, v{32+i}, v{40+i}")
        for i in range(4):
            a(f"v_mov_b32 v{36+i}, v{32+i}")
        for i in range(4):
            a(f"v_permlane32_swap_b32 v{32+i}, v{36+i}")
        for i in range(4):
            a(f"v_add_f32 v{32+i}, v{32+i}, v{36+i}")
        X = [32, 33, 34, 35]
        self.bf16r_pairs(X, 24)
        for i in range(4):
            a(f"v_mul_f32 v{32+i}, v{32+i}, v{48+i}")
        self.bf16r_pairs(X, 24)
        for i in range(4):
            a(f"v_add_f32 v{32+i}, v{32+i}, v{60+i}")
        self.bf16r_pairs(X, 24)
        a("v_add_f32 v16, v32, v33")
        a("v_mul_f32 v17, v32, v32")
        a("v_add_f32 v18, v34, v35")
        a("v_fmac_f32 v17, v33, v33")
        a("v_add_f32 v16, v16, v18")
        a("v_fmac_f32 v17, v34, v34")
        a("v_fmac_f32 v17, v35, v35")
        self.allred_wave([16, 17], [18, 19], n32=True)
        a(f"ds_write_b64 v14, v[16:17] offset:{L_AUX+128}")
        for i in range(4):
            a(f"v_bfi_b32 v{36+i}, {vFF}, {sT}, v{32+i}")
        a("s_mov_b32 exec_hi, 0")
        a(f"buffer_store_dwordx4 v[36:39], v9, {WS_}, s71 offen sc1")
        a("s_mov_b32 exec_hi, -1")
        a("s_waitcnt lgkmcnt(0)")
        a("s_barrier")
        for q in range(4):
            a(f"ds_read_b128 {v(16+4*q,4)}, v15 offset:{L_AUX+128+16*q}")
        a("s_waitcnt lgkmcnt(2)")
        a("v_add_f32 v16, v16, v18")
        a("v_add_f32 v17, v17, v19")
        a("v_add_f32 v20, v20, v22")
        a("v_add_f32 v21, v21, v23")
        a("s_waitcnt lgkmcnt(0)")
        a("v_add_f32 v24, v24, v26")
        a("v_add_f32 v25, v25, v27")
        a("v_add_f32 v28, v28, v30")
        a("v_add_f32 v29, v29, v31")
        a("v_add_f32 v16, v16, v20")
        a("v_add_f32 v17, v17, v21")
        a("v_add_f32 v24, v24, v28")
        a("v_add_f32 v25, v25, v29")
        a("v_add_f32 v16, v16, v24")
        a("v_add_f32 v17, v17, v25")
        a("v_mul_f32 v16, 0x3a800000, v16")
        a("v_mul_f32 v17, 0x3a800000, v17")
        a("v_fma_f32 v17, -v16, v16, v17")
        a("v_max_f32 v17, 0, v17")
        self.ln_consts(16, 17, 18)
        for x in X:
            a(f"v_sub_f32 v{x}, v{x}, v16")
        self.bf16r_pairs(X, 24)
        for x in X:
            a(f"v_mul_f32 v{x}, v{x}, v17")
        self.bf16r_pairs(X, 24)
        for i in range(4):
            a(f"v_mul_f32 v{32+i}, v{32+i}, v{56+i}")
        self.bf16r_pairs(X, 24)
        for i in range(4):
            a(f"v_add_f32 v{32+i}, v{32+i}, v{52+i}")
        self.bf16r_pairs(X, 24)
        self.tag(X)
        a("s_mov_b32 exec_hi, 0")
        a(f"buffer_store_dwordx4 v[32:35], v9, {WS_}, s70 offen")
        a(f"buffer_store_dwordx4 v[32:35], v9, {WS_}, s76 offen sc1")
        a("s_mov_b32 exec_hi, -1")
        self.stamp(sb + 3)

    def two_issue(self, srd, RS, D, tag):
        self.issue_unit(srd, RS, A[0], D, tag + "0", True)
        self.issue_unit(srd, RS, A[1], D, tag + "1", False)

    def two_finish(self, tag):
        self.wait(tag + "0")
        self.perms(A[0], A[2])
        self.wait(tag + "1")
        self.perms(A[1], A[0])
        return [A[2], A[0]]

    def p4(self, lr, lt, D):
        a = self.a
        RS = 7168
        sb = SLOT["P4"]
        self.stamp(sb)
        a(f"s_lshr_b32 s72, s68, 1")
        a(f"s_mul_i32 s67, {sX}, 7")
        a(f"s_add_u32 s72, s72, s67")
        a(f"s_and_b32 s71, s68, 1")
        a("s_cselect_b32 s60, s32, s28")
        a("s_cselect_b32 s61, s33, s29")
        a("s_mov_b32 s62, 7340032")
        a("s_mov_b32 s63, 0x20000")
        self.woff_u64(RS)
        a(f"s_mul_i32 s66, {sW}, {128*RS}")
        a(f"s_lshl_b32 s67, s72, 7")
        a(f"s_add_u32 s66, s66, s67")
        self.two_issue(W_, RS, D, "P4")
        self.red_addr(frag=True)
        a(f"s_mul_i32 s70, s71, {56*2048}")
        a(f"s_lshl_b32 s67, s72, 11")
        a(f"s_add_u32 s70, s70, s67")
        a(f"s_lshl_b32 s67, {sW}, 8")
        a(f"s_add_u32 s70, s70, s67")
        a(f"s_add_u32 s70, s70, {WS_GU}")
        a(f"v_lshrrev_b32 v8, 5, {vLANE}")
        a(f"v_and_b32 v10, 31, {vLANE}")
        a(f"v_mul_u32_u24 v9, {H2R}, v8")
        a(f"v_lshl_add_u32 v9, v10, 4, v9")
        a(f"v_mul_u32_u24 v26, {H2R}, {vLANE}")
        a(f"s_and_b32 s67, s68, 3")
        a(f"s_lshl_b32 s67, s67, 7")
        a(f"v_add_u32 v26, s67, v26")
        a(f"s_mul_i32 s67, {sW}, 2176")
        a(f"v_mul_u32_u24 v29, 272, v8")
        a(f"v_lshl_add_u32 v29, v10, 3, v29")
        a(f"v_add_u32 v29, s67, v29")
        a(f"v_mul_u32_u24 v30, 272, {vB}")
        a(f"v_lshl_add_u32 v30, {vHI}, 6, v30")
        a(f"v_lshl_add_u32 v30, {vG}, 4, v30")
        a(f"v_add_u32 v30, s67, v30")
        a(f"s_mul_i32 s72, {sX}, {8*H2R}")
        a(f"s_lshl_b32 s67, {sW}, 9")
        a(f"s_add_u32 s72, s72, s67")
        a(f"s_add_u32 s72, s72, {WS_H2}")
        for i in range(1, 4):
            a(f"s_add_u32 s{72+i}, s72, {2*H2R*i}")
        a(f"v_lshlrev_b32 v13, 2, {vLANE}")
        tbs = self.two_finish("P4")
        self.stamp(sb + 1)
        pl = []
        for i in range(4):
            r = 32 + 4 * i
            pl.append((f"buffer_load_dwordx4 {v(r,4)}, v9, {WS_}, s{76+i} offen sc1", r, 4))
        self.poll(pl, 24, gate=(0xff, 26, "s76"), fs=[(f"s{76+i}", f"s{72+i}") for i in range(4)], gs=44)
        self.stamp(sb + 2)
        for p in range(8):
            a(f"v_perm_b32 v{16+p}, v{33+2*p}, v{32+2*p}, {sSEL1}")
        for i in range(4):
            a(f"ds_write_b64 v29, {v(16+2*i,2)} offset:{lt+544*i}")
        a("s_waitcnt lgkmcnt(0)")
        for u in range(2):
            a(f"ds_read_b128 {v(BB+4*u,4)}, v30 offset:{lt+128*u}")
        a("s_waitcnt lgkmcnt(0)")

        def epi():
            self.bf16r1(16)
            Lu = a.newlabel("L_p4up")
            a("s_cmp_lg_u32 s71, 0")
            a(f"s_cbranch_scc1 {Lu}")
            a(f"v_mul_f32 v17, 0x{LOG2E ^ 0x80000000:x}, v16")
            a(f"v_exp_f32 v17, v17")
            a(f"v_add_f32 v17, 1.0, v17")
            a(f"v_rcp_f32 v17, v17")
            a(f"v_mul_f32 v16, v16, v17")
            self.bf16r1(16)
            a.label(Lu)
            self.publish1("v13", "s70", fast=True)
        self.tail(tbs, 8, lr, epi)
        self.stamp(sb + 3)

    def p5_issue(self, raw, D):
        a = self.a
        RS = 2048
        self.stamp(SLOT["P5"])
        self.woff_u64(RS)
        a(f"s_mul_i32 s66, {sX}, {448*2048}")
        a(f"s_min_u32 s67, {sW}, 6")
        a(f"s_lshl_b32 s67, s67, 17")
        a(f"s_add_u32 s66, s66, s67")
        a(f"s_lshl_b32 s67, s68, 7")
        a(f"s_add_u32 s66, s66, s67")
        Lsk = a.newlabel("L_p5i")
        a(f"s_cmp_ge_u32 {sW}, 7")
        a(f"s_cbranch_scc1 {Lsk}")
        self.issue_unit(WD_, RS, raw, D, "P5", True)
        a.label(Lsk)

    def p5_exec(self, tb, lr):
        a = self.a
        sb = SLOT["P5"]
        a(f"s_lshl_b32 s70, {sX}, 15")
        a(f"s_lshl_b32 s67, s68, 8")
        a(f"s_add_u32 s70, s70, s67")
        a(f"s_lshl_b32 s67, {sW}, 12")
        a(f"s_add_u32 s70, s70, s67")
        a(f"s_add_u32 s70, s70, {WS_DP}")
        a(f"v_lshlrev_b32 v8, 4, {vLANE}")
        a(f"s_mul_i32 s73, {sX}, {7*2048}")
        a(f"s_lshl_b32 s67, {sW}, 11")
        a(f"s_add_u32 s73, s73, s67")
        a(f"s_add_u32 s73, s73, {WS_GU}")
        a(f"s_add_u32 s74, s73, {56*2048}")
        a(f"v_mul_u32_u24 v26, {56*2048}, {vLANE}")
        a(f"s_lshl_b32 s67, s68, 7")
        a(f"v_add_u32 v26, s67, v26")
        a(f"v_lshlrev_b32 v13, 2, {vLANE}")
        self.stamp(sb + 1)
        Lsk = a.newlabel("L_p5skip")
        a(f"s_cmp_ge_u32 {sW}, 7")
        a(f"s_cbranch_scc1 {Lsk}")
        pl = []
        for m, so in enumerate(("s75", "s76")):
            for q in range(2):
                r = 32 + 8 * m + 4 * q
                pl.append((f"buffer_load_dwordx4 {v(r,4)}, v8, {WS_}, {so} offen offset:{1024*q} sc1", r, 4))
        self.poll(pl, 24, gate=(0x3, 26, "s75"), fs=[("s75", "s73"), ("s76", "s74")], gs=46)
        self.stamp(sb + 2)
        for e in range(16):
            a(f"v_and_b32 v{32+e}, 0xffff0000, v{32+e}")
        for e in range(8):
            a(f"v_mul_f32 v{32+e}, v{32+e}, v{40+e}")
        for p in range(4):
            a(f"v_cvt_pk_bf16_f32 v{BB+p}, v{32+2*p}, v{33+2*p}")
        a.label(Lsk)
        self.tail([tb], 7, lr, lambda: self.publish1("v13", "s70"))
        self.stamp(sb + 3)

    def gb_r5(self, lr, D):
        a = self.a
        RS = 12288
        sb = SLOT["GB"]
        self.stamp(sb)
        self.woff_u64(RS)
        a(f"s_mul_i32 s66, {sW}, {128*RS}")
        a(f"s_lshl_b32 s67, s68, 7")
        a(f"s_add_u32 s66, s66, s67")
        a(f"s_add_u32 s66, s66, {5120*2}")
        self.koff(8, 11, 1)
        a(f"s_lshl_b32 s67, {sW}, 8")
        self.ld(f"buffer_load_dwordx4 v[56:59], v8, {C_}, s67 offen", "c")
        self.ld(f"buffer_load_dwordx4 v[60:63], v8, {C_}, s67 offen offset:128", "c")
        self.two_issue(WM_, RS, D, "GB")
        self.red_addr()
        self.wait("c")
        self.silu_c(56, BB)
        self.silu_c(60, BB + 4)
        tbs = self.two_finish("GB")
        self.stamp(sb + 1)

        def epi():
            self.bf16r1(16)
            a("v_mov_b32 v15, v16")
        self.tail(tbs, 8, lr, epi)
        self.stamp(sb + 3)
        sb = SLOT["R5"]
        self.stamp(sb)
        a(f"v_lshlrev_b32 v13, 2, {vLANE}")
        a(f"s_lshl_b32 s69, s68, 8")
        a(f"s_lshl_b32 s67, {sW}, 12")
        a(f"s_add_u32 s69, s69, s67")
        a(f"s_lshl_b32 s67, {sX}, 15")
        a(f"s_add_u32 s70, s69, s67")
        a(f"s_add_u32 s70, s70, {WS_X1}")
        self.poll([(f"buffer_load_dword v14, v13, {WS_}, s70 offen sc1", 14, 1)], 24)
        a("v_and_b32 v14, 0xffff0000, v14")
        a(f"s_add_u32 s72, s69, {WS_DP}")
        for k in range(1, 8):
            a(f"s_add_u32 s{72+k}, s72, {32768*k}")
        a(f"v_lshlrev_b32 v10, 1, {vLANE}")
        a(f"s_lshr_b32 s69, s69, 1")
        self.stamp(sb + 1)
        self.poll([(f"buffer_load_dword v{32+k}, v13, {WS_}, s{72+k} offen sc1", 32 + k, 1) for k in range(8)], 24)
        self.stamp(sb + 2)
        for k in range(4):
            a(f"v_add_f32 v{32+k}, v{32+k}, v{36+k}")
        a("v_add_f32 v32, v32, v33")
        a("v_add_f32 v34, v34, v35")
        a("v_add_f32 v32, v32, v34")
        self.bf16r1(32)
        a("v_mul_f32 v32, v32, v15")
        self.bf16r1(32)
        a("v_add_f32 v32, v32, v14")
        a("v_cvt_pk_bf16_f32 v32, v32, v32")
        a(f"buffer_store_short v32, v10, {OUT_}, s69 offen")
        Lnb = a.newlabel("L_nobump")
        a(f"s_or_b32 s67, s68, {sW}")
        a("s_cmp_lg_u32 s67, 0")
        a(f"s_cbranch_scc1 {Lnb}")
        a(f"s_add_u32 s67, {sEP}, 1")
        a("v_mov_b32 v33, s67")
        a("v_mov_b32 v34, 0")
        a("s_mov_b64 exec, 1")
        a(f"buffer_store_dword v33, v34, {WS_}, 0 offen")
        a("s_mov_b64 exec, -1")
        a.label(Lnb)
        self.stamp(sb + 3)

    def build(self):
        a = self.a
        cfg = self.cfg
        hdr = open(os.path.join(os.path.dirname(os.path.abspath(__file__)), "..", "cdna_kernels", NAME + ".s.ref")).read()
        for line in hdr.split("\n"):
            if line.startswith("; @launch"):
                break
            a.raw(line)
        a.raw(f"; @launch grid=(256,1,1) block=(512,1,1) lds={LDS_BYTES}")
        a.raw('.amdgcn_target "amdgcn-amd-amdhsa--gfx950"')
        a.raw(".text")
        a.raw(f".globl {NAME}_kernel")
        a.raw(".p2align 8")
        a.raw(f".type {NAME}_kernel,@function")
        a.raw(f"{NAME}_kernel:")
        a("s_cmp_ge_u32 s2, 256")
        a("s_cbranch_scc1 L_exit")
        for (s0, ko, nb) in SRD_INFO:
            a(f"s_load_dwordx2 s[{s0}:{s0+1}], s[0:1], {ko}")
        for (s0, ko, nb) in SRD_INFO:
            a(f"s_mov_b32 s{s0+2}, {nb}")
            a(f"s_mov_b32 s{s0+3}, 0x20000")
        a(f"v_and_b32 {vLANE}, 63, v0")
        a("v_lshrrev_b32 v7, 6, v0")
        a(f"v_lshrrev_b32 {vG}, 4, {vLANE}")
        a(f"v_readfirstlane_b32 {sW}, v7")
        a(f"v_and_b32 {vI}, 15, v0")
        a(f"v_and_b32 {vB}, 7, v0")
        a(f"v_bfe_u32 {vHI}, v0, 3, 1")
        a(f"v_mov_b32 {vFF}, 0xff")
        a(f"v_mov_b32 {vSTAMP}, 0")
        a(f"s_mov_b32 {sSEL0}, 0x05040100")
        a(f"s_mov_b32 {sSEL1}, 0x07060302")
        a(f"s_and_b32 {sX}, s2, 7")
        a(f"s_lshr_b32 {sL}, s2, 3")
        a("s_waitcnt lgkmcnt(0)")
        a(f"s_load_dword {sEP}, s[52:53], 0")
        a(f"s_cmp_ge_u32 {sL}, 16")
        a("s_cbranch_scc1 L_G3")
        a(f"s_cmp_ge_u32 {sX}, 4")
        a("s_cbranch_scc1 L_ATT")
        a("; ======== G1")
        a(f"s_lshl_b32 s68, {sL}, 2")
        a(f"s_add_u32 s68, s68, {sX}")
        self.mod_issue("P0A", A[2], cfg["D_p0"])
        self.red_addr(frag=True)
        self.mod_exec("P0A", A[2], A[3], L_R[0])
        a.label("L_ATT")
        a(f"s_mov_b32 s68, {sL}")
        self.q = []
        self.att(L_R[1], cfg["D_att"])
        a(f"s_cmp_lt_u32 {sL}, 14")
        a("s_cbranch_scc1 L_P4")
        a(f"s_lshl_b32 s68, {sX}, 1")
        a(f"s_add_u32 s68, s68, {sL}")
        a(f"s_sub_u32 s68, s68, 14")
        self.gb_r5(L_R[2], cfg["D_gb"])
        a("s_branch L_done")
        a.label("L_P4")
        self.q = []
        self.p4(L_R[2], L_R[0], cfg["D_p4"])
        a("s_branch L_done")
        a.label("L_G3")
        self.q = []
        a("; ======== G3")
        a(f"s_sub_u32 s68, {sL}, 16")
        self.p1(A[0], A[1], L_R[0], cfg["D_p1"])
        self.p3_issue(A[0], cfg["D_p3"])
        Lnorm = a.newlabel("L_norm")

        def rm_block():
            a(f"s_cmp_ge_u32 {sL}, 28")
            a(f"s_cbranch_scc1 {Lnorm}")
            q0 = list(self.q)
            a(f"s_sub_u32 s68, s2, 64")
            self.mod_issue("RM", A[2], cfg["D_rm"])
            self.mod_exec("RM", A[2], A[3], L_R[1])
            a(f"s_sub_u32 s68, {sL}, 16")
            a.label(Lnorm)
            self.q = q0
        if cfg["rm_first"]:
            rm_block()
        self.wait("P3")
        self.perms(A[0], A[1])
        self.p3_exec(A[1], L_R[2], L_R[0])
        if not cfg["rm_first"]:
            rm_block()
        Lnr3 = a.newlabel("L_nor3")
        a(f"s_cmp_lt_u32 {sL}, 24")
        a(f"s_cbranch_scc1 {Lnr3}")
        a(f"s_sub_u32 s69, {sL}, 24")
        self.r3()
        a.label(Lnr3)
        self.p5_issue(A[0], cfg["D_p5"])
        a("s_waitcnt vmcnt(0)")
        self.q = []
        self.perms(A[0], A[1])
        self.p5_exec(A[1], L_R[0])
        a.label("L_done")
        if self.stamps:
            a(f"s_lshl_b32 s66, s2, 3")
            a(f"s_add_u32 s66, s66, {sW}")
            a(f"s_lshl_b32 s66, s66, 8")
            a(f"s_add_u32 s66, s66, {WS_STAMP}")
            a(f"v_lshlrev_b32 v8, 2, {vLANE}")
            a(f"buffer_store_dword {vSTAMP}, v8, {WS_}, s66 offen sc1")
        a.label("L_exit")
        a("s_endpgm")
        a.raw('.section .rodata,"a"')
        a.raw(".p2align 6")
        a.raw(f".amdhsa_kernel {NAME}_kernel")
        a.raw("  .amdhsa_next_free_vgpr 256")
        a.raw("  .amdhsa_next_free_sgpr 102")
        a.raw("  .amdhsa_accum_offset 256")
        a.raw("  .amdhsa_group_segment_fixed_size 0")
        a.raw("  .amdhsa_kernarg_size 112")
        a.raw("  .amdhsa_user_sgpr_count 2")
        a.raw("  .amdhsa_user_sgpr_kernarg_segment_ptr 1")
        a.raw("  .amdhsa_system_sgpr_workgroup_id_x 1")
        a.raw(".end_amdhsa_kernel")
        return a.text()


DEFAULT = dict(D_p0=8, D_p1=8, D_att=8, D_rm=4, D_p3=4, D_p4=4, D_p5=4, D_gb=4, rm_first=True)

if __name__ == "__main__":
    cfg = dict(DEFAULT)
    out = sys.argv[1] if len(sys.argv) > 1 else os.path.join(os.path.dirname(os.path.abspath(__file__)), "..", "cdna_kernels", NAME + ".s")
    if len(sys.argv) > 2 and sys.argv[2] == "stamps":
        cfg["stamps"] = True
    open(out, "w").write(Gen(cfg).build())
    print("wrote", out)
```

```python
import sys, os, struct
sys.path.insert(0, os.path.dirname(os.path.abspath(__file__)))
from asmlib import Asm

NAME = "adaLN_cond__sliding_block_cached__swiglu_ffn__decode"

WS_SAC = 4096
WS_MODR = WS_SAC + 2 * 32 * 2048
WS_QP = WS_MODR + 2 * 8 * 3072 * 4
WS_OP = WS_QP + 2 * 8 * 4096 * 4
WS_LSE = WS_OP + 8 * 4 * 32 * 128 * 4
WS_AP = WS_LSE + 128 * 128
WS_X1 = WS_AP + 8 * 8 * 1024 * 4
WS_DP = WS_X1 + 8 * 8 * 1024 * 4
assert WS_DP + 8 * 8 * 1024 * 4 <= (2 << 20)
FS = 1 << 20
H2R = 4096 + 128
WS_H2 = 2 << 20
WS_GU = WS_H2 + 8 * 8 * H2R + 1024 * 8
assert WS_GU + 2 * 8 * 3584 * 4 <= (3 << 20)
WS_STAMP = 4 << 20
WS_END = WS_STAMP + 256 * 8 * 64 * 4

X_, K_, V_, WQ_, WO_, WG_, WU_, WD_, C_, WM_, OUT_, WS_, DBG_, W_ = [f"s[{8+4*i}:{11+4*i}]" for i in range(14)]
SRD_INFO = [
    (44, 80, 12582912), (20, 24, 8388608), (12, 8, 33554432), (40, 72, 16384), (8, 0, 16384), (52, 104, WS_END),
    (16, 16, 33554432), (24, 32, 8388608), (28, 48, 7340032), (32, 56, 7340032), (36, 64, 7340032),
    (48, 88, 16384)]

sW, sT, sX, sSEL0, sSEL1 = "s3", "s4", "s5", "s6", "s7"
sEP, sL = "s64", "s65"
sPOLL, sDRY, sWE = "s80", "s82", "s83"
sMHI = "s[86:87]"
RSZ = 17408
L_R = [0, RSZ, 2 * RSZ]
L_AUX = 3 * RSZ
LDS_BYTES = 65536
SB = 2064

A = [64, 96, 128, 160]
ACC, BB, RES = 192, 224, 232
vLANE, vG, vI, vB, vHI, vFF, vSTAMP = "v1", "v2", "v3", "v4", "v5", "v6", "v7"
vRW, vRR = "v11", "v12"
YREG = 248
LOG2E = 0x3FB8AA3B
SCALE = struct.unpack("<I", struct.pack("<f", 128 ** -0.5))[0]
EPS = struct.unpack("<I", struct.pack("<f", 1e-5))[0]
SLOT = dict(P0A=0, P1=4, ATT=8, RM=12, P3=16, R3=20, P4=24, P5=28, GB=32, R5=36)


def v(n, cnt=1):
    return f"v{n}" if cnt == 1 else f"v[{n}:{n+cnt-1}]"


class Gen:
    def __init__(self, cfg):
        self.cfg = cfg
        self.a = Asm()
        self.stamps = cfg.get("stamps", False)
        self.poll_limit = cfg.get("poll_limit", 20000)
        self.q = []

    def ld(self, text, tag):
        self.a(text)
        self.q.append(tag)

    def wait(self, tag):
        if tag not in self.q:
            return
        idx = len(self.q) - 1 - self.q[::-1].index(tag)
        self.a(f"s_waitcnt vmcnt({len(self.q)-1-idx})")
        self.q = self.q[idx + 1:]

    def window(self, D):
        if len(self.q) >= D:
            self.a(f"s_waitcnt vmcnt({D-1})")
            self.q = self.q[len(self.q) - (D - 1):] if D > 1 else []

    def stamp(self, slot):
        if not self.stamps:
            return
        a = self.a
        a("s_memrealtime s[90:91]")
        a("s_waitcnt lgkmcnt(0)")
        a(f"v_writelane_b32 {vSTAMP}, s90, {slot}")

    def bf16r_pairs(self, regs, tmp):
        a = self.a
        for i in range(0, len(regs), 2):
            a(f"v_cvt_pk_bf16_f32 v{tmp}, v{regs[i]}, v{regs[i+1]}")
            a(f"v_lshlrev_b32 v{regs[i]}, 16, v{tmp}")
            a(f"v_and_b32 v{regs[i+1]}, 0xffff0000, v{tmp}")

    def bf16r1(self, r):
        a = self.a
        a(f"v_cvt_pk_bf16_f32 v{r}, v{r}, v{r}")
        a(f"v_lshlrev_b32 v{r}, 16, v{r}")

    def unpack_bf16(self, src, dst, n):
        a = self.a
        for i in range(n):
            a(f"v_lshlrev_b32 v{dst+2*i}, 16, v{src+i}")
            a(f"v_and_b32 v{dst+2*i+1}, 0xffff0000, v{src+i}")

    def allred_rows(self, regs, op, tmp, start8=True):
        a = self.a
        for r, t in zip(regs, tmp):
            if start8:
                a(f"{op}_dpp v{t}, v{r}, v{r} row_ror:8 row_mask:0xf bank_mask:0xf")
            else:
                a(f"v_mov_b32 v{t}, v{r}")
        if start8:
            for r, t in zip(regs, tmp):
                a(f"v_mov_b32 v{r}, v{t}")
        for r, t in zip(regs, tmp):
            a(f"v_permlane16_swap_b32 v{r}, v{t}")
        for r, t in zip(regs, tmp):
            a(f"{op} v{t}, v{r}, v{t}")
        for r, t in zip(regs, tmp):
            a(f"v_mov_b32 v{r}, v{t}")
        for r, t in zip(regs, tmp):
            a(f"v_permlane32_swap_b32 v{r}, v{t}")
        for r, t in zip(regs, tmp):
            a(f"{op} v{r}, v{r}, v{t}")

    def allred_wave(self, regs, tmp, op="v_add_f32", n32=False):
        a = self.a
        for r, t in zip(regs, tmp):
            a(f"{op}_dpp v{t}, v{r}, v{r} quad_perm:[1,0,3,2] row_mask:0xf bank_mask:0xf")
        for r, t in zip(regs, tmp):
            a(f"{op}_dpp v{r}, v{t}, v{t} quad_perm:[2,3,0,1] row_mask:0xf bank_mask:0xf")
        for r, t in zip(regs, tmp):
            a(f"{op}_dpp v{t}, v{r}, v{r} row_half_mirror row_mask:0xf bank_mask:0xf")
        for r, t in zip(regs, tmp):
            a(f"{op}_dpp v{r}, v{t}, v{t} row_ror:8 row_mask:0xf bank_mask:0xf")
        for r, t in zip(regs, tmp):
            a(f"v_mov_b32 v{t}, v{r}")
        for r, t in zip(regs, tmp):
            a(f"v_permlane16_swap_b32 v{r}, v{t}")
        for r, t in zip(regs, tmp):
            a(f"{op} v{r}, v{r}, v{t}")
        if n32:
            return
        for r, t in zip(regs, tmp):
            a(f"v_mov_b32 v{t}, v{r}")
        for r, t in zip(regs, tmp):
            a(f"v_permlane32_swap_b32 v{r}, v{t}")
        for r, t in zip(regs, tmp):
            a(f"{op} v{r}, v{r}, v{t}")

    def poll(self, loads, acc, gate=None, fs=None, gs=None):
        a = self.a
        keep = False
        if gate is not None and self.cfg.get("gate", True):
            mask, greg, gsoff = gate
            a(f"s_mov_b32 exec_lo, 0x{mask & 0xffffffff:x}")
            a(f"s_mov_b32 exec_hi, 0x{mask >> 32:x}")
            self.poll([(f"buffer_load_dword v25, v{greg}, {WS_}, {gsoff} offen sc1", 25, 1)], acc, fs=fs)
            a("s_mov_b64 exec, -1")
            keep = True
            if gs is not None:
                self.stamp(gs)
        L = a.newlabel("L_poll")
        D = a.newlabel("L_pdone")
        a(f"s_mov_b32 {sPOLL}, {self.poll_limit | 7}")
        if fs and not keep:
            for so, base in fs:
                a(f"s_mov_b32 {so}, {base}")
        a.label(L)
        for t, _, _ in loads:
            a(t)
        first = True
        for n, (t, r, cnt) in enumerate(loads):
            a(f"s_waitcnt vmcnt({len(loads)-1-n})")
            for i in range(cnt):
                if first:
                    a(f"v_xor_b32 v{acc}, {sT}, v{r+i}")
                    first = False
                else:
                    a(f"v_bitop3_b32 v{acc}, v{r+i}, v{acc}, {sT} bitop3:0xde")
        a(f"v_and_b32 v{acc}, {vFF}, v{acc}")
        a(f"v_cmp_ne_u32 vcc, 0, v{acc}")
        a(f"s_sub_u32 {sPOLL}, {sPOLL}, 1")
        a(f"s_cbranch_vccz {D}")
        if fs:
            a(f"s_and_b32 s81, {sPOLL}, 7")
            a(f"s_cselect_b32 s81, 0, {FS}")
            for so, base in fs:
                a(f"s_add_u32 {so}, {base}, s81")
        a(f"s_cmp_lg_u32 {sPOLL}, 0")
        a(f"s_cbranch_scc1 {L}")
        a.label(D)
        if gs is not None and self.stamps:
            a(f"v_writelane_b32 {vSTAMP}, {sPOLL}, {gs+1}")
        self.q = []

    def tag(self, regs):
        for r in regs:
            self.a(f"v_bfi_b32 v{r}, {vFF}, {sT}, v{r}")

    def perms(self, raw, tb):
        a = self.a
        for jj in range(8):
            for p in range(4):
                a(f"v_perm_b32 v{tb+4*jj+p}, v{raw+4*(2*p+1)+(jj>>1)}, v{raw+4*(2*p)+(jj>>1)}, {sSEL1 if jj & 1 else sSEL0}")

    def woff_u64(self, RS):
        a = self.a
        a(f"v_and_b32 v8, 1, {vI}")
        a(f"v_lshl_add_u32 v8, v8, 2, {vG}")
        a(f"v_mul_u32_u24 v10, {8*RS}, v8")
        a(f"v_lshrrev_b32 v8, 1, {vI}")
        a(f"v_lshl_add_u32 v10, v8, 4, v10")

    def issue_unit(self, srd, RS, raw, D, tag, first):
        for r in range(8):
            self.window(D)
            if not (first and r == 0):
                step = RS if r else (64 - 7) * RS
                self.a(f"s_add_u32 s66, s66, {step}")
            self.ld(f"buffer_load_dwordx4 {v(raw+4*r,4)}, v10, {srd}, s66 offen nt", tag)

    def merge64(self, acc, res):
        a = self.a
        for jj in range(8):
            A_ = acc + 4 * jj
            a(f"v_add_f32_dpp v{res+jj}, v{A_+1}, v{A_} row_ror:8 row_mask:0xf bank_mask:0x3")
        for jj in range(8):
            A_ = acc + 4 * jj
            a(f"v_add_f32_dpp v{res+jj}, v{A_+2}, v{A_+3} row_ror:8 row_mask:0xf bank_mask:0xc")

    def red_addr(self, frag=False):
        a = self.a
        a(f"v_mul_u32_u24 v8, {SB}, {vB}")
        a(f"v_lshl_add_u32 v9, {vG}, 1, {vHI}")
        a(f"v_lshl_add_u32 v8, v9, 5, v8")
        a(f"s_lshl_b32 s67, {sW}, 8")
        a(f"v_add_u32 {vRW}, s67, v8")
        if not frag:
            a(f"s_mul_i32 s67, {sW}, {SB}")
            a(f"v_lshl_add_u32 {vRR}, {vLANE}, 2, s67")
            return
        a(f"v_bfe_u32 v8, v0, 2, 3")
        a(f"v_mul_u32_u24 v8, {SB}, v8")
        a(f"v_bfe_u32 v9, v0, 5, 1")
        a(f"v_lshl_add_u32 v8, v9, 7, v8")
        a(f"v_and_b32 v9, 3, v0")
        a(f"v_lshl_add_u32 v8, v9, 2, v8")
        a(f"v_bfe_u32 v9, v0, 6, 2")
        a(f"v_lshl_add_u32 v8, v9, 5, v8")
        a(f"v_bfe_u32 v9, v0, 8, 1")
        a(f"v_lshl_add_u32 {vRR}, v9, 4, v8")

    def frag_off(self, dst, src, t):
        a = self.a
        a(f"v_lshrrev_b32 v{dst}, 4, {src}")
        a(f"v_lshlrev_b32 v{dst}, 11, v{dst}")
        a(f"v_and_b32 v{t}, 1, {src}")
        a(f"v_lshl_add_u32 v{dst}, v{t}, 10, v{dst}")
        a(f"v_bfe_u32 v{t}, {src}, 1, 2")
        a(f"v_lshl_add_u32 v{dst}, v{t}, 8, v{dst}")
        a(f"v_bfe_u32 v{t}, {src}, 3, 1")
        a(f"v_lshl_add_u32 v{dst}, v{t}, 7, v{dst}")

    def tail(self, tbs, nw, lr, epilogue):
        a = self.a
        Lskip = a.newlabel("L_nomm")
        if nw < 8:
            a(f"s_cmp_ge_u32 {sW}, {nw}")
            a(f"s_cbranch_scc1 {Lskip}")
        for jj in range(8):
            for u, tb in enumerate(tbs):
                c = "0" if u == 0 else v(ACC + 4 * jj, 4)
                a(f"v_mfma_f32_16x16x32_bf16 {v(ACC+4*jj,4)}, {v(tb+4*jj,4)}, {v(BB+4*u,4)}, {c}")
        self.merge64(ACC, RES)
        for q in range(2):
            a(f"ds_write_b128 {vRW}, {v(RES+4*q,4)} offset:{lr+16*q}")
        a("s_waitcnt lgkmcnt(0)")
        a.label(Lskip)
        a("s_barrier")
        assert lr % 256 == 0
        np_ = (nw + 1) // 2
        for p in range(np_):
            if 2 * p + 1 < nw:
                a(f"ds_read2st64_b32 {v(16+2*p,2)}, {vRR} offset0:{lr//256+2*p} offset1:{lr//256+2*p+1}")
            else:
                a(f"ds_read_b32 v{16+2*p}, {vRR} offset:{lr+256*2*p}")
        for p in range(np_):
            a(f"s_waitcnt lgkmcnt({np_-1-p})")
            if p == 0:
                a("v_add_f32 v16, v16, v17")
            else:
                a(f"v_add_f32 v16, v16, v{16+2*p}")
                if 2 * p + 1 < nw:
                    a(f"v_add_f32 v16, v16, v{17+2*p}")
        epilogue()

    def publish1(self, voff, soff, fast=False):
        a = self.a
        self.tag([16])
        if fast:
            a(f"buffer_store_dword v16, {voff}, {WS_}, {soff} offen")
            a(f"s_add_u32 {soff}, {soff}, {FS}")
        a(f"buffer_store_dword v16, {voff}, {WS_}, {soff} offen sc1")

    def get_tag(self):
        a = self.a
        a("s_waitcnt lgkmcnt(0)")
        a(f"s_add_u32 {sT}, {sEP}, 1")
        a(f"s_and_b32 {sT}, {sT}, 0xff")

    def ln_consts(self, m, var, t):
        a = self.a
        self.bf16r_pairs([m, var], t)
        a(f"v_add_f32 v{var}, 0x{EPS:x}, v{var}")
        self.bf16r1(var)
        a(f"v_sqrt_f32 v{var}, v{var}")
        self.bf16r1(var)
        a(f"v_rcp_f32 v{var}, v{var}")

    def silu_c(self, src, dst):
        a = self.a
        self.unpack_bf16(src, 40, 4)
        for e in range(8):
            a(f"v_mul_f32 v{48+e}, 0x{LOG2E ^ 0x80000000:x}, v{40+e}")
        for e in range(8):
            a(f"v_exp_f32 v{48+e}, v{48+e}")
        for e in range(8):
            a(f"v_add_f32 v{48+e}, 1.0, v{48+e}")
        for e in range(8):
            a(f"v_rcp_f32 v{48+e}, v{48+e}")
        for e in range(8):
            a(f"v_mul_f32 v{40+e}, v{40+e}, v{48+e}")
        for p in range(4):
            a(f"v_cvt_pk_bf16_f32 v{dst+p}, v{40+2*p}, v{40+2*p+1}")

    def koff(self, dst, rowlog, esz_log):
        a = self.a
        a(f"v_lshlrev_b32 v{dst}, {rowlog}, {vB}")
        a(f"v_lshl_add_u32 v{dst}, {vHI}, {5+esz_log}, v{dst}")
        a(f"v_lshl_add_u32 v{dst}, {vG}, {3+esz_log}, v{dst}")

    def mod_issue(self, name, raw, D):
        a = self.a
        RS = 12288
        self.stamp(SLOT[name])
        a("s_and_b32 s71, s68, 1")
        a("s_lshl_b32 s69, s71, 9")
        a(f"s_lshl_b32 s67, {sW}, 6")
        a("s_add_u32 s69, s69, s67")
        self.woff_u64(RS)
        a(f"s_mul_i32 s66, s69, {RS}")
        a("s_lshr_b32 s72, s68, 1")
        a("s_lshl_b32 s67, s72, 7")
        a("s_add_u32 s66, s66, s67")
        self.koff(8, 11, 1)
        a("s_lshl_b32 s67, s69, 1")
        self.ld(f"buffer_load_dwordx4 v[60:63], v8, {C_}, s67 offen", name + "c")
        self.issue_unit(WM_, RS, raw, D + 1, name, True)
        if name == "P0A":
            a(f"s_lshl_b32 s70, s71, 16")
            a("s_lshl_b32 s67, s72, 11")
            a("s_add_u32 s70, s70, s67")
            a(f"s_lshl_b32 s67, {sW}, 8")
            a("s_add_u32 s70, s70, s67")
            a(f"s_add_u32 s70, s70, {WS_SAC}")
        else:
            a(f"s_mul_i32 s70, s71, {8*3072*4}")
            a("s_lshl_b32 s67, s72, 8")
            a("s_add_u32 s70, s70, s67")
            a(f"s_mul_i32 s67, {sW}, {3072*4}")
            a("s_add_u32 s70, s70, s67")
            a(f"s_add_u32 s70, s70, {WS_MODR-32*256}")

    def mod_exec(self, name, raw, tb, lr):
        a = self.a
        self.wait(name + "c")
        self.silu_c(60, BB)
        self.get_tag()
        a(f"v_lshlrev_b32 v13, 2, {vLANE}")
        self.wait(name)
        self.stamp(SLOT[name] + 1)
        self.perms(raw, tb)
        self.tail([tb], 8, lr, lambda: self.publish1("v13", "s70"))
        self.stamp(SLOT[name] + 3)

    def p1(self, raw, tb, lr, D):
        a = self.a
        RS = 8192
        sb = SLOT["P1"]
        self.stamp(sb)
        a(f"s_and_b32 s71, {sX}, 1")
        a(f"s_lshr_b32 s72, {sX}, 1")
        a(f"s_lshl_b32 s72, s72, 4")
        a(f"s_add_u32 s72, s72, s68")
        a(f"s_lshl_b32 s69, s71, 9")
        a(f"s_lshl_b32 s67, {sW}, 6")
        a(f"s_add_u32 s69, s69, s67")
        self.woff_u64(RS)
        a(f"s_lshl_b32 s66, s69, 13")
        a(f"s_lshl_b32 s67, s72, 7")
        a(f"s_add_u32 s66, s66, s67")
        a(f"v_lshlrev_b32 v8, 4, {vLANE}")
        a(f"s_lshl_b32 s67, {sW}, 11")
        self.ld(f"buffer_load_dwordx4 v[32:35], v8, {X_}, s67 offen", "x")
        self.ld(f"buffer_load_dwordx4 v[36:39], v8, {X_}, s67 offen offset:1024", "x")
        self.koff(8, 11, 1)
        a(f"s_lshl_b32 s67, s69, 1")
        self.ld(f"buffer_load_dwordx4 v[60:63], v8, {X_}, s67 offen", "x")
        self.issue_unit(WQ_, RS, raw, D + 3, "P1", True)
        a(f"s_lshl_b32 s70, s71, 17")
        a(f"s_lshl_b32 s67, s72, 8")
        a(f"s_add_u32 s70, s70, s67")
        a(f"s_lshl_b32 s67, {sW}, 14")
        a(f"s_add_u32 s70, s70, s67")
        a(f"s_add_u32 s70, s70, {WS_QP}")
        self.red_addr()
        self.wait("x")
        self.unpack_bf16(32, 40, 8)
        a("v_add_f32 v14, v40, v41")
        for e in range(2, 16):
            a(f"v_add_f32 v14, v14, v{40+e}")
        self.allred_wave([14], [15])
        a("v_mul_f32 v14, 0x3a800000, v14")
        a("v_mov_b32 v16, 0")
        for e in range(16):
            a(f"v_sub_f32 v17, v{40+e}, v14")
            a(f"v_fmac_f32 v16, v17, v17")
        self.allred_wave([16], [15])
        a("v_mul_f32 v15, 0x3a800000, v16")
        self.ln_consts(14, 15, 16)
        a(f"s_lshl_b32 s67, {sW}, 3")
        a("v_mov_b32 v16, s67")
        a(f"ds_write_b64 v16, v[14:15] offset:{L_AUX}")
        self.get_tag()
        a("s_barrier")
        a(f"v_lshlrev_b32 v16, 3, {vB}")
        a(f"ds_read_b64 v[14:15], v16 offset:{L_AUX}")
        Y = list(range(YREG, YREG + 8))
        self.unpack_bf16(60, YREG, 4)
        a("s_waitcnt lgkmcnt(0)")
        for y in Y:
            a(f"v_sub_f32 v{y}, v{y}, v14")
        self.bf16r_pairs(Y, 24)
        for y in Y:
            a(f"v_mul_f32 v{y}, v{y}, v15")
        self.bf16r_pairs(Y, 24)
        a(f"v_lshlrev_b32 v8, 4, {vLANE}")
        a(f"s_lshl_b32 s73, s69, 5")
        a(f"s_add_u32 s73, s73, {WS_SAC}")
        a(f"s_add_u32 s74, s73, 65536")
        a(f"s_add_u32 s75, s73, 32768")
        a(f"s_add_u32 s76, s74, 32768")
        a(f"v_lshlrev_b32 v13, 2, {vLANE}")
        a(f"v_lshlrev_b32 v26, 15, {vLANE}")
        a(f"s_lshl_b32 s67, s68, 7")
        a(f"s_add_u32 s77, s67, s73")
        self.wait("P1")
        self.perms(raw, tb)
        self.stamp(sb + 1)
        pl = []
        for m, so in enumerate(("s73", "s74", "s75", "s76")):
            for q in range(2):
                r = 32 + 8 * m + 4 * q
                pl.append((f"buffer_load_dwordx4 {v(r,4)}, v8, {WS_}, {so} offen offset:{1024*q} sc1", r, 4))
        self.poll(pl, 24, gate=(0xf, 26, "s77"), gs=40)
        self.stamp(sb + 2)
        for e in range(8):
            a(f"v_add_f32 v{48+e}, v{48+e}, v{56+e}")
        self.bf16r_pairs(list(range(48, 56)), 24)
        for e in range(8):
            a(f"v_add_f32 v{48+e}, 1.0, v{48+e}")
        self.bf16r_pairs(list(range(48, 56)), 24)
        for e in range(8):
            a(f"v_add_f32 v{32+e}, v{32+e}, v{40+e}")
        self.bf16r_pairs(list(range(32, 40)), 24)
        for e in range(8):
            a(f"v_mul_f32 v{48+e}, v{YREG+e}, v{48+e}")
        self.bf16r_pairs(list(range(48, 56)), 24)
        for e in range(8):
            a(f"v_add_f32 v{48+e}, v{48+e}, v{32+e}")
        for p in range(4):
            a(f"v_cvt_pk_bf16_f32 v{BB+p}, v{48+2*p}, v{49+2*p}")
        self.tail([tb], 8, lr, lambda: self.publish1("v13", "s70"))
        self.stamp(sb + 3)

    def att(self, lr, D):
        a = self.a
        sb = SLOT["ATT"]
        self.stamp(sb)
        Lq = a.newlabel("L_attq")
        Lb1 = a.newlabel("L_attb1")
        Lb2 = a.newlabel("L_attb2")
        Lend = a.newlabel("L_attend")
        a(f"s_and_b32 s72, s68, 3")
        a(f"s_and_b32 s73, {sX}, 1")
        a(f"s_lshl_b32 s73, s73, 2")
        a(f"s_lshr_b32 s67, s68, 2")
        a(f"s_add_u32 s73, s73, s67")
        a(f"s_lshr_b32 s74, {sX}, 1")
        a(f"s_lshl_b32 s71, s73, 2")
        a(f"s_add_u32 s71, s71, s74")
        a("v_lshlrev_b32 v11, 4, v0")
        a(f"s_cmp_ge_u32 {sW}, 4")
        a(f"s_cbranch_scc1 {Lq}")
        q0 = list(self.q)
        a(f"s_lshl_b32 s66, s71, 20")
        a(f"s_lshl_b32 s67, s72, 16")
        a(f"s_add_u32 s66, s66, s67")
        a(f"s_lshl_b32 s67, {sW}, 14")
        a(f"s_add_u32 s66, s66, s67")
        a(f"s_add_u32 s66, s66, {3072*256}")
        a(f"s_mov_b32 s69, s66")
        a(f"v_and_b32 v8, 1, {vI}")
        a(f"v_lshrrev_b32 v9, 1, {vI}")
        a(f"v_lshl_add_u32 v10, v8, 2, {vG}")
        a(f"v_lshlrev_b32 v10, 4, v10")
        a(f"v_lshl_add_u32 v10, v9, 8, v10")
        a(f"v_lshl_add_u32 v14, {vG}, 1, v8")
        a(f"v_lshlrev_b32 v14, 8, v14")
        a(f"v_lshl_add_u32 v14, v9, 4, v14")
        for t in range(8):
            for hs in range(2):
                self.window(D)
                if t and not hs:
                    a("s_add_u32 s66, s66, 2048")
                self.ld(f"buffer_load_dwordx4 {v(64+8*t+4*hs,4)}, v10, {K_}, s66 offen offset:{128*hs} nt", "K")
        for r in range(8):
            for dh in range(2):
                self.window(D)
                if r and not dh:
                    a("s_add_u32 s69, s69, 2048")
                self.ld(f"buffer_load_dwordx4 {v(128+32*dh+4*r,4)}, v14, {V_}, s69 offen offset:{128*dh} nt", "V")
        self.get_tag()
        a(f"s_lshl_b32 s75, s73, 2")
        a(f"s_add_u32 s75, s75, s72")
        a(f"s_lshl_b32 s75, s75, 14")
        a(f"s_lshl_b32 s67, s74, 12")
        a(f"s_add_u32 s75, s75, s67")
        a(f"s_add_u32 s75, s75, {WS_OP}")
        a(f"v_lshl_add_u32 v8, {vHI}, 2, {vG}")
        a(f"v_lshlrev_b32 v8, 4, v8")
        a(f"v_lshl_add_u32 v8, {vB}, 8, v8")
        self.wait("K")
        qkv = list(self.q)
        a(f"s_branch {Lb1}")
        a.label(Lq)
        self.q = q0
        self.get_tag()
        a("v_subrev_u32 v8, 256, v0")
        a("v_lshlrev_b32 v9, 4, v8")
        a(f"s_lshl_b32 s66, s73, 14")
        a(f"s_lshl_b32 s67, s74, 12")
        a(f"s_add_u32 s66, s66, s67")
        a(f"s_add_u32 s66, s66, {WS_QP}")
        a(f"s_add_u32 s67, s66, 131072")
        self.poll([(f"buffer_load_dwordx4 {v(32+4*k,4)}, v9, {WS_}, s{66+k} offen sc1", 32 + 4 * k, 4) for k in range(2)], 24)
        self.stamp(sb + 2)
        for i in range(4):
            a(f"v_add_f32 v{32+i}, v{32+i}, v{36+i}")
        a("v_cvt_pk_bf16_f32 v32, v32, v33")
        a("v_cvt_pk_bf16_f32 v33, v34, v35")
        a(f"v_lshlrev_b32 v8, 3, v8")
        a(f"ds_write_b64 v8, v[32:33] offset:{L_AUX}")
        a("s_waitcnt lgkmcnt(0)")
        a.label(Lb1)
        a("s_barrier")
        a(f"s_cmp_ge_u32 {sW}, 4")
        a(f"s_cbranch_scc1 {Lb2}")
        self.q = qkv
        a(f"ds_read_b128 v[24:27], v8 offset:{L_AUX}")
        a(f"ds_read_b128 v[12:15], v8 offset:{L_AUX+128}")
        a("s_waitcnt lgkmcnt(0)")
        for t in range(8):
            a(f"v_mfma_f32_16x16x32_bf16 {v(32+4*t,4)}, {v(64+8*t,4)}, v[24:27], 0")
            a(f"v_mfma_f32_16x16x32_bf16 {v(32+4*t,4)}, {v(64+8*t+4,4)}, v[12:15], {v(32+4*t,4)}")
        self.merge64(32, 16)
        Z = list(range(16, 24))
        self.bf16r_pairs(Z, 24)
        for z in Z:
            a(f"v_mul_f32 v{z}, 0x{SCALE:x}, v{z}")
        self.bf16r_pairs(Z, 24)
        for z in Z:
            a(f"v_mul_f32 v{z}, 0x{LOG2E:x}, v{z}")
        a("v_max3_f32 v12, v16, v17, v18")
        a("v_max3_f32 v12, v12, v19, v20")
        a("v_max3_f32 v12, v12, v21, v22")
        a("v_max_f32 v12, v12, v23")
        self.allred_rows([12], "v_max_f32", [13])
        for z in Z:
            a(f"v_sub_f32 v{z}, v{z}, v12")
        for z in Z:
            a(f"v_exp_f32 v{z}, v{z}")
        for p in range(4):
            a(f"v_cvt_pk_bf16_f32 v{24+p}, v{16+2*p}, v{16+2*p+1}")
        a("v_add_f32 v13, v16, v17")
        for z in Z[2:]:
            a(f"v_add_f32 v13, v13, v{z}")
        self.allred_rows([13], "v_add_f32", [14])
        a(f"s_lshl_b32 s67, {sW}, 3")
        a(f"v_add_u32 v8, s67, {vB}")
        a(f"v_lshlrev_b32 v9, 3, v8")
        a(f"ds_write_b64 v9, v[12:13] offset:{L_AUX+2048}")
        a(f"v_mul_u32_u24 v8, {132*4}, v8")
        a(f"v_lshl_add_u32 v9, {vG}, 1, {vHI}")
        a(f"v_lshl_add_u32 v8, v9, 5, v8")
        self.wait("V")
        self.stamp(sb + 1)
        for dh in range(2):
            self.perms(128 + 32 * dh, 192 + 32 * dh)
            for jj in range(8):
                a(f"v_mfma_f32_16x16x32_bf16 {v(64+32*dh+4*jj,4)}, {v(192+32*dh+4*jj,4)}, v[24:27], 0")
        self.merge64(64, 32)
        self.merge64(96, 40)
        for dh in range(2):
            for q in range(2):
                a(f"ds_write_b128 v8, {v(32+8*dh+4*q,4)} offset:{lr+256*dh+16*q}")
        a("s_waitcnt lgkmcnt(0)")
        a.label(Lb2)
        self.q = []
        a("s_barrier")
        a(f"s_cmp_ge_u32 {sW}, 5")
        a(f"s_cbranch_scc1 {Lend}")
        a("v_lshrrev_b32 v8, 5, v0")
        a(f"s_cmp_eq_u32 {sW}, 4")
        a("s_cselect_b64 vcc, -1, 0")
        a(f"v_cndmask_b32 v8, v8, {vB}, vcc")
        a(f"v_lshlrev_b32 v9, 3, v8")
        for w in range(4):
            a(f"ds_read_b64 {v(16+2*w,2)}, v9 offset:{L_AUX+2048+64*w}")
        a(f"v_mul_u32_u24 v9, {132*4}, v8")
        a("v_and_b32 v10, 31, v0")
        a("v_lshl_add_u32 v9, v10, 4, v9")
        for w in range(4):
            a(f"ds_read_b128 {v(32+4*w,4)}, v9 offset:{lr+w*8*132*4}")
        a("s_waitcnt lgkmcnt(4)")
        a("v_max3_f32 v12, v16, v18, v20")
        a("v_max_f32 v12, v12, v22")
        for w in range(4):
            a(f"v_sub_f32 v{16+2*w}, v{16+2*w}, v12")
        for w in range(4):
            a(f"v_exp_f32 v{16+2*w}, v{16+2*w}")
        a("v_mul_f32 v13, v16, v17")
        for w in range(1, 4):
            a(f"v_fmac_f32 v13, v{16+2*w}, v{17+2*w}")
        Lw4 = a.newlabel("L_attw4")
        a(f"s_cmp_eq_u32 {sW}, 4")
        a(f"s_cbranch_scc1 {Lw4}")
        a("v_rcp_f32 v14, v13")
        for w in range(4):
            a(f"v_mul_f32 v{16+2*w}, v{16+2*w}, v14")
        a("s_waitcnt lgkmcnt(0)")
        for i in range(4):
            a(f"v_mul_f32 v{24+i}, v16, v{32+i}")
        for w in range(1, 4):
            for i in range(4):
                a(f"v_fmac_f32 v{24+i}, v{16+2*w}, v{32+4*w+i}")
        self.tag([24, 25, 26, 27])
        a(f"buffer_store_dwordx4 v[24:27], v11, {WS_}, s75 offen sc1")
        a(f"s_branch {Lend}")
        a.label(Lw4)
        a("v_log_f32 v13, v13")
        a("s_waitcnt lgkmcnt(0)")
        a("v_add_f32 v13, v12, v13")
        a("v_and_b32 v24, 0xffffff00, v13")
        a("v_sub_f32 v25, v13, v24")
        self.tag([24, 25])
        a(f"s_lshl_b32 s66, s73, 2")
        a(f"s_add_u32 s66, s66, s72")
        a(f"s_lshl_b32 s66, s66, 3")
        a(f"s_lshl_b32 s67, s74, 11")
        a(f"s_add_u32 s66, s66, s67")
        a(f"s_add_u32 s66, s66, {WS_LSE}")
        a(f"v_lshlrev_b32 v13, 8, {vB}")
        a("s_mov_b64 exec, 0xff")
        a(f"buffer_store_dwordx2 v[24:25], v13, {WS_}, s66 offen sc1")
        a("s_mov_b64 exec, -1")
        a.label(Lend)
        self.stamp(sb + 3)

    def p3_issue(self, raw, D):
        a = self.a
        RS = 2048
        self.stamp(SLOT["P3"])
        self.woff_u64(RS)
        a(f"s_lshl_b32 s66, {sX}, 20")
        a(f"s_lshl_b32 s67, {sW}, 17")
        a(f"s_add_u32 s66, s66, s67")
        a(f"s_lshl_b32 s67, s68, 7")
        a(f"s_add_u32 s66, s66, s67")
        self.issue_unit(WO_, RS, raw, D, "P3", True)

    def p3_exec(self, tb, lr, lt):
        a = self.a
        sb = SLOT["P3"]
        a(f"s_lshl_b32 s69, {sX}, 9")
        a(f"s_lshl_b32 s67, {sW}, 6")
        a(f"s_add_u32 s69, s69, s67")
        a(f"s_lshl_b32 s70, {sX}, 15")
        a(f"s_lshl_b32 s67, s68, 8")
        a(f"s_add_u32 s70, s70, s67")
        a(f"s_lshl_b32 s67, {sW}, 12")
        a(f"s_add_u32 s70, s70, s67")
        a(f"s_add_u32 s70, s70, {WS_AP}")
        a(f"v_lshlrev_b32 v8, 14, {vG}")
        a(f"v_lshl_add_u32 v8, {vI}, 4, v8")
        a(f"v_lshlrev_b32 v9, 5, {vB}")
        a(f"v_lshl_add_u32 v9, {vG}, 3, v9")
        a(f"s_lshl_b32 s72, s69, 2")
        a(f"s_add_u32 s72, s72, {WS_OP}")
        for k in range(1, 8):
            a(f"s_add_u32 s{72+k}, s72, {65536*k}")
        a(f"s_lshr_b32 s71, s69, 7")
        a(f"s_lshl_b32 s71, s71, 8")
        a(f"s_add_u32 s71, s71, {WS_LSE}")
        a(f"v_lshlrev_b32 v13, 2, {vLANE}")
        a(f"v_lshl_add_u32 v28, {vLANE}, 3, s71")
        a(f"s_lshl_b32 s67, s68, 15")
        a(f"s_add_u32 s67, s67, s72")
        a(f"v_bfe_u32 v29, v0, 1, 1")
        a(f"v_lshl_add_u32 v29, v29, 14, s67")
        a(f"v_and_b32 v30, 1, v0")
        a(f"v_lshl_add_u32 v29, v30, 7, v29")
        a(f"v_cmp_gt_u32 vcc, 32, {vLANE}")
        a(f"v_cndmask_b32 v28, v29, v28, vcc")
        a(f"s_mul_i32 s67, {sW}, 1152")
        a(f"v_mul_u32_u24 v29, 288, {vG}")
        a(f"v_lshl_add_u32 v29, {vI}, 3, v29")
        a(f"v_add_u32 v29, s67, v29")
        a(f"v_mul_u32_u24 v30, 144, {vB}")
        a(f"v_lshl_add_u32 v30, {vHI}, 6, v30")
        a(f"v_lshl_add_u32 v30, {vG}, 4, v30")
        a(f"v_add_u32 v30, s67, v30")
        self.stamp(sb + 1)
        pl = [(f"buffer_load_dwordx2 v[26:27], v9, {WS_}, s71 offen sc1", 26, 2)]
        for b in range(8):
            r = 32 + 4 * b
            pl.append((f"buffer_load_dwordx4 {v(r,4)}, v8, {WS_}, s{72+b} offen sc1", r, 4))
        self.poll(pl, 24, gate=(0xfffffffff, 28, "0"), gs=42)
        self.stamp(sb + 2)
        a("v_and_b32 v26, 0xffffff00, v26")
        a("v_add_f32 v26, v26, v27")
        a("v_mov_b32 v16, v26")
        self.allred_rows([16], "v_max_f32", [17], start8=False)
        a("v_sub_f32 v26, v26, v16")
        a("v_exp_f32 v26, v26")
        a("v_mov_b32 v16, v26")
        self.allred_rows([16], "v_add_f32", [17], start8=False)
        a("v_rcp_f32 v16, v16")
        a("v_mul_f32 v26, v26, v16")
        for b in range(8):
            for e in range(4):
                r = 32 + 4 * b + e
                a(f"v_mul_f32_dpp v{r}, v26, v{r} row_newbcast:{b} row_mask:0xf bank_mask:0xf")
        for r in range(32, 48):
            a(f"v_permlane32_swap_b32 v{r}, v{r+16}")
        for r in range(32, 48):
            a(f"v_add_f32 v{r}, v{r}, v{r+16}")
        for r in range(32, 40):
            a(f"v_permlane16_swap_b32 v{r}, v{r+8}")
        for r in range(32, 40):
            a(f"v_add_f32 v{r}, v{r}, v{r+8}")
        for p in range(4):
            a(f"v_cvt_pk_bf16_f32 v{16+p}, v{32+2*p}, v{33+2*p}")
        a(f"ds_write_b64 v29, v[16:17] offset:{lt}")
        a(f"ds_write_b64 v29, v[18:19] offset:{lt+144}")
        a("s_waitcnt lgkmcnt(0)")
        a(f"ds_read_b128 {v(BB,4)}, v30 offset:{lt}")
        a("s_waitcnt lgkmcnt(0)")
        self.tail([tb], 8, lr, lambda: self.publish1("v13", "s70"))
        self.stamp(sb + 3)

    def r3(self):
        a = self.a
        sb = SLOT["R3"]
        self.stamp(sb)
        a(f"v_and_b32 v9, 31, {vLANE}")
        a(f"v_lshlrev_b32 v9, 4, v9")
        a(f"v_lshrrev_b32 v8, 5, {vLANE}")
        a(f"v_mul_u32_u24 v10, {8*3072*4}, v8")
        a(f"v_add_u32 v10, v10, v9")
        a(f"v_lshl_add_u32 v8, v8, 17, v9")
        a(f"s_lshl_b32 s67, {sW}, 9")
        a(f"s_lshl_b32 s71, s69, 12")
        a(f"s_add_u32 s71, s71, s67")
        a(f"s_mul_i32 s72, s69, {3072*4}")
        a(f"s_add_u32 s72, s72, s67")
        a(f"s_add_u32 s72, s72, {WS_MODR}")
        a(f"s_add_u32 s73, s72, 4096")
        a(f"s_add_u32 s74, s72, 8192")
        a(f"v_lshrrev_b32 v14, 1, v9")
        a(f"s_lshr_b32 s67, s71, 1")
        self.ld(f"buffer_load_dwordx2 v[28:29], v14, {X_}, s67 offen", "x")
        self.poll([(f"buffer_load_dwordx4 {v(48+4*m,4)}, v10, {WS_}, s{72+m} offen sc1", 48 + 4 * m, 4) for m in range(3)], 24)
        M = list(range(48, 60))
        T = list(range(32, 44))
        for r, t in zip(M, T):
            a(f"v_mov_b32 v{t}, v{r}")
        for r, t in zip(M, T):
            a(f"v_permlane32_swap_b32 v{r}, v{t}")
        for r, t in zip(M, T):
            a(f"v_add_f32 v{r}, v{r}, v{t}")
        self.bf16r_pairs(M, 24)
        for i in range(4):
            a(f"v_add_f32 v{56+i}, 1.0, v{56+i}")
        self.bf16r_pairs([56, 57, 58, 59], 24)
        self.unpack_bf16(28, 60, 2)
        a(f"s_add_u32 s72, s71, {WS_AP}")
        for k in range(1, 4):
            a(f"s_add_u32 s{72+k}, s72, {32768*k}")
        a(f"s_lshl_b32 s67, {sX}, 15")
        a(f"s_add_u32 s71, s71, s67")
        a(f"s_lshl_b32 s70, {sX}, 3")
        a(f"s_add_u32 s70, s70, s69")
        a(f"s_mul_i32 s70, s70, {H2R}")
        a(f"s_lshl_b32 s67, {sW}, 9")
        a(f"s_add_u32 s70, s70, s67")
        a(f"s_add_u32 s70, s70, {WS_H2}")
        a(f"s_add_u32 s76, s70, {FS}")
        a(f"s_add_u32 s71, s71, {WS_X1}")
        a(f"s_lshl_b32 s67, {sW}, 3")
        a("v_mov_b32 v14, s67")
        a("v_mov_b32 v15, 0")
        self.stamp(sb + 1)
        self.poll([(f"buffer_load_dwordx4 {v(32+4*k,4)}, v8, {WS_}, s{72+k} offen sc1", 32 + 4 * k, 4) for k in range(4)], 24)
        self.stamp(sb + 2)
        for i in range(4):
            a(f"v_add_f32 v{32+i}, v{32+i}, v{36+i}")
            a(f"v_add_f32 v{40+i}, v{40+i}, v{44+i}")
        for i in range(4):
            a(f"v_add_f32 v{32+i}, v{32+i}, v{40+i}")
        for i in range(4):
            a(f"v_mov_b32 v{36+i}, v{32+i}")
        for i in range(4):
            a(f"v_permlane32_swap_b32 v{32+i}, v{36+i}")
        for i in range(4):
            a(f"v_add_f32 v{32+i}, v{32+i}, v{36+i}")
        X = [32, 33, 34, 35]
        self.bf16r_pairs(X, 24)
        for i in range(4):
            a(f"v_mul_f32 v{32+i}, v{32+i}, v{48+i}")
        self.bf16r_pairs(X, 24)
        for i in range(4):
            a(f"v_add_f32 v{32+i}, v{32+i}, v{60+i}")
        self.bf16r_pairs(X, 24)
        a("v_add_f32 v16, v32, v33")
        a("v_mul_f32 v17, v32, v32")
        a("v_add_f32 v18, v34, v35")
        a("v_fmac_f32 v17, v33, v33")
        a("v_add_f32 v16, v16, v18")
        a("v_fmac_f32 v17, v34, v34")
        a("v_fmac_f32 v17, v35, v35")
        self.allred_wave([16, 17], [18, 19], n32=True)
        a(f"ds_write_b64 v14, v[16:17] offset:{L_AUX+128}")
        for i in range(4):
            a(f"v_bfi_b32 v{36+i}, {vFF}, {sT}, v{32+i}")
        a("s_mov_b32 exec_hi, 0")
        a(f"buffer_store_dwordx4 v[36:39], v9, {WS_}, s71 offen sc1")
        a("s_mov_b32 exec_hi, -1")
        a("s_waitcnt lgkmcnt(0)")
        a("s_barrier")
        for q in range(4):
            a(f"ds_read_b128 {v(16+4*q,4)}, v15 offset:{L_AUX+128+16*q}")
        a("s_waitcnt lgkmcnt(2)")
        a("v_add_f32 v16, v16, v18")
        a("v_add_f32 v17, v17, v19")
        a("v_add_f32 v20, v20, v22")
        a("v_add_f32 v21, v21, v23")
        a("s_waitcnt lgkmcnt(0)")
        a("v_add_f32 v24, v24, v26")
        a("v_add_f32 v25, v25, v27")
        a("v_add_f32 v28, v28, v30")
        a("v_add_f32 v29, v29, v31")
        a("v_add_f32 v16, v16, v20")
        a("v_add_f32 v17, v17, v21")
        a("v_add_f32 v24, v24, v28")
        a("v_add_f32 v25, v25, v29")
        a("v_add_f32 v16, v16, v24")
        a("v_add_f32 v17, v17, v25")
        a("v_mul_f32 v16, 0x3a800000, v16")
        a("v_mul_f32 v17, 0x3a800000, v17")
        a("v_fma_f32 v17, -v16, v16, v17")
        a("v_max_f32 v17, 0, v17")
        self.ln_consts(16, 17, 18)
        for x in X:
            a(f"v_sub_f32 v{x}, v{x}, v16")
        self.bf16r_pairs(X, 24)
        for x in X:
            a(f"v_mul_f32 v{x}, v{x}, v17")
        self.bf16r_pairs(X, 24)
        for i in range(4):
            a(f"v_mul_f32 v{32+i}, v{32+i}, v{56+i}")
        self.bf16r_pairs(X, 24)
        for i in range(4):
            a(f"v_add_f32 v{32+i}, v{32+i}, v{52+i}")
        self.bf16r_pairs(X, 24)
        self.tag(X)
        a("s_mov_b32 exec_hi, 0")
        a(f"buffer_store_dwordx4 v[32:35], v9, {WS_}, s70 offen")
        a(f"buffer_store_dwordx4 v[32:35], v9, {WS_}, s76 offen sc1")
        a("s_mov_b32 exec_hi, -1")
        self.stamp(sb + 3)

    def two_issue(self, srd, RS, D, tag):
        self.issue_unit(srd, RS, A[0], D, tag + "0", True)
        self.issue_unit(srd, RS, A[1], D, tag + "1", False)

    def two_finish(self, tag):
        self.wait(tag + "0")
        self.perms(A[0], A[2])
        self.wait(tag + "1")
        self.perms(A[1], A[0])
        return [A[2], A[0]]

    def p4(self, lr, lt, D):
        a = self.a
        RS = 7168
        sb = SLOT["P4"]
        self.stamp(sb)
        a(f"s_lshr_b32 s72, s68, 1")
        a(f"s_mul_i32 s67, {sX}, 7")
        a(f"s_add_u32 s72, s72, s67")
        a(f"s_and_b32 s71, s68, 1")
        a("s_cselect_b32 s60, s32, s28")
        a("s_cselect_b32 s61, s33, s29")
        a("s_mov_b32 s62, 7340032")
        a("s_mov_b32 s63, 0x20000")
        self.woff_u64(RS)
        a(f"s_mul_i32 s66, {sW}, {128*RS}")
        a(f"s_lshl_b32 s67, s72, 7")
        a(f"s_add_u32 s66, s66, s67")
        self.two_issue(W_, RS, D, "P4")
        self.red_addr(frag=True)
        a(f"s_mul_i32 s70, s71, {56*2048}")
        a(f"s_lshl_b32 s67, s72, 11")
        a(f"s_add_u32 s70, s70, s67")
        a(f"s_lshl_b32 s67, {sW}, 8")
        a(f"s_add_u32 s70, s70, s67")
        a(f"s_add_u32 s70, s70, {WS_GU}")
        a(f"v_lshrrev_b32 v8, 5, {vLANE}")
        a(f"v_and_b32 v10, 31, {vLANE}")
        a(f"v_mul_u32_u24 v9, {H2R}, v8")
        a(f"v_lshl_add_u32 v9, v10, 4, v9")
        a(f"v_mul_u32_u24 v26, {H2R}, {vLANE}")
        a(f"s_and_b32 s67, s68, 3")
        a(f"s_lshl_b32 s67, s67, 7")
        a(f"v_add_u32 v26, s67, v26")
        a(f"s_mul_i32 s67, {sW}, 2176")
        a(f"v_mul_u32_u24 v29, 272, v8")
        a(f"v_lshl_add_u32 v29, v10, 3, v29")
        a(f"v_add_u32 v29, s67, v29")
        a(f"v_mul_u32_u24 v30, 272, {vB}")
        a(f"v_lshl_add_u32 v30, {vHI}, 6, v30")
        a(f"v_lshl_add_u32 v30, {vG}, 4, v30")
        a(f"v_add_u32 v30, s67, v30")
        a(f"s_mul_i32 s72, {sX}, {8*H2R}")
        a(f"s_lshl_b32 s67, {sW}, 9")
        a(f"s_add_u32 s72, s72, s67")
        a(f"s_add_u32 s72, s72, {WS_H2}")
        for i in range(1, 4):
            a(f"s_add_u32 s{72+i}, s72, {2*H2R*i}")
        a(f"v_lshlrev_b32 v13, 2, {vLANE}")
        tbs = self.two_finish("P4")
        self.stamp(sb + 1)
        pl = []
        for i in range(4):
            r = 32 + 4 * i
            pl.append((f"buffer_load_dwordx4 {v(r,4)}, v9, {WS_}, s{76+i} offen sc1", r, 4))
        self.poll(pl, 24, gate=(0xff, 26, "s76"), fs=[(f"s{76+i}", f"s{72+i}") for i in range(4)], gs=44)
        self.stamp(sb + 2)
        for p in range(8):
            a(f"v_perm_b32 v{16+p}, v{33+2*p}, v{32+2*p}, {sSEL1}")
        for i in range(4):
            a(f"ds_write_b64 v29, {v(16+2*i,2)} offset:{lt+544*i}")
        a("s_waitcnt lgkmcnt(0)")
        for u in range(2):
            a(f"ds_read_b128 {v(BB+4*u,4)}, v30 offset:{lt+128*u}")
        a("s_waitcnt lgkmcnt(0)")

        def epi():
            self.bf16r1(16)
            Lu = a.newlabel("L_p4up")
            a("s_cmp_lg_u32 s71, 0")
            a(f"s_cbranch_scc1 {Lu}")
            a(f"v_mul_f32 v17, 0x{LOG2E ^ 0x80000000:x}, v16")
            a(f"v_exp_f32 v17, v17")
            a(f"v_add_f32 v17, 1.0, v17")
            a(f"v_rcp_f32 v17, v17")
            a(f"v_mul_f32 v16, v16, v17")
            self.bf16r1(16)
            a.label(Lu)
            self.publish1("v13", "s70", fast=True)
        self.tail(tbs, 8, lr, epi)
        self.stamp(sb + 3)

    def p5_issue(self, raw, D):
        a = self.a
        RS = 2048
        self.stamp(SLOT["P5"])
        self.woff_u64(RS)
        a(f"s_mul_i32 s66, {sX}, {448*2048}")
        a(f"s_min_u32 s67, {sW}, 6")
        a(f"s_lshl_b32 s67, s67, 17")
        a(f"s_add_u32 s66, s66, s67")
        a(f"s_lshl_b32 s67, s68, 7")
        a(f"s_add_u32 s66, s66, s67")
        Lsk = a.newlabel("L_p5i")
        a(f"s_cmp_ge_u32 {sW}, 7")
        a(f"s_cbranch_scc1 {Lsk}")
        self.issue_unit(WD_, RS, raw, D, "P5", True)
        a.label(Lsk)

    def p5_exec(self, tb, lr):
        a = self.a
        sb = SLOT["P5"]
        a(f"s_lshl_b32 s70, {sX}, 15")
        a(f"s_lshl_b32 s67, s68, 8")
        a(f"s_add_u32 s70, s70, s67")
        a(f"s_lshl_b32 s67, {sW}, 12")
        a(f"s_add_u32 s70, s70, s67")
        a(f"s_add_u32 s70, s70, {WS_DP}")
        a(f"v_lshlrev_b32 v8, 4, {vLANE}")
        a(f"s_mul_i32 s73, {sX}, {7*2048}")
        a(f"s_lshl_b32 s67, {sW}, 11")
        a(f"s_add_u32 s73, s73, s67")
        a(f"s_add_u32 s73, s73, {WS_GU}")
        a(f"s_add_u32 s74, s73, {56*2048}")
        a(f"v_mul_u32_u24 v26, {56*2048}, {vLANE}")
        a(f"s_lshl_b32 s67, s68, 7")
        a(f"v_add_u32 v26, s67, v26")
        a(f"v_lshlrev_b32 v13, 2, {vLANE}")
        self.stamp(sb + 1)
        Lsk = a.newlabel("L_p5skip")
        a(f"s_cmp_ge_u32 {sW}, 7")
        a(f"s_cbranch_scc1 {Lsk}")
        pl = []
        for m, so in enumerate(("s75", "s76")):
            for q in range(2):
                r = 32 + 8 * m + 4 * q
                pl.append((f"buffer_load_dwordx4 {v(r,4)}, v8, {WS_}, {so} offen offset:{1024*q} sc1", r, 4))
        self.poll(pl, 24, gate=(0x3, 26, "s75"), fs=[("s75", "s73"), ("s76", "s74")], gs=46)
        self.stamp(sb + 2)
        for e in range(16):
            a(f"v_and_b32 v{32+e}, 0xffff0000, v{32+e}")
        for e in range(8):
            a(f"v_mul_f32 v{32+e}, v{32+e}, v{40+e}")
        for p in range(4):
            a(f"v_cvt_pk_bf16_f32 v{BB+p}, v{32+2*p}, v{33+2*p}")
        a.label(Lsk)
        self.tail([tb], 7, lr, lambda: self.publish1("v13", "s70"))
        self.stamp(sb + 3)

    def gb_r5(self, lr, D):
        a = self.a
        RS = 12288
        sb = SLOT["GB"]
        self.stamp(sb)
        self.woff_u64(RS)
        a(f"s_mul_i32 s66, {sW}, {128*RS}")
        a(f"s_lshl_b32 s67, s68, 7")
        a(f"s_add_u32 s66, s66, s67")
        a(f"s_add_u32 s66, s66, {5120*2}")
        self.koff(8, 11, 1)
        a(f"s_lshl_b32 s67, {sW}, 8")
        self.ld(f"buffer_load_dwordx4 v[56:59], v8, {C_}, s67 offen", "c")
        self.ld(f"buffer_load_dwordx4 v[60:63], v8, {C_}, s67 offen offset:128", "c")
        self.two_issue(WM_, RS, D, "GB")
        self.red_addr()
        self.wait("c")
        self.silu_c(56, BB)
        self.silu_c(60, BB + 4)
        tbs = self.two_finish("GB")
        self.stamp(sb + 1)

        def epi():
            self.bf16r1(16)
            a("v_mov_b32 v15, v16")
        self.tail(tbs, 8, lr, epi)
        self.stamp(sb + 3)
        sb = SLOT["R5"]
        self.stamp(sb)
        a(f"v_lshlrev_b32 v13, 2, {vLANE}")
        a(f"s_lshl_b32 s69, s68, 8")
        a(f"s_lshl_b32 s67, {sW}, 12")
        a(f"s_add_u32 s69, s69, s67")
        a(f"s_lshl_b32 s67, {sX}, 15")
        a(f"s_add_u32 s70, s69, s67")
        a(f"s_add_u32 s70, s70, {WS_X1}")
        self.poll([(f"buffer_load_dword v14, v13, {WS_}, s70 offen sc1", 14, 1)], 24)
        a("v_and_b32 v14, 0xffff0000, v14")
        a(f"s_add_u32 s72, s69, {WS_DP}")
        for k in range(1, 8):
            a(f"s_add_u32 s{72+k}, s72, {32768*k}")
        a(f"v_lshlrev_b32 v10, 1, {vLANE}")
        a(f"s_lshr_b32 s69, s69, 1")
        self.stamp(sb + 1)
        self.poll([(f"buffer_load_dword v{32+k}, v13, {WS_}, s{72+k} offen sc1", 32 + k, 1) for k in range(8)], 24)
        self.stamp(sb + 2)
        for k in range(4):
            a(f"v_add_f32 v{32+k}, v{32+k}, v{36+k}")
        a("v_add_f32 v32, v32, v33")
        a("v_add_f32 v34, v34, v35")
        a("v_add_f32 v32, v32, v34")
        self.bf16r1(32)
        a("v_mul_f32 v32, v32, v15")
        self.bf16r1(32)
        a("v_add_f32 v32, v32, v14")
        a("v_cvt_pk_bf16_f32 v32, v32, v32")
        a(f"buffer_store_short v32, v10, {OUT_}, s69 offen")
        Lnb = a.newlabel("L_nobump")
        a(f"s_or_b32 s67, s68, {sW}")
        a("s_cmp_lg_u32 s67, 0")
        a(f"s_cbranch_scc1 {Lnb}")
        a(f"s_add_u32 s67, {sEP}, 1")
        a("v_mov_b32 v33, s67")
        a("v_mov_b32 v34, 0")
        a("s_mov_b64 exec, 1")
        a(f"buffer_store_dword v33, v34, {WS_}, 0 offen")
        a("s_mov_b64 exec, -1")
        a.label(Lnb)
        self.stamp(sb + 3)

    def build(self):
        a = self.a
        cfg = self.cfg
        hdr = open(os.path.join(os.path.dirname(os.path.abspath(__file__)), "..", "cdna_kernels", NAME + ".s.ref")).read()
        for line in hdr.split("\n"):
            if line.startswith("; @launch"):
                break
            a.raw(line)
        a.raw(f"; @launch grid=(256,1,1) block=(512,1,1) lds={LDS_BYTES}")
        a.raw('.amdgcn_target "amdgcn-amd-amdhsa--gfx950"')
        a.raw(".text")
        a.raw(f".globl {NAME}_kernel")
        a.raw(".p2align 8")
        a.raw(f".type {NAME}_kernel,@function")
        a.raw(f"{NAME}_kernel:")
        a("s_cmp_ge_u32 s2, 256")
        a("s_cbranch_scc1 L_exit")
        if cfg.get("dbg"):
            a("s_memrealtime s[92:93]")
            a("s_load_dwordx2 s[96:97], s[0:1], 96")
            a("s_mov_b32 s98, 256")
            a("s_mov_b32 s99, 0x20000")
        for (s0, ko, nb) in SRD_INFO:
            a(f"s_load_dwordx2 s[{s0}:{s0+1}], s[0:1], {ko}")
        for (s0, ko, nb) in SRD_INFO:
            a(f"s_mov_b32 s{s0+2}, {nb}")
            a(f"s_mov_b32 s{s0+3}, 0x20000")
        a(f"v_and_b32 {vLANE}, 63, v0")
        a("v_lshrrev_b32 v7, 6, v0")
        a(f"v_lshrrev_b32 {vG}, 4, {vLANE}")
        a(f"v_readfirstlane_b32 {sW}, v7")
        a(f"v_and_b32 {vI}, 15, v0")
        a(f"v_and_b32 {vB}, 7, v0")
        a(f"v_bfe_u32 {vHI}, v0, 3, 1")
        a(f"v_mov_b32 {vFF}, 0xff")
        a(f"v_mov_b32 {vSTAMP}, 0")
        a(f"s_mov_b32 {sSEL0}, 0x05040100")
        a(f"s_mov_b32 {sSEL1}, 0x07060302")
        a(f"s_and_b32 {sX}, s2, 7")
        a(f"s_lshr_b32 {sL}, s2, 3")
        a("s_waitcnt lgkmcnt(0)")
        a(f"s_load_dword {sEP}, s[52:53], 0")
        a(f"s_cmp_ge_u32 {sL}, 16")
        a("s_cbranch_scc1 L_G3")
        a(f"s_cmp_ge_u32 {sX}, 4")
        a("s_cbranch_scc1 L_ATT")
        a("; ======== G1")
        a(f"s_lshl_b32 s68, {sL}, 2")
        a(f"s_add_u32 s68, s68, {sX}")
        self.mod_issue("P0A", A[2], cfg["D_p0"])
        self.red_addr(frag=True)
        self.mod_exec("P0A", A[2], A[3], L_R[0])
        a.label("L_ATT")
        a(f"s_mov_b32 s68, {sL}")
        self.q = []
        self.att(L_R[1], cfg["D_att"])
        a(f"s_cmp_lt_u32 {sL}, 14")
        a("s_cbranch_scc1 L_P4")
        a(f"s_lshl_b32 s68, {sX}, 1")
        a(f"s_add_u32 s68, s68, {sL}")
        a(f"s_sub_u32 s68, s68, 14")
        self.gb_r5(L_R[2], cfg["D_gb"])
        a("s_branch L_done")
        a.label("L_P4")
        self.q = []
        self.p4(L_R[2], L_R[0], cfg["D_p4"])
        a("s_branch L_done")
        a.label("L_G3")
        self.q = []
        a("; ======== G3")
        a(f"s_sub_u32 s68, {sL}, 16")
        self.p1(A[0], A[1], L_R[0], cfg["D_p1"])
        self.p3_issue(A[0], cfg["D_p3"])
        Lnorm = a.newlabel("L_norm")

        def rm_block():
            a(f"s_cmp_ge_u32 {sL}, 28")
            a(f"s_cbranch_scc1 {Lnorm}")
            q0 = list(self.q)
            a(f"s_sub_u32 s68, s2, 64")
            self.mod_issue("RM", A[2], cfg["D_rm"])
            self.mod_exec("RM", A[2], A[3], L_R[1])
            a(f"s_sub_u32 s68, {sL}, 16")
            a.label(Lnorm)
            self.q = q0
        if cfg["rm_first"]:
            rm_block()
        self.wait("P3")
        self.perms(A[0], A[1])
        self.p3_exec(A[1], L_R[2], L_R[0])
        if not cfg["rm_first"]:
            rm_block()
        Lnr3 = a.newlabel("L_nor3")
        a(f"s_cmp_lt_u32 {sL}, 24")
        a(f"s_cbranch_scc1 {Lnr3}")
        a(f"s_sub_u32 s69, {sL}, 24")
        self.r3()
        a.label(Lnr3)
        self.p5_issue(A[0], cfg["D_p5"])
        a("s_waitcnt vmcnt(0)")
        self.q = []
        self.perms(A[0], A[1])
        self.p5_exec(A[1], L_R[0])
        a.label("L_done")
        if cfg.get("dbg"):
            a("v_mov_b32 v9, 0")
            a("s_not_b32 s66, s92")
            a("v_writelane_b32 v9, s66, 0")
            a("v_writelane_b32 v9, s92, 1")
            for i, sl in enumerate(cfg["dbg"]):
                a(f"v_readlane_b32 s66, {vSTAMP}, {sl}")
                a("s_nop 3")
                a(f"v_writelane_b32 v9, s66, {2+i}")
            a(f"v_lshlrev_b32 v8, 2, {vLANE}")
            a("s_mov_b64 exec, 0xffff")
            a(f"buffer_atomic_umax v9, v8, s[96:99], 0 offen")
            a("s_mov_b64 exec, -1")
        if self.stamps and not cfg.get("dbg"):
            a(f"s_lshl_b32 s66, s2, 3")
            a(f"s_add_u32 s66, s66, {sW}")
            a(f"s_lshl_b32 s66, s66, 8")
            a(f"s_add_u32 s66, s66, {WS_STAMP}")
            a(f"v_lshlrev_b32 v8, 2, {vLANE}")
            a(f"buffer_store_dword {vSTAMP}, v8, {WS_}, s66 offen sc1")
        a.label("L_exit")
        a("s_endpgm")
        a.raw('.section .rodata,"a"')
        a.raw(".p2align 6")
        a.raw(f".amdhsa_kernel {NAME}_kernel")
        a.raw("  .amdhsa_next_free_vgpr 256")
        a.raw("  .amdhsa_next_free_sgpr 102")
        a.raw("  .amdhsa_accum_offset 256")
        a.raw("  .amdhsa_group_segment_fixed_size 0")
        a.raw("  .amdhsa_kernarg_size 112")
        a.raw("  .amdhsa_user_sgpr_count 2")
        a.raw("  .amdhsa_user_sgpr_kernarg_segment_ptr 1")
        a.raw("  .amdhsa_system_sgpr_workgroup_id_x 1")
        a.raw(".end_amdhsa_kernel")
        return a.text()


DEFAULT = dict(D_p0=8, D_p1=8, D_att=8, D_rm=4, D_p3=4, D_p4=4, D_p5=4, D_gb=4, rm_first=True)

if __name__ == "__main__":
    cfg = dict(DEFAULT)
    out = sys.argv[1] if len(sys.argv) > 1 else os.path.join(os.path.dirname(os.path.abspath(__file__)), "..", "cdna_kernels", NAME + ".s")
    if len(sys.argv) > 2 and sys.argv[2] == "stamps":
        cfg["stamps"] = True
    if len(sys.argv) > 2 and sys.argv[2] == "dbg":
        cfg["stamps"] = True
        cfg["dbg"] = [1, 3, 6, 7, 10, 11, 15, 18, 19, 23, 26, 27, 31, 39]
    open(out, "w").write(Gen(cfg).build())
    print("wrote", out)
```

```python
import sys, os, struct
sys.path.insert(0, os.path.dirname(os.path.abspath(__file__)))
from asmlib import Asm

NAME = "adaLN_cond__sliding_block_cached__swiglu_ffn__decode"

WS_SAC = 4096
WS_MODR = WS_SAC + 2 * 32 * 2048
WS_QP = WS_MODR + 2 * 8 * 3072 * 4
WS_OP = WS_QP + 2 * 8 * 4096 * 4
WS_LSE = WS_OP + 8 * 4 * 32 * 128 * 4
WS_AP = WS_LSE + 128 * 128
WS_X1 = WS_AP + 8 * 8 * 1024 * 4
WS_DP = WS_X1 + 8 * 8 * 1024 * 4
assert WS_DP + 8 * 8 * 1024 * 4 <= (2 << 20)
FS = 1 << 20
H2R = 4096 + 128
WS_H2 = 2 << 20
WS_GU = WS_H2 + 8 * 8 * H2R + 1024 * 8
assert WS_GU + 2 * 8 * 3584 * 4 <= (3 << 20)
WS_STAMP = 4 << 20
WS_END = WS_STAMP + 256 * 8 * 64 * 4

X_, K_, V_, WQ_, WO_, WG_, WU_, WD_, C_, WM_, OUT_, WS_, DBG_, W_ = [f"s[{8+4*i}:{11+4*i}]" for i in range(14)]
SRD_INFO = [
    (44, 80, 12582912), (20, 24, 8388608), (12, 8, 33554432), (40, 72, 16384), (8, 0, 16384), (52, 104, WS_END),
    (16, 16, 33554432), (24, 32, 8388608), (28, 48, 7340032), (32, 56, 7340032), (36, 64, 7340032),
    (48, 88, 16384)]

sW, sT, sX, sSEL0, sSEL1 = "s3", "s4", "s5", "s6", "s7"
sEP, sL = "s64", "s65"
sPOLL, sDRY, sWE = "s80", "s82", "s83"
sMHI = "s[86:87]"
RSZ = 17408
L_R = [0, RSZ, 2 * RSZ]
L_AUX = 3 * RSZ
LDS_BYTES = 65536
SB = 2064

A = [64, 96, 128, 160]
ACC, BB, RES = 192, 224, 232
vLANE, vG, vI, vB, vHI, vFF, vSTAMP = "v1", "v2", "v3", "v4", "v5", "v6", "v7"
vRW, vRR = "v11", "v12"
YREG = 248
LOG2E = 0x3FB8AA3B
SCALE = struct.unpack("<I", struct.pack("<f", 128 ** -0.5))[0]
EPS = struct.unpack("<I", struct.pack("<f", 1e-5))[0]
SLOT = dict(P0A=0, P1=4, ATT=8, RM=12, P3=16, R3=20, P4=24, P5=28, GB=32, R5=36)


def v(n, cnt=1):
    return f"v{n}" if cnt == 1 else f"v[{n}:{n+cnt-1}]"


class Gen:
    def __init__(self, cfg):
        self.cfg = cfg
        self.a = Asm()
        self.stamps = cfg.get("stamps", False)
        self.poll_limit = cfg.get("poll_limit", 20000)
        self.q = []

    def ld(self, text, tag):
        self.a(text)
        self.q.append(tag)

    def wait(self, tag):
        if tag not in self.q:
            return
        idx = len(self.q) - 1 - self.q[::-1].index(tag)
        self.a(f"s_waitcnt vmcnt({len(self.q)-1-idx})")
        self.q = self.q[idx + 1:]

    def window(self, D):
        if len(self.q) >= D:
            self.a(f"s_waitcnt vmcnt({D-1})")
            self.q = self.q[len(self.q) - (D - 1):] if D > 1 else []

    def stamp(self, slot):
        if not self.stamps:
            return
        a = self.a
        a("s_memrealtime s[90:91]")
        a("s_waitcnt lgkmcnt(0)")
        a(f"v_writelane_b32 {vSTAMP}, s90, {slot}")

    def bf16r_pairs(self, regs, tmp):
        a = self.a
        for i in range(0, len(regs), 2):
            a(f"v_cvt_pk_bf16_f32 v{tmp}, v{regs[i]}, v{regs[i+1]}")
            a(f"v_lshlrev_b32 v{regs[i]}, 16, v{tmp}")
            a(f"v_and_b32 v{regs[i+1]}, 0xffff0000, v{tmp}")

    def bf16r1(self, r):
        a = self.a
        a(f"v_cvt_pk_bf16_f32 v{r}, v{r}, v{r}")
        a(f"v_lshlrev_b32 v{r}, 16, v{r}")

    def unpack_bf16(self, src, dst, n):
        a = self.a
        for i in range(n):
            a(f"v_lshlrev_b32 v{dst+2*i}, 16, v{src+i}")
            a(f"v_and_b32 v{dst+2*i+1}, 0xffff0000, v{src+i}")

    def allred_rows(self, regs, op, tmp, start8=True):
        a = self.a
        for r, t in zip(regs, tmp):
            if start8:
                a(f"{op}_dpp v{t}, v{r}, v{r} row_ror:8 row_mask:0xf bank_mask:0xf")
            else:
                a(f"v_mov_b32 v{t}, v{r}")
        if start8:
            for r, t in zip(regs, tmp):
                a(f"v_mov_b32 v{r}, v{t}")
        for r, t in zip(regs, tmp):
            a(f"v_permlane16_swap_b32 v{r}, v{t}")
        for r, t in zip(regs, tmp):
            a(f"{op} v{t}, v{r}, v{t}")
        for r, t in zip(regs, tmp):
            a(f"v_mov_b32 v{r}, v{t}")
        for r, t in zip(regs, tmp):
            a(f"v_permlane32_swap_b32 v{r}, v{t}")
        for r, t in zip(regs, tmp):
            a(f"{op} v{r}, v{r}, v{t}")

    def allred_wave(self, regs, tmp, op="v_add_f32", n32=False):
        a = self.a
        for r, t in zip(regs, tmp):
            a(f"{op}_dpp v{t}, v{r}, v{r} quad_perm:[1,0,3,2] row_mask:0xf bank_mask:0xf")
        for r, t in zip(regs, tmp):
            a(f"{op}_dpp v{r}, v{t}, v{t} quad_perm:[2,3,0,1] row_mask:0xf bank_mask:0xf")
        for r, t in zip(regs, tmp):
            a(f"{op}_dpp v{t}, v{r}, v{r} row_half_mirror row_mask:0xf bank_mask:0xf")
        for r, t in zip(regs, tmp):
            a(f"{op}_dpp v{r}, v{t}, v{t} row_ror:8 row_mask:0xf bank_mask:0xf")
        for r, t in zip(regs, tmp):
            a(f"v_mov_b32 v{t}, v{r}")
        for r, t in zip(regs, tmp):
            a(f"v_permlane16_swap_b32 v{r}, v{t}")
        for r, t in zip(regs, tmp):
            a(f"{op} v{r}, v{r}, v{t}")
        if n32:
            return
        for r, t in zip(regs, tmp):
            a(f"v_mov_b32 v{t}, v{r}")
        for r, t in zip(regs, tmp):
            a(f"v_permlane32_swap_b32 v{r}, v{t}")
        for r, t in zip(regs, tmp):
            a(f"{op} v{r}, v{r}, v{t}")

    def poll(self, loads, acc, gate=None, fs=None, gs=None):
        a = self.a
        keep = False
        if gate is not None and self.cfg.get("gate", True):
            mask, greg, gsoff = gate
            a(f"s_mov_b32 exec_lo, 0x{mask & 0xffffffff:x}")
            a(f"s_mov_b32 exec_hi, 0x{mask >> 32:x}")
            self.poll([(f"buffer_load_dword v25, v{greg}, {WS_}, {gsoff} offen sc1", 25, 1)], acc, fs=fs)
            a("s_mov_b64 exec, -1")
            keep = True
            if gs is not None:
                self.stamp(gs)
        L = a.newlabel("L_poll")
        D = a.newlabel("L_pdone")
        a(f"s_mov_b32 {sPOLL}, {self.poll_limit | 7}")
        if fs and not keep:
            for so, base in fs:
                a(f"s_mov_b32 {so}, {base}")
        a.label(L)
        for t, _, _ in loads:
            a(t)
        first = True
        for n, (t, r, cnt) in enumerate(loads):
            a(f"s_waitcnt vmcnt({len(loads)-1-n})")
            for i in range(cnt):
                if first:
                    a(f"v_xor_b32 v{acc}, {sT}, v{r+i}")
                    first = False
                else:
                    a(f"v_bitop3_b32 v{acc}, v{r+i}, v{acc}, {sT} bitop3:0xde")
        a(f"v_and_b32 v{acc}, {vFF}, v{acc}")
        a(f"v_cmp_ne_u32 vcc, 0, v{acc}")
        a(f"s_sub_u32 {sPOLL}, {sPOLL}, 1")
        a(f"s_cbranch_vccz {D}")
        if fs:
            a(f"s_and_b32 s81, {sPOLL}, 7")
            a(f"s_cselect_b32 s81, 0, {FS}")
            for so, base in fs:
                a(f"s_add_u32 {so}, {base}, s81")
        a(f"s_cmp_lg_u32 {sPOLL}, 0")
        a(f"s_cbranch_scc1 {L}")
        a.label(D)
        if gs is not None and self.stamps:
            a(f"v_writelane_b32 {vSTAMP}, {sPOLL}, {gs+1}")
        self.q = []

    def tag(self, regs):
        for r in regs:
            self.a(f"v_bfi_b32 v{r}, {vFF}, {sT}, v{r}")

    def perms(self, raw, tb):
        a = self.a
        for jj in range(8):
            for p in range(4):
                a(f"v_perm_b32 v{tb+4*jj+p}, v{raw+4*(2*p+1)+(jj>>1)}, v{raw+4*(2*p)+(jj>>1)}, {sSEL1 if jj & 1 else sSEL0}")

    def woff_u64(self, RS):
        a = self.a
        a(f"v_and_b32 v8, 1, {vI}")
        a(f"v_lshl_add_u32 v8, v8, 2, {vG}")
        a(f"v_mul_u32_u24 v10, {8*RS}, v8")
        a(f"v_lshrrev_b32 v8, 1, {vI}")
        a(f"v_lshl_add_u32 v10, v8, 4, v10")

    def issue_unit(self, srd, RS, raw, D, tag, first):
        for r in range(8):
            self.window(D)
            if not (first and r == 0):
                step = RS if r else (64 - 7) * RS
                self.a(f"s_add_u32 s66, s66, {step}")
            self.ld(f"buffer_load_dwordx4 {v(raw+4*r,4)}, v10, {srd}, s66 offen nt", tag)

    def merge64(self, acc, res):
        a = self.a
        for jj in range(8):
            A_ = acc + 4 * jj
            a(f"v_add_f32_dpp v{res+jj}, v{A_+1}, v{A_} row_ror:8 row_mask:0xf bank_mask:0x3")
        for jj in range(8):
            A_ = acc + 4 * jj
            a(f"v_add_f32_dpp v{res+jj}, v{A_+2}, v{A_+3} row_ror:8 row_mask:0xf bank_mask:0xc")

    def red_addr(self, frag=False):
        a = self.a
        a(f"v_mul_u32_u24 v8, {SB}, {vB}")
        a(f"v_lshl_add_u32 v9, {vG}, 1, {vHI}")
        a(f"v_lshl_add_u32 v8, v9, 5, v8")
        a(f"s_lshl_b32 s67, {sW}, 8")
        a(f"v_add_u32 {vRW}, s67, v8")
        if not frag:
            a(f"s_mul_i32 s67, {sW}, {SB}")
            a(f"v_lshl_add_u32 {vRR}, {vLANE}, 2, s67")
            return
        a(f"v_bfe_u32 v8, v0, 2, 3")
        a(f"v_mul_u32_u24 v8, {SB}, v8")
        a(f"v_bfe_u32 v9, v0, 5, 1")
        a(f"v_lshl_add_u32 v8, v9, 7, v8")
        a(f"v_and_b32 v9, 3, v0")
        a(f"v_lshl_add_u32 v8, v9, 2, v8")
        a(f"v_bfe_u32 v9, v0, 6, 2")
        a(f"v_lshl_add_u32 v8, v9, 5, v8")
        a(f"v_bfe_u32 v9, v0, 8, 1")
        a(f"v_lshl_add_u32 {vRR}, v9, 4, v8")

    def frag_off(self, dst, src, t):
        a = self.a
        a(f"v_lshrrev_b32 v{dst}, 4, {src}")
        a(f"v_lshlrev_b32 v{dst}, 11, v{dst}")
        a(f"v_and_b32 v{t}, 1, {src}")
        a(f"v_lshl_add_u32 v{dst}, v{t}, 10, v{dst}")
        a(f"v_bfe_u32 v{t}, {src}, 1, 2")
        a(f"v_lshl_add_u32 v{dst}, v{t}, 8, v{dst}")
        a(f"v_bfe_u32 v{t}, {src}, 3, 1")
        a(f"v_lshl_add_u32 v{dst}, v{t}, 7, v{dst}")

    def tail(self, tbs, nw, lr, epilogue):
        a = self.a
        Lskip = a.newlabel("L_nomm")
        if nw < 8:
            a(f"s_cmp_ge_u32 {sW}, {nw}")
            a(f"s_cbranch_scc1 {Lskip}")
        for jj in range(8):
            for u, tb in enumerate(tbs):
                c = "0" if u == 0 else v(ACC + 4 * jj, 4)
                a(f"v_mfma_f32_16x16x32_bf16 {v(ACC+4*jj,4)}, {v(tb+4*jj,4)}, {v(BB+4*u,4)}, {c}")
        self.merge64(ACC, RES)
        for q in range(2):
            a(f"ds_write_b128 {vRW}, {v(RES+4*q,4)} offset:{lr+16*q}")
        a("s_waitcnt lgkmcnt(0)")
        a.label(Lskip)
        a("s_barrier")
        assert lr % 256 == 0
        np_ = (nw + 1) // 2
        for p in range(np_):
            if 2 * p + 1 < nw:
                a(f"ds_read2st64_b32 {v(16+2*p,2)}, {vRR} offset0:{lr//256+2*p} offset1:{lr//256+2*p+1}")
            else:
                a(f"ds_read_b32 v{16+2*p}, {vRR} offset:{lr+256*2*p}")
        for p in range(np_):
            a(f"s_waitcnt lgkmcnt({np_-1-p})")
            if p == 0:
                a("v_add_f32 v16, v16, v17")
            else:
                a(f"v_add_f32 v16, v16, v{16+2*p}")
                if 2 * p + 1 < nw:
                    a(f"v_add_f32 v16, v16, v{17+2*p}")
        epilogue()

    def publish1(self, voff, soff, fast=False):
        a = self.a
        self.tag([16])
        if fast:
            a(f"buffer_store_dword v16, {voff}, {WS_}, {soff} offen")
            a(f"s_add_u32 {soff}, {soff}, {FS}")
        a(f"buffer_store_dword v16, {voff}, {WS_}, {soff} offen sc1")

    def get_tag(self):
        a = self.a
        a("s_waitcnt lgkmcnt(0)")
        a(f"s_add_u32 {sT}, {sEP}, 1")
        a(f"s_and_b32 {sT}, {sT}, 0xff")

    def ln_consts(self, m, var, t):
        a = self.a
        self.bf16r_pairs([m, var], t)
        a(f"v_add_f32 v{var}, 0x{EPS:x}, v{var}")
        self.bf16r1(var)
        a(f"v_sqrt_f32 v{var}, v{var}")
        self.bf16r1(var)
        a(f"v_rcp_f32 v{var}, v{var}")

    def silu_c(self, src, dst):
        a = self.a
        self.unpack_bf16(src, 40, 4)
        for e in range(8):
            a(f"v_mul_f32 v{48+e}, 0x{LOG2E ^ 0x80000000:x}, v{40+e}")
        for e in range(8):
            a(f"v_exp_f32 v{48+e}, v{48+e}")
        for e in range(8):
            a(f"v_add_f32 v{48+e}, 1.0, v{48+e}")
        for e in range(8):
            a(f"v_rcp_f32 v{48+e}, v{48+e}")
        for e in range(8):
            a(f"v_mul_f32 v{40+e}, v{40+e}, v{48+e}")
        for p in range(4):
            a(f"v_cvt_pk_bf16_f32 v{dst+p}, v{40+2*p}, v{40+2*p+1}")

    def koff(self, dst, rowlog, esz_log):
        a = self.a
        a(f"v_lshlrev_b32 v{dst}, {rowlog}, {vB}")
        a(f"v_lshl_add_u32 v{dst}, {vHI}, {5+esz_log}, v{dst}")
        a(f"v_lshl_add_u32 v{dst}, {vG}, {3+esz_log}, v{dst}")

    def mod_issue(self, name, raw, D):
        a = self.a
        RS = 12288
        self.stamp(SLOT[name])
        a("s_and_b32 s71, s68, 1")
        a("s_lshl_b32 s69, s71, 9")
        a(f"s_lshl_b32 s67, {sW}, 6")
        a("s_add_u32 s69, s69, s67")
        self.woff_u64(RS)
        a(f"s_mul_i32 s66, s69, {RS}")
        a("s_lshr_b32 s72, s68, 1")
        a("s_lshl_b32 s67, s72, 7")
        a("s_add_u32 s66, s66, s67")
        self.koff(8, 11, 1)
        a("s_lshl_b32 s67, s69, 1")
        self.ld(f"buffer_load_dwordx4 v[60:63], v8, {C_}, s67 offen", name + "c")
        self.issue_unit(WM_, RS, raw, D + 1, name, True)
        if name == "P0A":
            a(f"s_lshl_b32 s70, s71, 16")
            a("s_lshl_b32 s67, s72, 11")
            a("s_add_u32 s70, s70, s67")
            a(f"s_lshl_b32 s67, {sW}, 8")
            a("s_add_u32 s70, s70, s67")
            a(f"s_add_u32 s70, s70, {WS_SAC}")
        else:
            a(f"s_mul_i32 s70, s71, {8*3072*4}")
            a("s_lshl_b32 s67, s72, 8")
            a("s_add_u32 s70, s70, s67")
            a(f"s_mul_i32 s67, {sW}, {3072*4}")
            a("s_add_u32 s70, s70, s67")
            a(f"s_add_u32 s70, s70, {WS_MODR-32*256}")

    def mod_exec(self, name, raw, tb, lr):
        a = self.a
        self.wait(name + "c")
        self.silu_c(60, BB)
        self.get_tag()
        a(f"v_lshlrev_b32 v13, 2, {vLANE}")
        self.wait(name)
        self.stamp(SLOT[name] + 1)
        self.perms(raw, tb)
        self.tail([tb], 8, lr, lambda: self.publish1("v13", "s70"))
        self.stamp(SLOT[name] + 3)

    def p1(self, raw, tb, lr, D):
        a = self.a
        RS = 8192
        sb = SLOT["P1"]
        self.stamp(sb)
        a(f"s_and_b32 s71, {sX}, 1")
        a(f"s_lshr_b32 s72, {sX}, 1")
        a(f"s_lshl_b32 s72, s72, 4")
        a(f"s_add_u32 s72, s72, s68")
        a(f"s_lshl_b32 s69, s71, 9")
        a(f"s_lshl_b32 s67, {sW}, 6")
        a(f"s_add_u32 s69, s69, s67")
        self.woff_u64(RS)
        a(f"s_lshl_b32 s66, s69, 13")
        a(f"s_lshl_b32 s67, s72, 7")
        a(f"s_add_u32 s66, s66, s67")
        a(f"v_lshlrev_b32 v8, 4, {vLANE}")
        a(f"s_lshl_b32 s67, {sW}, 11")
        self.ld(f"buffer_load_dwordx4 v[32:35], v8, {X_}, s67 offen", "x")
        self.ld(f"buffer_load_dwordx4 v[36:39], v8, {X_}, s67 offen offset:1024", "x")
        self.koff(8, 11, 1)
        a(f"s_lshl_b32 s67, s69, 1")
        self.ld(f"buffer_load_dwordx4 v[60:63], v8, {X_}, s67 offen", "x")
        self.issue_unit(WQ_, RS, raw, D + 3, "P1", True)
        a(f"s_lshl_b32 s70, s71, 17")
        a(f"s_lshl_b32 s67, s72, 8")
        a(f"s_add_u32 s70, s70, s67")
        a(f"s_lshl_b32 s67, {sW}, 14")
        a(f"s_add_u32 s70, s70, s67")
        a(f"s_add_u32 s70, s70, {WS_QP}")
        self.red_addr()
        self.wait("x")
        self.unpack_bf16(32, 40, 8)
        a("v_add_f32 v14, v40, v41")
        for e in range(2, 16):
            a(f"v_add_f32 v14, v14, v{40+e}")
        self.allred_wave([14], [15])
        a("v_mul_f32 v14, 0x3a800000, v14")
        a("v_mov_b32 v16, 0")
        for e in range(16):
            a(f"v_sub_f32 v17, v{40+e}, v14")
            a(f"v_fmac_f32 v16, v17, v17")
        self.allred_wave([16], [15])
        a("v_mul_f32 v15, 0x3a800000, v16")
        self.ln_consts(14, 15, 16)
        a(f"s_lshl_b32 s67, {sW}, 3")
        a("v_mov_b32 v16, s67")
        a(f"ds_write_b64 v16, v[14:15] offset:{L_AUX}")
        self.get_tag()
        a("s_barrier")
        a(f"v_lshlrev_b32 v16, 3, {vB}")
        a(f"ds_read_b64 v[14:15], v16 offset:{L_AUX}")
        Y = list(range(YREG, YREG + 8))
        self.unpack_bf16(60, YREG, 4)
        a("s_waitcnt lgkmcnt(0)")
        for y in Y:
            a(f"v_sub_f32 v{y}, v{y}, v14")
        self.bf16r_pairs(Y, 24)
        for y in Y:
            a(f"v_mul_f32 v{y}, v{y}, v15")
        self.bf16r_pairs(Y, 24)
        a(f"v_lshlrev_b32 v8, 4, {vLANE}")
        a(f"s_lshl_b32 s73, s69, 5")
        a(f"s_add_u32 s73, s73, {WS_SAC}")
        a(f"s_add_u32 s74, s73, 65536")
        a(f"s_add_u32 s75, s73, 32768")
        a(f"s_add_u32 s76, s74, 32768")
        a(f"v_lshlrev_b32 v13, 2, {vLANE}")
        a(f"v_lshlrev_b32 v26, 15, {vLANE}")
        a(f"s_lshl_b32 s67, s68, 7")
        a(f"s_add_u32 s77, s67, s73")
        self.wait("P1")
        self.perms(raw, tb)
        self.stamp(sb + 1)
        pl = []
        for m, so in enumerate(("s73", "s74", "s75", "s76")):
            for q in range(2):
                r = 32 + 8 * m + 4 * q
                pl.append((f"buffer_load_dwordx4 {v(r,4)}, v8, {WS_}, {so} offen offset:{1024*q} sc1", r, 4))
        self.poll(pl, 24, gate=(0xf, 26, "s77"), gs=40)
        self.stamp(sb + 2)
        for e in range(8):
            a(f"v_add_f32 v{48+e}, v{48+e}, v{56+e}")
        self.bf16r_pairs(list(range(48, 56)), 24)
        for e in range(8):
            a(f"v_add_f32 v{48+e}, 1.0, v{48+e}")
        self.bf16r_pairs(list(range(48, 56)), 24)
        for e in range(8):
            a(f"v_add_f32 v{32+e}, v{32+e}, v{40+e}")
        self.bf16r_pairs(list(range(32, 40)), 24)
        for e in range(8):
            a(f"v_mul_f32 v{48+e}, v{YREG+e}, v{48+e}")
        self.bf16r_pairs(list(range(48, 56)), 24)
        for e in range(8):
            a(f"v_add_f32 v{48+e}, v{48+e}, v{32+e}")
        for p in range(4):
            a(f"v_cvt_pk_bf16_f32 v{BB+p}, v{48+2*p}, v{49+2*p}")
        self.tail([tb], 8, lr, lambda: self.publish1("v13", "s70"))
        self.stamp(sb + 3)

    def att(self, lr, D):
        a = self.a
        sb = SLOT["ATT"]
        self.stamp(sb)
        Lq = a.newlabel("L_attq")
        Lb1 = a.newlabel("L_attb1")
        Lb2 = a.newlabel("L_attb2")
        Lend = a.newlabel("L_attend")
        a(f"s_and_b32 s72, s68, 3")
        a(f"s_and_b32 s73, {sX}, 1")
        a(f"s_lshl_b32 s73, s73, 2")
        a(f"s_lshr_b32 s67, s68, 2")
        a(f"s_add_u32 s73, s73, s67")
        a(f"s_lshr_b32 s74, {sX}, 1")
        if self.cfg.get("hx"):
            a(f"s_xor_b32 s74, s74, {self.cfg['hx']}")
        a(f"s_lshl_b32 s71, s73, 2")
        a(f"s_add_u32 s71, s71, s74")
        a("v_lshlrev_b32 v11, 4, v0")
        a(f"s_cmp_ge_u32 {sW}, 4")
        a(f"s_cbranch_scc1 {Lq}")
        q0 = list(self.q)
        a(f"s_lshl_b32 s66, s71, 20")
        a(f"s_lshl_b32 s67, s72, 16")
        a(f"s_add_u32 s66, s66, s67")
        a(f"s_lshl_b32 s67, {sW}, 14")
        a(f"s_add_u32 s66, s66, s67")
        a(f"s_add_u32 s66, s66, {3072*256}")
        a(f"s_mov_b32 s69, s66")
        a(f"v_and_b32 v8, 1, {vI}")
        a(f"v_lshrrev_b32 v9, 1, {vI}")
        a(f"v_lshl_add_u32 v10, v8, 2, {vG}")
        a(f"v_lshlrev_b32 v10, 4, v10")
        a(f"v_lshl_add_u32 v10, v9, 8, v10")
        a(f"v_lshl_add_u32 v14, {vG}, 1, v8")
        a(f"v_lshlrev_b32 v14, 8, v14")
        a(f"v_lshl_add_u32 v14, v9, 4, v14")
        for t in range(8):
            for hs in range(2):
                self.window(D)
                if t and not hs:
                    a("s_add_u32 s66, s66, 2048")
                self.ld(f"buffer_load_dwordx4 {v(64+8*t+4*hs,4)}, v10, {K_}, s66 offen offset:{128*hs} nt", "K")
        for r in range(8):
            for dh in range(2):
                self.window(D)
                if r and not dh:
                    a("s_add_u32 s69, s69, 2048")
                self.ld(f"buffer_load_dwordx4 {v(128+32*dh+4*r,4)}, v14, {V_}, s69 offen offset:{128*dh} nt", "V")
        self.get_tag()
        a(f"s_lshl_b32 s75, s73, 2")
        a(f"s_add_u32 s75, s75, s72")
        a(f"s_lshl_b32 s75, s75, 14")
        a(f"s_lshl_b32 s67, s74, 12")
        a(f"s_add_u32 s75, s75, s67")
        a(f"s_add_u32 s75, s75, {WS_OP}")
        a(f"v_lshl_add_u32 v8, {vHI}, 2, {vG}")
        a(f"v_lshlrev_b32 v8, 4, v8")
        a(f"v_lshl_add_u32 v8, {vB}, 8, v8")
        self.wait("K")
        qkv = list(self.q)
        a(f"s_branch {Lb1}")
        a.label(Lq)
        self.q = q0
        self.get_tag()
        a("v_subrev_u32 v8, 256, v0")
        a("v_lshlrev_b32 v9, 4, v8")
        a(f"s_lshl_b32 s66, s73, 14")
        a(f"s_lshl_b32 s67, s74, 12")
        a(f"s_add_u32 s66, s66, s67")
        a(f"s_add_u32 s66, s66, {WS_QP}")
        a(f"s_add_u32 s67, s66, 131072")
        self.poll([(f"buffer_load_dwordx4 {v(32+4*k,4)}, v9, {WS_}, s{66+k} offen sc1", 32 + 4 * k, 4) for k in range(2)], 24)
        self.stamp(sb + 2)
        for i in range(4):
            a(f"v_add_f32 v{32+i}, v{32+i}, v{36+i}")
        a("v_cvt_pk_bf16_f32 v32, v32, v33")
        a("v_cvt_pk_bf16_f32 v33, v34, v35")
        a(f"v_lshlrev_b32 v8, 3, v8")
        a(f"ds_write_b64 v8, v[32:33] offset:{L_AUX}")
        a("s_waitcnt lgkmcnt(0)")
        a.label(Lb1)
        a("s_barrier")
        a(f"s_cmp_ge_u32 {sW}, 4")
        a(f"s_cbranch_scc1 {Lb2}")
        self.q = qkv
        a(f"ds_read_b128 v[24:27], v8 offset:{L_AUX}")
        a(f"ds_read_b128 v[12:15], v8 offset:{L_AUX+128}")
        a("s_waitcnt lgkmcnt(0)")
        for t in range(8):
            a(f"v_mfma_f32_16x16x32_bf16 {v(32+4*t,4)}, {v(64+8*t,4)}, v[24:27], 0")
            a(f"v_mfma_f32_16x16x32_bf16 {v(32+4*t,4)}, {v(64+8*t+4,4)}, v[12:15], {v(32+4*t,4)}")
        self.merge64(32, 16)
        Z = list(range(16, 24))
        self.bf16r_pairs(Z, 24)
        for z in Z:
            a(f"v_mul_f32 v{z}, 0x{SCALE:x}, v{z}")
        self.bf16r_pairs(Z, 24)
        for z in Z:
            a(f"v_mul_f32 v{z}, 0x{LOG2E:x}, v{z}")
        a("v_max3_f32 v12, v16, v17, v18")
        a("v_max3_f32 v12, v12, v19, v20")
        a("v_max3_f32 v12, v12, v21, v22")
        a("v_max_f32 v12, v12, v23")
        self.allred_rows([12], "v_max_f32", [13])
        for z in Z:
            a(f"v_sub_f32 v{z}, v{z}, v12")
        for z in Z:
            a(f"v_exp_f32 v{z}, v{z}")
        for p in range(4):
            a(f"v_cvt_pk_bf16_f32 v{24+p}, v{16+2*p}, v{16+2*p+1}")
        a("v_add_f32 v13, v16, v17")
        for z in Z[2:]:
            a(f"v_add_f32 v13, v13, v{z}")
        self.allred_rows([13], "v_add_f32", [14])
        a(f"s_lshl_b32 s67, {sW}, 3")
        a(f"v_add_u32 v8, s67, {vB}")
        a(f"v_lshlrev_b32 v9, 3, v8")
        a(f"ds_write_b64 v9, v[12:13] offset:{L_AUX+2048}")
        a(f"v_mul_u32_u24 v8, {132*4}, v8")
        a(f"v_lshl_add_u32 v9, {vG}, 1, {vHI}")
        a(f"v_lshl_add_u32 v8, v9, 5, v8")
        self.wait("V")
        self.stamp(sb + 1)
        for dh in range(2):
            self.perms(128 + 32 * dh, 192 + 32 * dh)
            for jj in range(8):
                a(f"v_mfma_f32_16x16x32_bf16 {v(64+32*dh+4*jj,4)}, {v(192+32*dh+4*jj,4)}, v[24:27], 0")
        self.merge64(64, 32)
        self.merge64(96, 40)
        for dh in range(2):
            for q in range(2):
                a(f"ds_write_b128 v8, {v(32+8*dh+4*q,4)} offset:{lr+256*dh+16*q}")
        a("s_waitcnt lgkmcnt(0)")
        a.label(Lb2)
        self.q = []
        a("s_barrier")
        a(f"s_cmp_ge_u32 {sW}, 5")
        a(f"s_cbranch_scc1 {Lend}")
        a("v_lshrrev_b32 v8, 5, v0")
        a(f"s_cmp_eq_u32 {sW}, 4")
        a("s_cselect_b64 vcc, -1, 0")
        a(f"v_cndmask_b32 v8, v8, {vB}, vcc")
        a(f"v_lshlrev_b32 v9, 3, v8")
        for w in range(4):
            a(f"ds_read_b64 {v(16+2*w,2)}, v9 offset:{L_AUX+2048+64*w}")
        a(f"v_mul_u32_u24 v9, {132*4}, v8")
        a("v_and_b32 v10, 31, v0")
        a("v_lshl_add_u32 v9, v10, 4, v9")
        for w in range(4):
            a(f"ds_read_b128 {v(32+4*w,4)}, v9 offset:{lr+w*8*132*4}")
        a("s_waitcnt lgkmcnt(4)")
        a("v_max3_f32 v12, v16, v18, v20")
        a("v_max_f32 v12, v12, v22")
        for w in range(4):
            a(f"v_sub_f32 v{16+2*w}, v{16+2*w}, v12")
        for w in range(4):
            a(f"v_exp_f32 v{16+2*w}, v{16+2*w}")
        a("v_mul_f32 v13, v16, v17")
        for w in range(1, 4):
            a(f"v_fmac_f32 v13, v{16+2*w}, v{17+2*w}")
        Lw4 = a.newlabel("L_attw4")
        a(f"s_cmp_eq_u32 {sW}, 4")
        a(f"s_cbranch_scc1 {Lw4}")
        a("v_rcp_f32 v14, v13")
        for w in range(4):
            a(f"v_mul_f32 v{16+2*w}, v{16+2*w}, v14")
        a("s_waitcnt lgkmcnt(0)")
        for i in range(4):
            a(f"v_mul_f32 v{24+i}, v16, v{32+i}")
        for w in range(1, 4):
            for i in range(4):
                a(f"v_fmac_f32 v{24+i}, v{16+2*w}, v{32+4*w+i}")
        self.tag([24, 25, 26, 27])
        a(f"buffer_store_dwordx4 v[24:27], v11, {WS_}, s75 offen sc1")
        a(f"s_branch {Lend}")
        a.label(Lw4)
        a("v_log_f32 v13, v13")
        a("s_waitcnt lgkmcnt(0)")
        a("v_add_f32 v13, v12, v13")
        a("v_and_b32 v24, 0xffffff00, v13")
        a("v_sub_f32 v25, v13, v24")
        self.tag([24, 25])
        a(f"s_lshl_b32 s66, s73, 2")
        a(f"s_add_u32 s66, s66, s72")
        a(f"s_lshl_b32 s66, s66, 3")
        a(f"s_lshl_b32 s67, s74, 11")
        a(f"s_add_u32 s66, s66, s67")
        a(f"s_add_u32 s66, s66, {WS_LSE}")
        a(f"v_lshlrev_b32 v13, 8, {vB}")
        a("s_mov_b64 exec, 0xff")
        a(f"buffer_store_dwordx2 v[24:25], v13, {WS_}, s66 offen sc1")
        a("s_mov_b64 exec, -1")
        a.label(Lend)
        self.stamp(sb + 3)

    def p3_issue(self, raw, D):
        a = self.a
        RS = 2048
        self.stamp(SLOT["P3"])
        self.woff_u64(RS)
        a(f"s_lshl_b32 s66, {sX}, 20")
        a(f"s_lshl_b32 s67, {sW}, 17")
        a(f"s_add_u32 s66, s66, s67")
        a(f"s_lshl_b32 s67, s68, 7")
        a(f"s_add_u32 s66, s66, s67")
        self.issue_unit(WO_, RS, raw, D, "P3", True)

    def p3_exec(self, tb, lr, lt):
        a = self.a
        sb = SLOT["P3"]
        a(f"s_lshl_b32 s69, {sX}, 9")
        a(f"s_lshl_b32 s67, {sW}, 6")
        a(f"s_add_u32 s69, s69, s67")
        a(f"s_lshl_b32 s70, {sX}, 15")
        a(f"s_lshl_b32 s67, s68, 8")
        a(f"s_add_u32 s70, s70, s67")
        a(f"s_lshl_b32 s67, {sW}, 12")
        a(f"s_add_u32 s70, s70, s67")
        a(f"s_add_u32 s70, s70, {WS_AP}")
        a(f"v_lshlrev_b32 v8, 14, {vG}")
        a(f"v_lshl_add_u32 v8, {vI}, 4, v8")
        a(f"v_lshlrev_b32 v9, 5, {vB}")
        a(f"v_lshl_add_u32 v9, {vG}, 3, v9")
        a(f"s_lshl_b32 s72, s69, 2")
        a(f"s_add_u32 s72, s72, {WS_OP}")
        for k in range(1, 8):
            a(f"s_add_u32 s{72+k}, s72, {65536*k}")
        a(f"s_lshr_b32 s71, s69, 7")
        a(f"s_lshl_b32 s71, s71, 8")
        a(f"s_add_u32 s71, s71, {WS_LSE}")
        a(f"v_lshlrev_b32 v13, 2, {vLANE}")
        a(f"v_lshl_add_u32 v28, {vLANE}, 3, s71")
        a(f"s_lshl_b32 s67, s68, 15")
        a(f"s_add_u32 s67, s67, s72")
        a(f"v_bfe_u32 v29, v0, 1, 1")
        a(f"v_lshl_add_u32 v29, v29, 14, s67")
        a(f"v_and_b32 v30, 1, v0")
        a(f"v_lshl_add_u32 v29, v30, 7, v29")
        a(f"v_cmp_gt_u32 vcc, 32, {vLANE}")
        a(f"v_cndmask_b32 v28, v29, v28, vcc")
        a(f"s_mul_i32 s67, {sW}, 1152")
        a(f"v_mul_u32_u24 v29, 288, {vG}")
        a(f"v_lshl_add_u32 v29, {vI}, 3, v29")
        a(f"v_add_u32 v29, s67, v29")
        a(f"v_mul_u32_u24 v30, 144, {vB}")
        a(f"v_lshl_add_u32 v30, {vHI}, 6, v30")
        a(f"v_lshl_add_u32 v30, {vG}, 4, v30")
        a(f"v_add_u32 v30, s67, v30")
        self.stamp(sb + 1)
        pl = [(f"buffer_load_dwordx2 v[26:27], v9, {WS_}, s71 offen sc1", 26, 2)]
        for b in range(8):
            r = 32 + 4 * b
            pl.append((f"buffer_load_dwordx4 {v(r,4)}, v8, {WS_}, s{72+b} offen sc1", r, 4))
        self.poll(pl, 24, gate=(0xfffffffff, 28, "0"), gs=42)
        self.stamp(sb + 2)
        a("v_and_b32 v26, 0xffffff00, v26")
        a("v_add_f32 v26, v26, v27")
        a("v_mov_b32 v16, v26")
        self.allred_rows([16], "v_max_f32", [17], start8=False)
        a("v_sub_f32 v26, v26, v16")
        a("v_exp_f32 v26, v26")
        a("v_mov_b32 v16, v26")
        self.allred_rows([16], "v_add_f32", [17], start8=False)
        a("v_rcp_f32 v16, v16")
        a("v_mul_f32 v26, v26, v16")
        for b in range(8):
            for e in range(4):
                r = 32 + 4 * b + e
                a(f"v_mul_f32_dpp v{r}, v26, v{r} row_newbcast:{b} row_mask:0xf bank_mask:0xf")
        for r in range(32, 48):
            a(f"v_permlane32_swap_b32 v{r}, v{r+16}")
        for r in range(32, 48):
            a(f"v_add_f32 v{r}, v{r}, v{r+16}")
        for r in range(32, 40):
            a(f"v_permlane16_swap_b32 v{r}, v{r+8}")
        for r in range(32, 40):
            a(f"v_add_f32 v{r}, v{r}, v{r+8}")
        for p in range(4):
            a(f"v_cvt_pk_bf16_f32 v{16+p}, v{32+2*p}, v{33+2*p}")
        a(f"ds_write_b64 v29, v[16:17] offset:{lt}")
        a(f"ds_write_b64 v29, v[18:19] offset:{lt+144}")
        a("s_waitcnt lgkmcnt(0)")
        a(f"ds_read_b128 {v(BB,4)}, v30 offset:{lt}")
        a("s_waitcnt lgkmcnt(0)")
        self.tail([tb], 8, lr, lambda: self.publish1("v13", "s70"))
        self.stamp(sb + 3)

    def r3(self):
        a = self.a
        sb = SLOT["R3"]
        self.stamp(sb)
        a(f"v_and_b32 v9, 31, {vLANE}")
        a(f"v_lshlrev_b32 v9, 4, v9")
        a(f"v_lshrrev_b32 v8, 5, {vLANE}")
        a(f"v_mul_u32_u24 v10, {8*3072*4}, v8")
        a(f"v_add_u32 v10, v10, v9")
        a(f"v_lshl_add_u32 v8, v8, 17, v9")
        a(f"s_lshl_b32 s67, {sW}, 9")
        a(f"s_lshl_b32 s71, s69, 12")
        a(f"s_add_u32 s71, s71, s67")
        a(f"s_mul_i32 s72, s69, {3072*4}")
        a(f"s_add_u32 s72, s72, s67")
        a(f"s_add_u32 s72, s72, {WS_MODR}")
        a(f"s_add_u32 s73, s72, 4096")
        a(f"s_add_u32 s74, s72, 8192")
        a(f"v_lshrrev_b32 v14, 1, v9")
        a(f"s_lshr_b32 s67, s71, 1")
        self.ld(f"buffer_load_dwordx2 v[28:29], v14, {X_}, s67 offen", "x")
        self.poll([(f"buffer_load_dwordx4 {v(48+4*m,4)}, v10, {WS_}, s{72+m} offen sc1", 48 + 4 * m, 4) for m in range(3)], 24)
        M = list(range(48, 60))
        T = list(range(32, 44))
        for r, t in zip(M, T):
            a(f"v_mov_b32 v{t}, v{r}")
        for r, t in zip(M, T):
            a(f"v_permlane32_swap_b32 v{r}, v{t}")
        for r, t in zip(M, T):
            a(f"v_add_f32 v{r}, v{r}, v{t}")
        self.bf16r_pairs(M, 24)
        for i in range(4):
            a(f"v_add_f32 v{56+i}, 1.0, v{56+i}")
        self.bf16r_pairs([56, 57, 58, 59], 24)
        self.unpack_bf16(28, 60, 2)
        a(f"s_add_u32 s72, s71, {WS_AP}")
        for k in range(1, 4):
            a(f"s_add_u32 s{72+k}, s72, {32768*k}")
        a(f"s_lshl_b32 s67, {sX}, 15")
        a(f"s_add_u32 s71, s71, s67")
        a(f"s_lshl_b32 s70, {sX}, 3")
        a(f"s_add_u32 s70, s70, s69")
        a(f"s_mul_i32 s70, s70, {H2R}")
        a(f"s_lshl_b32 s67, {sW}, 9")
        a(f"s_add_u32 s70, s70, s67")
        a(f"s_add_u32 s70, s70, {WS_H2}")
        a(f"s_add_u32 s76, s70, {FS}")
        a(f"s_add_u32 s71, s71, {WS_X1}")
        a(f"s_lshl_b32 s67, {sW}, 3")
        a("v_mov_b32 v14, s67")
        a("v_mov_b32 v15, 0")
        self.stamp(sb + 1)
        self.poll([(f"buffer_load_dwordx4 {v(32+4*k,4)}, v8, {WS_}, s{72+k} offen sc1", 32 + 4 * k, 4) for k in range(4)], 24)
        self.stamp(sb + 2)
        for i in range(4):
            a(f"v_add_f32 v{32+i}, v{32+i}, v{36+i}")
            a(f"v_add_f32 v{40+i}, v{40+i}, v{44+i}")
        for i in range(4):
            a(f"v_add_f32 v{32+i}, v{32+i}, v{40+i}")
        for i in range(4):
            a(f"v_mov_b32 v{36+i}, v{32+i}")
        for i in range(4):
            a(f"v_permlane32_swap_b32 v{32+i}, v{36+i}")
        for i in range(4):
            a(f"v_add_f32 v{32+i}, v{32+i}, v{36+i}")
        X = [32, 33, 34, 35]
        self.bf16r_pairs(X, 24)
        for i in range(4):
            a(f"v_mul_f32 v{32+i}, v{32+i}, v{48+i}")
        self.bf16r_pairs(X, 24)
        for i in range(4):
            a(f"v_add_f32 v{32+i}, v{32+i}, v{60+i}")
        self.bf16r_pairs(X, 24)
        a("v_add_f32 v16, v32, v33")
        a("v_mul_f32 v17, v32, v32")
        a("v_add_f32 v18, v34, v35")
        a("v_fmac_f32 v17, v33, v33")
        a("v_add_f32 v16, v16, v18")
        a("v_fmac_f32 v17, v34, v34")
        a("v_fmac_f32 v17, v35, v35")
        self.allred_wave([16, 17], [18, 19], n32=True)
        a(f"ds_write_b64 v14, v[16:17] offset:{L_AUX+128}")
        for i in range(4):
            a(f"v_bfi_b32 v{36+i}, {vFF}, {sT}, v{32+i}")
        a("s_mov_b32 exec_hi, 0")
        a(f"buffer_store_dwordx4 v[36:39], v9, {WS_}, s71 offen sc1")
        a("s_mov_b32 exec_hi, -1")
        a("s_waitcnt lgkmcnt(0)")
        a("s_barrier")
        for q in range(4):
            a(f"ds_read_b128 {v(16+4*q,4)}, v15 offset:{L_AUX+128+16*q}")
        a("s_waitcnt lgkmcnt(2)")
        a("v_add_f32 v16, v16, v18")
        a("v_add_f32 v17, v17, v19")
        a("v_add_f32 v20, v20, v22")
        a("v_add_f32 v21, v21, v23")
        a("s_waitcnt lgkmcnt(0)")
        a("v_add_f32 v24, v24, v26")
        a("v_add_f32 v25, v25, v27")
        a("v_add_f32 v28, v28, v30")
        a("v_add_f32 v29, v29, v31")
        a("v_add_f32 v16, v16, v20")
        a("v_add_f32 v17, v17, v21")
        a("v_add_f32 v24, v24, v28")
        a("v_add_f32 v25, v25, v29")
        a("v_add_f32 v16, v16, v24")
        a("v_add_f32 v17, v17, v25")
        a("v_mul_f32 v16, 0x3a800000, v16")
        a("v_mul_f32 v17, 0x3a800000, v17")
        a("v_fma_f32 v17, -v16, v16, v17")
        a("v_max_f32 v17, 0, v17")
        self.ln_consts(16, 17, 18)
        for x in X:
            a(f"v_sub_f32 v{x}, v{x}, v16")
        self.bf16r_pairs(X, 24)
        for x in X:
            a(f"v_mul_f32 v{x}, v{x}, v17")
        self.bf16r_pairs(X, 24)
        for i in range(4):
            a(f"v_mul_f32 v{32+i}, v{32+i}, v{56+i}")
        self.bf16r_pairs(X, 24)
        for i in range(4):
            a(f"v_add_f32 v{32+i}, v{32+i}, v{52+i}")
        self.bf16r_pairs(X, 24)
        self.tag(X)
        a("s_mov_b32 exec_hi, 0")
        a(f"buffer_store_dwordx4 v[32:35], v9, {WS_}, s70 offen")
        a(f"buffer_store_dwordx4 v[32:35], v9, {WS_}, s76 offen sc1")
        a("s_mov_b32 exec_hi, -1")
        self.stamp(sb + 3)

    def two_issue(self, srd, RS, D, tag):
        self.issue_unit(srd, RS, A[0], D, tag + "0", True)
        self.issue_unit(srd, RS, A[1], D, tag + "1", False)

    def two_finish(self, tag):
        self.wait(tag + "0")
        self.perms(A[0], A[2])
        self.wait(tag + "1")
        self.perms(A[1], A[0])
        return [A[2], A[0]]

    def p4(self, lr, lt, D):
        a = self.a
        RS = 7168
        sb = SLOT["P4"]
        self.stamp(sb)
        a(f"s_lshr_b32 s72, s68, 1")
        a(f"s_mul_i32 s67, {sX}, 7")
        a(f"s_add_u32 s72, s72, s67")
        a(f"s_and_b32 s71, s68, 1")
        a("s_cselect_b32 s60, s32, s28")
        a("s_cselect_b32 s61, s33, s29")
        a("s_mov_b32 s62, 7340032")
        a("s_mov_b32 s63, 0x20000")
        self.woff_u64(RS)
        a(f"s_mul_i32 s66, {sW}, {128*RS}")
        a(f"s_lshl_b32 s67, s72, 7")
        a(f"s_add_u32 s66, s66, s67")
        self.two_issue(W_, RS, D, "P4")
        self.red_addr(frag=True)
        a(f"s_mul_i32 s70, s71, {56*2048}")
        a(f"s_lshl_b32 s67, s72, 11")
        a(f"s_add_u32 s70, s70, s67")
        a(f"s_lshl_b32 s67, {sW}, 8")
        a(f"s_add_u32 s70, s70, s67")
        a(f"s_add_u32 s70, s70, {WS_GU}")
        a(f"v_lshrrev_b32 v8, 5, {vLANE}")
        a(f"v_and_b32 v10, 31, {vLANE}")
        a(f"v_mul_u32_u24 v9, {H2R}, v8")
        a(f"v_lshl_add_u32 v9, v10, 4, v9")
        a(f"v_mul_u32_u24 v26, {H2R}, {vLANE}")
        a(f"s_and_b32 s67, s68, 3")
        a(f"s_lshl_b32 s67, s67, 7")
        a(f"v_add_u32 v26, s67, v26")
        a(f"s_mul_i32 s67, {sW}, 2176")
        a(f"v_mul_u32_u24 v29, 272, v8")
        a(f"v_lshl_add_u32 v29, v10, 3, v29")
        a(f"v_add_u32 v29, s67, v29")
        a(f"v_mul_u32_u24 v30, 272, {vB}")
        a(f"v_lshl_add_u32 v30, {vHI}, 6, v30")
        a(f"v_lshl_add_u32 v30, {vG}, 4, v30")
        a(f"v_add_u32 v30, s67, v30")
        a(f"s_mul_i32 s72, {sX}, {8*H2R}")
        a(f"s_lshl_b32 s67, {sW}, 9")
        a(f"s_add_u32 s72, s72, s67")
        a(f"s_add_u32 s72, s72, {WS_H2}")
        for i in range(1, 4):
            a(f"s_add_u32 s{72+i}, s72, {2*H2R*i}")
        a(f"v_lshlrev_b32 v13, 2, {vLANE}")
        tbs = self.two_finish("P4")
        self.stamp(sb + 1)
        pl = []
        for i in range(4):
            r = 32 + 4 * i
            pl.append((f"buffer_load_dwordx4 {v(r,4)}, v9, {WS_}, s{76+i} offen sc1", r, 4))
        self.poll(pl, 24, gate=(0xff, 26, "s76"), fs=[(f"s{76+i}", f"s{72+i}") for i in range(4)], gs=44)
        self.stamp(sb + 2)
        for p in range(8):
            a(f"v_perm_b32 v{16+p}, v{33+2*p}, v{32+2*p}, {sSEL1}")
        for i in range(4):
            a(f"ds_write_b64 v29, {v(16+2*i,2)} offset:{lt+544*i}")
        a("s_waitcnt lgkmcnt(0)")
        for u in range(2):
            a(f"ds_read_b128 {v(BB+4*u,4)}, v30 offset:{lt+128*u}")
        a("s_waitcnt lgkmcnt(0)")

        def epi():
            self.bf16r1(16)
            Lu = a.newlabel("L_p4up")
            a("s_cmp_lg_u32 s71, 0")
            a(f"s_cbranch_scc1 {Lu}")
            a(f"v_mul_f32 v17, 0x{LOG2E ^ 0x80000000:x}, v16")
            a(f"v_exp_f32 v17, v17")
            a(f"v_add_f32 v17, 1.0, v17")
            a(f"v_rcp_f32 v17, v17")
            a(f"v_mul_f32 v16, v16, v17")
            self.bf16r1(16)
            a.label(Lu)
            self.publish1("v13", "s70", fast=True)
        self.tail(tbs, 8, lr, epi)
        self.stamp(sb + 3)

    def p5_issue(self, raw, D):
        a = self.a
        RS = 2048
        self.stamp(SLOT["P5"])
        self.woff_u64(RS)
        a(f"s_mul_i32 s66, {sX}, {448*2048}")
        a(f"s_min_u32 s67, {sW}, 6")
        a(f"s_lshl_b32 s67, s67, 17")
        a(f"s_add_u32 s66, s66, s67")
        a(f"s_lshl_b32 s67, s68, 7")
        a(f"s_add_u32 s66, s66, s67")
        Lsk = a.newlabel("L_p5i")
        a(f"s_cmp_ge_u32 {sW}, 7")
        a(f"s_cbranch_scc1 {Lsk}")
        self.issue_unit(WD_, RS, raw, D, "P5", True)
        a.label(Lsk)

    def p5_exec(self, tb, lr):
        a = self.a
        sb = SLOT["P5"]
        a(f"s_lshl_b32 s70, {sX}, 15")
        a(f"s_lshl_b32 s67, s68, 8")
        a(f"s_add_u32 s70, s70, s67")
        a(f"s_lshl_b32 s67, {sW}, 12")
        a(f"s_add_u32 s70, s70, s67")
        a(f"s_add_u32 s70, s70, {WS_DP}")
        a(f"v_lshlrev_b32 v8, 4, {vLANE}")
        a(f"s_mul_i32 s73, {sX}, {7*2048}")
        a(f"s_lshl_b32 s67, {sW}, 11")
        a(f"s_add_u32 s73, s73, s67")
        a(f"s_add_u32 s73, s73, {WS_GU}")
        a(f"s_add_u32 s74, s73, {56*2048}")
        a(f"v_mul_u32_u24 v26, {56*2048}, {vLANE}")
        a(f"s_lshl_b32 s67, s68, 7")
        a(f"v_add_u32 v26, s67, v26")
        a(f"v_lshlrev_b32 v13, 2, {vLANE}")
        self.stamp(sb + 1)
        Lsk = a.newlabel("L_p5skip")
        a(f"s_cmp_ge_u32 {sW}, 7")
        a(f"s_cbranch_scc1 {Lsk}")
        pl = []
        for m, so in enumerate(("s75", "s76")):
            for q in range(2):
                r = 32 + 8 * m + 4 * q
                pl.append((f"buffer_load_dwordx4 {v(r,4)}, v8, {WS_}, {so} offen offset:{1024*q} sc1", r, 4))
        self.poll(pl, 24, gate=(0x3, 26, "s75"), fs=[("s75", "s73"), ("s76", "s74")], gs=46)
        self.stamp(sb + 2)
        for e in range(16):
            a(f"v_and_b32 v{32+e}, 0xffff0000, v{32+e}")
        for e in range(8):
            a(f"v_mul_f32 v{32+e}, v{32+e}, v{40+e}")
        for p in range(4):
            a(f"v_cvt_pk_bf16_f32 v{BB+p}, v{32+2*p}, v{33+2*p}")
        a.label(Lsk)
        self.tail([tb], 7, lr, lambda: self.publish1("v13", "s70"))
        self.stamp(sb + 3)

    def gb_r5(self, lr, D):
        a = self.a
        RS = 12288
        sb = SLOT["GB"]
        self.stamp(sb)
        self.woff_u64(RS)
        a(f"s_mul_i32 s66, {sW}, {128*RS}")
        a(f"s_lshl_b32 s67, s68, 7")
        a(f"s_add_u32 s66, s66, s67")
        a(f"s_add_u32 s66, s66, {5120*2}")
        self.koff(8, 11, 1)
        a(f"s_lshl_b32 s67, {sW}, 8")
        self.ld(f"buffer_load_dwordx4 v[56:59], v8, {C_}, s67 offen", "c")
        self.ld(f"buffer_load_dwordx4 v[60:63], v8, {C_}, s67 offen offset:128", "c")
        self.two_issue(WM_, RS, D, "GB")
        self.red_addr()
        self.wait("c")
        self.silu_c(56, BB)
        self.silu_c(60, BB + 4)
        tbs = self.two_finish("GB")
        self.stamp(sb + 1)

        def epi():
            self.bf16r1(16)
            a("v_mov_b32 v15, v16")
        self.tail(tbs, 8, lr, epi)
        self.stamp(sb + 3)
        sb = SLOT["R5"]
        self.stamp(sb)
        a(f"v_lshlrev_b32 v13, 2, {vLANE}")
        a(f"s_lshl_b32 s69, s68, 8")
        a(f"s_lshl_b32 s67, {sW}, 12")
        a(f"s_add_u32 s69, s69, s67")
        a(f"s_lshl_b32 s67, {sX}, 15")
        a(f"s_add_u32 s70, s69, s67")
        a(f"s_add_u32 s70, s70, {WS_X1}")
        self.poll([(f"buffer_load_dword v14, v13, {WS_}, s70 offen sc1", 14, 1)], 24)
        a("v_and_b32 v14, 0xffff0000, v14")
        a(f"s_add_u32 s72, s69, {WS_DP}")
        for k in range(1, 8):
            a(f"s_add_u32 s{72+k}, s72, {32768*k}")
        a(f"v_lshlrev_b32 v10, 1, {vLANE}")
        a(f"s_lshr_b32 s69, s69, 1")
        self.stamp(sb + 1)
        self.poll([(f"buffer_load_dword v{32+k}, v13, {WS_}, s{72+k} offen sc1", 32 + k, 1) for k in range(8)], 24)
        self.stamp(sb + 2)
        for k in range(4):
            a(f"v_add_f32 v{32+k}, v{32+k}, v{36+k}")
        a("v_add_f32 v32, v32, v33")
        a("v_add_f32 v34, v34, v35")
        a("v_add_f32 v32, v32, v34")
        self.bf16r1(32)
        a("v_mul_f32 v32, v32, v15")
        self.bf16r1(32)
        a("v_add_f32 v32, v32, v14")
        a("v_cvt_pk_bf16_f32 v32, v32, v32")
        a(f"buffer_store_short v32, v10, {OUT_}, s69 offen")
        Lnb = a.newlabel("L_nobump")
        a(f"s_or_b32 s67, s68, {sW}")
        a("s_cmp_lg_u32 s67, 0")
        a(f"s_cbranch_scc1 {Lnb}")
        a(f"s_add_u32 s67, {sEP}, 1")
        a("v_mov_b32 v33, s67")
        a("v_mov_b32 v34, 0")
        a("s_mov_b64 exec, 1")
        a(f"buffer_store_dword v33, v34, {WS_}, 0 offen")
        a("s_mov_b64 exec, -1")
        a.label(Lnb)
        self.stamp(sb + 3)

    def build(self):
        a = self.a
        cfg = self.cfg
        hdr = open(os.path.join(os.path.dirname(os.path.abspath(__file__)), "..", "cdna_kernels", NAME + ".s.ref")).read()
        for line in hdr.split("\n"):
            if line.startswith("; @launch"):
                break
            a.raw(line)
        a.raw(f"; @launch grid=(256,1,1) block=(512,1,1) lds={LDS_BYTES}")
        a.raw('.amdgcn_target "amdgcn-amd-amdhsa--gfx950"')
        a.raw(".text")
        a.raw(f".globl {NAME}_kernel")
        a.raw(".p2align 8")
        a.raw(f".type {NAME}_kernel,@function")
        a.raw(f"{NAME}_kernel:")
        a("s_cmp_ge_u32 s2, 256")
        a("s_cbranch_scc1 L_exit")
        for (s0, ko, nb) in SRD_INFO:
            a(f"s_load_dwordx2 s[{s0}:{s0+1}], s[0:1], {ko}")
        for (s0, ko, nb) in SRD_INFO:
            a(f"s_mov_b32 s{s0+2}, {nb}")
            a(f"s_mov_b32 s{s0+3}, 0x20000")
        a(f"v_and_b32 {vLANE}, 63, v0")
        a("v_lshrrev_b32 v7, 6, v0")
        a(f"v_lshrrev_b32 {vG}, 4, {vLANE}")
        a(f"v_readfirstlane_b32 {sW}, v7")
        a(f"v_and_b32 {vI}, 15, v0")
        a(f"v_and_b32 {vB}, 7, v0")
        a(f"v_bfe_u32 {vHI}, v0, 3, 1")
        a(f"v_mov_b32 {vFF}, 0xff")
        a(f"v_mov_b32 {vSTAMP}, 0")
        a(f"s_mov_b32 {sSEL0}, 0x05040100")
        a(f"s_mov_b32 {sSEL1}, 0x07060302")
        a(f"s_and_b32 {sX}, s2, 7")
        a(f"s_lshr_b32 {sL}, s2, 3")
        if cfg.get("pre"):
            Lp = a.newlabel("L_pre")
            a(f"s_cmp_lg_u32 {sW}, 7")
            a(f"s_cbranch_scc1 {Lp}")
            a("s_getpc_b64 s[66:67]")
            a.label("L_pc")
            a(f"s_lshl_b32 s68, {sL}, 11")
            a(f"v_lshl_add_u32 v8, {vI}, 7, s68")
            a(f"v_min_u32 v8, L_exit-L_pc, v8")
            a("s_mov_b64 exec, 0xffff")
            a("global_load_dword v9, v8, s[66:67]")
            a("s_mov_b64 exec, -1")
            a.label(Lp)
        a("s_waitcnt lgkmcnt(0)")
        a(f"s_load_dword {sEP}, s[52:53], 0")
        a(f"s_cmp_ge_u32 {sL}, 16")
        a("s_cbranch_scc1 L_G3")
        a(f"s_cmp_ge_u32 {sX}, 4")
        a("s_cbranch_scc1 L_ATT")
        a("; ======== G1")
        a(f"s_lshl_b32 s68, {sL}, 2")
        a(f"s_add_u32 s68, s68, {sX}")
        self.mod_issue("P0A", A[2], cfg["D_p0"])
        self.red_addr(frag=True)
        self.mod_exec("P0A", A[2], A[3], L_R[0])
        a.label("L_ATT")
        a(f"s_mov_b32 s68, {sL}")
        self.q = []
        self.att(L_R[1], cfg["D_att"])
        a(f"s_cmp_lt_u32 {sL}, 14")
        a("s_cbranch_scc1 L_P4")
        a(f"s_lshl_b32 s68, {sX}, 1")
        a(f"s_add_u32 s68, s68, {sL}")
        a(f"s_sub_u32 s68, s68, 14")
        self.gb_r5(L_R[2], cfg["D_gb"])
        a("s_branch L_done")
        a.label("L_P4")
        self.q = []
        self.p4(L_R[2], L_R[0], cfg["D_p4"])
        a("s_branch L_done")
        a.label("L_G3")
        self.q = []
        a("; ======== G3")
        a(f"s_sub_u32 s68, {sL}, 16")
        self.p1(A[0], A[1], L_R[0], cfg["D_p1"])
        self.p3_issue(A[0], cfg["D_p3"])
        Lnorm = a.newlabel("L_norm")

        def rm_block():
            a(f"s_cmp_ge_u32 {sL}, 28")
            a(f"s_cbranch_scc1 {Lnorm}")
            q0 = list(self.q)
            a(f"s_sub_u32 s68, s2, 64")
            self.mod_issue("RM", A[2], cfg["D_rm"])
            self.mod_exec("RM", A[2], A[3], L_R[1])
            a(f"s_sub_u32 s68, {sL}, 16")
            a.label(Lnorm)
            self.q = q0
        if cfg["rm_first"]:
            rm_block()
        self.wait("P3")
        self.perms(A[0], A[1])
        self.p3_exec(A[1], L_R[2], L_R[0])
        if not cfg["rm_first"]:
            rm_block()
        Lnr3 = a.newlabel("L_nor3")
        a(f"s_cmp_lt_u32 {sL}, 24")
        a(f"s_cbranch_scc1 {Lnr3}")
        a(f"s_sub_u32 s69, {sL}, 24")
        self.r3()
        a.label(Lnr3)
        self.p5_issue(A[0], cfg["D_p5"])
        a("s_waitcnt vmcnt(0)")
        self.q = []
        self.perms(A[0], A[1])
        self.p5_exec(A[1], L_R[0])
        a.label("L_done")
        if self.stamps:
            a(f"s_lshl_b32 s66, s2, 3")
            a(f"s_add_u32 s66, s66, {sW}")
            a(f"s_lshl_b32 s66, s66, 8")
            a(f"s_add_u32 s66, s66, {WS_STAMP}")
            a(f"v_lshlrev_b32 v8, 2, {vLANE}")
            a(f"buffer_store_dword {vSTAMP}, v8, {WS_}, s66 offen sc1")
        a.label("L_exit")
        a("s_endpgm")
        a.raw('.section .rodata,"a"')
        a.raw(".p2align 6")
        a.raw(f".amdhsa_kernel {NAME}_kernel")
        a.raw("  .amdhsa_next_free_vgpr 256")
        a.raw("  .amdhsa_next_free_sgpr 102")
        a.raw("  .amdhsa_accum_offset 256")
        a.raw("  .amdhsa_group_segment_fixed_size 0")
        a.raw("  .amdhsa_kernarg_size 112")
        a.raw("  .amdhsa_user_sgpr_count 2")
        a.raw("  .amdhsa_user_sgpr_kernarg_segment_ptr 1")
        a.raw("  .amdhsa_system_sgpr_workgroup_id_x 1")
        a.raw(".end_amdhsa_kernel")
        return a.text()


DEFAULT = dict(D_p0=8, D_p1=8, D_att=8, D_rm=4, D_p3=4, D_p4=4, D_p5=4, D_gb=4, rm_first=True)

if __name__ == "__main__":
    cfg = dict(DEFAULT)
    out = sys.argv[1] if len(sys.argv) > 1 else os.path.join(os.path.dirname(os.path.abspath(__file__)), "..", "cdna_kernels", NAME + ".s")
    for arg in sys.argv[2:]:
        if "=" in arg:
            k_, v_ = arg.split("=")
            cfg[k_] = eval(v_)
        else:
            cfg[arg] = True
    open(out, "w").write(Gen(cfg).build())
    print("wrote", out)
```

```python
import sys, os, struct
sys.path.insert(0, os.path.dirname(os.path.abspath(__file__)))
from asmlib import Asm

NAME = "adaLN_cond__sliding_block_cached__swiglu_ffn__decode"

FS = 4 << 20
WS_SAC = 4096
WS_MGA = WS_SAC + 8 * 32768
WS_MSC = WS_MGA + 4 * 8 * 1024 * 4
WS_QP = WS_MSC + 2 * 8 * 2048 * 4
WS_OP = WS_QP + 8 * 8 * 4096 * 4
WS_LSE = WS_OP + 8 * 4 * 32 * 128 * 4
WS_AP = WS_LSE + 4096
WS_X1 = WS_AP + 8 * 8 * 1024 * 4
WS_DP = WS_X1 + 8 * 8 * 1024 * 4
H2R = 4096 + 128
WS_H2 = WS_DP + 8 * 8 * 1024 * 4
WS_GU = WS_H2 + 8 * 8 * H2R + 1024 * 8
assert WS_GU + 2 * 8 * 3584 * 4 <= FS
WS_STAMP = 2 * FS
WS_END = WS_STAMP + 256 * 16 * 64 * 4

X_, K_, V_, WQ_, WO_, WG_, WU_, WD_, C_, WM_, OUT_, WS_, DBG_, W_ = [f"s[{8+4*i}:{11+4*i}]" for i in range(14)]
SRD_INFO = [
    (44, 80, 12582912), (20, 24, 8388608), (12, 8, 33554432), (40, 72, 16384), (8, 0, 16384), (52, 104, WS_END),
    (16, 16, 33554432), (24, 32, 8388608), (28, 48, 7340032), (32, 56, 7340032), (36, 64, 7340032),
    (48, 88, 16384)]

sW, sT, sX, sL, sSEL1 = "s3", "s4", "s5", "s6", "s7"
sEP = "s64"
sPOLL = "s80"
sLOG = "s88"
sHKV = "s65"
sM8 = "s[84:85]"
NS = 16
SLOTB = 8192
L_AUX = NS * SLOTB
L_CNT = L_AUX
L_ST = L_AUX + 256
L_Q = L_AUX + 512
L_P = L_Q + 8 * 272
L_ML = L_P + 4096
L_H = L_AUX + 512
L_OB = L_H + 2048
LDS_BYTES = L_AUX + 12288
assert L_OB + 8192 <= LDS_BYTES and L_ML + 640 <= LDS_BYTES
SB = 272
C_LANDED, C_FREE = 0, 1
CNT = dict(S1=20, H=21, P1P=22, Q=23, P=24, ATTP=25, RM=26, P3=27, P3P=28, R3=29, R3P=30, P4=31, P5=32, GB=33, P0P=34,
           QG=35, P3G=36, R3G=37)

A = [64, 96, 128]
ACC, BB = 160, 48
vLANE, vG, vI, vB, vHI, vFF, vSTAMP = "v1", "v2", "v3", "v4", "v5", "v6", "v7"
vRW, vRR, vL4, vZ, vONE = "v11", "v12", "v13", "v14", "v15"
NVGPR = 168
TR = 160
TRA = 164
LOG2E = 0x3FB8AA3B
SCALE = struct.unpack("<I", struct.pack("<f", 128 ** -0.5))[0]
EPS = struct.unpack("<I", struct.pack("<f", 1e-5))[0]
SLOT = dict(P0A=0, P1=4, ATT=8, RM=12, P3=16, R3=20, P4=24, P5=28, GB=32, R5=36)


def v(n, cnt=1):
    return f"v{n}" if cnt == 1 else f"v[{n}:{n+cnt-1}]"


class Gen:
    def __init__(self, cfg):
        self.cfg = cfg
        self.a = Asm()
        self.stamps = cfg.get("stamps", False)
        self.poll_limit = cfg.get("poll_limit", 20000)

    def stamp(self, slot):
        if not self.stamps:
            return
        a = self.a
        a("s_memrealtime s[90:91]")
        a("s_waitcnt lgkmcnt(0)")
        a(f"v_writelane_b32 {vSTAMP}, s90, {slot}")

    def xs(self, n):
        if self.cfg.get("xs"):
            self.stamp(58 + n)

    def bf16r_pairs(self, regs, tmp):
        a = self.a
        for i in range(0, len(regs), 2):
            a(f"v_cvt_pk_bf16_f32 v{tmp}, v{regs[i]}, v{regs[i+1]}")
            a(f"v_lshlrev_b32 v{regs[i]}, 16, v{tmp}")
            a(f"v_and_b32 v{regs[i+1]}, 0xffff0000, v{tmp}")

    def bf16r1(self, r):
        a = self.a
        a(f"v_cvt_pk_bf16_f32 v{r}, v{r}, v{r}")
        a(f"v_lshlrev_b32 v{r}, 16, v{r}")

    def unpack_bf16(self, src, dst, n):
        a = self.a
        for i in range(n):
            a(f"v_lshlrev_b32 v{dst+2*i}, 16, v{src+i}")
            a(f"v_and_b32 v{dst+2*i+1}, 0xffff0000, v{src+i}")

    def allred_g(self, regs, op, tmp):
        a = self.a
        for r, t in zip(regs, tmp):
            a(f"v_mov_b32 v{t}, v{r}")
        for r, t in zip(regs, tmp):
            a(f"v_permlane16_swap_b32 v{r}, v{t}")
        for r, t in zip(regs, tmp):
            a(f"{op} v{t}, v{r}, v{t}")
        for r, t in zip(regs, tmp):
            a(f"v_mov_b32 v{r}, v{t}")
        for r, t in zip(regs, tmp):
            a(f"v_permlane32_swap_b32 v{r}, v{t}")
        for r, t in zip(regs, tmp):
            a(f"{op} v{r}, v{r}, v{t}")

    def allred_wave(self, regs, tmp, op="v_add_f32", n32=False):
        a = self.a
        for r, t in zip(regs, tmp):
            a(f"{op}_dpp v{t}, v{r}, v{r} quad_perm:[1,0,3,2] row_mask:0xf bank_mask:0xf")
        for r, t in zip(regs, tmp):
            a(f"{op}_dpp v{r}, v{t}, v{t} quad_perm:[2,3,0,1] row_mask:0xf bank_mask:0xf")
        for r, t in zip(regs, tmp):
            a(f"{op}_dpp v{t}, v{r}, v{r} row_half_mirror row_mask:0xf bank_mask:0xf")
        for r, t in zip(regs, tmp):
            a(f"{op}_dpp v{r}, v{t}, v{t} row_ror:8 row_mask:0xf bank_mask:0xf")
        for r, t in zip(regs, tmp):
            a(f"v_mov_b32 v{t}, v{r}")
        for r, t in zip(regs, tmp):
            a(f"v_permlane16_swap_b32 v{r}, v{t}")
        for r, t in zip(regs, tmp):
            a(f"{op} v{r}, v{r}, v{t}")
        if n32:
            return
        for r, t in zip(regs, tmp):
            a(f"v_mov_b32 v{t}, v{r}")
        for r, t in zip(regs, tmp):
            a(f"v_permlane32_swap_b32 v{r}, v{t}")
        for r, t in zip(regs, tmp):
            a(f"{op} v{r}, v{r}, v{t}")

    def check(self, loads, acc, mid=None):
        a = self.a
        for t, _, _ in loads:
            a(t + (" nt" if self.cfg.get("gnt") and t.endswith("sc1") else ""))
        if mid:
            mid()
        first = True
        for n, (t, r, cnt) in enumerate(loads):
            a(f"s_waitcnt vmcnt({len(loads)-1-n})")
            for i in range(cnt):
                if first:
                    a(f"v_xor_b32 v{acc}, {sT}, v{r+i}")
                    first = False
                else:
                    a(f"v_bitop3_b32 v{acc}, v{r+i}, v{acc}, {sT} bitop3:0xde")
        a(f"v_and_b32 v{acc}, {vFF}, v{acc}")
        a(f"v_cmp_ne_u32 vcc, 0, v{acc}")

    def poll(self, loads, acc, gate=None, fs=None, vfs=None, gs=None, plain=False, mid=None, keep=False, gfs=True, hook=None, lhook=None):
        a = self.a
        if gate is not None:
            mask, greg, gsoff = gate
            a(f"s_mov_b32 exec_lo, 0x{mask & 0xffffffff:x}")
            a(f"s_mov_b32 exec_hi, 0x{mask >> 32:x}")
            self.poll([(f"buffer_load_dword v25, v{greg}, {WS_}, {gsoff} offen sc1", 25, 1)], acc, fs=fs if gfs else None, lhook=hook)
            a("s_mov_b64 exec, -1")
            keep = gfs
            if gs is not None:
                self.stamp(gs)
        L = a.newlabel("L_poll")
        D = a.newlabel("L_pdone")
        if fs and not keep:
            for so, base in fs:
                a(f"s_add_u32 {so}, {base}, {FS}")
        if plain or mid:
            self.check([(t.replace(" sc1", "") if plain else t, r, c) for t, r, c in loads], acc, mid)
            a(f"s_mov_b32 {sPOLL}, {self.poll_limit | 7}")
            a(f"s_cbranch_vccz {D}")
        else:
            a(f"s_mov_b32 {sPOLL}, {self.poll_limit | 7}")
        a.label(L)
        self.check(loads, acc, lhook)
        a(f"s_sub_u32 {sPOLL}, {sPOLL}, 1")
        a(f"s_cbranch_vccz {D}")
        if fs or vfs:
            a(f"s_and_b32 s81, {sPOLL}, 7")
            a(f"s_cselect_b32 s81, {FS}, 0")
            for so, base in (fs or []):
                a(f"s_add_u32 {so}, {base}, s81")
            if vfs:
                a(f"v_mad_u32_u24 v{vfs[0]}, v{vfs[1]}, s81, v{vfs[2]}")
        a(f"s_cmp_lg_u32 {sPOLL}, 0")
        a(f"s_cbranch_scc1 {L}")
        a.label(D)
        if gs is not None and self.stamps:
            a(f"v_writelane_b32 {vSTAMP}, {sPOLL}, {gs+1}")

    def tag(self, regs):
        for r in regs:
            self.a(f"v_bfi_b32 v{r}, {vFF}, {sT}, v{r}")

    def bump(self, cnt, val=vONE):
        a = self.a
        a("s_mov_b64 exec, 1")
        a(f"ds_add_u32 {vZ}, {val} offset:{4*cnt}")
        a("s_mov_b64 exec, -1")

    def lds_wait(self, cnt, need, reads=(), tmp=16, slow=0, rl=False):
        a = self.a
        L = a.newlabel("L_lw")
        D = a.newlabel("L_lwd")
        E = a.newlabel("L_lwe")
        rd = f"ds_read_b32 v{tmp}, {vZ} offset:{4*cnt}"
        nr = len([t for t in reads if t.startswith("ds_")])
        if rl and self.cfg.get("rl", 1):
            a(f"s_mov_b32 {sPOLL}, {self.poll_limit * 8}")
            a.label(L)
            a(rd)
            for t in reads:
                a(t)
            a(f"s_sub_u32 {sPOLL}, {sPOLL}, 1")
            a(f"s_cbranch_scc1 {E}")
            a(f"s_waitcnt lgkmcnt({min(nr, 15)})")
            a(f"v_cmp_le_i32 vcc, {need}, v{tmp}")
            a(f"s_cbranch_vccz {L}")
            a.label(E)
            return
        if reads:
            a(rd)
            for t in reads:
                a(t)
            a(f"s_waitcnt lgkmcnt({min(nr, 15)})")
            a(f"v_cmp_le_i32 vcc, {need}, v{tmp}")
            a(f"s_cbranch_vccnz {E}")
        a(f"s_mov_b32 {sPOLL}, {self.poll_limit * 8}")
        a.label(L)
        a(rd)
        a(f"s_waitcnt lgkmcnt(0)")
        a(f"v_cmp_le_i32 vcc, {need}, v{tmp}")
        a(f"s_sub_u32 {sPOLL}, {sPOLL}, 1")
        a(f"s_cbranch_vccnz {D}")
        for _ in range(slow):
            a("s_nop 15")
        a(f"s_cmp_lg_u32 {sPOLL}, 0")
        a(f"s_cbranch_scc1 {L}")
        a.label(D)
        for t in reads:
            a(t)
        a.label(E)

    def early_pull(self, flag, need, reads, mask):
        a = self.a

        def hook():
            S = a.newlabel("L_hk")
            a(f"s_cmp_lg_u32 {flag}, 0")
            a(f"s_cbranch_scc1 {S}")
            a(f"ds_read_b32 v16, {vZ} offset:{4*C_LANDED}")
            a("s_waitcnt lgkmcnt(0)")
            a(f"v_cmp_le_i32 vcc, {need}, v16")
            a(f"s_cbranch_vccz {S}")
            a("s_mov_b64 exec, -1")
            for t in reads:
                if t[0] == "@":
                    a.label(t[1:])
                else:
                    a(t)
            a(f"s_mov_b32 exec_lo, 0x{mask & 0xffffffff:x}")
            a(f"s_mov_b32 exec_hi, 0x{mask >> 32:x}")
            a(f"s_mov_b32 {flag}, 1")
            a.label(S)
        return hook

    def late_pull(self, flag, need, reads):
        a = self.a
        S = a.newlabel("L_lp")
        a(f"s_cmp_lg_u32 {flag}, 0")
        a(f"s_cbranch_scc1 {S}")
        self.lds_wait(C_LANDED, need, reads, tmp=24)
        a.label(S)

    def slot_of(self, base, sdst, sunit):
        a = self.a
        a(f"s_add_u32 {sdst}, {sW}, {base}")
        a(f"s_add_u32 {sunit}, {sdst}, 1")
        a(f"s_and_b32 {sdst}, {sdst}, {NS-1}")
        a(f"s_lshl_b32 {sdst}, {sdst}, 13")

    def release(self, sslot, n=8):
        a = self.a
        a(f"s_lshr_b32 s67, {sslot}, 11")
        a(f"v_add_u32 v16, s67, {vZ}")
        a(f"v_mov_b32 v17, {n}")
        a("s_mov_b64 exec, 1")
        a(f"ds_add_u32 v16, v17 offset:{4*C_FREE}")
        a("s_mov_b64 exec, -1")

    def release_run(self, slot0, n, val=vONE):
        a = self.a
        a(f"v_add_u32 v16, {vL4}, {vZ}")
        a(f"s_mov_b64 exec, 0x{(1 << n) - 1:x}")
        a(f"ds_add_u32 v16, {val} offset:{4*(C_FREE+slot0)}")
        a("s_mov_b64 exec, -1")

    def pull(self, base, dst, release=False, red=None):
        a = self.a
        self.slot_of(base, "s78", "s79")
        for cg in range(4):
            a(f"v_add_u32 v{TRA+cg}, s78, v{TR+cg}")
        if red:
            self.red_addr(base, red)
        self.lds_wait(C_LANDED, "s79", slow=self.cfg["slow"])
        for cg in range(4):
            for hi in range(2):
                for q in range(2):
                    a(f"ds_read_b64_tr_b16 {v(dst+8*cg+4*hi+2*q,2)}, v{TRA+cg} offset:{(32*hi+16*q)*128}")
        a("s_waitcnt lgkmcnt(0)")
        if release:
            self.release("s78")

    def red_addr(self, base, kind):
        a = self.a
        a(f"v_mul_u32_u24 v16, {SB}, {vB}")
        a(f"v_lshl_add_u32 v16, {vG}, 4, v16")
        a(f"v_add_u32 {vRW}, s78, v16")
        if isinstance(base, int):
            a(f"s_mov_b32 s67, {(base % NS) * SLOTB}")
        else:
            a(f"s_and_b32 s67, {base}, {NS-1}")
            a(f"s_lshl_b32 s67, s67, 13")
        if kind == "row":
            a(f"s_mul_i32 s77, {sW}, {SB}")
            a(f"s_add_u32 s67, s67, s77")
            a(f"v_add_u32 {vRR}, s67, {vL4}")
        else:
            a(f"v_bfe_u32 v16, v0, 2, 3")
            a(f"v_mul_u32_u24 v16, {SB}, v16")
            a(f"v_bfe_u32 v17, v0, 5, 1")
            a(f"v_lshl_add_u32 v16, v17, 7, v16")
            a(f"v_and_b32 v17, 3, v0")
            a(f"v_lshl_add_u32 v16, v17, 2, v16")
            a(f"v_bfe_u32 v17, v0, 6, 2")
            a(f"v_lshl_add_u32 v16, v17, 4, v16")
            a(f"v_bfe_u32 v17, v0, 8, 1")
            a(f"v_lshl_add_u32 v16, v17, 6, v16")
            a(f"v_add_u32 {vRR}, s67, v16")

    def tail(self, tbs, nw, cnt, epilogue, acc=32, slow=0, BB=BB):
        a = self.a
        Lskip = a.newlabel("L_nomm")
        if nw < 8:
            a(f"s_cmp_ge_u32 {sW}, {nw}")
            a(f"s_cbranch_scc1 {Lskip}")
        first = True
        for u, tb in enumerate(tbs):
            for cg in range(4):
                c = "0" if first else v(acc + 4 * cg, 4)
                a(f"v_mfma_f32_16x16x32_bf16 {v(acc+4*cg,4)}, {v(tb+8*cg,4)}, {v(BB+8*u,4)}, {c}")
                a(f"v_mov_b32_dpp v{BB+8*u+4+cg}, v{BB+8*u+cg} row_ror:8 row_mask:0xf bank_mask:0xf")
            first = False
        for u, tb in enumerate(tbs):
            for cg in range(4):
                a(f"v_mfma_f32_16x16x32_bf16 {v(acc+4*cg,4)}, {v(tb+8*cg+4,4)}, {v(BB+8*u+4,4)}, {v(acc+4*cg,4)}")
        a(f"s_mov_b64 exec, {sM8}")
        for cg in range(4):
            a(f"ds_write_b128 {vRW}, {v(acc+4*cg,4)} offset:{64*cg}")
        self.bump(CNT[cnt])
        a.label(Lskip)
        np_ = (nw + 1) // 2
        rd = []
        for p in range(np_):
            if 2 * p + 1 < nw:
                rd.append(f"ds_read2st64_b32 {v(16+2*p,2)}, {vRR} offset0:{64*p} offset1:{64*p+32}")
            else:
                rd.append(f"ds_read_b32 v{16+2*p}, {vRR} offset:{SLOTB*2*p}")
        self.lds_wait(CNT[cnt], nw, rd, tmp=24, slow=slow, rl=not slow)
        for p in range(np_):
            a(f"s_waitcnt lgkmcnt({np_-1-p})")
            if p == 0:
                a("v_add_f32 v16, v16, v17")
            else:
                a(f"v_add_f32 v16, v16, v{16+2*p}")
                if 2 * p + 1 < nw:
                    a(f"v_add_f32 v16, v16, v{17+2*p}")
        epilogue()

    def publish1(self, voff, soff, fast=None):
        a = self.a
        self.tag([16])
        if fast:
            a(f"buffer_store_dword v16, {voff}, {WS_}, {fast} offen")
        a(f"buffer_store_dword v16, {voff}, {WS_}, {soff} offen sc1")

    def ln_consts(self, m, var, t):
        a = self.a
        self.bf16r_pairs([m, var], t)
        a(f"v_add_f32 v{var}, 0x{EPS:x}, v{var}")
        self.bf16r1(var)
        a(f"v_sqrt_f32 v{var}, v{var}")
        self.bf16r1(var)
        a(f"v_rcp_f32 v{var}, v{var}")

    def silu_c(self, src, dst):
        a = self.a
        self.unpack_bf16(src, 32, 4)
        for e in range(8):
            a(f"v_mul_f32 v{40+e}, 0x{LOG2E ^ 0x80000000:x}, v{32+e}")
        for e in range(8):
            a(f"v_exp_f32 v{40+e}, v{40+e}")
        for e in range(8):
            a(f"v_add_f32 v{40+e}, 1.0, v{40+e}")
        for e in range(8):
            a(f"v_rcp_f32 v{40+e}, v{40+e}")
        for e in range(8):
            a(f"v_mul_f32 v{32+e}, v{32+e}, v{40+e}")
        for p in range(4):
            a(f"v_cvt_pk_bf16_f32 v{dst+p}, v{32+2*p}, v{32+2*p+1}")

    def rot_addr(self, sh, c, dst):
        a = self.a
        a(f"v_lshrrev_b32 v16, 5, {vLANE}")
        a(f"v_sub_u32 v{dst+5}, 1, v16")
        a(f"v_add_u32 v16, {sX}, v16")
        for i in range(4):
            r = dst + 4 if i == 0 else dst + i
            a(f"v_add_u32 v17, {2*i}, v16")
            a(f"v_and_b32 v17, 7, v17")
            a(f"v_lshlrev_b32 v17, {sh}, v17")
            a(f"v_lshl_add_u32 v{r}, v{c}, 4, v17")
        a(f"v_lshl_add_u32 v{dst}, v{dst+5}, 22, v{dst+4}")

    def rm_task(self, k0, cg):
        a = self.a
        L1 = a.newlabel("L_rmt")
        a(f"s_and_b32 {k0}, {sL}, 1")
        a(f"s_lshl_b32 {k0}, {k0}, 9")
        a(f"s_bfe_u32 {cg}, {sL}, 0x20001")
        a(f"s_lshl2_add_u32 {cg}, {sX}, {cg}")
        a(f"s_add_u32 {cg}, {cg}, 48")
        a(f"s_cmp_lt_u32 {sL}, 24")
        a(f"s_cbranch_scc1 {L1}")
        a(f"s_and_b32 {k0}, {sL}, 3")
        a(f"s_lshl_b32 {k0}, {k0}, 8")
        a(f"s_bfe_u32 {cg}, {sL}, 0x10002")
        a(f"s_lshl1_add_u32 {cg}, {sX}, {cg}")
        a(f"s_add_u32 {cg}, {cg}, 32")
        a.label(L1)

    def p4_cg(self, d):
        a = self.a
        a(f"s_add_u32 {d}, {sX}, 3")
        a(f"s_and_b32 {d}, {d}, 7")
        a(f"s_lshr_b32 s67, {sL}, 1")
        a(f"s_add_u32 {d}, {d}, s67")
        a(f"s_add_u32 {d}, {d}, 1")
        for _ in range(2):
            a(f"s_cmp_ge_u32 {d}, 7")
            a(f"s_cselect_b32 s67, 7, 0")
            a(f"s_sub_u32 {d}, {d}, s67")
        a(f"s_mul_i32 s67, {sX}, 7")
        a(f"s_add_u32 {d}, {d}, s67")

    def swap_j(self, d, p, q):
        a = self.a
        a(f"s_sub_u32 {d}, {sL}, 16")
        if not self.cfg.get("swap", 1):
            return
        a(f"s_cmp_eq_u32 {sL}, {16+p}")
        a(f"s_cselect_b32 {d}, {q}, {d}")
        a(f"s_cmp_eq_u32 {sL}, {16+q}")
        a(f"s_cselect_b32 {d}, {p}, {d}")

    def koff(self, dst):
        a = self.a
        a(f"v_lshlrev_b32 v{dst}, 11, {vB}")
        a(f"v_lshl_add_u32 v{dst}, {vHI}, 6, v{dst}")
        a(f"v_lshl_add_u32 v{dst}, {vG}, 3, v{dst}")

    def load_bfrag(self, dst, srd, soff, extra=0):
        a = self.a
        a(f"buffer_load_dwordx2 {v(dst,2)}, v8, {srd}, {soff} offen offset:{extra}")
        a(f"buffer_load_dwordx2 {v(dst+2,2)}, v8, {srd}, {soff} offen offset:{extra+32}")

    def p0a_early(self):
        a = self.a
        a(f"v_bfe_u32 v8, {vLANE}, 1, 3")
        a(f"v_lshlrev_b32 v8, 11, v8")
        a(f"v_lshl_add_u32 v8, {vG}, 3, v8")
        a(f"v_and_b32 v9, 1, {vLANE}")
        a(f"v_lshl_add_u32 v8, v9, 5, v8")
        a(f"s_and_b32 s71, {sL}, 3")
        a(f"s_lshl_b32 s67, s71, 9")
        a(f"s_lshl_b32 s70, {sW}, 6")
        a(f"s_add_u32 s67, s67, s70")
        a("s_waitcnt lgkmcnt(0)")
        a(f"buffer_load_dwordx2 v[28:29], v8, {C_}, s67 offen")

    def p0a(self):
        a = self.a
        sb = SLOT["P0A"]
        BF, AF = 96, 128
        self.stamp(sb)
        a(f"s_lshl_b32 s67, {sW}, 9")
        a(f"v_lshl_add_u32 v8, {vLANE}, 3, {vZ}")
        a(f"v_add_u32 v8, s67, v8")
        a(f"s_lshl_b32 s70, {sX}, 15")
        a(f"s_lshr_b32 s67, {sL}, 2")
        a(f"s_lshl_b32 s67, s67, 13")
        a(f"s_add_u32 s70, s70, s67")
        a(f"s_lshl_b32 s67, {sW}, 11")
        a(f"s_add_u32 s70, s70, s67")
        a(f"s_lshl_b32 s67, s71, 9")
        a(f"s_add_u32 s70, s70, s67")
        a(f"s_add_u32 s70, s70, {WS_SAC}")
        a(f"s_add_u32 s72, s70, {FS}")
        a(f"v_lshlrev_b32 v10, 4, {vB}")
        a(f"v_lshl_add_u32 v10, {vG}, 7, v10")
        a(f"v_add_u32 v30, v10, {vZ}")
        a(f"s_lshl_b32 s67, {sW}, 5")
        a(f"v_xor_b32 v9, s67, v{TR}")
        a(f"s_waitcnt vmcnt(0)")
        self.unpack_bf16(28, 32, 2)
        for e in range(4):
            a(f"v_mul_f32 v{40+e}, 0x{LOG2E ^ 0x80000000:x}, v{32+e}")
        for e in range(4):
            a(f"v_exp_f32 v{40+e}, v{40+e}")
        for e in range(4):
            a(f"v_add_f32 v{40+e}, 1.0, v{40+e}")
        for e in range(4):
            a(f"v_rcp_f32 v{40+e}, v{40+e}")
        for e in range(4):
            a(f"v_mul_f32 v{32+e}, v{32+e}, v{40+e}")
        for p in range(2):
            a(f"v_cvt_pk_bf16_f32 v{32+p}, v{32+2*p}, v{33+2*p}")
        a(f"ds_write_b64 v8, v[32:33] offset:{L_P-L_AUX}")
        self.bump(CNT["S1"])
        a(f"s_cmp_ge_u32 {sW}, 4")
        a("s_cbranch_scc1 L_att")
        self.lds_wait(CNT["S1"], 8, [f"ds_read_b128 {v(BF+4*st,4)}, v30 offset:{L_P-L_AUX+512*st}" for st in range(8)], tmp=24)
        a("s_waitcnt lgkmcnt(0)")
        self.stamp(sb + 1)
        for u in range(4):
            rd = [f"ds_read_b64_tr_b16 {v(AF+8*u+4*hi+2*q,2)}, v9 offset:{u*SLOTB+(32*hi+16*q)*128}" for hi in range(2) for q in range(2)]
            self.lds_wait(C_LANDED, u + 1, rd, tmp=24)
            for hi in range(2):
                a(f"s_waitcnt lgkmcnt({2-2*hi})")
                c = "0" if u == 0 else v(16 + 4 * hi, 4)
                a(f"v_mfma_f32_16x16x32_bf16 {v(16+4*hi,4)}, {v(AF+8*u+4*hi,4)}, {v(BF+8*u+4*hi,4)}, {c}")
        for r in range(4):
            a(f"v_add_f32 v{16+r}, v{16+r}, v{20+r}")
        self.tag([16, 17, 18, 19])
        a(f"s_mov_b64 exec, {sM8}")
        a(f"buffer_store_dwordx4 v[16:19], v10, {WS_}, s72 offen")
        a(f"buffer_store_dwordx4 v[16:19], v10, {WS_}, s70 offen sc1")
        self.bump(CNT["P0P"])
        self.stamp(sb + 3)
        a("v_mov_b32 v20, 2")
        self.release_run(0, 4, "v20")

    def rm(self, tb):
        a = self.a
        name = "RM"
        self.stamp(SLOT[name])
        self.rm_task("s69", "s72")
        a("s_lshl_b32 s70, s69, 7")
        a("s_lshl_b32 s67, s72, 8")
        a("s_add_u32 s70, s70, s67")
        Lr = a.newlabel("L_rmr")
        Le = a.newlabel("L_rme")
        a(f"s_cmp_ge_u32 {sL}, 24")
        a(f"s_cbranch_scc1 {Lr}")
        a(f"s_lshl_b32 s67, {sW}, 13")
        a("s_add_u32 s70, s70, s67")
        a(f"s_add_u32 s70, s70, {WS_MSC-48*256}")
        self.pull(8, tb, red="row")
        self.stamp(SLOT[name] + 1)
        self.tail([tb], 8, name, lambda: self.publish1(vL4, "s70"), slow=self.cfg["slow"], BB=100)
        self.release_run(8, 8)
        a(f"s_branch {Le}")
        a.label(Lr)
        a(f"s_lshl_b32 s67, {sW}, 12")
        a("s_add_u32 s70, s70, s67")
        a(f"s_add_u32 s70, s70, {WS_MGA-32*256}")
        self.slot_of(12, "s78", "s79")
        self.red_addr(12, "row")
        Ls = a.newlabel("L_rms")
        a(f"s_cmp_ge_u32 {sW}, 4")
        a(f"s_cbranch_scc1 {Ls}")
        self.pull(12, tb)
        self.stamp(SLOT[name] + 1)
        a.label(Ls)
        self.tail([tb], 4, name, lambda: self.publish1(vL4, "s70"), slow=self.cfg["slow"], BB=100)
        self.release_run(12, 4)
        a.label(Le)
        self.stamp(SLOT[name] + 3)

    def p1_early(self):
        a = self.a
        a(f"v_lshlrev_b32 v9, 4, {vLANE}")
        a(f"s_lshl_b32 s70, {sW}, 11")
        a(f"v_bfe_u32 v10, {vLANE}, 3, 2")
        a(f"v_lshlrev_b32 v8, 11, {vB}")
        a(f"v_lshl_add_u32 v8, v10, 3, v8")
        a(f"v_lshrrev_b32 v10, 5, {vLANE}")
        a(f"v_lshl_add_u32 v8, v10, 2, v8")
        a(f"s_lshl_b32 s69, {sX}, 8")
        a(f"s_lshl_b32 s67, {sW}, 5")
        a(f"s_add_u32 s69, s69, s67")
        a("s_waitcnt lgkmcnt(0)")
        a(f"buffer_load_dwordx4 v[32:35], v9, {X_}, s70 offen")
        a(f"buffer_load_dwordx4 v[36:39], v9, {X_}, s70 offen offset:1024")
        a(f"buffer_load_dword v58, v8, {X_}, s69 offen")
        self.rm_task("s69", "s72")
        a(f"s_lshl_b32 s67, {sW}, 6")
        a("s_add_u32 s69, s69, s67")
        a("s_and_b32 s69, s69, 1023")
        a("s_lshl_b32 s69, s69, 1")
        self.koff(8)
        self.load_bfrag(96, C_, "s69")

    def p1(self, tb):
        a = self.a
        sb = SLOT["P1"]
        Y = [60, 61]
        self.stamp(sb)
        a(f"s_lshl_b32 s70, {sX}, 17")
        a(f"s_lshl_b32 s67, s68, 10")
        a(f"s_add_u32 s70, s70, s67")
        a(f"s_lshl_b32 s67, {sW}, 7")
        a(f"s_add_u32 s70, s70, s67")
        a(f"s_add_u32 s70, s70, {WS_QP}")
        a(f"s_add_u32 s71, s70, {FS}")
        a(f"v_lshlrev_b32 v31, 14, {vB}")
        a(f"v_lshl_add_u32 v31, {vHI}, 6, v31")
        a(f"v_lshl_add_u32 v31, {vG}, 4, v31")
        a(f"v_and_b32 v30, 31, {vLANE}")
        a(f"v_lshl_add_u32 v28, v30, 4, {vZ}")
        a(f"s_lshr_b32 s67, {sW}, 1")
        a(f"s_lshl_b32 s67, s67, 9")
        a(f"s_and_b32 s72, {sW}, 1")
        a(f"s_lshl_b32 s72, s72, 3")
        a(f"s_add_u32 s67, s67, s72")
        a(f"v_add_u32 v28, s67, v28")
        a(f"v_lshl_add_u32 v29, {vB}, 4, {vZ}")
        a(f"v_lshl_add_u32 v29, {vG}, 7, v29")
        a(f"v_lshrrev_b32 v27, 5, {vLANE}")
        a(f"v_lshl_add_u32 v28, v27, 2, v28")
        a(f"v_lshlrev_b32 v27, 14, v27")
        a(f"v_lshl_add_u32 v27, v30, 4, v27")
        a(f"s_and_b32 s67, {sW}, 3")
        a(f"s_lshl_b32 s67, s67, 9")
        a(f"v_add_u32 v26, s67, v27")
        a(f"s_lshl_b32 s73, {sX}, 15")
        a(f"s_lshl_b32 s67, {sW}, 11")
        a(f"s_add_u32 s73, s73, s67")
        a(f"s_add_u32 s73, s73, {WS_SAC}")
        a("s_waitcnt vmcnt(3)")
        self.unpack_bf16(32, 40, 8)
        a("v_add_f32 v18, v40, v41")
        for e in range(2, 16):
            a(f"v_add_f32 v18, v18, v{40+e}")
        self.allred_wave([18], [19])
        a("v_mul_f32 v18, 0x3a800000, v18")
        a("v_mov_b32 v16, 0")
        for e in range(16):
            a(f"v_sub_f32 v17, v{40+e}, v18")
            a(f"v_fmac_f32 v16, v17, v17")
        self.allred_wave([16], [19])
        a("v_mul_f32 v19, 0x3a800000, v16")
        self.ln_consts(18, 19, 16)
        a(f"s_lshl_b32 s67, {sW}, 3")
        a(f"v_add_u32 v16, s67, {vZ}")
        a(f"ds_write_b64 v16, v[18:19] offset:{L_ST-L_AUX}")
        self.bump(CNT["S1"])
        a(f"v_lshl_add_u32 v17, {vB}, 3, {vZ}")
        a("s_waitcnt vmcnt(0)")
        self.unpack_bf16(58, 60, 1)
        self.silu_c(96, 100)
        self.lds_wait(CNT["S1"], 8, [f"ds_read_b64 v[18:19], v17 offset:{L_ST-L_AUX}"])
        a("s_waitcnt lgkmcnt(0)")
        for y in Y:
            a(f"v_sub_f32 v{y}, v{y}, v18")
        self.bf16r_pairs(Y, 24)
        for y in Y:
            a(f"v_mul_f32 v{y}, v{y}, v19")
        self.bf16r_pairs(Y, 24)
        a(f"s_lshr_b32 s78, {sW}, 1")
        a(f"s_add_u32 s79, s78, 1")
        a(f"s_lshl_b32 s78, s78, 13")
        a(f"s_lshl_b32 s67, s72, 3")
        a(f"v_xor_b32 v16, s67, v{TR}")
        a(f"v_add_u32 v{TRA}, s78, v16")
        a(f"v_xor_b32 v16, s67, v{TR+1}")
        a(f"v_add_u32 v{TRA+1}, s78, v16")
        def wreads(rh):
            return [f"ds_read_b64_tr_b16 {v(tb+16*rh+8*c2+4*hi+2*q,2)}, v{TRA+c2} offset:{4*SLOTB*rh+(32*hi+16*q)*128}"
                    for c2 in range(2) for hi in range(2) for q in range(2)]
        self.lds_wait(C_LANDED, "s79", slow=self.cfg["slow"])
        for t in wreads(0):
            a(t)
        a(f"s_add_u32 s79, s79, 4")
        a("s_mov_b32 s75, 0")
        self.stamp(sb + 1)
        pl = [(f"buffer_load_dwordx4 {v(32+4*p,4)}, v27, {WS_}, s74 offen offset:{512*p} sc1", 32 + 4 * p, 4) for p in range(4)]
        GM = 0x100000001
        self.poll(pl, 24, gate=(GM, 26, "s74"), fs=[("s74", "s73")], gs=40, hook=self.early_pull("s75", "s79", wreads(1), GM))
        self.stamp(sb + 2)
        for e in range(4):
            a(f"v_add_f32 v{32+e}, v{32+e}, v{36+e}")
            a(f"v_add_f32 v{40+e}, v{40+e}, v{44+e}")
        for e in range(4):
            a(f"v_add_f32 v{32+e}, v{32+e}, v{40+e}")
        a("v_permlane32_swap_b32 v32, v34")
        a("v_permlane32_swap_b32 v33, v35")
        self.bf16r_pairs([34, 35], 24)
        for e in range(2):
            a(f"v_add_f32 v{34+e}, 1.0, v{34+e}")
        self.bf16r_pairs([34, 35], 24)
        self.bf16r_pairs([32, 33], 25)
        for e in range(2):
            a(f"v_mul_f32 v{34+e}, v{Y[e]}, v{34+e}")
        self.bf16r_pairs([34, 35], 24)
        for e in range(2):
            a(f"v_add_f32 v{32+e}, v{32+e}, v{34+e}")
        a("v_cvt_pk_bf16_f32 v32, v32, v33")
        a(f"ds_write_b32 v28, v32 offset:{L_H-L_AUX}")
        self.bump(CNT["H"])
        self.xs(0)
        self.late_pull("s75", "s79", wreads(1))
        self.lds_wait(CNT["H"], 8, [f"ds_read_b128 {v(32+4*st,4)}, v29 offset:{L_H-L_AUX+512*st}" for st in range(4)], tmp=24, rl=True)
        for st in range(4):
            a(f"s_waitcnt lgkmcnt({3-st})")
            for c2 in range(2):
                c = "0" if st == 0 else v(16 + 4 * c2, 4)
                a(f"v_mfma_f32_16x16x32_bf16 {v(16+4*c2,4)}, {v(tb+16*(st>>1)+8*c2+4*(st&1),4)}, {v(32+4*st,4)}, {c}")
        self.xs(1)
        a(f"s_lshr_b32 s67, s68, 2")
        a(f"s_cmp_lg_u32 s67, {sHKV}")
        for e in range(4):
            a(f"v_cndmask_b32 v{16+e}, v{20+e}, v{16+e}, {sM8}")
        self.tag([16, 17, 18, 19])
        a(f"buffer_store_dwordx4 v[16:19], v31, {WS_}, s70 offen sc1")
        Ln = a.newlabel("L_nopl")
        a(f"s_cbranch_scc1 {Ln}")
        a(f"buffer_store_dwordx4 v[16:19], v31, {WS_}, s71 offen")
        a.label(Ln)
        self.bump(CNT["P1P"])
        self.stamp(sb + 3)
        a(f"s_lshr_b32 s67, s78, 11")
        a(f"v_add_u32 v24, s67, {vZ}")
        a(f"v_mov_b32 v25, 4")
        a("s_mov_b64 exec, 1")
        a(f"ds_add_u32 v24, v25 offset:{4*C_FREE}")
        a(f"ds_add_u32 v24, v25 offset:{4*C_FREE+16}")
        a("s_mov_b64 exec, -1")

    def att(self, uK):
        a = self.a
        sb = SLOT["ATT"]
        uV = uK + 8
        KR, VR, PR = 64, 96, 128
        self.stamp(sb)
        a(f"s_and_b32 s72, s68, 3")
        a(f"s_and_b32 s73, {sX}, 1")
        a(f"s_lshl_b32 s73, s73, 2")
        a(f"s_lshr_b32 s67, s68, 2")
        a(f"s_add_u32 s73, s73, s67")
        a(f"s_mov_b32 s74, {sHKV}")
        a(f"v_and_b32 v8, 31, {vLANE}")
        self.rot_addr(17, 8, 56)
        a(f"s_lshl_b32 s66, s73, 14")
        a(f"s_lshl_b32 s67, s74, 12")
        a(f"s_add_u32 s66, s66, s67")
        a(f"s_lshl_b32 s67, {sW}, 9")
        a(f"s_add_u32 s66, s66, s67")
        a(f"s_add_u32 s66, s66, {WS_QP}")
        a(f"s_mul_i32 s67, {sW}, 272")
        a(f"v_lshl_add_u32 v28, v8, 3, {vZ}")
        a(f"v_add_u32 v28, s67, v28")
        a(f"v_lshrrev_b32 v16, 5, {vLANE}")
        a(f"v_lshl_add_u32 v28, v16, 2, v28")
        a(f"v_mul_u32_u24 v29, 272, {vB}")
        a(f"v_lshl_add_u32 v29, {vG}, 4, v29")
        a(f"v_add_u32 v29, v29, {vZ}")
        a(f"v_lshl_add_u32 v30, {vB}, 4, {vZ}")
        a(f"v_lshl_add_u32 v30, {vG}, 7, v30")
        a(f"s_lshl_b32 s67, {sW}, 9")
        a(f"v_add_u32 v31, s67, v30")
        a(f"v_lshl_add_u32 v31, {vHI}, 3, v31")
        a(f"v_mul_u32_u24 v26, 80, {vB}")
        a(f"v_add_u32 v26, v26, {vZ}")
        a(f"s_lshl_b32 s67, {sW}, 3")
        a(f"v_add_u32 v27, s67, v26")
        a(f"v_lshl_add_u32 v26, {vHI}, 5, v26")
        for r in range(PR, PR + 32):
            a(f"v_mov_b32 v{r}, 0")
        a(f"s_not_b64 s[86:87], {sM8}")
        a(f"s_lshl_b32 s75, s73, 2")
        a(f"s_add_u32 s75, s75, s72")
        a(f"s_lshl_b32 s76, s73, 7")
        a(f"s_lshl2_add_u32 s76, s72, s76")
        a(f"s_lshl_b32 s75, s75, 14")
        a(f"s_lshl_b32 s67, s74, 12")
        a(f"s_add_u32 s75, s75, s67")
        a(f"s_lshl_b32 s67, {sW}, 9")
        a(f"s_add_u32 s75, s75, s67")
        a(f"s_add_u32 s75, s75, {WS_OP}")
        a(f"s_lshl_b32 s67, s74, 10")
        a(f"s_add_u32 s76, s76, s67")
        a(f"s_add_u32 s76, s76, {WS_LSE}")
        a(f"v_sub_u32 v10, v30, {vZ}")
        a(f"v_lshrrev_b32 v16, 2, {vLANE}")
        a(f"v_and_b32 v17, 7, v16")
        a(f"v_xor_b32 v17, {sW}, v17")
        a(f"v_lshlrev_b32 v16, 8, v16")
        a(f"v_lshl_add_u32 v16, v17, 5, v16")
        a(f"v_and_b32 v17, 3, {vLANE}")
        a(f"v_lshl_add_u32 v62, v17, 3, v16")
        a(f"v_add_u32 v63, 0x10000, v62")
        self.slot_of(uK, "s78", "s79")
        a(f"v_xor_b32 v16, {vG}, {vI}")
        a(f"v_lshlrev_b32 v16, 4, v16")
        a(f"v_lshl_add_u32 v16, {vI}, 8, v16")
        for st in range(4):
            a(f"v_xor_b32 v17, {64*st}, v16")
            a(f"v_add_u32 v{TRA+st}, s78, v17")
        self.lds_wait(C_LANDED, "s79", slow=self.cfg["slow"])
        for kb in range(2):
            for st in range(4):
                a(f"ds_read_b128 {v(KR+16*kb+4*st,4)}, v{TRA+st} offset:{4096*kb}")
        a("s_waitcnt lgkmcnt(0)")
        self.release("s78")
        vr = []
        for t in range(8):
            sl = (uV + t) % NS
            for q in range(2):
                off = sl * SLOTB + 4096 * q
                vr.append(f"ds_read_b64_tr_b16 {v(VR+4*t+2*q,2)}, v{62 + off//65536} offset:{off % 65536}")
        a("s_mov_b32 s77, 0")
        GM = 0x100000001
        self.poll([(f"buffer_load_dwordx4 {v(32+4*i,4)}, v{56+i}, {WS_}, s66 offen sc1", 32 + 4 * i, 4) for i in range(4)], 24,
                  gate=(GM, 58, "s66"), vfs=(56, 61, 60), gs=54, hook=self.early_pull("s77", uV + 8, vr, GM))
        self.stamp(sb + 2)
        for i in range(4):
            a(f"v_add_f32 v{32+i}, v{32+i}, v{36+i}")
            a(f"v_add_f32 v{40+i}, v{40+i}, v{44+i}")
        for i in range(4):
            a(f"v_add_f32 v{32+i}, v{32+i}, v{40+i}")
        a("v_permlane32_swap_b32 v32, v34")
        a("v_permlane32_swap_b32 v33, v35")
        a("v_add_f32 v32, v32, v34")
        a("v_add_f32 v33, v33, v35")
        a("v_cvt_pk_bf16_f32 v32, v32, v33")
        a(f"ds_write_b32 v28, v32 offset:{L_Q-L_AUX}")
        self.bump(CNT["Q"])
        self.lds_wait(CNT["Q"], 8, [f"ds_read_b128 {v(32+4*st,4)}, v29 offset:{L_Q-L_AUX+64*st}" for st in range(4)], tmp=24, rl=True)
        for st in range(4):
            a(f"s_waitcnt lgkmcnt({3-st})")
            for kb in range(2):
                c = "0" if st == 0 else v(16 + 4 * kb, 4)
                a(f"v_mfma_f32_16x16x32_bf16 {v(16+4*kb,4)}, {v(KR+16*kb+4*st,4)}, {v(32+4*st,4)}, {c}")
        self.xs(0)
        Z = [16, 17, 18, 19]
        for e in range(4):
            a(f"v_cndmask_b32 v{16+e}, v{20+e}, v{16+e}, {sM8}")
        self.bf16r_pairs(Z[:2], 24)
        self.bf16r_pairs(Z[2:], 25)
        for z in Z:
            a(f"v_mul_f32 v{z}, 0x{SCALE:x}, v{z}")
        self.bf16r_pairs(Z[:2], 24)
        self.bf16r_pairs(Z[2:], 25)
        a("v_max3_f32 v32, v16, v17, v18")
        a("v_max_f32 v33, v32, v19")
        a("v_max_f32_dpp v32, v33, v33 row_ror:8 row_mask:0xf bank_mask:0xf")
        self.allred_g([32], "v_max_f32", [33])
        a(f"v_mul_f32 v32, 0x{LOG2E:x}, v32")
        for z in Z:
            a(f"v_fma_f32 v{z}, v{z}, {sLOG}, -v32")
        for z in Z:
            a(f"v_exp_f32 v{z}, v{z}")
        a("v_cvt_pk_bf16_f32 v36, v16, v17")
        a("v_cvt_pk_bf16_f32 v37, v18, v19")
        a(f"ds_write_b64 v31, v[36:37] offset:{L_P-L_AUX}")
        a("v_add_f32 v16, v16, v17")
        a("v_add_f32 v18, v18, v19")
        a("v_add_f32 v34, v16, v18")
        a("v_add_f32_dpp v33, v34, v34 row_ror:8 row_mask:0xf bank_mask:0xf")
        self.allred_g([33], "v_add_f32", [34])
        a(f"ds_write_b64 v27, v[32:33] offset:{L_ML-L_AUX}")
        self.bump(CNT["P"])
        self.xs(1)
        self.late_pull("s77", uV + 8, vr)
        self.xs(2)
        rd = [f"ds_read_b128 {v(32+4*i,4)}, v26 offset:{L_ML-L_AUX+16*i}" for i in range(2)]
        rd += [f"s_mov_b64 exec, {sM8}"]
        rd += [f"ds_read_b128 {v(PR+4*t,4)}, v30 offset:{L_P-L_AUX+512*t}" for t in range(4)]
        rd += [f"s_mov_b64 exec, s[86:87]"]
        rd += [f"ds_read_b128 {v(PR+4*t,4)}, v30 offset:{L_P-L_AUX+512*t}" for t in range(4, 8)]
        rd += [f"s_mov_b64 exec, -1"]
        self.lds_wait(CNT["P"], 8, rd, tmp=24, rl=self.cfg.get("rlp", 0))
        self.xs(3)
        a("s_waitcnt lgkmcnt(8)")
        a("v_max3_f32 v16, v32, v34, v36")
        a("v_max_f32 v17, v16, v38")
        a("v_max_f32_dpp v16, v17, v17 row_ror:8 row_mask:0xf bank_mask:0xf")
        for t in range(4):
            a(f"s_waitcnt lgkmcnt({7-t})")
            a(f"v_mfma_f32_16x16x32_bf16 {v(KR+4*t,4)}, {v(VR+4*t,4)}, {v(PR+4*t,4)}, 0")
            a(f"v_sub_f32 v{32+2*t}, v{32+2*t}, v16")
            a(f"v_exp_f32 v{32+2*t}, v{32+2*t}")
        for t in range(4):
            a(f"s_waitcnt lgkmcnt({3-t})")
            a(f"v_mfma_f32_16x16x32_bf16 {v(KR+4*t,4)}, {v(VR+16+4*t,4)}, {v(PR+16+4*t,4)}, {v(KR+4*t,4)}")
            a(f"v_mul_f32 v18, v32, v33" if t == 0 else f"v_fmac_f32 v18, v{32+2*t}, v{33+2*t}")
        a("v_add_f32_dpp v17, v18, v18 row_ror:8 row_mask:0xf bank_mask:0xf")
        a("v_rcp_f32 v18, v17")
        a("v_log_f32 v17, v17")
        for i in range(4):
            a(f"v_mul_f32 v{20+i}, v32, v{KR+i}")
        Ln = a.newlabel("L_nolse")
        a(f"s_cmp_lg_u32 {sW}, 7")
        a(f"s_cbranch_scc1 {Ln}")
        a("v_add_f32 v17, v16, v17")
        self.tag([17])
        a("s_mov_b64 exec, 0xff")
        a(f"buffer_store_dword v17, v10, {WS_}, s76 offen sc1")
        a("s_mov_b64 exec, -1")
        a.label(Ln)
        for t in range(1, 4):
            for i in range(4):
                a(f"v_fmac_f32 v{20+i}, v{32+2*t}, v{KR+4*t+i}")
        for i in range(4):
            a(f"v_add_f32_dpp v{40+i}, v{20+i}, v{20+i} row_ror:8 row_mask:0xf bank_mask:0xf")
        for i in range(4):
            a(f"v_mul_f32 v{40+i}, v{40+i}, v18")
        self.tag([40, 41, 42, 43])
        a(f"s_mov_b64 exec, {sM8}")
        a(f"buffer_store_dwordx4 v[40:43], v10, {WS_}, s75 offen sc1")
        self.bump(CNT["ATTP"])
        self.stamp(sb + 3)
        self.release_run(uV % NS, NS - uV % NS)
        self.release_run(0, 8 - (NS - uV % NS))

    def p3(self, ubase, tb):
        a = self.a
        sb = SLOT["P3"]
        self.stamp(sb)
        a(f"s_lshl_b32 s70, {sX}, 15")
        a(f"s_lshl_b32 s67, s68, 8")
        a(f"s_add_u32 s70, s70, s67")
        a(f"s_lshl_b32 s67, {sW}, 12")
        a(f"s_add_u32 s70, s70, s67")
        a(f"s_add_u32 s70, s70, {WS_AP}")
        a(f"s_add_u32 s69, s70, {FS}")
        a(f"v_lshlrev_b32 v8, 4, {vLANE}")
        a(f"s_lshl_b32 s72, {sX}, 11")
        a(f"s_lshl_b32 s67, {sW}, 16")
        a(f"s_add_u32 s72, s72, s67")
        a(f"s_add_u32 s72, s72, {WS_OP}")
        for i in range(1, 4):
            a(f"s_add_u32 s{72+i}, s72, {16384*i}")
        a(f"v_lshlrev_b32 v9, 4, {vB}")
        a(f"s_lshr_b32 s71, {sX}, 1")
        a(f"s_lshl_b32 s71, s71, 10")
        a(f"s_lshl_b32 s67, {sW}, 7")
        a(f"s_add_u32 s71, s71, s67")
        a(f"s_add_u32 s71, s71, {WS_LSE}")
        a(f"v_bfe_u32 v16, v0, 2, 1")
        a(f"v_lshl_add_u32 v16, {vG}, 1, v16")
        a(f"v_lshl_add_u32 v29, v16, 9, {vZ}")
        a(f"v_xor_b32 v16, {sW}, v16")
        a(f"v_lshl_add_u32 v29, v16, 4, v29")
        a(f"v_and_b32 v16, 1, v0")
        a(f"v_lshl_add_u32 v29, v16, 8, v29")
        a(f"v_lshl_add_u32 v29, {vHI}, 7, v29")
        a(f"v_bfe_u32 v16, v0, 1, 1")
        a(f"v_lshl_add_u32 v29, v16, 3, v29")
        a(f"s_and_b32 s67, {sW}, 3")
        a(f"s_lshl_b32 s67, s67, 1")
        a(f"v_xor_b32 v16, {vHI}, {vB}")
        a(f"v_xor_b32 v16, s67, v16")
        a(f"v_lshl_add_u32 v30, v16, 4, {vZ}")
        a(f"v_lshl_add_u32 v30, {vG}, 7, v30")
        a(f"v_lshl_add_u32 v30, {vHI}, 9, v30")
        a(f"s_lshl_b32 s67, {sW}, 10")
        a(f"v_add_u32 v30, s67, v30")
        self.slot_of(ubase, "s78", "s79")
        for cg in range(4):
            a(f"v_add_u32 v{TRA+cg}, s78, v{TR+cg}")
        self.red_addr(ubase, "row")
        wr = [f"ds_read_b64_tr_b16 {v(tb+8*cg+4*hi+2*q,2)}, v{TRA+cg} offset:{(32*hi+16*q)*128}" for cg in range(4) for hi in range(2) for q in range(2)]
        a("s_mov_b32 s77, 0")
        self.mod_addr()
        Lnm = a.newlabel("L_nomod")
        hk = wr + [f"s_cmp_lt_u32 {sL}, 24", f"s_cbranch_scc1 {Lnm}"] + [t for t, _, _ in self.mod_loads()] + [f"@{Lnm}"]
        self.stamp(sb + 1)
        self.poll([(f"buffer_load_dwordx4 v[32:35], v9, {WS_}, s71 offen sc1", 32, 4)], 24,
                  lhook=self.early_pull("s77", "s79", hk if self.cfg.get("hmod", 2) == 1 else wr, (1 << 64) - 1))
        self.stamp(42)
        G0 = 128
        pl = []
        for sp in range(4):
            for i in range(2):
                r = G0 + 8 * sp + 4 * i
                pl.append((f"buffer_load_dwordx4 {v(r,4)}, v8, {WS_}, s{72+sp} offen offset:{1024*i} sc1", r, 4))

        def weights():
            a("v_max3_f32 v36, v32, v33, v34")
            a("v_max_f32 v36, v36, v35")
            for w in range(32, 36):
                a(f"v_sub_f32 v{w}, v{w}, v36")
            for w in range(32, 36):
                a(f"v_exp_f32 v{w}, v{w}")
            a("v_add_f32 v36, v32, v33")
            a("v_add_f32 v37, v34, v35")
            a("v_add_f32 v36, v36, v37")
            a("v_rcp_f32 v36, v36")
            for w in range(32, 36):
                a(f"v_mul_f32 v{w}, v{w}, v36")
        self.poll(pl, 24, plain=self.cfg["plain"], mid=weights)
        if self.stamps:
            a(f"v_writelane_b32 {vSTAMP}, {sPOLL}, 43")
        self.stamp(sb + 2)
        for e in range(8):
            a(f"v_mul_f32 v{G0+e}, v32, v{G0+e}")
        for sp in range(1, 4):
            for e in range(8):
                a(f"v_fmac_f32 v{G0+e}, v{32+sp}, v{G0+8*sp+e}")
        for p in range(4):
            a(f"v_cvt_pk_bf16_f32 v{16+p}, v{G0+2*p}, v{G0+1+2*p}")
        a(f"ds_write_b64 v29, v[16:17] offset:{L_OB-L_AUX}")
        a(f"ds_write_b64 v29, v[18:19] offset:{L_OB-L_AUX+4096}")
        self.bump(CNT["P3G"])
        self.late_pull("s77", "s79", wr)
        self.lds_wait(CNT["P3G"], 8, [f"ds_read_b128 {v(BB,4)}, v30 offset:{L_OB-L_AUX}"], tmp=24, rl=True)
        if self.cfg.get("hmod", 2) == 2:
            a(f"s_cmp_lt_u32 {sL}, 24")
            a(f"s_cbranch_scc1 {Lnm}")
            for t, _, _ in self.mod_loads():
                a(t)
            a.label(Lnm)
        a("s_waitcnt lgkmcnt(0)")
        self.xs(2)
        self.tail([tb], 8, "P3", lambda: self.publish1(vL4, "s70", fast="s69"))
        self.bump(CNT["P3P"])
        self.stamp(sb + 3)

    def mod_addr(self):
        a = self.a
        a(f"v_and_b32 v16, 31, {vLANE}")
        a(f"v_lshlrev_b32 v16, 4, v16")
        a(f"v_lshrrev_b32 v17, 5, {vLANE}")
        a(f"v_lshl_add_u32 v112, v17, 15, v16")
        a(f"v_lshl_add_u32 v113, v17, 16, v16")
        a(f"s_and_b32 s97, {sL}, 7")
        a(f"s_lshl_b32 s67, {sW}, 9")
        a(f"s_lshl_b32 s94, s97, 12")
        a(f"s_add_u32 s94, s94, s67")
        a(f"s_add_u32 s94, s94, {WS_MGA}")
        a(f"s_add_u32 s95, s94, 65536")
        a(f"s_lshl_b32 s96, s97, 13")
        a(f"s_add_u32 s96, s96, s67")
        a(f"s_add_u32 s96, s96, {WS_MSC}")
        a(f"s_add_u32 s97, s96, 4096")
        a(f"v_not_b32 v96, {sT}")

    def mod_loads(self):
        return [(f"buffer_load_dwordx4 {v(r,4)}, v{ad}, {WS_}, {so} offen sc1", r, 4)
                for r, ad, so in ((96, 112, "s94"), (108, 112, "s95"), (100, 113, "s96"), (104, 113, "s97"))]

    def r3(self):
        a = self.a
        sb = SLOT["R3"]
        a(f"v_and_b32 v8, 31, {vLANE}")
        a(f"v_lshlrev_b32 v9, 4, v8")
        a(f"s_lshl_b32 s67, {sW}, 9")
        a(f"s_lshl_b32 s71, s69, 12")
        a(f"s_add_u32 s71, s71, s67")
        ml = self.mod_loads()
        a(f"v_lshrrev_b32 v16, 1, v9")
        a(f"s_lshr_b32 s67, s71, 1")
        a(f"buffer_load_dwordx2 v[28:29], v16, {X_}, s67 offen")
        self.rot_addr(15, 8, 64)
        a(f"s_add_u32 s77, s71, {WS_AP}")
        a(f"s_lshl_b32 s67, {sX}, 15")
        a(f"s_add_u32 s71, s71, s67")
        a(f"s_lshl_b32 s70, {sX}, 3")
        a(f"s_add_u32 s70, s70, s69")
        a(f"s_mul_i32 s70, s70, {H2R}")
        a(f"s_lshl_b32 s67, {sW}, 9")
        a(f"s_add_u32 s70, s70, s67")
        a(f"s_add_u32 s70, s70, {WS_H2}")
        a(f"s_add_u32 s76, s70, {FS}")
        a(f"s_add_u32 s71, s71, {WS_X1}")
        a(f"s_lshl_b32 s67, {sW}, 3")
        a(f"v_add_u32 v10, s67, {vZ}")
        gate = self.cfg.get("r3gate")

        def mod():
            Lok = a.newlabel("L_modok")
            a(f"s_waitcnt vmcnt({3 if gate else 7})")
            a(f"v_xor_b32 v25, {sT}, v96")
            for r in range(97, 112):
                a(f"v_bitop3_b32 v25, v{r}, v25, {sT} bitop3:0xde")
            a(f"v_and_b32 v25, {vFF}, v25")
            a(f"v_cmp_ne_u32 vcc, 0, v25")
            a(f"s_cbranch_vccz {Lok}")
            self.poll(ml, 25)
            a.label(Lok)
            for i in range(4):
                a(f"v_add_f32 v{96+i}, v{96+i}, v{108+i}")
            M = list(range(96, 108))
            T = list(range(116, 128))
            for r, t in zip(M, T):
                a(f"v_mov_b32 v{t}, v{r}")
            for r, t in zip(M, T):
                a(f"v_permlane32_swap_b32 v{r}, v{t}")
            for r, t in zip(M, T):
                a(f"v_add_f32 v{r}, v{r}, v{t}")
            self.bf16r_pairs(M, 25)
            for i in range(4):
                a(f"v_add_f32 v{104+i}, 1.0, v{104+i}")
            self.bf16r_pairs([104, 105, 106, 107], 25)
            a(f"s_waitcnt vmcnt({0 if gate else 4})")
            self.unpack_bf16(28, 108, 2)
            self.stamp(sb + 1)
        self.stamp(sb)
        if gate:
            mod()
        self.poll([(f"buffer_load_dwordx4 {v(32+4*k,4)}, v{64+k}, {WS_}, s77 offen sc1", 32 + 4 * k, 4) for k in range(4)], 24,
                  vfs=(64, 69, 68), gate=(0x100000001, 66, "s77") if gate else None, gs=56 if gate else None, mid=None if gate else mod)
        self.stamp(sb + 2)
        for i in range(4):
            a(f"v_add_f32 v{32+i}, v{32+i}, v{36+i}")
            a(f"v_add_f32 v{40+i}, v{40+i}, v{44+i}")
        for i in range(4):
            a(f"v_add_f32 v{32+i}, v{32+i}, v{40+i}")
        for i in range(4):
            a(f"v_mov_b32 v{36+i}, v{32+i}")
        for i in range(4):
            a(f"v_permlane32_swap_b32 v{32+i}, v{36+i}")
        for i in range(4):
            a(f"v_add_f32 v{32+i}, v{32+i}, v{36+i}")
        X = [32, 33, 34, 35]
        self.bf16r_pairs(X, 24)
        for i in range(4):
            a(f"v_mul_f32 v{32+i}, v{32+i}, v{96+i}")
        self.bf16r_pairs(X, 24)
        for i in range(4):
            a(f"v_add_f32 v{32+i}, v{32+i}, v{108+i}")
        self.bf16r_pairs(X, 24)
        a("v_add_f32 v16, v32, v33")
        a("v_mul_f32 v17, v32, v32")
        a("v_add_f32 v18, v34, v35")
        a("v_fmac_f32 v17, v33, v33")
        a("v_add_f32 v16, v16, v18")
        a("v_fmac_f32 v17, v34, v34")
        a("v_fmac_f32 v17, v35, v35")
        self.allred_wave([16, 17], [18, 19], n32=True)
        a(f"ds_write_b64 v10, v[16:17] offset:{L_ST+64-L_AUX}")
        self.bump(CNT["R3"])
        self.xs(3)
        for i in range(4):
            a(f"v_bfi_b32 v{36+i}, {vFF}, {sT}, v{32+i}")
        a("s_mov_b32 exec_hi, 0")
        a(f"buffer_store_dwordx4 v[36:39], v9, {WS_}, s71 offen sc1")
        a("s_mov_b32 exec_hi, -1")
        self.lds_wait(CNT["R3"], 8, [f"ds_read_b128 {v(16+4*q,4)}, {vZ} offset:{L_ST+64-L_AUX+16*q}" for q in range(4)], tmp=40)
        a("s_waitcnt lgkmcnt(2)")
        a("v_add_f32 v16, v16, v18")
        a("v_add_f32 v17, v17, v19")
        a("v_add_f32 v20, v20, v22")
        a("v_add_f32 v21, v21, v23")
        a("s_waitcnt lgkmcnt(0)")
        a("v_add_f32 v24, v24, v26")
        a("v_add_f32 v25, v25, v27")
        a("v_add_f32 v28, v28, v30")
        a("v_add_f32 v29, v29, v31")
        a("v_add_f32 v16, v16, v20")
        a("v_add_f32 v17, v17, v21")
        a("v_add_f32 v24, v24, v28")
        a("v_add_f32 v25, v25, v29")
        a("v_add_f32 v16, v16, v24")
        a("v_add_f32 v17, v17, v25")
        a("v_mul_f32 v16, 0x3a800000, v16")
        a("v_mul_f32 v17, 0x3a800000, v17")
        a("v_fma_f32 v17, -v16, v16, v17")
        a("v_max_f32 v17, 0, v17")
        self.ln_consts(16, 17, 18)
        for x in X:
            a(f"v_sub_f32 v{x}, v{x}, v16")
        self.bf16r_pairs(X, 24)
        for x in X:
            a(f"v_mul_f32 v{x}, v{x}, v17")
        self.bf16r_pairs(X, 24)
        for i in range(4):
            a(f"v_mul_f32 v{32+i}, v{32+i}, v{104+i}")
        self.bf16r_pairs(X, 24)
        for i in range(4):
            a(f"v_add_f32 v{32+i}, v{32+i}, v{100+i}")
        self.bf16r_pairs(X, 24)
        self.tag(X)
        a("s_mov_b32 exec_hi, 0")
        a(f"buffer_store_dwordx4 v[32:35], v9, {WS_}, s76 offen")
        a(f"buffer_store_dwordx4 v[32:35], v9, {WS_}, s70 offen sc1")
        self.bump(CNT["R3P"])
        self.stamp(sb + 3)

    def p4(self):
        a = self.a
        sb = SLOT["P4"]
        self.stamp(sb)
        self.p4_cg("s72")
        a(f"s_and_b32 s71, s68, 1")
        a(f"s_mul_i32 s70, s71, {56*2048}")
        a(f"s_lshl_b32 s67, s72, 11")
        a(f"s_add_u32 s70, s70, s67")
        a(f"s_lshl_b32 s67, {sW}, 8")
        a(f"s_add_u32 s70, s70, s67")
        a(f"s_add_u32 s70, s70, {WS_GU}")
        a(f"s_add_u32 s69, s70, {FS}")
        a(f"v_lshrrev_b32 v8, 5, {vLANE}")
        a(f"v_mul_u32_u24 v9, {H2R}, v8")
        a(f"v_lshl_add_u32 v9, {vI}, 4, v9")
        a(f"v_bfe_u32 v10, {vLANE}, 4, 1")
        a(f"v_lshl_add_u32 v9, v10, 11, v9")
        a(f"v_mul_u32_u24 v26, {H2R}, {vLANE}")
        a(f"s_and_b32 s67, s68, 1")
        a(f"s_lshl_b32 s67, s67, 11")
        a(f"v_add_u32 v26, s67, v26")
        self.slot_of(4, "s78", "s79")
        self.red_addr(4, "frag")
        a(f"s_add_u32 s67, s78, 4096")
        a(f"v_mul_u32_u24 v29, 272, v8")
        a(f"v_bfe_u32 v30, v0, 3, 2")
        a(f"v_lshl_add_u32 v29, v30, 6, v29")
        a(f"v_and_b32 v30, 3, v0")
        a(f"v_lshl_add_u32 v29, v30, 4, v29")
        a(f"v_bfe_u32 v30, v0, 2, 1")
        a(f"v_lshl_add_u32 v29, v30, 3, v29")
        a(f"v_add_u32 v29, s67, v29")
        a(f"v_mul_u32_u24 v30, 272, {vB}")
        a(f"v_lshl_add_u32 v30, {vHI}, 6, v30")
        a(f"v_lshl_add_u32 v30, {vG}, 4, v30")
        a(f"v_add_u32 v30, s67, v30")
        self.pull(20, A[0])
        self.pull(28, A[1])
        a(f"s_mul_i32 s72, {sX}, {8*H2R}")
        a(f"s_lshl_b32 s67, {sW}, 8")
        a(f"s_add_u32 s72, s72, s67")
        a(f"s_add_u32 s72, s72, {WS_H2}")
        for i in range(1, 4):
            a(f"s_add_u32 s{72+i}, s72, {2*H2R*i}")
        self.stamp(sb + 1)
        pl = []
        for i in range(4):
            r = 32 + 4 * i
            pl.append((f"buffer_load_dwordx4 {v(r,4)}, v9, {WS_}, s{76+i} offen sc1", r, 4))
        self.poll(pl, 24, gate=(self.cfg["p4gate"], 26, "s76"), fs=[(f"s{76+i}", f"s{72+i}") for i in range(4)], gs=44)
        self.stamp(sb + 2)
        for p in range(8):
            a(f"v_perm_b32 v{16+p}, v{33+2*p}, v{32+2*p}, {sSEL1}")
        for i in range(4):
            a(f"ds_write_b64 v29, {v(16+2*i,2)} offset:{544*i}")
        for u in range(2):
            a(f"ds_read_b128 {v(BB+8*u,4)}, v30 offset:{128*u}")
        a("s_waitcnt lgkmcnt(0)")

        def epi():
            self.bf16r1(16)
            Lu = a.newlabel("L_p4up")
            a("s_cmp_lg_u32 s71, 0")
            a(f"s_cbranch_scc1 {Lu}")
            a(f"v_mul_f32 v17, 0x{LOG2E ^ 0x80000000:x}, v16")
            a(f"v_exp_f32 v17, v17")
            a(f"v_add_f32 v17, 1.0, v17")
            a(f"v_rcp_f32 v17, v17")
            a(f"v_mul_f32 v16, v16, v17")
            self.bf16r1(16)
            a.label(Lu)
            self.publish1(vL4, "s70", fast="s69")
        self.tail([A[0], A[1]], 8, "P4", epi)
        self.stamp(sb + 3)

    def p5(self, ubase, tb):
        a = self.a
        sb = SLOT["P5"]
        self.stamp(sb)
        a(f"s_lshl_b32 s70, {sX}, 15")
        a(f"s_lshl_b32 s67, s68, 8")
        a(f"s_add_u32 s70, s70, s67")
        a(f"s_lshl_b32 s67, {sW}, 12")
        a(f"s_add_u32 s70, s70, s67")
        a(f"s_add_u32 s70, s70, {WS_DP}")
        a(f"s_add_u32 s69, s70, {FS}")
        a(f"v_lshlrev_b32 v8, 4, {vLANE}")
        a(f"s_mul_i32 s73, {sX}, {7*2048}")
        a(f"s_lshl_b32 s67, {sW}, 11")
        a(f"s_add_u32 s73, s73, s67")
        a(f"s_add_u32 s73, s73, {WS_GU}")
        a(f"s_add_u32 s74, s73, {56*2048}")
        a(f"v_mul_u32_u24 v26, {56*2048}, {vLANE}")
        a(f"s_lshl_b32 s67, s68, 7")
        a(f"v_add_u32 v26, s67, v26")
        self.slot_of(ubase, "s78", "s79")
        self.red_addr(ubase, "row")
        Lsk = a.newlabel("L_p5skip")
        a(f"s_cmp_ge_u32 {sW}, 7")
        a(f"s_cbranch_scc1 {Lsk}")
        self.pull(ubase, tb)
        self.stamp(sb + 1)
        pl = []
        for m, so in enumerate(("s75", "s76")):
            for q in range(2):
                r = 32 + 8 * m + 4 * q
                pl.append((f"buffer_load_dwordx4 {v(r,4)}, v8, {WS_}, {so} offen offset:{1024*q} sc1", r, 4))
        self.poll(pl, 24, gate=(0x3, 26, "s75"), fs=[("s75", "s73"), ("s76", "s74")], gs=46)
        self.stamp(sb + 2)
        for e in range(16):
            a(f"v_and_b32 v{32+e}, 0xffff0000, v{32+e}")
        for e in range(8):
            a(f"v_mul_f32 v{32+e}, v{32+e}, v{40+e}")
        for p in range(4):
            a(f"v_cvt_pk_bf16_f32 v{BB+p}, v{32+2*p}, v{33+2*p}")
        a.label(Lsk)
        self.tail([tb], 7, "P5", lambda: self.publish1(vL4, "s70", fast="s69"))
        self.stamp(sb + 3)

    def gb_r5(self):
        a = self.a
        sb = SLOT["GB"]
        self.stamp(sb)
        self.koff(8)
        a(f"s_lshl_b32 s67, {sW}, 7")
        self.load_bfrag(24, C_, "s67")
        self.load_bfrag(28, C_, "s67", 1024)
        a("s_waitcnt vmcnt(0)")
        self.silu_c(24, BB)
        self.silu_c(28, BB + 8)
        self.slot_of(4, "s78", "s79")
        self.red_addr(4, "row")
        self.pull(20, A[0])
        self.pull(28, A[1])
        self.stamp(sb + 1)

        def epi():
            self.bf16r1(16)
            a("v_mov_b32 v31, v16")
        self.tail([A[0], A[1]], 8, "GB", epi, slow=self.cfg["slow"])
        self.stamp(sb + 3)
        sb = SLOT["R5"]
        self.stamp(sb)
        a(f"s_lshl_b32 s69, s68, 8")
        a(f"s_lshl_b32 s67, {sW}, 12")
        a(f"s_add_u32 s69, s69, s67")
        a(f"s_add_u32 s67, {sX}, 1")
        a(f"s_and_b32 s67, s67, 7")
        a(f"s_lshl_b32 s67, s67, 15")
        a(f"s_add_u32 s70, s69, s67")
        a(f"s_add_u32 s70, s70, {WS_X1}")
        self.poll([(f"buffer_load_dword v30, {vL4}, {WS_}, s70 offen sc1", 30, 1)], 24)
        a("v_and_b32 v30, 0xffff0000, v30")
        a(f"s_add_u32 s70, s69, {WS_DP}")
        for k in range(8):
            a(f"s_add_u32 s67, {sX}, {k}")
            a(f"s_and_b32 s67, s67, 7")
            a(f"s_lshl_b32 s67, s67, 15")
            a(f"s_add_u32 s{72+k if k else 71}, s70, s67")
        a(f"v_lshlrev_b32 v10, 1, {vLANE}")
        a(f"s_lshr_b32 s69, s69, 1")
        self.stamp(sb + 1)
        self.poll([(f"buffer_load_dword v{32+k}, {vL4}, {WS_}, s{72+k} offen sc1", 32 + k, 1) for k in range(8)], 24,
                  fs=[("s72", "s71")], gate=(1, 13, "s76") if self.cfg.get("r5gate") else None, gfs=False)
        self.stamp(sb + 2)
        for k in range(4):
            a(f"v_add_f32 v{32+k}, v{32+k}, v{36+k}")
        a("v_add_f32 v32, v32, v33")
        a("v_add_f32 v34, v34, v35")
        a("v_add_f32 v32, v32, v34")
        self.bf16r1(32)
        a("v_mul_f32 v32, v32, v31")
        self.bf16r1(32)
        a("v_add_f32 v32, v32, v30")
        a("v_cvt_pk_bf16_f32 v32, v32, v32")
        a(f"buffer_store_short v32, v10, {OUT_}, s69 offen")
        Lnb = a.newlabel("L_nobump")
        a(f"s_or_b32 s67, s68, {sW}")
        a("s_cmp_lg_u32 s67, 0")
        a(f"s_cbranch_scc1 {Lnb}")
        a(f"s_add_u32 s67, {sEP}, 1")
        a("v_mov_b32 v33, s67")
        a("v_mov_b32 v34, 0")
        a("s_mov_b64 exec, 1")
        a(f"buffer_store_dword v33, v34, {WS_}, 0 offen")
        a("s_mov_b64 exec, -1")
        a.label(Lnb)
        self.stamp(sb + 3)

    def l_signal(self, lag):
        a = self.a
        a(f"s_sub_u32 s67, s72, {lag}")
        a("v_mov_b32 v20, s67")
        a("s_mov_b64 exec, 1")
        a(f"ds_max_i32 {vZ}, v20 offset:{4*C_LANDED}")
        a("s_mov_b64 exec, -1")
        if self.stamps and self.cfg.get("ls"):
            S = a.newlabel("L_ls")
            a("s_cmp_le_i32 s67, s93")
            a(f"s_cbranch_scc1 {S}")
            a("s_mov_b32 s93, s67")
            a("s_memrealtime s[90:91]")
            a("s_mov_b32 s92, m0")
            a("s_mov_b32 m0, s67")
            a("s_waitcnt lgkmcnt(0)")
            a("v_writelane_b32 v41, s90, m0")
            a("s_mov_b32 m0, s92")
            a.label(S)

    def l_drain(self):
        a = self.a
        for t in reversed(range((self.lD + 7) // 8)):
            a(f"s_waitcnt vmcnt({8*t})")
            self.l_signal(t)
        self.lD = 0

    def l_wait(self, cnt, need):
        self.l_drain()
        self.lds_wait(CNT[cnt], need)

    def l_woff(self, RS):
        a = self.a
        a(f"v_mul_u32_u24 v10, {RS}, v8")
        a(f"v_add_u32 v10, v10, v9")

    def l_seg(self, srd, n, D, voffs, steps, barrier=False, until=None):
        a = self.a
        credit = self.lU + n > NS
        if n > 1:
            a(f"s_mov_b32 s75, {n}")
        E = a.newlabel("L_sege")
        L2 = [a.newlabel("L_seg2") for _ in range(2)]
        for ph, D in enumerate([D] + ([until[2]] if until else [])):
            L = a.newlabel("L_seg")
            js, lag = (D - 1) % 8, (D - 1) // 8
            a.label(L)
            if credit:
                Lok = a.newlabel("L_cok")
                Lsp = a.newlabel("L_csp")
                a("s_lshr_b32 s67, s73, 11")
                a(f"v_add_u32 v22, s67, {vZ}")
                a(f"ds_read_b32 v21, v22 offset:{4*C_FREE}")
                a("s_waitcnt lgkmcnt(0)")
                a("v_cmp_le_i32 vcc, s74, v21")
                a(f"s_cbranch_vccnz {Lok}")
                a("s_waitcnt vmcnt(0)")
                self.l_signal(0)
                a(f"s_mov_b32 {sPOLL}, {self.poll_limit*8}")
                a.label(Lsp)
                a(f"ds_read_b32 v21, v22 offset:{4*C_FREE}")
                a("s_waitcnt lgkmcnt(0)")
                a("v_cmp_le_i32 vcc, s74, v21")
                a(f"s_sub_u32 {sPOLL}, {sPOLL}, 1")
                a(f"s_cbranch_vccnz {Lok}")
                a(f"s_cmp_lg_u32 {sPOLL}, 0")
                a(f"s_cbranch_scc1 {Lsp}")
                a.label(Lok)
            for j in range(8):
                if j % 4 == 0:
                    if until and ph == 0:
                        a(f"ds_read_b32 v21, {vZ} offset:{4*CNT[until[0]]}")
                        a("s_waitcnt lgkmcnt(0)")
                        a(f"v_cmp_le_i32 vcc, {until[1]}, v21")
                        a(f"s_cbranch_vccnz {L2[j//4]}")
                    if ph == 1:
                        a.label(L2[j // 4])
                    a(f"s_add_u32 m0, s73, {1024*j}" if j else "s_mov_b32 m0, s73")
                if not barrier:
                    a(f"s_waitcnt vmcnt({D-1})")
                    if j == js:
                        self.l_signal(lag)
                a(f"buffer_load_dwordx4 {voffs[j]}, {srd}, s66 offen offset:{1024*(j%4)} nt lds")
                st = steps[j] - (1024 * ((j + 1) % 4) - 1024 * (j % 4))
                if st > 0:
                    a(f"s_add_u32 s66, s66, {st}")
                elif st < 0:
                    a(f"s_sub_u32 s66, s66, {-st}")
            a("s_add_u32 s72, s72, 1")
            a(f"s_add_u32 s73, s73, {SLOTB}")
            if self.lU + n >= NS:
                a(f"s_cmp_ge_u32 s73, {NS*SLOTB}")
                a("s_cselect_b32 s73, 0, s73")
                a("s_cselect_b32 s67, 8, 0")
                a("s_add_u32 s74, s74, s67")
            if n > 1:
                a("s_sub_u32 s75, s75, 1")
                a("s_cmp_lg_u32 s75, 0")
                a(f"s_cbranch_scc1 {L}")
            if until and ph == 0:
                a(f"s_branch {E}")
                D1 = D
        if until:
            a.label(E)
            D = max(D, D1)
        self.lU += n
        self.lD = D if not barrier else 8 * self.lU

    def l_tile(self, srd, segs, kind, RS=0, first=False, stamp=None):
        a = self.a
        if stamp is not None:
            self.stamp(stamp)
        if kind == "w":
            self.l_woff(RS)
            voffs, steps = ["v10"] * 8, [8 * RS] * 8
        elif kind == "wq":
            self.l_woff(RS)
            voffs, steps = ["v10"] * 8, [8 * RS] * 7 + [(8 - 64) * RS + 128]
        elif kind == "wo":
            self.l_woff(RS)
            voffs, steps = ["v10"] * 8, [128 * RS] * 7 + [(8 - 7 * 128) * RS]
        elif kind == "k":
            voffs, steps = [f"v{24+j%4}" for j in range(8)], [1024] * 8
        else:
            voffs, steps = [f"v{28+j%2}" for j in range(8)], [1024] * 8
        for sg in segs:
            if isinstance(sg[0], str):
                self.l_wait(*sg)
                continue
            n, D = sg[:2]
            if first:
                n0 = min(n, max(1, D // 8))
                self.l_seg(srd, n0, D, voffs, steps, barrier=True)
                a("s_barrier")
                n -= n0
                first = False
            if n:
                self.l_seg(srd, n, D, voffs, steps, until=sg[2:] or None)

    def loader(self):
        a = self.a
        cfg = self.cfg
        a("s_setprio 3")
        a("s_mov_b32 s93, 0")
        if cfg.get("pre"):
            a("s_getpc_b64 s[66:67]")
            a.label("L_pc")
            a(f"s_lshl_b32 s68, {sL}, 10")
            a(f"v_lshl_add_u32 v8, {vLANE}, 7, s68")
            a("v_min_u32 v8, L_exit-L_pc, v8")
            a("s_mov_b64 exec, 0xff")
            a("global_load_dword v40, v8, s[66:67]")
            a("s_mov_b64 exec, -1")
        a(f"v_lshrrev_b32 v8, 3, {vLANE}")
        a(f"v_lshlrev_b32 v9, 1, {vG}")
        a(f"v_xor_b32 v9, v9, {vB}")
        a("v_lshlrev_b32 v9, 4, v9")
        a(f"v_xor_b32 v16, {vI}, {vG}")
        a(f"v_lshlrev_b32 v16, 4, v16")
        a(f"v_lshl_add_u32 v24, {vG}, 8, v16")
        for j in range(1, 4):
            a(f"v_xor_b32 v{24+j}, {64*j}, v24")
        a(f"v_lshlrev_b32 v16, 1, {vG}")
        a(f"v_xor_b32 v16, {vI}, v16")
        a(f"v_lshlrev_b32 v16, 4, v16")
        a(f"v_lshl_add_u32 v28, {vG}, 8, v16")
        a("v_xor_b32 v29, 0x80, v28")
        a("s_mov_b32 s72, 0")
        a("s_mov_b32 s73, 0")
        a("s_mov_b32 s74, 0")
        a(f"s_cmp_ge_u32 {sL}, 16")
        a("s_cbranch_scc1 L_LB")

        def wait(key):
            if cfg.get(key):
                self.l_wait(*cfg[key])
        self.lU, self.lD = 0, 0
        a(f"s_and_b32 s67, {sL}, 3")
        a(f"s_mul_i32 s66, s67, {256*12288}")
        a(f"s_lshr_b32 s67, {sL}, 3")
        a(f"s_lshl_b32 s67, s67, 11")
        a(f"s_add_u32 s66, s66, s67")
        a(f"s_lshl_b32 s67, {sX}, 8")
        a(f"s_add_u32 s66, s66, s67")
        a(f"s_bfe_u32 s67, {sL}, 0x10002")
        a(f"s_lshl_b32 s67, s67, 7")
        a(f"s_add_u32 s66, s66, s67")
        a("s_waitcnt lgkmcnt(0)")
        self.l_tile(WM_, cfg["P0A"], "w", 12288, first=True, stamp=48)
        a(f"s_and_b32 s69, {sX}, 1")
        a(f"s_lshl_b32 s69, s69, 2")
        a(f"s_lshr_b32 s67, {sL}, 2")
        a(f"s_add_u32 s69, s69, s67")
        a(f"s_lshl_b32 s69, s69, 2")
        a(f"s_add_u32 s69, s69, {sHKV}")
        a(f"s_lshl_b32 s69, s69, 20")
        a(f"s_and_b32 s67, {sL}, 3")
        a(f"s_lshl_b32 s67, s67, 16")
        a(f"s_add_u32 s69, s69, s67")
        a(f"s_add_u32 s69, s69, {3072*256}")
        wait("wK")
        a("s_mov_b32 s66, s69")
        self.l_tile(K_, cfg["K"], "k", stamp=49)
        a("s_mov_b32 s66, s69")
        self.l_tile(V_, cfg["V"], "v", stamp=50)
        wait("wP4")
        st = (self.lU, self.lD)
        a(f"s_cmp_ge_u32 {sL}, 14")
        a(f"s_cbranch_scc1 L_lgb")
        self.p4_cg("s66")
        a(f"s_lshl_b32 s66, s66, 7")
        a(f"s_and_b32 s67, {sL}, 1")
        a("s_cselect_b32 s60, s32, s28")
        a("s_cselect_b32 s61, s33, s29")
        a("s_mov_b32 s62, 7340032")
        a("s_mov_b32 s63, 0x20000")
        self.l_tile(W_, cfg["P4"], "w", 7168, stamp=51)
        self.l_drain()
        a("s_branch L_done")
        a.label("L_lgb")
        self.lU, self.lD = st
        a(f"s_lshl_b32 s66, {sX}, 1")
        a(f"s_add_u32 s66, s66, {sL}")
        a(f"s_lshl_b32 s66, s66, 7")
        a(f"s_add_u32 s66, s66, {5120*2-14*128}")
        self.l_tile(WM_, cfg["GB"], "w", 12288, stamp=51)
        self.l_drain()
        a("s_branch L_done")
        a.label("L_LB")
        self.lU, self.lD = 0, 0
        a(f"s_sub_u32 s68, {sL}, 16")
        a(f"s_lshl_b32 s70, {sX}, 20")
        a(f"s_lshl_b32 s67, s68, 9")
        a(f"s_add_u32 s70, s70, s67")
        a("s_mov_b32 s66, s70")
        a("s_waitcnt lgkmcnt(0)")
        self.l_tile(WQ_, cfg["P1a"], "wq", 8192, first=True, stamp=48)
        a(f"s_add_u32 s66, s70, {64*8192}")
        self.l_tile(WQ_, cfg["P1b"], "wq", 8192)
        self.rm_task("s70", "s71")
        a(f"s_mul_i32 s66, s70, 12288")
        a(f"s_lshl_b32 s71, s71, 7")
        a(f"s_add_u32 s66, s66, s71")

        def wotile(key):
            a(f"s_lshr_b32 s66, {sX}, 1")
            a(f"s_lshl_b32 s66, s66, 21")
            a(f"s_and_b32 s67, {sX}, 1")
            a(f"s_lshl_b32 s67, s67, 17")
            a(f"s_add_u32 s66, s66, s67")
            self.swap_j("s69", 3, 9)
            a(f"s_lshl_b32 s69, s69, 7")
            a(f"s_add_u32 s66, s66, s69")
            self.l_tile(WO_, cfg[key], "wo", 2048, stamp=50)

        def wdtile(key):
            a(f"s_mul_i32 s66, {sX}, {448*2048}")
            self.swap_j("s69", 5, 11)
            a(f"s_lshl_b32 s69, s69, 7")
            a(f"s_add_u32 s66, s66, s69")
            self.l_tile(WD_, cfg[key], "w", 2048, stamp=51)
            self.l_drain()
            a("s_branch L_done")
        st = (self.lU, self.lD)
        a(f"s_cmp_ge_u32 {sL}, 24")
        a(f"s_cbranch_scc1 L_lr3")
        wait("wB")
        self.l_tile(WM_, cfg["RM"], "w", 12288, stamp=53)
        wotile("P3")
        wait("wP5")
        wdtile("P5")
        a.label("L_lr3")
        self.lU, self.lD = st
        self.l_drain()
        a("v_mov_b32 v20, 8")
        a(f"v_lshl_add_u32 v22, {vLANE}, 2, {vZ}")
        a("s_mov_b64 exec, 15")
        a(f"ds_add_u32 v22, v20 offset:{4*(C_FREE+8)}")
        a("s_mov_b64 exec, -1")
        a("s_mov_b32 s72, 12")
        a(f"s_mov_b32 s73, {12*SLOTB}")
        self.lU = 12
        wait("wB")
        self.l_tile(WM_, cfg["RMr"], "w", 12288, stamp=53)
        wotile("P3r")
        wait("wP5r")
        wdtile("P5r")

    def build(self):
        a = self.a
        cfg = self.cfg
        hdr = open(os.path.join(os.path.dirname(os.path.abspath(__file__)), "..", "cdna_kernels", NAME + ".s.ref")).read()
        for line in hdr.split("\n"):
            if line.startswith("; @launch"):
                break
            a.raw(line)
        a.raw(f"; @launch grid=(256,1,1) block=(576,1,1) lds={LDS_BYTES}")
        a.raw('.amdgcn_target "amdgcn-amd-amdhsa--gfx950"')
        a.raw(".text")
        a.raw(f".globl {NAME}_kernel")
        a.raw(".p2align 8")
        a.raw(f".type {NAME}_kernel,@function")
        a.raw(f"{NAME}_kernel:")
        a("s_cmp_ge_u32 s2, 256")
        a("s_cbranch_scc1 L_exit")
        for (s0, ko, nb) in SRD_INFO:
            a(f"s_load_dwordx2 s[{s0}:{s0+1}], s[0:1], {ko}")
        for (s0, ko, nb) in SRD_INFO:
            a(f"s_mov_b32 s{s0+2}, {nb}")
            a(f"s_mov_b32 s{s0+3}, 0x20000")
        a(f"v_and_b32 {vLANE}, 63, v0")
        a("v_lshrrev_b32 v7, 6, v0")
        a(f"v_lshrrev_b32 {vG}, 4, {vLANE}")
        a(f"v_readfirstlane_b32 {sW}, v7")
        a(f"v_and_b32 {vI}, 15, v0")
        a(f"v_and_b32 {vB}, 7, v0")
        a(f"v_bfe_u32 {vHI}, v0, 3, 1")
        a(f"v_mov_b32 {vSTAMP}, 0")
        if self.stamps:
            a(f"v_mov_b32 v41, 0")
        a(f"v_mov_b32 {vZ}, 0x20000")
        a(f"s_and_b32 {sX}, s2, 7")
        a(f"s_lshr_b32 {sL}, s2, 3")
        a(f"s_lshr_b32 {sHKV}, {sX}, 1")
        a(f"s_xor_b32 {sHKV}, {sHKV}, 1")
        a(f"s_cmp_lt_u32 {sW}, 8")
        a("s_cbranch_scc1 L_compute")
        self.loader()
        a.label("L_compute")
        a(f"v_lshlrev_b32 {vL4}, 2, {vLANE}")
        a("v_mov_b32 v16, 0")
        a(f"v_add_u32 v17, {vL4}, {vZ}")
        a(f"ds_write_b32 v17, v16 offset:{L_CNT-L_AUX}")
        a(f"s_cmp_ge_u32 {sL}, 16")
        a("s_cbranch_scc1 L_eB")
        self.p0a_early()
        a("s_branch L_eD")
        a.label("L_eB")
        self.p1_early()
        a.label("L_eD")
        a(f"s_load_dword {sEP}, s[52:53], 0")
        a("s_barrier")
        a(f"v_mov_b32 {vFF}, 0xff")
        a(f"v_mov_b32 {vONE}, 1")
        a(f"s_mov_b32 {sSEL1}, 0x07060302")
        a("s_mov_b32 s84, 0x00ff00ff")
        a("s_mov_b32 s85, 0x00ff00ff")
        a(f"s_mov_b32 {sLOG}, 0x{LOG2E:x}")
        a(f"v_lshrrev_b32 v8, 2, {vLANE}")
        a(f"v_lshlrev_b32 v8, 7, v8")
        a(f"v_and_b32 v9, 3, {vLANE}")
        a(f"v_lshl_add_u32 v8, v9, 3, v8")
        a(f"v_bfe_u32 v9, {vLANE}, 3, 2")
        a(f"v_lshl_add_u32 v{TR}, v9, 5, v8")
        for cg in range(1, 4):
            a(f"v_xor_b32 v{TR+cg}, {32*cg}, v{TR}")
        a("s_waitcnt lgkmcnt(0)")
        a(f"s_add_u32 {sT}, {sEP}, 1")
        a(f"s_and_b32 {sT}, {sT}, 0xff")
        a(f"s_cmp_ge_u32 {sL}, 16")
        a("s_cbranch_scc1 L_B")
        a("; ======== A")
        self.p0a()
        a.label("L_att")
        a(f"s_mov_b32 s68, {sL}")
        self.att(4)
        a(f"s_mov_b32 s68, {sL}")
        a(f"s_cmp_lt_u32 {sL}, 14")
        a(f"s_cbranch_scc1 L_P4")
        a(f"s_lshl_b32 s68, {sX}, 1")
        a(f"s_add_u32 s68, s68, {sL}")
        a(f"s_sub_u32 s68, s68, 14")
        self.gb_r5()
        a("s_branch L_done")
        a.label("L_P4")
        self.p4()
        a("s_branch L_done")
        a.label("L_B")
        a("; ======== B")
        a(f"s_sub_u32 s68, {sL}, 16")
        self.p1(A[0])
        self.rm(A[0])
        self.swap_j("s68", 3, 9)
        self.p3(16, A[0])
        a(f"s_cmp_lt_u32 {sL}, 24")
        a(f"s_cbranch_scc1 L_nor3")
        a(f"s_sub_u32 s69, {sL}, 24")
        self.r3()
        a.label("L_nor3")
        self.swap_j("s68", 5, 11)
        self.p5(24, A[0])
        a.label("L_done")
        if self.stamps:
            self.stamp(52)
            a(f"s_lshl_b32 s66, s2, 4")
            a(f"s_add_u32 s66, s66, {sW}")
            a(f"s_lshl_b32 s66, s66, 8")
            a(f"s_add_u32 s66, s66, {WS_STAMP}")
            a(f"v_lshlrev_b32 v8, 2, {vLANE}")
            a(f"buffer_store_dword {vSTAMP}, v8, {WS_}, s66 offen sc1")
            a(f"s_cmp_lt_u32 {sW}, 8")
            a("s_cbranch_scc1 L_exit")
            a(f"buffer_store_dword v41, v8, {WS_}, s66 offen offset:256 sc1")
        a.label("L_exit")
        a("s_endpgm")
        a.raw('.section .rodata,"a"')
        a.raw(".p2align 6")
        a.raw(f".amdhsa_kernel {NAME}_kernel")
        a.raw(f"  .amdhsa_next_free_vgpr {NVGPR}")
        a.raw("  .amdhsa_next_free_sgpr 102")
        a.raw(f"  .amdhsa_accum_offset {NVGPR}")
        a.raw("  .amdhsa_group_segment_fixed_size 0")
        a.raw("  .amdhsa_kernarg_size 112")
        a.raw("  .amdhsa_user_sgpr_count 2")
        a.raw("  .amdhsa_user_sgpr_kernarg_segment_ptr 1")
        a.raw("  .amdhsa_system_sgpr_workgroup_id_x 1")
        a.raw(".end_amdhsa_kernel")
        return a.text()


DEFAULT = dict(slow=3, plain=True, p4gate=1, r3gate=1,
               P0A=[(4, 32)], wK=("P0P", 4), K=[(8, 56)], V=[(8, 56)], wP4=("ATTP", 8), P4=[(16, 56)], GB=[(16, 32)],
               P1a=[(4, 32)], P1b=[(4, 56)], wB=("P1P", 8), RM=[(3, 16), (5, 56)], P3=[(8, 56)], wP5=("P3P", 8), P5=[(7, 56)],
               RMr=[(3, 16), (1, 56)], P3r=[(8, 56)], wP5r=("R3P", 8), P5r=[(7, 56)])

if __name__ == "__main__":
    cfg = dict(DEFAULT)
    out = sys.argv[1]
    for arg in sys.argv[2:]:
        k, _, val = arg.partition("=")
        cfg[k] = eval(val) if val else True
    open(out, "w").write(Gen(cfg).build())
    print("wrote", out)
```

```python
import sys, os, struct
sys.path.insert(0, os.path.dirname(os.path.abspath(__file__)))
from asmlib import Asm

NAME = "adaLN_cond__sliding_block_cached__swiglu_ffn__decode"

FS = 4 << 20
WS_SAC = 4096
WS_MGA = WS_SAC + 8 * 32768
WS_MSC = WS_MGA + 4 * 8 * 1024 * 4
WS_QP = WS_MSC + 2 * 8 * 2048 * 4
WS_OP = WS_QP + 8 * 8 * 4096 * 4
WS_LSE = WS_OP + 8 * 4 * 32 * 128 * 4
WS_AP = WS_LSE + 4096
WS_X1 = WS_AP + 8 * 8 * 1024 * 4
WS_DP = WS_X1 + 8 * 8 * 1024 * 4
H2R = 4096 + 128
WS_H2 = WS_DP + 8 * 8 * 1024 * 4
WS_GU = WS_H2 + 8 * 8 * H2R + 1024 * 8
assert WS_GU + 2 * 8 * 3584 * 4 <= FS
WS_STAMP = 2 * FS
WS_END = WS_STAMP + 256 * 16 * 64 * 4

X_, K_, V_, WQ_, WO_, WG_, WU_, WD_, C_, WM_, OUT_, WS_, DBG_, W_ = [f"s[{8+4*i}:{11+4*i}]" for i in range(14)]
SRD_INFO = [
    (44, 80, 12582912), (20, 24, 8388608), (12, 8, 33554432), (40, 72, 16384), (8, 0, 16384), (52, 104, WS_END),
    (16, 16, 33554432), (24, 32, 8388608), (28, 48, 7340032), (32, 56, 7340032), (36, 64, 7340032),
    (48, 88, 16384)]

sW, sT, sX, sL, sSEL1 = "s3", "s4", "s5", "s6", "s7"
sEP = "s64"
sPOLL = "s80"
sLOG = "s88"
sHKV = "s65"
sM8 = "s[84:85]"
NS = 16
SLOTB = 8192
L_AUX = NS * SLOTB
L_CNT = L_AUX
L_ST = L_AUX + 256
L_Q = L_AUX + 512
L_P = L_Q + 8 * 272
L_ML = L_P + 4096
L_H = L_AUX + 512
L_OB = L_H + 2048
LDS_BYTES = L_AUX + 12288
assert L_OB + 8192 <= LDS_BYTES - 256 and L_ML + 640 <= LDS_BYTES - 256
SB = 272
C_LANDED, C_FREE = 0, 1
CNT = dict(S1=20, H=21, P1P=22, Q=23, P=24, ATTP=25, RM=26, P3=27, P3P=28, R3=29, R3P=30, P4=31, P5=32, GB=33, P0P=34,
           QG=35, P3G=36, R3G=37)

A = [64, 96, 128]
ACC, BB = 160, 48
vLANE, vG, vI, vB, vHI, vFF, vSTAMP = "v1", "v2", "v3", "v4", "v5", "v6", "v7"
vRW, vRR, vL4, vZ, vONE = "v11", "v12", "v13", "v14", "v15"
NVGPR = 168
TR = 160
TRA = 164
LOG2E = 0x3FB8AA3B
SCALE = struct.unpack("<I", struct.pack("<f", 128 ** -0.5))[0]
EPS = struct.unpack("<I", struct.pack("<f", 1e-5))[0]
SLOT = dict(P0A=0, P1=4, ATT=8, RM=12, P3=16, R3=20, P4=24, P5=28, GB=32, R5=36)


def v(n, cnt=1):
    return f"v{n}" if cnt == 1 else f"v[{n}:{n+cnt-1}]"


class Gen:
    def __init__(self, cfg):
        self.cfg = cfg
        self.a = Asm()
        self.stamps = cfg.get("stamps", False)
        self.poll_limit = cfg.get("poll_limit", 20000)

    def stamp(self, slot):
        if not self.stamps:
            return
        a = self.a
        a("s_memrealtime s[90:91]")
        a("s_waitcnt lgkmcnt(0)")
        a(f"v_writelane_b32 {vSTAMP}, s90, {slot}")

    def xs(self, n):
        if self.cfg.get("xs"):
            self.stamp(58 + n)

    def bf16r_pairs(self, regs, tmp):
        a = self.a
        for i in range(0, len(regs), 2):
            a(f"v_cvt_pk_bf16_f32 v{tmp}, v{regs[i]}, v{regs[i+1]}")
            a(f"v_lshlrev_b32 v{regs[i]}, 16, v{tmp}")
            a(f"v_and_b32 v{regs[i+1]}, 0xffff0000, v{tmp}")

    def bf16r1(self, r):
        a = self.a
        a(f"v_cvt_pk_bf16_f32 v{r}, v{r}, v{r}")
        a(f"v_lshlrev_b32 v{r}, 16, v{r}")

    def unpack_bf16(self, src, dst, n):
        a = self.a
        for i in range(n):
            a(f"v_lshlrev_b32 v{dst+2*i}, 16, v{src+i}")
            a(f"v_and_b32 v{dst+2*i+1}, 0xffff0000, v{src+i}")

    def allred_g(self, regs, op, tmp):
        a = self.a
        for r, t in zip(regs, tmp):
            a(f"v_mov_b32 v{t}, v{r}")
        for r, t in zip(regs, tmp):
            a(f"v_permlane16_swap_b32 v{r}, v{t}")
        for r, t in zip(regs, tmp):
            a(f"{op} v{t}, v{r}, v{t}")
        for r, t in zip(regs, tmp):
            a(f"v_mov_b32 v{r}, v{t}")
        for r, t in zip(regs, tmp):
            a(f"v_permlane32_swap_b32 v{r}, v{t}")
        for r, t in zip(regs, tmp):
            a(f"{op} v{r}, v{r}, v{t}")

    def allred_wave(self, regs, tmp, op="v_add_f32", n32=False):
        a = self.a
        for r, t in zip(regs, tmp):
            a(f"{op}_dpp v{t}, v{r}, v{r} quad_perm:[1,0,3,2] row_mask:0xf bank_mask:0xf")
        for r, t in zip(regs, tmp):
            a(f"{op}_dpp v{r}, v{t}, v{t} quad_perm:[2,3,0,1] row_mask:0xf bank_mask:0xf")
        for r, t in zip(regs, tmp):
            a(f"{op}_dpp v{t}, v{r}, v{r} row_half_mirror row_mask:0xf bank_mask:0xf")
        for r, t in zip(regs, tmp):
            a(f"{op}_dpp v{r}, v{t}, v{t} row_ror:8 row_mask:0xf bank_mask:0xf")
        for r, t in zip(regs, tmp):
            a(f"v_mov_b32 v{t}, v{r}")
        for r, t in zip(regs, tmp):
            a(f"v_permlane16_swap_b32 v{r}, v{t}")
        for r, t in zip(regs, tmp):
            a(f"{op} v{r}, v{r}, v{t}")
        if n32:
            return
        for r, t in zip(regs, tmp):
            a(f"v_mov_b32 v{t}, v{r}")
        for r, t in zip(regs, tmp):
            a(f"v_permlane32_swap_b32 v{r}, v{t}")
        for r, t in zip(regs, tmp):
            a(f"{op} v{r}, v{r}, v{t}")

    def check(self, loads, acc, mid=None):
        a = self.a
        for t, _, _ in loads:
            a(t + (" nt" if self.cfg.get("gnt") and t.endswith("sc1") else ""))
        if mid:
            mid()
        first = True
        for n, (t, r, cnt) in enumerate(loads):
            a(f"s_waitcnt vmcnt({len(loads)-1-n})")
            for i in range(cnt):
                if first:
                    a(f"v_xor_b32 v{acc}, {sT}, v{r+i}")
                    first = False
                else:
                    a(f"v_bitop3_b32 v{acc}, v{r+i}, v{acc}, {sT} bitop3:0xde")
        a(f"v_and_b32 v{acc}, {vFF}, v{acc}")
        a(f"v_cmp_ne_u32 vcc, 0, v{acc}")

    def poll(self, loads, acc, gate=None, fs=None, vfs=None, gs=None, plain=False, mid=None, keep=False, gfs=True, hook=None, lhook=None, gbump=None):
        a = self.a
        if gate is not None:
            mask, greg, gsoff = gate
            a(f"s_mov_b32 exec_lo, 0x{mask & 0xffffffff:x}")
            a(f"s_mov_b32 exec_hi, 0x{mask >> 32:x}")
            self.poll([(f"buffer_load_dword v25, v{greg}, {WS_}, {gsoff} offen sc1", 25, 1)], acc, fs=fs if gfs else None, lhook=hook)
            a("s_mov_b64 exec, -1")
            keep = gfs
            if gs is not None:
                self.stamp(gs)
        L = a.newlabel("L_poll")
        D = a.newlabel("L_pdone")
        if fs and not keep:
            for so, base in fs:
                a(f"s_add_u32 {so}, {base}, {FS}")
        if gbump:
            mid = lambda: self.bump(CNT[gbump])
        if plain or mid:
            self.check([(t.replace(" sc1", "") if plain else t, r, c) for t, r, c in loads], acc, mid)
            a(f"s_mov_b32 {sPOLL}, {self.poll_limit | 7}")
            a(f"s_cbranch_vccz {D}")
        else:
            a(f"s_mov_b32 {sPOLL}, {self.poll_limit | 7}")
        a.label(L)
        self.check(loads, acc, lhook)
        a(f"s_sub_u32 {sPOLL}, {sPOLL}, 1")
        a(f"s_cbranch_vccz {D}")
        if fs or vfs:
            a(f"s_and_b32 s81, {sPOLL}, 7")
            a(f"s_cselect_b32 s81, {FS}, 0")
            for so, base in (fs or []):
                a(f"s_add_u32 {so}, {base}, s81")
            if vfs:
                a(f"v_mad_u32_u24 v{vfs[0]}, v{vfs[1]}, s81, v{vfs[2]}")
        a(f"s_cmp_lg_u32 {sPOLL}, 0")
        a(f"s_cbranch_scc1 {L}")
        a.label(D)
        if gs is not None and self.stamps:
            a(f"v_writelane_b32 {vSTAMP}, {sPOLL}, {gs+1}")

    def tag(self, regs):
        for r in regs:
            self.a(f"v_bfi_b32 v{r}, {vFF}, {sT}, v{r}")

    def bump(self, cnt, val=vONE):
        a = self.a
        a("s_mov_b64 exec, 1")
        a(f"ds_add_u32 {vZ}, {val} offset:{4*cnt}")
        a("s_mov_b64 exec, -1")

    def lds_wait(self, cnt, need, reads=(), tmp=16, slow=0, rl=False):
        a = self.a
        L = a.newlabel("L_lw")
        D = a.newlabel("L_lwd")
        E = a.newlabel("L_lwe")
        rd = f"ds_read_b32 v{tmp}, {vZ} offset:{4*cnt}"
        nr = len([t for t in reads if t.startswith("ds_")])
        if rl and self.cfg.get("rl", 1):
            a(f"s_mov_b32 {sPOLL}, {self.poll_limit * 8}")
            a.label(L)
            a(rd)
            for t in reads:
                a(t)
            a(f"s_sub_u32 {sPOLL}, {sPOLL}, 1")
            a(f"s_cbranch_scc1 {E}")
            a(f"s_waitcnt lgkmcnt({min(nr, 15)})")
            a(f"v_cmp_le_i32 vcc, {need}, v{tmp}")
            a(f"s_cbranch_vccz {L}")
            a.label(E)
            return
        if reads:
            a(rd)
            for t in reads:
                a(t)
            a(f"s_waitcnt lgkmcnt({min(nr, 15)})")
            a(f"v_cmp_le_i32 vcc, {need}, v{tmp}")
            a(f"s_cbranch_vccnz {E}")
        a(f"s_mov_b32 {sPOLL}, {self.poll_limit * 8}")
        a.label(L)
        a(rd)
        a(f"s_waitcnt lgkmcnt(0)")
        a(f"v_cmp_le_i32 vcc, {need}, v{tmp}")
        a(f"s_sub_u32 {sPOLL}, {sPOLL}, 1")
        a(f"s_cbranch_vccnz {D}")
        for _ in range(slow):
            a("s_nop 15")
        a(f"s_cmp_lg_u32 {sPOLL}, 0")
        a(f"s_cbranch_scc1 {L}")
        a.label(D)
        for t in reads:
            a(t)
        a.label(E)

    def early_pull(self, flag, need, reads, mask):
        a = self.a

        def hook():
            S = a.newlabel("L_hk")
            a(f"s_cmp_lg_u32 {flag}, 0")
            a(f"s_cbranch_scc1 {S}")
            a(f"ds_read_b32 v16, {vZ} offset:{4*C_LANDED}")
            a("s_waitcnt lgkmcnt(0)")
            a(f"v_cmp_le_i32 vcc, {need}, v16")
            a(f"s_cbranch_vccz {S}")
            a("s_mov_b64 exec, -1")
            for t in reads:
                if t[0] == "@":
                    a.label(t[1:])
                else:
                    a(t)
            a(f"s_mov_b32 exec_lo, 0x{mask & 0xffffffff:x}")
            a(f"s_mov_b32 exec_hi, 0x{mask >> 32:x}")
            a(f"s_mov_b32 {flag}, 1")
            a.label(S)
        return hook

    def late_pull(self, flag, need, reads):
        a = self.a
        S = a.newlabel("L_lp")
        a(f"s_cmp_lg_u32 {flag}, 0")
        a(f"s_cbranch_scc1 {S}")
        self.lds_wait(C_LANDED, need, reads, tmp=24)
        a.label(S)

    def slot_of(self, base, sdst, sunit):
        a = self.a
        a(f"s_add_u32 {sdst}, {sW}, {base}")
        a(f"s_add_u32 {sunit}, {sdst}, 1")
        a(f"s_and_b32 {sdst}, {sdst}, {NS-1}")
        a(f"s_lshl_b32 {sdst}, {sdst}, 13")

    def release(self, sslot, n=8):
        a = self.a
        a(f"s_lshr_b32 s67, {sslot}, 11")
        a(f"v_add_u32 v16, s67, {vZ}")
        a(f"v_mov_b32 v17, {n}")
        a("s_mov_b64 exec, 1")
        a(f"ds_add_u32 v16, v17 offset:{4*C_FREE}")
        a("s_mov_b64 exec, -1")

    def release_run(self, slot0, n, val=vONE):
        a = self.a
        a(f"v_add_u32 v16, {vL4}, {vZ}")
        a(f"s_mov_b64 exec, 0x{(1 << n) - 1:x}")
        a(f"ds_add_u32 v16, {val} offset:{4*(C_FREE+slot0)}")
        a("s_mov_b64 exec, -1")

    def pull(self, base, dst, release=False, red=None):
        a = self.a
        self.slot_of(base, "s78", "s79")
        for cg in range(4):
            a(f"v_add_u32 v{TRA+cg}, s78, v{TR+cg}")
        if red:
            self.red_addr(base, red)
        self.lds_wait(C_LANDED, "s79", slow=self.cfg["slow"])
        for cg in range(4):
            for hi in range(2):
                for q in range(2):
                    a(f"ds_read_b64_tr_b16 {v(dst+8*cg+4*hi+2*q,2)}, v{TRA+cg} offset:{(32*hi+16*q)*128}")
        a("s_waitcnt lgkmcnt(0)")
        if release:
            self.release("s78")

    def red_addr(self, base, kind):
        a = self.a
        a(f"v_mul_u32_u24 v16, {SB}, {vB}")
        a(f"v_lshl_add_u32 v16, {vG}, 4, v16")
        a(f"v_add_u32 {vRW}, s78, v16")
        if isinstance(base, int):
            a(f"s_mov_b32 s67, {(base % NS) * SLOTB}")
        else:
            a(f"s_and_b32 s67, {base}, {NS-1}")
            a(f"s_lshl_b32 s67, s67, 13")
        if kind == "row":
            a(f"s_mul_i32 s77, {sW}, {SB}")
            a(f"s_add_u32 s67, s67, s77")
            a(f"v_add_u32 {vRR}, s67, {vL4}")
        else:
            a(f"v_bfe_u32 v16, v0, 2, 3")
            a(f"v_mul_u32_u24 v16, {SB}, v16")
            a(f"v_bfe_u32 v17, v0, 5, 1")
            a(f"v_lshl_add_u32 v16, v17, 7, v16")
            a(f"v_and_b32 v17, 3, v0")
            a(f"v_lshl_add_u32 v16, v17, 2, v16")
            a(f"v_bfe_u32 v17, v0, 6, 2")
            a(f"v_lshl_add_u32 v16, v17, 4, v16")
            a(f"v_bfe_u32 v17, v0, 8, 1")
            a(f"v_lshl_add_u32 v16, v17, 6, v16")
            a(f"v_add_u32 {vRR}, s67, v16")

    def tail(self, tbs, nw, cnt, epilogue, acc=32, slow=0, BB=BB):
        a = self.a
        Lskip = a.newlabel("L_nomm")
        if nw < 8:
            a(f"s_cmp_ge_u32 {sW}, {nw}")
            a(f"s_cbranch_scc1 {Lskip}")
        first = True
        for u, tb in enumerate(tbs):
            for cg in range(4):
                c = "0" if first else v(acc + 4 * cg, 4)
                a(f"v_mfma_f32_16x16x32_bf16 {v(acc+4*cg,4)}, {v(tb+8*cg,4)}, {v(BB+8*u,4)}, {c}")
                a(f"v_mov_b32_dpp v{BB+8*u+4+cg}, v{BB+8*u+cg} row_ror:8 row_mask:0xf bank_mask:0xf")
            first = False
        for u, tb in enumerate(tbs):
            for cg in range(4):
                a(f"v_mfma_f32_16x16x32_bf16 {v(acc+4*cg,4)}, {v(tb+8*cg+4,4)}, {v(BB+8*u+4,4)}, {v(acc+4*cg,4)}")
        a(f"s_mov_b64 exec, {sM8}")
        for cg in range(4):
            a(f"ds_write_b128 {vRW}, {v(acc+4*cg,4)} offset:{64*cg}")
        self.bump(CNT[cnt])
        a.label(Lskip)
        np_ = (nw + 1) // 2
        rd = []
        for p in range(np_):
            if 2 * p + 1 < nw:
                rd.append(f"ds_read2st64_b32 {v(16+2*p,2)}, {vRR} offset0:{64*p} offset1:{64*p+32}")
            else:
                rd.append(f"ds_read_b32 v{16+2*p}, {vRR} offset:{SLOTB*2*p}")
        self.lds_wait(CNT[cnt], nw, rd, tmp=24, slow=slow, rl=not slow)
        for p in range(np_):
            a(f"s_waitcnt lgkmcnt({np_-1-p})")
            if p == 0:
                a("v_add_f32 v16, v16, v17")
            else:
                a(f"v_add_f32 v16, v16, v{16+2*p}")
                if 2 * p + 1 < nw:
                    a(f"v_add_f32 v16, v16, v{17+2*p}")
        epilogue()

    def publish1(self, voff, soff, fast=None):
        a = self.a
        self.tag([16])
        if fast:
            a(f"buffer_store_dword v16, {voff}, {WS_}, {fast} offen")
        a(f"buffer_store_dword v16, {voff}, {WS_}, {soff} offen sc1")

    def ln_consts(self, m, var, t):
        a = self.a
        self.bf16r_pairs([m, var], t)
        a(f"v_add_f32 v{var}, 0x{EPS:x}, v{var}")
        self.bf16r1(var)
        a(f"v_sqrt_f32 v{var}, v{var}")
        self.bf16r1(var)
        a(f"v_rcp_f32 v{var}, v{var}")

    def silu_c(self, src, dst):
        a = self.a
        self.unpack_bf16(src, 32, 4)
        for e in range(8):
            a(f"v_mul_f32 v{40+e}, 0x{LOG2E ^ 0x80000000:x}, v{32+e}")
        for e in range(8):
            a(f"v_exp_f32 v{40+e}, v{40+e}")
        for e in range(8):
            a(f"v_add_f32 v{40+e}, 1.0, v{40+e}")
        for e in range(8):
            a(f"v_rcp_f32 v{40+e}, v{40+e}")
        for e in range(8):
            a(f"v_mul_f32 v{32+e}, v{32+e}, v{40+e}")
        for p in range(4):
            a(f"v_cvt_pk_bf16_f32 v{dst+p}, v{32+2*p}, v{32+2*p+1}")

    def rot_addr(self, sh, c, dst):
        a = self.a
        a(f"v_lshrrev_b32 v16, 5, {vLANE}")
        a(f"v_sub_u32 v{dst+5}, 1, v16")
        a(f"v_add_u32 v16, {sX}, v16")
        for i in range(4):
            r = dst + 4 if i == 0 else dst + i
            a(f"v_add_u32 v17, {2*i}, v16")
            a(f"v_and_b32 v17, 7, v17")
            a(f"v_lshlrev_b32 v17, {sh}, v17")
            a(f"v_lshl_add_u32 v{r}, v{c}, 4, v17")
        a(f"v_lshl_add_u32 v{dst}, v{dst+5}, 22, v{dst+4}")

    def rm_task(self, k0, cg):
        a = self.a
        L1 = a.newlabel("L_rmt")
        a(f"s_and_b32 {k0}, {sL}, 1")
        a(f"s_lshl_b32 {k0}, {k0}, 9")
        a(f"s_bfe_u32 {cg}, {sL}, 0x20001")
        a(f"s_lshl2_add_u32 {cg}, {sX}, {cg}")
        a(f"s_add_u32 {cg}, {cg}, 48")
        a(f"s_cmp_lt_u32 {sL}, 24")
        a(f"s_cbranch_scc1 {L1}")
        a(f"s_and_b32 {k0}, {sL}, 3")
        a(f"s_lshl_b32 {k0}, {k0}, 8")
        a(f"s_bfe_u32 {cg}, {sL}, 0x10002")
        a(f"s_lshl1_add_u32 {cg}, {sX}, {cg}")
        a(f"s_add_u32 {cg}, {cg}, 32")
        a.label(L1)

    def p4_cg(self, d):
        a = self.a
        a(f"s_add_u32 {d}, {sX}, 3")
        a(f"s_and_b32 {d}, {d}, 7")
        a(f"s_lshr_b32 s67, {sL}, 1")
        a(f"s_add_u32 {d}, {d}, s67")
        a(f"s_add_u32 {d}, {d}, 1")
        for _ in range(2):
            a(f"s_cmp_ge_u32 {d}, 7")
            a(f"s_cselect_b32 s67, 7, 0")
            a(f"s_sub_u32 {d}, {d}, s67")
        a(f"s_mul_i32 s67, {sX}, 7")
        a(f"s_add_u32 {d}, {d}, s67")

    def swap_j(self, d, p, q):
        a = self.a
        a(f"s_sub_u32 {d}, {sL}, 16")
        if not self.cfg.get("swap", 1):
            return
        a(f"s_cmp_eq_u32 {sL}, {16+p}")
        a(f"s_cselect_b32 {d}, {q}, {d}")
        a(f"s_cmp_eq_u32 {sL}, {16+q}")
        a(f"s_cselect_b32 {d}, {p}, {d}")

    def koff(self, dst):
        a = self.a
        a(f"v_lshlrev_b32 v{dst}, 11, {vB}")
        a(f"v_lshl_add_u32 v{dst}, {vHI}, 6, v{dst}")
        a(f"v_lshl_add_u32 v{dst}, {vG}, 3, v{dst}")

    def load_bfrag(self, dst, srd, soff, extra=0):
        a = self.a
        a(f"buffer_load_dwordx2 {v(dst,2)}, v8, {srd}, {soff} offen offset:{extra}")
        a(f"buffer_load_dwordx2 {v(dst+2,2)}, v8, {srd}, {soff} offen offset:{extra+32}")

    def p0a_early(self):
        a = self.a
        a(f"v_bfe_u32 v8, {vLANE}, 1, 3")
        a(f"v_lshlrev_b32 v8, 11, v8")
        a(f"v_lshl_add_u32 v8, {vG}, 3, v8")
        a(f"v_and_b32 v9, 1, {vLANE}")
        a(f"v_lshl_add_u32 v8, v9, 5, v8")
        a(f"s_and_b32 s71, {sL}, 3")
        a(f"s_lshl_b32 s67, s71, 9")
        a(f"s_lshl_b32 s70, {sW}, 6")
        a(f"s_add_u32 s67, s67, s70")
        a("s_waitcnt lgkmcnt(0)")
        a(f"buffer_load_dwordx2 v[28:29], v8, {C_}, s67 offen")

    def p0a(self):
        a = self.a
        sb = SLOT["P0A"]
        BF, AF = 96, 128
        self.stamp(sb)
        a(f"s_lshl_b32 s67, {sW}, 9")
        a(f"v_lshl_add_u32 v8, {vLANE}, 3, {vZ}")
        a(f"v_add_u32 v8, s67, v8")
        a(f"s_lshl_b32 s70, {sX}, 15")
        a(f"s_lshr_b32 s67, {sL}, 2")
        a(f"s_lshl_b32 s67, s67, 13")
        a(f"s_add_u32 s70, s70, s67")
        a(f"s_lshl_b32 s67, {sW}, 11")
        a(f"s_add_u32 s70, s70, s67")
        a(f"s_lshl_b32 s67, s71, 9")
        a(f"s_add_u32 s70, s70, s67")
        a(f"s_add_u32 s70, s70, {WS_SAC}")
        a(f"s_add_u32 s72, s70, {FS}")
        a(f"v_lshlrev_b32 v10, 4, {vB}")
        a(f"v_lshl_add_u32 v10, {vG}, 7, v10")
        a(f"v_add_u32 v30, v10, {vZ}")
        a(f"s_lshl_b32 s67, {sW}, 5")
        a(f"v_xor_b32 v9, s67, v{TR}")
        a(f"s_waitcnt vmcnt(0)")
        self.unpack_bf16(28, 32, 2)
        for e in range(4):
            a(f"v_mul_f32 v{40+e}, 0x{LOG2E ^ 0x80000000:x}, v{32+e}")
        for e in range(4):
            a(f"v_exp_f32 v{40+e}, v{40+e}")
        for e in range(4):
            a(f"v_add_f32 v{40+e}, 1.0, v{40+e}")
        for e in range(4):
            a(f"v_rcp_f32 v{40+e}, v{40+e}")
        for e in range(4):
            a(f"v_mul_f32 v{32+e}, v{32+e}, v{40+e}")
        for p in range(2):
            a(f"v_cvt_pk_bf16_f32 v{32+p}, v{32+2*p}, v{33+2*p}")
        a(f"ds_write_b64 v8, v[32:33] offset:{L_P-L_AUX}")
        self.bump(CNT["S1"])
        a(f"s_cmp_ge_u32 {sW}, 4")
        a("s_cbranch_scc1 L_att")
        self.lds_wait(CNT["S1"], 8, [f"ds_read_b128 {v(BF+4*st,4)}, v30 offset:{L_P-L_AUX+512*st}" for st in range(8)], tmp=24)
        a("s_waitcnt lgkmcnt(0)")
        self.stamp(sb + 1)
        for u in range(4):
            rd = [f"ds_read_b64_tr_b16 {v(AF+8*u+4*hi+2*q,2)}, v9 offset:{u*SLOTB+(32*hi+16*q)*128}" for hi in range(2) for q in range(2)]
            self.lds_wait(C_LANDED, u + 1, rd, tmp=24)
            for hi in range(2):
                a(f"s_waitcnt lgkmcnt({2-2*hi})")
                c = "0" if u == 0 else v(16 + 4 * hi, 4)
                a(f"v_mfma_f32_16x16x32_bf16 {v(16+4*hi,4)}, {v(AF+8*u+4*hi,4)}, {v(BF+8*u+4*hi,4)}, {c}")
        for r in range(4):
            a(f"v_add_f32 v{16+r}, v{16+r}, v{20+r}")
        self.tag([16, 17, 18, 19])
        a(f"s_mov_b64 exec, {sM8}")
        a(f"buffer_store_dwordx4 v[16:19], v10, {WS_}, s72 offen")
        a(f"buffer_store_dwordx4 v[16:19], v10, {WS_}, s70 offen sc1")
        self.bump(CNT["P0P"])
        self.stamp(sb + 3)
        a("v_mov_b32 v20, 2")
        self.release_run(0, 4, "v20")

    def rm(self, tb):
        a = self.a
        name = "RM"
        self.stamp(SLOT[name])
        self.rm_task("s69", "s72")
        a("s_lshl_b32 s70, s69, 7")
        a("s_lshl_b32 s67, s72, 8")
        a("s_add_u32 s70, s70, s67")
        Lr = a.newlabel("L_rmr")
        Le = a.newlabel("L_rme")
        a(f"s_cmp_ge_u32 {sL}, 24")
        a(f"s_cbranch_scc1 {Lr}")
        a(f"s_lshl_b32 s67, {sW}, 13")
        a("s_add_u32 s70, s70, s67")
        a(f"s_add_u32 s70, s70, {WS_MSC-48*256}")
        self.pull(8, tb, red="row")
        self.stamp(SLOT[name] + 1)
        self.tail([tb], 8, name, lambda: self.publish1(vL4, "s70"), slow=self.cfg["slow"], BB=100)
        self.release_run(8, 8)
        a(f"s_branch {Le}")
        a.label(Lr)
        a(f"s_lshl_b32 s67, {sW}, 12")
        a("s_add_u32 s70, s70, s67")
        a(f"s_add_u32 s70, s70, {WS_MGA-32*256}")
        self.slot_of(12, "s78", "s79")
        self.red_addr(12, "row")
        Ls = a.newlabel("L_rms")
        a(f"s_cmp_ge_u32 {sW}, 4")
        a(f"s_cbranch_scc1 {Ls}")
        self.pull(12, tb)
        self.stamp(SLOT[name] + 1)
        a.label(Ls)
        self.tail([tb], 4, name, lambda: self.publish1(vL4, "s70"), slow=self.cfg["slow"], BB=100)
        self.release_run(12, 4)
        a.label(Le)
        self.stamp(SLOT[name] + 3)

    def p1_early(self):
        a = self.a
        a(f"v_lshlrev_b32 v9, 4, {vLANE}")
        a(f"s_lshl_b32 s70, {sW}, 11")
        a(f"v_bfe_u32 v10, {vLANE}, 3, 2")
        a(f"v_lshlrev_b32 v8, 11, {vB}")
        a(f"v_lshl_add_u32 v8, v10, 3, v8")
        a(f"v_lshrrev_b32 v10, 5, {vLANE}")
        a(f"v_lshl_add_u32 v8, v10, 2, v8")
        a(f"s_lshl_b32 s69, {sX}, 8")
        a(f"s_lshl_b32 s67, {sW}, 5")
        a(f"s_add_u32 s69, s69, s67")
        a("s_waitcnt lgkmcnt(0)")
        a(f"buffer_load_dwordx4 v[32:35], v9, {X_}, s70 offen")
        a(f"buffer_load_dwordx4 v[36:39], v9, {X_}, s70 offen offset:1024")
        a(f"buffer_load_dword v58, v8, {X_}, s69 offen")
        self.rm_task("s69", "s72")
        a(f"s_lshl_b32 s67, {sW}, 6")
        a("s_add_u32 s69, s69, s67")
        a("s_and_b32 s69, s69, 1023")
        a("s_lshl_b32 s69, s69, 1")
        self.koff(8)
        self.load_bfrag(96, C_, "s69")

    def p1(self, tb):
        a = self.a
        sb = SLOT["P1"]
        Y = [60, 61]
        self.stamp(sb)
        a(f"s_lshl_b32 s70, {sX}, 17")
        a(f"s_lshl_b32 s67, s68, 10")
        a(f"s_add_u32 s70, s70, s67")
        a(f"s_lshl_b32 s67, {sW}, 7")
        a(f"s_add_u32 s70, s70, s67")
        a(f"s_add_u32 s70, s70, {WS_QP}")
        a(f"s_add_u32 s71, s70, {FS}")
        a(f"v_lshlrev_b32 v31, 14, {vB}")
        a(f"v_lshl_add_u32 v31, {vHI}, 6, v31")
        a(f"v_lshl_add_u32 v31, {vG}, 4, v31")
        a(f"v_and_b32 v30, 31, {vLANE}")
        a(f"v_lshl_add_u32 v28, v30, 4, {vZ}")
        a(f"s_lshr_b32 s67, {sW}, 1")
        a(f"s_lshl_b32 s67, s67, 9")
        a(f"s_and_b32 s72, {sW}, 1")
        a(f"s_lshl_b32 s72, s72, 3")
        a(f"s_add_u32 s67, s67, s72")
        a(f"v_add_u32 v28, s67, v28")
        a(f"v_lshl_add_u32 v29, {vB}, 4, {vZ}")
        a(f"v_lshl_add_u32 v29, {vG}, 7, v29")
        a(f"v_lshrrev_b32 v27, 5, {vLANE}")
        a(f"v_lshl_add_u32 v28, v27, 2, v28")
        a(f"v_lshlrev_b32 v27, 14, v27")
        a(f"v_lshl_add_u32 v27, v30, 4, v27")
        a(f"s_and_b32 s67, {sW}, 3")
        a(f"s_lshl_b32 s67, s67, 9")
        a(f"v_add_u32 v26, s67, v27")
        a(f"s_lshl_b32 s73, {sX}, 15")
        a(f"s_lshl_b32 s67, {sW}, 11")
        a(f"s_add_u32 s73, s73, s67")
        a(f"s_add_u32 s73, s73, {WS_SAC}")
        a("s_waitcnt vmcnt(3)")
        self.unpack_bf16(32, 40, 8)
        a("v_add_f32 v18, v40, v41")
        for e in range(2, 16):
            a(f"v_add_f32 v18, v18, v{40+e}")
        self.allred_wave([18], [19])
        a("v_mul_f32 v18, 0x3a800000, v18")
        a("v_mov_b32 v16, 0")
        for e in range(16):
            a(f"v_sub_f32 v17, v{40+e}, v18")
            a(f"v_fmac_f32 v16, v17, v17")
        self.allred_wave([16], [19])
        a("v_mul_f32 v19, 0x3a800000, v16")
        self.ln_consts(18, 19, 16)
        a(f"s_lshl_b32 s67, {sW}, 3")
        a(f"v_add_u32 v16, s67, {vZ}")
        a(f"ds_write_b64 v16, v[18:19] offset:{L_ST-L_AUX}")
        self.bump(CNT["S1"])
        a(f"v_lshl_add_u32 v17, {vB}, 3, {vZ}")
        a("s_waitcnt vmcnt(0)")
        self.unpack_bf16(58, 60, 1)
        self.silu_c(96, 100)
        self.lds_wait(CNT["S1"], 8, [f"ds_read_b64 v[18:19], v17 offset:{L_ST-L_AUX}"])
        a("s_waitcnt lgkmcnt(0)")
        for y in Y:
            a(f"v_sub_f32 v{y}, v{y}, v18")
        self.bf16r_pairs(Y, 24)
        for y in Y:
            a(f"v_mul_f32 v{y}, v{y}, v19")
        self.bf16r_pairs(Y, 24)
        a(f"s_lshr_b32 s78, {sW}, 1")
        a(f"s_add_u32 s79, s78, 1")
        a(f"s_lshl_b32 s78, s78, 13")
        a(f"s_lshl_b32 s67, s72, 3")
        a(f"v_xor_b32 v16, s67, v{TR}")
        a(f"v_add_u32 v{TRA}, s78, v16")
        a(f"v_xor_b32 v16, s67, v{TR+1}")
        a(f"v_add_u32 v{TRA+1}, s78, v16")
        def wreads(rh):
            return [f"ds_read_b64_tr_b16 {v(tb+16*rh+8*c2+4*hi+2*q,2)}, v{TRA+c2} offset:{4*SLOTB*rh+(32*hi+16*q)*128}"
                    for c2 in range(2) for hi in range(2) for q in range(2)]
        self.lds_wait(C_LANDED, "s79", slow=self.cfg["slow"])
        for t in wreads(0):
            a(t)
        a(f"s_add_u32 s79, s79, 4")
        a("s_mov_b32 s75, 0")
        self.stamp(sb + 1)
        pl = [(f"buffer_load_dwordx4 {v(32+4*p,4)}, v27, {WS_}, s74 offen offset:{512*p} sc1", 32 + 4 * p, 4) for p in range(4)]
        GM = 0x100000001
        self.poll(pl, 24, gate=(GM, 26, "s74"), fs=[("s74", "s73")], gs=40, hook=self.early_pull("s75", "s79", wreads(1), GM))
        self.stamp(sb + 2)
        for e in range(4):
            a(f"v_add_f32 v{32+e}, v{32+e}, v{36+e}")
            a(f"v_add_f32 v{40+e}, v{40+e}, v{44+e}")
        for e in range(4):
            a(f"v_add_f32 v{32+e}, v{32+e}, v{40+e}")
        a("v_permlane32_swap_b32 v32, v34")
        a("v_permlane32_swap_b32 v33, v35")
        self.bf16r_pairs([34, 35], 24)
        for e in range(2):
            a(f"v_add_f32 v{34+e}, 1.0, v{34+e}")
        self.bf16r_pairs([34, 35], 24)
        self.bf16r_pairs([32, 33], 25)
        for e in range(2):
            a(f"v_mul_f32 v{34+e}, v{Y[e]}, v{34+e}")
        self.bf16r_pairs([34, 35], 24)
        for e in range(2):
            a(f"v_add_f32 v{32+e}, v{32+e}, v{34+e}")
        a("v_cvt_pk_bf16_f32 v32, v32, v33")
        a(f"ds_write_b32 v28, v32 offset:{L_H-L_AUX}")
        self.bump(CNT["H"])
        self.xs(0)
        self.late_pull("s75", "s79", wreads(1))
        self.lds_wait(CNT["H"], 8, [f"ds_read_b128 {v(32+4*st,4)}, v29 offset:{L_H-L_AUX+512*st}" for st in range(4)], tmp=24, rl=True)
        for st in range(4):
            a(f"s_waitcnt lgkmcnt({3-st})")
            for c2 in range(2):
                c = "0" if st == 0 else v(16 + 4 * c2, 4)
                a(f"v_mfma_f32_16x16x32_bf16 {v(16+4*c2,4)}, {v(tb+16*(st>>1)+8*c2+4*(st&1),4)}, {v(32+4*st,4)}, {c}")
        self.xs(1)
        a(f"s_lshr_b32 s67, s68, 2")
        a(f"s_cmp_lg_u32 s67, {sHKV}")
        for e in range(4):
            a(f"v_cndmask_b32 v{16+e}, v{20+e}, v{16+e}, {sM8}")
        self.tag([16, 17, 18, 19])
        a(f"buffer_store_dwordx4 v[16:19], v31, {WS_}, s70 offen sc1")
        Ln = a.newlabel("L_nopl")
        a(f"s_cbranch_scc1 {Ln}")
        a(f"buffer_store_dwordx4 v[16:19], v31, {WS_}, s71 offen")
        a.label(Ln)
        self.bump(CNT["P1P"])
        self.stamp(sb + 3)
        a(f"s_lshr_b32 s67, s78, 11")
        a(f"v_add_u32 v24, s67, {vZ}")
        a(f"v_mov_b32 v25, 4")
        a("s_mov_b64 exec, 1")
        a(f"ds_add_u32 v24, v25 offset:{4*C_FREE}")
        a(f"ds_add_u32 v24, v25 offset:{4*C_FREE+16}")
        a("s_mov_b64 exec, -1")

    def att(self, uK):
        a = self.a
        sb = SLOT["ATT"]
        uV = uK + 8
        KR, VR, PR = 64, 96, 128
        self.stamp(sb)
        a(f"s_and_b32 s72, s68, 3")
        a(f"s_and_b32 s73, {sX}, 1")
        a(f"s_lshl_b32 s73, s73, 2")
        a(f"s_lshr_b32 s67, s68, 2")
        a(f"s_add_u32 s73, s73, s67")
        a(f"s_mov_b32 s74, {sHKV}")
        a(f"v_and_b32 v8, 31, {vLANE}")
        self.rot_addr(17, 8, 56)
        a(f"s_lshl_b32 s66, s73, 14")
        a(f"s_lshl_b32 s67, s74, 12")
        a(f"s_add_u32 s66, s66, s67")
        a(f"s_lshl_b32 s67, {sW}, 9")
        a(f"s_add_u32 s66, s66, s67")
        a(f"s_add_u32 s66, s66, {WS_QP}")
        a(f"s_mul_i32 s67, {sW}, 272")
        a(f"v_lshl_add_u32 v28, v8, 3, {vZ}")
        a(f"v_add_u32 v28, s67, v28")
        a(f"v_lshrrev_b32 v16, 5, {vLANE}")
        a(f"v_lshl_add_u32 v28, v16, 2, v28")
        a(f"v_mul_u32_u24 v29, 272, {vB}")
        a(f"v_lshl_add_u32 v29, {vG}, 4, v29")
        a(f"v_add_u32 v29, v29, {vZ}")
        a(f"v_lshl_add_u32 v30, {vB}, 4, {vZ}")
        a(f"v_lshl_add_u32 v30, {vG}, 7, v30")
        a(f"s_lshl_b32 s67, {sW}, 9")
        a(f"v_add_u32 v31, s67, v30")
        a(f"v_lshl_add_u32 v31, {vHI}, 3, v31")
        a(f"v_mul_u32_u24 v26, 80, {vB}")
        a(f"v_add_u32 v26, v26, {vZ}")
        a(f"s_lshl_b32 s67, {sW}, 3")
        a(f"v_add_u32 v27, s67, v26")
        a(f"v_lshl_add_u32 v26, {vHI}, 5, v26")
        for r in range(PR, PR + 32):
            a(f"v_mov_b32 v{r}, 0")
        a(f"s_not_b64 s[86:87], {sM8}")
        a(f"s_lshl_b32 s75, s73, 2")
        a(f"s_add_u32 s75, s75, s72")
        a(f"s_lshl_b32 s76, s73, 7")
        a(f"s_lshl2_add_u32 s76, s72, s76")
        a(f"s_lshl_b32 s75, s75, 14")
        a(f"s_lshl_b32 s67, s74, 12")
        a(f"s_add_u32 s75, s75, s67")
        a(f"s_lshl_b32 s67, {sW}, 9")
        a(f"s_add_u32 s75, s75, s67")
        a(f"s_add_u32 s75, s75, {WS_OP}")
        a(f"s_lshl_b32 s67, s74, 10")
        a(f"s_add_u32 s76, s76, s67")
        a(f"s_add_u32 s76, s76, {WS_LSE}")
        a(f"v_sub_u32 v10, v30, {vZ}")
        a(f"v_lshrrev_b32 v16, 2, {vLANE}")
        a(f"v_and_b32 v17, 7, v16")
        a(f"v_xor_b32 v17, {sW}, v17")
        a(f"v_lshlrev_b32 v16, 8, v16")
        a(f"v_lshl_add_u32 v16, v17, 5, v16")
        a(f"v_and_b32 v17, 3, {vLANE}")
        a(f"v_lshl_add_u32 v62, v17, 3, v16")
        a(f"v_add_u32 v63, 0x10000, v62")
        self.slot_of(uK, "s78", "s79")
        a(f"v_xor_b32 v16, {vG}, {vI}")
        a(f"v_lshlrev_b32 v16, 4, v16")
        a(f"v_lshl_add_u32 v16, {vI}, 8, v16")
        for st in range(4):
            a(f"v_xor_b32 v17, {64*st}, v16")
            a(f"v_add_u32 v{TRA+st}, s78, v17")
        self.lds_wait(C_LANDED, "s79", slow=self.cfg["slow"])
        for kb in range(2):
            for st in range(4):
                a(f"ds_read_b128 {v(KR+16*kb+4*st,4)}, v{TRA+st} offset:{4096*kb}")
        a("s_waitcnt lgkmcnt(0)")
        self.release("s78")
        vr = []
        for t in range(8):
            sl = (uV + t) % NS
            for q in range(2):
                off = sl * SLOTB + 4096 * q
                vr.append(f"ds_read_b64_tr_b16 {v(VR+4*t+2*q,2)}, v{62 + off//65536} offset:{off % 65536}")
        a("s_mov_b32 s77, 0")
        GM = 0x100000001
        if self.cfg.get("qlate"):
            self.lds_wait(C_LANDED, uV + self.cfg["qlate"], slow=self.cfg["slow"])
            self.stamp(sb + 1)
        self.poll([(f"buffer_load_dwordx4 {v(32+4*i,4)}, v{56+i}, {WS_}, s66 offen sc1", 32 + 4 * i, 4) for i in range(4)], 24,
                  gate=(GM, 58, "s66") if self.cfg.get("qgate", 1) else None, vfs=(56, 61, 60), gs=54,
                  hook=self.early_pull("s77", uV + 8, vr, GM), gbump="QG")
        self.stamp(sb + 2)
        for i in range(4):
            a(f"v_add_f32 v{32+i}, v{32+i}, v{36+i}")
            a(f"v_add_f32 v{40+i}, v{40+i}, v{44+i}")
        for i in range(4):
            a(f"v_add_f32 v{32+i}, v{32+i}, v{40+i}")
        a("v_permlane32_swap_b32 v32, v34")
        a("v_permlane32_swap_b32 v33, v35")
        a("v_add_f32 v32, v32, v34")
        a("v_add_f32 v33, v33, v35")
        a("v_cvt_pk_bf16_f32 v32, v32, v33")
        a(f"ds_write_b32 v28, v32 offset:{L_Q-L_AUX}")
        self.bump(CNT["Q"])
        self.lds_wait(CNT["Q"], 8, [f"ds_read_b128 {v(32+4*st,4)}, v29 offset:{L_Q-L_AUX+64*st}" for st in range(4)], tmp=24, rl=True)
        for st in range(4):
            a(f"s_waitcnt lgkmcnt({3-st})")
            for kb in range(2):
                c = "0" if st == 0 else v(16 + 4 * kb, 4)
                a(f"v_mfma_f32_16x16x32_bf16 {v(16+4*kb,4)}, {v(KR+16*kb+4*st,4)}, {v(32+4*st,4)}, {c}")
        self.xs(0)
        Z = [16, 17, 18, 19]
        for e in range(4):
            a(f"v_cndmask_b32 v{16+e}, v{20+e}, v{16+e}, {sM8}")
        self.bf16r_pairs(Z[:2], 24)
        self.bf16r_pairs(Z[2:], 25)
        for z in Z:
            a(f"v_mul_f32 v{z}, 0x{SCALE:x}, v{z}")
        self.bf16r_pairs(Z[:2], 24)
        self.bf16r_pairs(Z[2:], 25)
        a("v_max3_f32 v32, v16, v17, v18")
        a("v_max_f32 v33, v32, v19")
        a("v_max_f32_dpp v32, v33, v33 row_ror:8 row_mask:0xf bank_mask:0xf")
        self.allred_g([32], "v_max_f32", [33])
        a(f"v_mul_f32 v32, 0x{LOG2E:x}, v32")
        for z in Z:
            a(f"v_fma_f32 v{z}, v{z}, {sLOG}, -v32")
        for z in Z:
            a(f"v_exp_f32 v{z}, v{z}")
        a("v_cvt_pk_bf16_f32 v36, v16, v17")
        a("v_cvt_pk_bf16_f32 v37, v18, v19")
        a(f"ds_write_b64 v31, v[36:37] offset:{L_P-L_AUX}")
        a("v_add_f32 v16, v16, v17")
        a("v_add_f32 v18, v18, v19")
        a("v_add_f32 v34, v16, v18")
        a("v_add_f32_dpp v33, v34, v34 row_ror:8 row_mask:0xf bank_mask:0xf")
        self.allred_g([33], "v_add_f32", [34])
        a(f"ds_write_b64 v27, v[32:33] offset:{L_ML-L_AUX}")
        self.bump(CNT["P"])
        self.xs(1)
        self.late_pull("s77", uV + 8, vr)
        self.xs(2)
        rd = [f"ds_read_b128 {v(32+4*i,4)}, v26 offset:{L_ML-L_AUX+16*i}" for i in range(2)]
        rd += [f"s_mov_b64 exec, {sM8}"]
        rd += [f"ds_read_b128 {v(PR+4*t,4)}, v30 offset:{L_P-L_AUX+512*t}" for t in range(4)]
        rd += [f"s_mov_b64 exec, s[86:87]"]
        rd += [f"ds_read_b128 {v(PR+4*t,4)}, v30 offset:{L_P-L_AUX+512*t}" for t in range(4, 8)]
        rd += [f"s_mov_b64 exec, -1"]
        self.lds_wait(CNT["P"], 8, rd, tmp=24, rl=self.cfg.get("rlp", 0))
        self.xs(3)
        a("s_waitcnt lgkmcnt(8)")
        a("v_max3_f32 v16, v32, v34, v36")
        a("v_max_f32 v17, v16, v38")
        a("v_max_f32_dpp v16, v17, v17 row_ror:8 row_mask:0xf bank_mask:0xf")
        for t in range(4):
            a(f"s_waitcnt lgkmcnt({7-t})")
            a(f"v_mfma_f32_16x16x32_bf16 {v(KR+4*t,4)}, {v(VR+4*t,4)}, {v(PR+4*t,4)}, 0")
            a(f"v_sub_f32 v{32+2*t}, v{32+2*t}, v16")
            a(f"v_exp_f32 v{32+2*t}, v{32+2*t}")
        for t in range(4):
            a(f"s_waitcnt lgkmcnt({3-t})")
            a(f"v_mfma_f32_16x16x32_bf16 {v(KR+4*t,4)}, {v(VR+16+4*t,4)}, {v(PR+16+4*t,4)}, {v(KR+4*t,4)}")
            a(f"v_mul_f32 v18, v32, v33" if t == 0 else f"v_fmac_f32 v18, v{32+2*t}, v{33+2*t}")
        a("v_add_f32_dpp v17, v18, v18 row_ror:8 row_mask:0xf bank_mask:0xf")
        a("v_rcp_f32 v18, v17")
        a("v_log_f32 v17, v17")
        for i in range(4):
            a(f"v_mul_f32 v{20+i}, v32, v{KR+i}")
        Ln = a.newlabel("L_nolse")
        a(f"s_cmp_lg_u32 {sW}, 7")
        a(f"s_cbranch_scc1 {Ln}")
        a("v_add_f32 v17, v16, v17")
        self.tag([17])
        a("s_mov_b64 exec, 0xff")
        a(f"buffer_store_dword v17, v10, {WS_}, s76 offen sc1")
        a("s_mov_b64 exec, -1")
        a.label(Ln)
        for t in range(1, 4):
            for i in range(4):
                a(f"v_fmac_f32 v{20+i}, v{32+2*t}, v{KR+4*t+i}")
        for i in range(4):
            a(f"v_add_f32_dpp v{40+i}, v{20+i}, v{20+i} row_ror:8 row_mask:0xf bank_mask:0xf")
        for i in range(4):
            a(f"v_mul_f32 v{40+i}, v{40+i}, v18")
        self.tag([40, 41, 42, 43])
        a(f"s_mov_b64 exec, {sM8}")
        a(f"buffer_store_dwordx4 v[40:43], v10, {WS_}, s75 offen sc1")
        self.bump(CNT["ATTP"])
        self.stamp(sb + 3)
        self.release_run(uV % NS, NS - uV % NS)
        self.release_run(0, 8 - (NS - uV % NS))

    def p3(self, ubase, tb):
        a = self.a
        sb = SLOT["P3"]
        self.stamp(sb)
        a(f"s_lshl_b32 s70, {sX}, 15")
        a(f"s_lshl_b32 s67, s68, 8")
        a(f"s_add_u32 s70, s70, s67")
        a(f"s_lshl_b32 s67, {sW}, 12")
        a(f"s_add_u32 s70, s70, s67")
        a(f"s_add_u32 s70, s70, {WS_AP}")
        a(f"s_add_u32 s69, s70, {FS}")
        a(f"v_lshlrev_b32 v8, 4, {vLANE}")
        a(f"s_lshl_b32 s72, {sX}, 11")
        a(f"s_lshl_b32 s67, {sW}, 16")
        a(f"s_add_u32 s72, s72, s67")
        a(f"s_add_u32 s72, s72, {WS_OP}")
        for i in range(1, 4):
            a(f"s_add_u32 s{72+i}, s72, {16384*i}")
        a(f"v_lshlrev_b32 v9, 4, {vB}")
        a(f"s_lshr_b32 s71, {sX}, 1")
        a(f"s_lshl_b32 s71, s71, 10")
        a(f"s_lshl_b32 s67, {sW}, 7")
        a(f"s_add_u32 s71, s71, s67")
        a(f"s_add_u32 s71, s71, {WS_LSE}")
        a(f"v_bfe_u32 v16, v0, 2, 1")
        a(f"v_lshl_add_u32 v16, {vG}, 1, v16")
        a(f"v_lshl_add_u32 v29, v16, 9, {vZ}")
        a(f"v_xor_b32 v16, {sW}, v16")
        a(f"v_lshl_add_u32 v29, v16, 4, v29")
        a(f"v_and_b32 v16, 1, v0")
        a(f"v_lshl_add_u32 v29, v16, 8, v29")
        a(f"v_lshl_add_u32 v29, {vHI}, 7, v29")
        a(f"v_bfe_u32 v16, v0, 1, 1")
        a(f"v_lshl_add_u32 v29, v16, 3, v29")
        a(f"s_and_b32 s67, {sW}, 3")
        a(f"s_lshl_b32 s67, s67, 1")
        a(f"v_xor_b32 v16, {vHI}, {vB}")
        a(f"v_xor_b32 v16, s67, v16")
        a(f"v_lshl_add_u32 v30, v16, 4, {vZ}")
        a(f"v_lshl_add_u32 v30, {vG}, 7, v30")
        a(f"v_lshl_add_u32 v30, {vHI}, 9, v30")
        a(f"s_lshl_b32 s67, {sW}, 10")
        a(f"v_add_u32 v30, s67, v30")
        self.slot_of(ubase, "s78", "s79")
        for cg in range(4):
            a(f"v_add_u32 v{TRA+cg}, s78, v{TR+cg}")
        self.red_addr(ubase, "row")
        wr = [f"ds_read_b64_tr_b16 {v(tb+8*cg+4*hi+2*q,2)}, v{TRA+cg} offset:{(32*hi+16*q)*128}" for cg in range(4) for hi in range(2) for q in range(2)]
        a("s_mov_b32 s77, 0")
        self.mod_addr()
        Lnm = a.newlabel("L_nomod")
        hk = wr + [f"s_cmp_lt_u32 {sL}, 24", f"s_cbranch_scc1 {Lnm}"] + [t for t, _, _ in self.mod_loads()] + [f"@{Lnm}"]
        self.stamp(sb + 1)
        self.poll([(f"buffer_load_dwordx4 v[32:35], v9, {WS_}, s71 offen sc1", 32, 4)], 24,
                  lhook=self.early_pull("s77", "s79", hk if self.cfg.get("hmod", 2) == 1 else wr, (1 << 64) - 1))
        self.stamp(42)
        G0 = 128
        pl = []
        for sp in range(4):
            for i in range(2):
                r = G0 + 8 * sp + 4 * i
                pl.append((f"buffer_load_dwordx4 {v(r,4)}, v8, {WS_}, s{72+sp} offen offset:{1024*i} sc1", r, 4))

        def weights():
            a("v_max3_f32 v36, v32, v33, v34")
            a("v_max_f32 v36, v36, v35")
            for w in range(32, 36):
                a(f"v_sub_f32 v{w}, v{w}, v36")
            for w in range(32, 36):
                a(f"v_exp_f32 v{w}, v{w}")
            a("v_add_f32 v36, v32, v33")
            a("v_add_f32 v37, v34, v35")
            a("v_add_f32 v36, v36, v37")
            a("v_rcp_f32 v36, v36")
            for w in range(32, 36):
                a(f"v_mul_f32 v{w}, v{w}, v36")
        self.poll(pl, 24, plain=self.cfg["plain"], mid=weights)
        if self.stamps:
            a(f"v_writelane_b32 {vSTAMP}, {sPOLL}, 43")
        self.stamp(sb + 2)
        for e in range(8):
            a(f"v_mul_f32 v{G0+e}, v32, v{G0+e}")
        for sp in range(1, 4):
            for e in range(8):
                a(f"v_fmac_f32 v{G0+e}, v{32+sp}, v{G0+8*sp+e}")
        for p in range(4):
            a(f"v_cvt_pk_bf16_f32 v{16+p}, v{G0+2*p}, v{G0+1+2*p}")
        a(f"ds_write_b64 v29, v[16:17] offset:{L_OB-L_AUX}")
        a(f"ds_write_b64 v29, v[18:19] offset:{L_OB-L_AUX+4096}")
        self.bump(CNT["P3G"])
        self.late_pull("s77", "s79", wr)
        self.lds_wait(CNT["P3G"], 8, [f"ds_read_b128 {v(BB,4)}, v30 offset:{L_OB-L_AUX}"], tmp=24, rl=True)
        if self.cfg.get("hmod", 2) == 2:
            a(f"s_cmp_lt_u32 {sL}, 24")
            a(f"s_cbranch_scc1 {Lnm}")
            for t, _, _ in self.mod_loads():
                a(t)
            a.label(Lnm)
        a("s_waitcnt lgkmcnt(0)")
        self.xs(2)
        self.tail([tb], 8, "P3", lambda: self.publish1(vL4, "s70", fast="s69"))
        self.bump(CNT["P3P"])
        self.stamp(sb + 3)

    def mod_addr(self):
        a = self.a
        a(f"v_and_b32 v16, 31, {vLANE}")
        a(f"v_lshlrev_b32 v16, 4, v16")
        a(f"v_lshrrev_b32 v17, 5, {vLANE}")
        a(f"v_lshl_add_u32 v112, v17, 15, v16")
        a(f"v_lshl_add_u32 v113, v17, 16, v16")
        a(f"s_and_b32 s97, {sL}, 7")
        a(f"s_lshl_b32 s67, {sW}, 9")
        a(f"s_lshl_b32 s94, s97, 12")
        a(f"s_add_u32 s94, s94, s67")
        a(f"s_add_u32 s94, s94, {WS_MGA}")
        a(f"s_add_u32 s95, s94, 65536")
        a(f"s_lshl_b32 s96, s97, 13")
        a(f"s_add_u32 s96, s96, s67")
        a(f"s_add_u32 s96, s96, {WS_MSC}")
        a(f"s_add_u32 s97, s96, 4096")
        a(f"v_not_b32 v96, {sT}")

    def mod_loads(self):
        return [(f"buffer_load_dwordx4 {v(r,4)}, v{ad}, {WS_}, {so} offen sc1", r, 4)
                for r, ad, so in ((96, 112, "s94"), (108, 112, "s95"), (100, 113, "s96"), (104, 113, "s97"))]

    def r3(self):
        a = self.a
        sb = SLOT["R3"]
        a(f"v_and_b32 v8, 31, {vLANE}")
        a(f"v_lshlrev_b32 v9, 4, v8")
        a(f"s_lshl_b32 s67, {sW}, 9")
        a(f"s_lshl_b32 s71, s69, 12")
        a(f"s_add_u32 s71, s71, s67")
        ml = self.mod_loads()
        a(f"v_lshrrev_b32 v16, 1, v9")
        a(f"s_lshr_b32 s67, s71, 1")
        a(f"buffer_load_dwordx2 v[28:29], v16, {X_}, s67 offen")
        self.rot_addr(15, 8, 64)
        a(f"s_add_u32 s77, s71, {WS_AP}")
        a(f"s_lshl_b32 s67, {sX}, 15")
        a(f"s_add_u32 s71, s71, s67")
        a(f"s_lshl_b32 s70, {sX}, 3")
        a(f"s_add_u32 s70, s70, s69")
        a(f"s_mul_i32 s70, s70, {H2R}")
        a(f"s_lshl_b32 s67, {sW}, 9")
        a(f"s_add_u32 s70, s70, s67")
        a(f"s_add_u32 s70, s70, {WS_H2}")
        a(f"s_add_u32 s76, s70, {FS}")
        a(f"s_add_u32 s71, s71, {WS_X1}")
        a(f"s_lshl_b32 s67, {sW}, 3")
        a(f"v_add_u32 v10, s67, {vZ}")
        gate = self.cfg.get("r3gate")

        def mod():
            Lok = a.newlabel("L_modok")
            a(f"s_waitcnt vmcnt({3 if gate else 7})")
            a(f"v_xor_b32 v25, {sT}, v96")
            for r in range(97, 112):
                a(f"v_bitop3_b32 v25, v{r}, v25, {sT} bitop3:0xde")
            a(f"v_and_b32 v25, {vFF}, v25")
            a(f"v_cmp_ne_u32 vcc, 0, v25")
            a(f"s_cbranch_vccz {Lok}")
            self.poll(ml, 25)
            a.label(Lok)
            for i in range(4):
                a(f"v_add_f32 v{96+i}, v{96+i}, v{108+i}")
            M = list(range(96, 108))
            T = list(range(116, 128))
            for r, t in zip(M, T):
                a(f"v_mov_b32 v{t}, v{r}")
            for r, t in zip(M, T):
                a(f"v_permlane32_swap_b32 v{r}, v{t}")
            for r, t in zip(M, T):
                a(f"v_add_f32 v{r}, v{r}, v{t}")
            self.bf16r_pairs(M, 25)
            for i in range(4):
                a(f"v_add_f32 v{104+i}, 1.0, v{104+i}")
            self.bf16r_pairs([104, 105, 106, 107], 25)
            a(f"s_waitcnt vmcnt({0 if gate else 4})")
            self.unpack_bf16(28, 108, 2)
            self.stamp(sb + 1)
        self.stamp(sb)
        if gate:
            mod()
        self.poll([(f"buffer_load_dwordx4 {v(32+4*k,4)}, v{64+k}, {WS_}, s77 offen sc1", 32 + 4 * k, 4) for k in range(4)], 24,
                  vfs=(64, 69, 68), gate=(0x100000001, 66, "s77") if gate else None, gs=56 if gate else None, mid=None if gate else mod)
        self.stamp(sb + 2)
        for i in range(4):
            a(f"v_add_f32 v{32+i}, v{32+i}, v{36+i}")
            a(f"v_add_f32 v{40+i}, v{40+i}, v{44+i}")
        for i in range(4):
            a(f"v_add_f32 v{32+i}, v{32+i}, v{40+i}")
        for i in range(4):
            a(f"v_mov_b32 v{36+i}, v{32+i}")
        for i in range(4):
            a(f"v_permlane32_swap_b32 v{32+i}, v{36+i}")
        for i in range(4):
            a(f"v_add_f32 v{32+i}, v{32+i}, v{36+i}")
        X = [32, 33, 34, 35]
        self.bf16r_pairs(X, 24)
        for i in range(4):
            a(f"v_mul_f32 v{32+i}, v{32+i}, v{96+i}")
        self.bf16r_pairs(X, 24)
        for i in range(4):
            a(f"v_add_f32 v{32+i}, v{32+i}, v{108+i}")
        self.bf16r_pairs(X, 24)
        a("v_add_f32 v16, v32, v33")
        a("v_mul_f32 v17, v32, v32")
        a("v_add_f32 v18, v34, v35")
        a("v_fmac_f32 v17, v33, v33")
        a("v_add_f32 v16, v16, v18")
        a("v_fmac_f32 v17, v34, v34")
        a("v_fmac_f32 v17, v35, v35")
        self.allred_wave([16, 17], [18, 19], n32=True)
        a(f"ds_write_b64 v10, v[16:17] offset:{L_ST+64-L_AUX}")
        self.bump(CNT["R3"])
        self.xs(3)
        for i in range(4):
            a(f"v_bfi_b32 v{36+i}, {vFF}, {sT}, v{32+i}")
        a("s_mov_b32 exec_hi, 0")
        a(f"buffer_store_dwordx4 v[36:39], v9, {WS_}, s71 offen sc1")
        a("s_mov_b32 exec_hi, -1")
        self.lds_wait(CNT["R3"], 8, [f"ds_read_b128 {v(16+4*q,4)}, {vZ} offset:{L_ST+64-L_AUX+16*q}" for q in range(4)], tmp=40)
        a("s_waitcnt lgkmcnt(2)")
        a("v_add_f32 v16, v16, v18")
        a("v_add_f32 v17, v17, v19")
        a("v_add_f32 v20, v20, v22")
        a("v_add_f32 v21, v21, v23")
        a("s_waitcnt lgkmcnt(0)")
        a("v_add_f32 v24, v24, v26")
        a("v_add_f32 v25, v25, v27")
        a("v_add_f32 v28, v28, v30")
        a("v_add_f32 v29, v29, v31")
        a("v_add_f32 v16, v16, v20")
        a("v_add_f32 v17, v17, v21")
        a("v_add_f32 v24, v24, v28")
        a("v_add_f32 v25, v25, v29")
        a("v_add_f32 v16, v16, v24")
        a("v_add_f32 v17, v17, v25")
        a("v_mul_f32 v16, 0x3a800000, v16")
        a("v_mul_f32 v17, 0x3a800000, v17")
        a("v_fma_f32 v17, -v16, v16, v17")
        a("v_max_f32 v17, 0, v17")
        self.ln_consts(16, 17, 18)
        for x in X:
            a(f"v_sub_f32 v{x}, v{x}, v16")
        self.bf16r_pairs(X, 24)
        for x in X:
            a(f"v_mul_f32 v{x}, v{x}, v17")
        self.bf16r_pairs(X, 24)
        for i in range(4):
            a(f"v_mul_f32 v{32+i}, v{32+i}, v{104+i}")
        self.bf16r_pairs(X, 24)
        for i in range(4):
            a(f"v_add_f32 v{32+i}, v{32+i}, v{100+i}")
        self.bf16r_pairs(X, 24)
        self.tag(X)
        a("s_mov_b32 exec_hi, 0")
        a(f"buffer_store_dwordx4 v[32:35], v9, {WS_}, s76 offen")
        a(f"buffer_store_dwordx4 v[32:35], v9, {WS_}, s70 offen sc1")
        self.bump(CNT["R3P"])
        self.stamp(sb + 3)

    def p4(self):
        a = self.a
        sb = SLOT["P4"]
        self.stamp(sb)
        self.p4_cg("s72")
        a(f"s_and_b32 s71, s68, 1")
        a(f"s_mul_i32 s70, s71, {56*2048}")
        a(f"s_lshl_b32 s67, s72, 11")
        a(f"s_add_u32 s70, s70, s67")
        a(f"s_lshl_b32 s67, {sW}, 8")
        a(f"s_add_u32 s70, s70, s67")
        a(f"s_add_u32 s70, s70, {WS_GU}")
        a(f"s_add_u32 s69, s70, {FS}")
        a(f"v_lshrrev_b32 v8, 5, {vLANE}")
        a(f"v_mul_u32_u24 v9, {H2R}, v8")
        a(f"v_lshl_add_u32 v9, {vI}, 4, v9")
        a(f"v_bfe_u32 v10, {vLANE}, 4, 1")
        a(f"v_lshl_add_u32 v9, v10, 11, v9")
        a(f"v_mul_u32_u24 v26, {H2R}, {vLANE}")
        a(f"s_and_b32 s67, s68, 1")
        a(f"s_lshl_b32 s67, s67, 11")
        a(f"v_add_u32 v26, s67, v26")
        self.slot_of(4, "s78", "s79")
        self.red_addr(4, "frag")
        a(f"s_add_u32 s67, s78, 4096")
        a(f"v_mul_u32_u24 v29, 272, v8")
        a(f"v_bfe_u32 v30, v0, 3, 2")
        a(f"v_lshl_add_u32 v29, v30, 6, v29")
        a(f"v_and_b32 v30, 3, v0")
        a(f"v_lshl_add_u32 v29, v30, 4, v29")
        a(f"v_bfe_u32 v30, v0, 2, 1")
        a(f"v_lshl_add_u32 v29, v30, 3, v29")
        a(f"v_add_u32 v29, s67, v29")
        a(f"v_mul_u32_u24 v30, 272, {vB}")
        a(f"v_lshl_add_u32 v30, {vHI}, 6, v30")
        a(f"v_lshl_add_u32 v30, {vG}, 4, v30")
        a(f"v_add_u32 v30, s67, v30")
        self.pull(20, A[0])
        self.pull(28, A[1])
        a(f"s_mul_i32 s72, {sX}, {8*H2R}")
        a(f"s_lshl_b32 s67, {sW}, 8")
        a(f"s_add_u32 s72, s72, s67")
        a(f"s_add_u32 s72, s72, {WS_H2}")
        for i in range(1, 4):
            a(f"s_add_u32 s{72+i}, s72, {2*H2R*i}")
        self.stamp(sb + 1)
        pl = []
        for i in range(4):
            r = 32 + 4 * i
            pl.append((f"buffer_load_dwordx4 {v(r,4)}, v9, {WS_}, s{76+i} offen sc1", r, 4))
        self.poll(pl, 24, gate=(self.cfg["p4gate"], 26, "s76"), fs=[(f"s{76+i}", f"s{72+i}") for i in range(4)], gs=44)
        self.stamp(sb + 2)
        for p in range(8):
            a(f"v_perm_b32 v{16+p}, v{33+2*p}, v{32+2*p}, {sSEL1}")
        for i in range(4):
            a(f"ds_write_b64 v29, {v(16+2*i,2)} offset:{544*i}")
        for u in range(2):
            a(f"ds_read_b128 {v(BB+8*u,4)}, v30 offset:{128*u}")
        a("s_waitcnt lgkmcnt(0)")

        def epi():
            self.bf16r1(16)
            Lu = a.newlabel("L_p4up")
            a("s_cmp_lg_u32 s71, 0")
            a(f"s_cbranch_scc1 {Lu}")
            a(f"v_mul_f32 v17, 0x{LOG2E ^ 0x80000000:x}, v16")
            a(f"v_exp_f32 v17, v17")
            a(f"v_add_f32 v17, 1.0, v17")
            a(f"v_rcp_f32 v17, v17")
            a(f"v_mul_f32 v16, v16, v17")
            self.bf16r1(16)
            a.label(Lu)
            self.publish1(vL4, "s70", fast="s69")
        self.tail([A[0], A[1]], 8, "P4", epi)
        self.stamp(sb + 3)

    def p5(self, ubase, tb):
        a = self.a
        sb = SLOT["P5"]
        self.stamp(sb)
        a(f"s_lshl_b32 s70, {sX}, 15")
        a(f"s_lshl_b32 s67, s68, 8")
        a(f"s_add_u32 s70, s70, s67")
        a(f"s_lshl_b32 s67, {sW}, 12")
        a(f"s_add_u32 s70, s70, s67")
        a(f"s_add_u32 s70, s70, {WS_DP}")
        a(f"s_add_u32 s69, s70, {FS}")
        a(f"v_lshlrev_b32 v8, 4, {vLANE}")
        a(f"s_mul_i32 s73, {sX}, {7*2048}")
        a(f"s_lshl_b32 s67, {sW}, 11")
        a(f"s_add_u32 s73, s73, s67")
        a(f"s_add_u32 s73, s73, {WS_GU}")
        a(f"s_add_u32 s74, s73, {56*2048}")
        a(f"v_mul_u32_u24 v26, {56*2048}, {vLANE}")
        a(f"s_lshl_b32 s67, s68, 7")
        a(f"v_add_u32 v26, s67, v26")
        self.slot_of(ubase, "s78", "s79")
        self.red_addr(ubase, "row")
        Lsk = a.newlabel("L_p5skip")
        a(f"s_cmp_ge_u32 {sW}, 7")
        a(f"s_cbranch_scc1 {Lsk}")
        self.pull(ubase, tb)
        self.stamp(sb + 1)
        pl = []
        for m, so in enumerate(("s75", "s76")):
            for q in range(2):
                r = 32 + 8 * m + 4 * q
                pl.append((f"buffer_load_dwordx4 {v(r,4)}, v8, {WS_}, {so} offen offset:{1024*q} sc1", r, 4))
        self.poll(pl, 24, gate=(0x3, 26, "s75"), fs=[("s75", "s73"), ("s76", "s74")], gs=46)
        self.stamp(sb + 2)
        for e in range(16):
            a(f"v_and_b32 v{32+e}, 0xffff0000, v{32+e}")
        for e in range(8):
            a(f"v_mul_f32 v{32+e}, v{32+e}, v{40+e}")
        for p in range(4):
            a(f"v_cvt_pk_bf16_f32 v{BB+p}, v{32+2*p}, v{33+2*p}")
        a.label(Lsk)
        self.tail([tb], 7, "P5", lambda: self.publish1(vL4, "s70", fast="s69"))
        self.stamp(sb + 3)

    def gb_r5(self):
        a = self.a
        sb = SLOT["GB"]
        self.stamp(sb)
        self.koff(8)
        a(f"s_lshl_b32 s67, {sW}, 7")
        self.load_bfrag(24, C_, "s67")
        self.load_bfrag(28, C_, "s67", 1024)
        a("s_waitcnt vmcnt(0)")
        self.silu_c(24, BB)
        self.silu_c(28, BB + 8)
        self.slot_of(4, "s78", "s79")
        self.red_addr(4, "row")
        self.pull(20, A[0])
        self.pull(28, A[1])
        self.stamp(sb + 1)

        def epi():
            self.bf16r1(16)
            a("v_mov_b32 v31, v16")
        self.tail([A[0], A[1]], 8, "GB", epi, slow=self.cfg["slow"])
        self.stamp(sb + 3)
        sb = SLOT["R5"]
        self.stamp(sb)
        a(f"s_lshl_b32 s69, s68, 8")
        a(f"s_lshl_b32 s67, {sW}, 12")
        a(f"s_add_u32 s69, s69, s67")
        a(f"s_add_u32 s67, {sX}, 1")
        a(f"s_and_b32 s67, s67, 7")
        a(f"s_lshl_b32 s67, s67, 15")
        a(f"s_add_u32 s70, s69, s67")
        a(f"s_add_u32 s70, s70, {WS_X1}")
        self.poll([(f"buffer_load_dword v30, {vL4}, {WS_}, s70 offen sc1", 30, 1)], 24)
        a("v_and_b32 v30, 0xffff0000, v30")
        a(f"s_add_u32 s70, s69, {WS_DP}")
        for k in range(8):
            a(f"s_add_u32 s67, {sX}, {k}")
            a(f"s_and_b32 s67, s67, 7")
            a(f"s_lshl_b32 s67, s67, 15")
            a(f"s_add_u32 s{72+k if k else 71}, s70, s67")
        a(f"v_lshlrev_b32 v10, 1, {vLANE}")
        a(f"s_lshr_b32 s69, s69, 1")
        self.stamp(sb + 1)
        self.poll([(f"buffer_load_dword v{32+k}, {vL4}, {WS_}, s{72+k} offen sc1", 32 + k, 1) for k in range(8)], 24,
                  fs=[("s72", "s71")], gate=(1, 13, "s76") if self.cfg.get("r5gate") else None, gfs=False)
        self.stamp(sb + 2)
        for k in range(4):
            a(f"v_add_f32 v{32+k}, v{32+k}, v{36+k}")
        a("v_add_f32 v32, v32, v33")
        a("v_add_f32 v34, v34, v35")
        a("v_add_f32 v32, v32, v34")
        self.bf16r1(32)
        a("v_mul_f32 v32, v32, v31")
        self.bf16r1(32)
        a("v_add_f32 v32, v32, v30")
        a("v_cvt_pk_bf16_f32 v32, v32, v32")
        a(f"buffer_store_short v32, v10, {OUT_}, s69 offen")
        Lnb = a.newlabel("L_nobump")
        a(f"s_or_b32 s67, s68, {sW}")
        a("s_cmp_lg_u32 s67, 0")
        a(f"s_cbranch_scc1 {Lnb}")
        a(f"s_add_u32 s67, {sEP}, 1")
        a("v_mov_b32 v33, s67")
        a("v_mov_b32 v34, 0")
        a("s_mov_b64 exec, 1")
        a(f"buffer_store_dword v33, v34, {WS_}, 0 offen")
        a("s_mov_b64 exec, -1")
        a.label(Lnb)
        self.stamp(sb + 3)

    def l_signal(self, lag):
        a = self.a
        a(f"s_sub_u32 s67, s72, {lag}")
        a("v_mov_b32 v20, s67")
        a(f"ds_max_i32 v19, v20 offset:{4*C_LANDED}")
        if self.stamps and self.cfg.get("ls"):
            S = a.newlabel("L_ls")
            a("s_cmp_le_i32 s67, s93")
            a(f"s_cbranch_scc1 {S}")
            self.l_flush()
            a("s_mov_b32 s93, s67")
            a("s_memrealtime s[98:99]")
            a.label(S)

    def l_flush(self):
        a = self.a
        if self.stamps and self.cfg.get("ls"):
            a("s_mov_b32 s92, m0")
            a("s_mov_b32 m0, s93")
            a("s_waitcnt lgkmcnt(1)")
            a("v_writelane_b32 v41, s98, m0")
            a("s_mov_b32 m0, s92")

    def l_drain(self):
        a = self.a
        for t in reversed(range((self.lD + 7) // 8)):
            a(f"s_waitcnt vmcnt({8*t})")
            if self.stamps and self.cfg.get("ls"):
                a("s_waitcnt lgkmcnt(0)")
            self.l_signal(t)
        self.lD = 0

    def l_wait(self, cnt, need):
        self.l_drain()
        self.lds_wait(CNT[cnt], need)

    def l_seg(self, srd, n, D, step, barrier=False, until=None):
        a = self.a
        credit = self.lU + n > NS
        wrap = self.lU + n >= NS
        if n > 1:
            a(f"s_mov_b32 s75, {-n}")
        if credit:
            a("s_lshr_b32 s67, s73, 11")
            a(f"v_add_u32 v22, s67, {vZ}")
            a(f"ds_read_b32 v21, v22 offset:{4*C_FREE}")
        if until:
            a(f"ds_read_b32 v23, {vZ} offset:{4*CNT[until[0]]}")
        E = a.newlabel("L_sege")
        L2 = a.newlabel("L_seg2")
        for ph, D in enumerate([D] + ([until[2]] if until else [])):
            assert D % 4 == 0 and D >= 4
            L = a.newlabel("L_seg") if ph == 0 else L2
            hs, lag = (1, D // 8 - 1) if D % 8 == 0 else (0, (D - 4) // 8)
            a.label(L)
            if credit or (until and ph == 0):
                a("s_waitcnt lgkmcnt(0)")
            if until and ph == 0:
                a(f"v_cmp_le_i32 vcc, {until[1]}, v23")
                a(f"s_cbranch_vccnz {L2}")
            if credit:
                Lok = a.newlabel("L_cok")
                Lsp = a.newlabel("L_csp")
                a("v_cmp_le_i32 vcc, s74, v21")
                a(f"s_cbranch_vccnz {Lok}")
                a(f"ds_read_b32 v21, v22 offset:{4*C_FREE}")
                a("s_waitcnt lgkmcnt(0)")
                a("v_cmp_le_i32 vcc, s74, v21")
                a(f"s_cbranch_vccnz {Lok}")
                a("s_waitcnt vmcnt(0)")
                self.l_signal(0)
                a(f"s_mov_b32 {sPOLL}, {self.poll_limit*8}")
                a.label(Lsp)
                a(f"ds_read_b32 v21, v22 offset:{4*C_FREE}")
                a("s_waitcnt lgkmcnt(0)")
                a("v_cmp_le_i32 vcc, s74, v21")
                a(f"s_sub_u32 {sPOLL}, {sPOLL}, 1")
                a(f"s_cbranch_vccnz {Lok}")
                a(f"s_cmp_lg_u32 {sPOLL}, 0")
                a(f"s_cbranch_scc1 {Lsp}")
                a.label(Lok)
            for h in range(2):
                a("s_add_u32 m0, s73, 4096" if h else "s_mov_b32 m0, s73")
                if not barrier:
                    a(f"s_waitcnt vmcnt({D-4})")
                    if h == hs:
                        self.l_signal(lag)
                for j in range(4):
                    a(f"buffer_load_dwordx4 v{24+4*h+j}, {srd}, s66 offen offset:{1024*j} nt lds")
                    if h == 1 and j == 0:
                        a(f"s_add_u32 s73, s73, {SLOTB}")
                        if wrap:
                            a(f"s_cmp_ge_u32 s73, {NS*SLOTB}")
                            a("s_cselect_b32 s73, 0, s73")
                            a("s_cselect_b32 s67, 8, 0")
                            a("s_add_u32 s74, s74, s67")
                    if h == 1 and j == 1 and n > 1:
                        if credit:
                            a("s_lshr_b32 s67, s73, 11")
                            a(f"v_add_u32 v22, s67, {vZ}")
                            a(f"ds_read_b32 v21, v22 offset:{4*C_FREE}")
                        if until and ph == 0:
                            a(f"ds_read_b32 v23, {vZ} offset:{4*CNT[until[0]]}")
                    if h == 1 and j == 2:
                        a("s_add_u32 s72, s72, 1")
            a(f"s_add_u32 s66, s66, {step}")
            if n > 1:
                a("s_add_u32 s75, s75, 1")
                a(f"s_cbranch_scc0 {L}")
            if until and ph == 0:
                a(f"s_branch {E}")
                D1 = D
        if until:
            a.label(E)
            D = max(D, D1)
        self.lU += n
        self.lD = D if not barrier else 8 * self.lU

    def l_tile(self, srd, segs, kind, RS=0, first=False, stamp=None, setup=True):
        a = self.a
        if stamp is not None:
            self.stamp(stamp)
        if kind in ("w", "wq", "wo"):
            js = (128 if kind == "wo" else 8) * RS
            step = {"w": 64 * RS, "wq": 128, "wo": 8 * RS}[kind]
            if setup:
                a(f"v_mul_u32_u24 v24, {RS}, v8")
                a(f"v_add_u32 v24, v24, v9")
                for j in range(1, 8):
                    a(f"v_add_u32 v{24+j}, {js*j - 1024*(j%4)}, v24")
        else:
            step = 8192
            if kind == "k":
                a(f"v_xor_b32 v16, {vI}, {vG}")
            else:
                a(f"v_lshlrev_b32 v16, 1, {vG}")
                a(f"v_xor_b32 v16, {vI}, v16")
            a(f"v_lshlrev_b32 v16, 4, v16")
            a(f"v_lshl_add_u32 v24, {vG}, 8, v16")
            for j in range(1, 8):
                a(f"v_xor_b32 v{24+j}, {(64*(j%4) if kind == 'k' else 128*(j%2)) + 4096*(j//4)}, v24")
        for sg in segs:
            if isinstance(sg[0], str):
                self.l_wait(*sg)
                continue
            n, D = sg[:2]
            if first:
                n0 = min(n, max(1, D // 8))
                self.l_seg(srd, n0, D, step, barrier=True)
                a("s_barrier")
                n -= n0
                first = False
            if n:
                self.l_seg(srd, n, D, step, until=sg[2:] or None)

    def loader(self):
        a = self.a
        cfg = self.cfg
        a("s_setprio 3")
        a("s_mov_b32 s93, 0")
        if cfg.get("pre"):
            a("s_getpc_b64 s[66:67]")
            a.label("L_pc")
            a(f"s_lshl_b32 s68, {sL}, 10")
            a(f"v_lshl_add_u32 v8, {vLANE}, 7, s68")
            a("v_min_u32 v8, L_exit-L_pc, v8")
            a("s_mov_b64 exec, 0xff")
            a("global_load_dword v40, v8, s[66:67]")
            a("s_mov_b64 exec, -1")
        a(f"v_lshrrev_b32 v8, 3, {vLANE}")
        a(f"v_lshlrev_b32 v9, 1, {vG}")
        a(f"v_xor_b32 v9, v9, {vB}")
        a("v_lshlrev_b32 v9, 4, v9")
        a(f"v_lshlrev_b32 v19, 2, {vLANE}")
        a(f"v_add_u32 v19, {LDS_BYTES-256}, v19")
        a(f"s_mov_b32 s67, 0x20000")
        a(f"v_writelane_b32 v19, s67, 0")
        a("s_mov_b32 s72, 0")
        a("s_mov_b32 s73, 0")
        a("s_mov_b32 s74, 0")
        a(f"s_cmp_ge_u32 {sL}, 16")
        a("s_cbranch_scc1 L_LB")

        def wait(key):
            if cfg.get(key):
                self.l_wait(*cfg[key])
        self.lU, self.lD = 0, 0
        a(f"s_and_b32 s67, {sL}, 3")
        a(f"s_mul_i32 s66, s67, {256*12288}")
        a(f"s_lshr_b32 s67, {sL}, 3")
        a(f"s_lshl_b32 s67, s67, 11")
        a(f"s_add_u32 s66, s66, s67")
        a(f"s_lshl_b32 s67, {sX}, 8")
        a(f"s_add_u32 s66, s66, s67")
        a(f"s_bfe_u32 s67, {sL}, 0x10002")
        a(f"s_lshl_b32 s67, s67, 7")
        a(f"s_add_u32 s66, s66, s67")
        a("s_waitcnt lgkmcnt(0)")
        self.l_tile(WM_, cfg["P0A"], "w", 12288, first=True, stamp=48)
        a(f"s_and_b32 s69, {sX}, 1")
        a(f"s_lshl_b32 s69, s69, 2")
        a(f"s_lshr_b32 s67, {sL}, 2")
        a(f"s_add_u32 s69, s69, s67")
        a(f"s_lshl_b32 s69, s69, 2")
        a(f"s_add_u32 s69, s69, {sHKV}")
        a(f"s_lshl_b32 s69, s69, 20")
        a(f"s_and_b32 s67, {sL}, 3")
        a(f"s_lshl_b32 s67, s67, 16")
        a(f"s_add_u32 s69, s69, s67")
        a(f"s_add_u32 s69, s69, {3072*256}")
        wait("wK")
        a("s_mov_b32 s66, s69")
        self.l_tile(K_, cfg["K"], "k", stamp=49)
        a("s_mov_b32 s66, s69")
        self.l_tile(V_, cfg["V"], "v", stamp=50)
        wait("wP4")
        st = (self.lU, self.lD)
        a(f"s_cmp_ge_u32 {sL}, 14")
        a(f"s_cbranch_scc1 L_lgb")
        self.p4_cg("s66")
        a(f"s_lshl_b32 s66, s66, 7")
        a(f"s_and_b32 s67, {sL}, 1")
        a("s_cselect_b32 s60, s32, s28")
        a("s_cselect_b32 s61, s33, s29")
        a("s_mov_b32 s62, 7340032")
        a("s_mov_b32 s63, 0x20000")
        self.l_tile(W_, cfg["P4"], "w", 7168, stamp=51)
        self.l_drain()
        a("s_branch L_done")
        a.label("L_lgb")
        self.lU, self.lD = st
        a(f"s_lshl_b32 s66, {sX}, 1")
        a(f"s_add_u32 s66, s66, {sL}")
        a(f"s_lshl_b32 s66, s66, 7")
        a(f"s_add_u32 s66, s66, {5120*2-14*128}")
        self.l_tile(WM_, cfg["GB"], "w", 12288, stamp=51)
        self.l_drain()
        a("s_branch L_done")
        a.label("L_LB")
        self.lU, self.lD = 0, 0
        a(f"s_sub_u32 s68, {sL}, 16")
        a(f"s_lshl_b32 s70, {sX}, 20")
        a(f"s_lshl_b32 s67, s68, 9")
        a(f"s_add_u32 s70, s70, s67")
        a("s_mov_b32 s66, s70")
        a("s_waitcnt lgkmcnt(0)")
        self.l_tile(WQ_, cfg["P1a"], "wq", 8192, first=True, stamp=48)
        a(f"s_add_u32 s66, s70, {64*8192}")
        self.l_tile(WQ_, cfg["P1b"], "wq", 8192, setup=False)
        self.rm_task("s70", "s71")
        a(f"s_mul_i32 s66, s70, 12288")
        a(f"s_lshl_b32 s71, s71, 7")
        a(f"s_add_u32 s66, s66, s71")

        def wotile(key):
            a(f"s_lshr_b32 s66, {sX}, 1")
            a(f"s_lshl_b32 s66, s66, 21")
            a(f"s_and_b32 s67, {sX}, 1")
            a(f"s_lshl_b32 s67, s67, 17")
            a(f"s_add_u32 s66, s66, s67")
            self.swap_j("s69", 3, 9)
            a(f"s_lshl_b32 s69, s69, 7")
            a(f"s_add_u32 s66, s66, s69")
            self.l_tile(WO_, cfg[key], "wo", 2048, stamp=50)

        def wdtile(key):
            a(f"s_mul_i32 s66, {sX}, {448*2048}")
            self.swap_j("s69", 5, 11)
            a(f"s_lshl_b32 s69, s69, 7")
            a(f"s_add_u32 s66, s66, s69")
            self.l_tile(WD_, cfg[key], "w", 2048, stamp=51)
            self.l_drain()
            a("s_branch L_done")
        st = (self.lU, self.lD)
        a(f"s_cmp_ge_u32 {sL}, 24")
        a(f"s_cbranch_scc1 L_lr3")
        wait("wB")
        self.l_tile(WM_, cfg["RM"], "w", 12288, stamp=53)
        wotile("P3")
        wait("wP5")
        wdtile("P5")
        a.label("L_lr3")
        self.lU, self.lD = st
        self.l_drain()
        a("v_mov_b32 v20, 8")
        a(f"v_lshl_add_u32 v22, {vLANE}, 2, {vZ}")
        a("s_mov_b64 exec, 15")
        a(f"ds_add_u32 v22, v20 offset:{4*(C_FREE+8)}")
        a("s_mov_b64 exec, -1")
        a("s_mov_b32 s72, 12")
        a(f"s_mov_b32 s73, {12*SLOTB}")
        self.lU = 12
        wait("wB")
        self.l_tile(WM_, cfg["RMr"], "w", 12288, stamp=53)
        wotile("P3r")
        wait("wP5r")
        wdtile("P5r")

    def build(self):
        a = self.a
        cfg = self.cfg
        hdr = open(os.path.join(os.path.dirname(os.path.abspath(__file__)), "..", "cdna_kernels", NAME + ".s.ref")).read()
        for line in hdr.split("\n"):
            if line.startswith("; @launch"):
                break
            a.raw(line)
        a.raw(f"; @launch grid=(256,1,1) block=(576,1,1) lds={LDS_BYTES}")
        a.raw('.amdgcn_target "amdgcn-amd-amdhsa--gfx950"')
        a.raw(".text")
        a.raw(f".globl {NAME}_kernel")
        a.raw(".p2align 8")
        a.raw(f".type {NAME}_kernel,@function")
        a.raw(f"{NAME}_kernel:")
        a("s_cmp_ge_u32 s2, 256")
        a("s_cbranch_scc1 L_exit")
        if cfg.get("dbg"):
            a("s_memrealtime s[100:101]")
            a("s_load_dwordx2 s[56:57], s[0:1], 96")
            a("s_mov_b32 s58, 256")
            a("s_mov_b32 s59, 0x20000")
        for (s0, ko, nb) in SRD_INFO:
            a(f"s_load_dwordx2 s[{s0}:{s0+1}], s[0:1], {ko}")
        for (s0, ko, nb) in SRD_INFO:
            a(f"s_mov_b32 s{s0+2}, {nb}")
            a(f"s_mov_b32 s{s0+3}, 0x20000")
        a(f"v_and_b32 {vLANE}, 63, v0")
        a("v_lshrrev_b32 v7, 6, v0")
        a(f"v_lshrrev_b32 {vG}, 4, {vLANE}")
        a(f"v_readfirstlane_b32 {sW}, v7")
        a(f"v_and_b32 {vI}, 15, v0")
        a(f"v_and_b32 {vB}, 7, v0")
        a(f"v_bfe_u32 {vHI}, v0, 3, 1")
        a(f"v_mov_b32 {vSTAMP}, 0")
        if self.stamps:
            a(f"v_mov_b32 v41, 0")
        a(f"v_mov_b32 {vZ}, 0x20000")
        a(f"s_and_b32 {sX}, s2, 7")
        a(f"s_lshr_b32 {sL}, s2, 3")
        a(f"s_lshr_b32 {sHKV}, {sX}, 1")
        a(f"s_xor_b32 {sHKV}, {sHKV}, 1")
        a(f"s_cmp_lt_u32 {sW}, 8")
        a("s_cbranch_scc1 L_compute")
        self.loader()
        a.label("L_compute")
        a(f"v_lshlrev_b32 {vL4}, 2, {vLANE}")
        a("v_mov_b32 v16, 0")
        a(f"v_add_u32 v17, {vL4}, {vZ}")
        a(f"ds_write_b32 v17, v16 offset:{L_CNT-L_AUX}")
        a(f"s_cmp_ge_u32 {sL}, 16")
        a("s_cbranch_scc1 L_eB")
        self.p0a_early()
        a("s_branch L_eD")
        a.label("L_eB")
        self.p1_early()
        a.label("L_eD")
        a(f"s_load_dword {sEP}, s[52:53], 0")
        a("s_barrier")
        a(f"v_mov_b32 {vFF}, 0xff")
        a(f"v_mov_b32 {vONE}, 1")
        a(f"s_mov_b32 {sSEL1}, 0x07060302")
        a("s_mov_b32 s84, 0x00ff00ff")
        a("s_mov_b32 s85, 0x00ff00ff")
        a(f"s_mov_b32 {sLOG}, 0x{LOG2E:x}")
        a(f"v_lshrrev_b32 v8, 2, {vLANE}")
        a(f"v_lshlrev_b32 v8, 7, v8")
        a(f"v_and_b32 v9, 3, {vLANE}")
        a(f"v_lshl_add_u32 v8, v9, 3, v8")
        a(f"v_bfe_u32 v9, {vLANE}, 3, 2")
        a(f"v_lshl_add_u32 v{TR}, v9, 5, v8")
        for cg in range(1, 4):
            a(f"v_xor_b32 v{TR+cg}, {32*cg}, v{TR}")
        a("s_waitcnt lgkmcnt(0)")
        a(f"s_add_u32 {sT}, {sEP}, 1")
        a(f"s_and_b32 {sT}, {sT}, 0xff")
        a(f"s_cmp_ge_u32 {sL}, 16")
        a("s_cbranch_scc1 L_B")
        a("; ======== A")
        self.p0a()
        a.label("L_att")
        a(f"s_mov_b32 s68, {sL}")
        self.att(4)
        a(f"s_mov_b32 s68, {sL}")
        a(f"s_cmp_lt_u32 {sL}, 14")
        a(f"s_cbranch_scc1 L_P4")
        a(f"s_lshl_b32 s68, {sX}, 1")
        a(f"s_add_u32 s68, s68, {sL}")
        a(f"s_sub_u32 s68, s68, 14")
        self.gb_r5()
        a("s_branch L_done")
        a.label("L_P4")
        self.p4()
        a("s_branch L_done")
        a.label("L_B")
        a("; ======== B")
        a(f"s_sub_u32 s68, {sL}, 16")
        self.p1(A[0])
        self.rm(A[0])
        self.swap_j("s68", 3, 9)
        self.p3(16, A[0])
        a(f"s_cmp_lt_u32 {sL}, 24")
        a(f"s_cbranch_scc1 L_nor3")
        a(f"s_sub_u32 s69, {sL}, 24")
        self.r3()
        a.label("L_nor3")
        self.swap_j("s68", 5, 11)
        self.p5(24, A[0])
        a.label("L_done")
        if cfg.get("dbg"):
            a(f"s_cmp_lg_u32 {sL}, 15")
            a("s_cbranch_scc1 L_nodbg")
            a(f"s_cmp_lg_u32 {sW}, 0")
            a("s_cbranch_scc1 L_nodbg")
            a("s_memrealtime s[90:91]")
            a("s_waitcnt lgkmcnt(0)")
            a("v_mov_b32 v16, s100")
            a("v_mov_b32 v17, s90")
            a(f"s_lshl_b32 s66, {sX}, 2")
            a("v_mov_b32 v18, 0")
            a("s_mov_b64 exec, 1")
            a(f"buffer_store_dword v16, v18, {DBG_}, s66 offen")
            a(f"buffer_store_dword v17, v18, {DBG_}, s66 offen offset:32")
            a("s_mov_b64 exec, -1")
            a.label("L_nodbg")
        if self.stamps:
            self.stamp(52)
            a(f"s_lshl_b32 s66, s2, 4")
            a(f"s_add_u32 s66, s66, {sW}")
            a(f"s_lshl_b32 s66, s66, 8")
            a(f"s_add_u32 s66, s66, {WS_STAMP}")
            a(f"v_lshlrev_b32 v8, 2, {vLANE}")
            a(f"buffer_store_dword {vSTAMP}, v8, {WS_}, s66 offen sc1")
            a(f"s_cmp_lt_u32 {sW}, 8")
            a("s_cbranch_scc1 L_exit")
            self.l_flush()
            a(f"buffer_store_dword v41, v8, {WS_}, s66 offen offset:256 sc1")
        a.label("L_exit")
        a("s_endpgm")
        a.raw('.section .rodata,"a"')
        a.raw(".p2align 6")
        a.raw(f".amdhsa_kernel {NAME}_kernel")
        a.raw(f"  .amdhsa_next_free_vgpr {NVGPR}")
        a.raw("  .amdhsa_next_free_sgpr 102")
        a.raw(f"  .amdhsa_accum_offset {NVGPR}")
        a.raw("  .amdhsa_group_segment_fixed_size 0")
        a.raw("  .amdhsa_kernarg_size 112")
        a.raw("  .amdhsa_user_sgpr_count 2")
        a.raw("  .amdhsa_user_sgpr_kernarg_segment_ptr 1")
        a.raw("  .amdhsa_system_sgpr_workgroup_id_x 1")
        a.raw(".end_amdhsa_kernel")
        return a.text()


DEFAULT = dict(slow=3, plain=True, p4gate=1, r3gate=1,
               P0A=[(4, 32)], wK=("P0P", 4), K=[(8, 56)], V=[(8, 56)], wP4=("ATTP", 8), P4=[(16, 56)], GB=[(16, 32)],
               P1a=[(4, 32)], P1b=[(4, 56)], wB=("P1P", 8), RM=[(3, 16), (5, 56)], P3=[(8, 56)], wP5=("P3P", 8), P5=[(7, 56)],
               RMr=[(3, 16), (1, 56)], P3r=[(8, 56)], wP5r=("R3P", 8), P5r=[(7, 56)])

if __name__ == "__main__":
    cfg = dict(DEFAULT)
    out = sys.argv[1]
    for arg in sys.argv[2:]:
        k, _, val = arg.partition("=")
        cfg[k] = eval(val) if val else True
    open(out, "w").write(Gen(cfg).build())
    print("wrote", out)
```

```python
import sys, os, struct
sys.path.insert(0, os.path.dirname(os.path.abspath(__file__)))
from asmlib import Asm

NAME = "adaLN_cond__sliding_block_cached__swiglu_ffn__decode"

FS = 4 << 20
WS_SAC = 4096
WS_MGA = WS_SAC + 8 * 32768
WS_MSC = WS_MGA + 4 * 8 * 1024 * 4
WS_QP = WS_MSC + 2 * 8 * 2048 * 4
WS_OP = WS_QP + 8 * 8 * 4096 * 4
WS_LSE = WS_OP + 8 * 4 * 32 * 128 * 4
WS_AP = WS_LSE + 4096
WS_X1 = WS_AP + 8 * 8 * 1024 * 4
WS_DP = WS_X1 + 8 * 8 * 1024 * 4
H2R = 4096 + 128
WS_H2 = WS_DP + 8 * 8 * 1024 * 4
WS_GU = WS_H2 + 8 * 8 * H2R + 1024 * 8
assert WS_GU + 2 * 8 * 3584 * 4 <= FS
WS_STAMP = 2 * FS
WS_END = WS_STAMP + 256 * 16 * 64 * 4

X_, K_, V_, WQ_, WO_, WG_, WU_, WD_, C_, WM_, OUT_, WS_, DBG_, W_ = [f"s[{8+4*i}:{11+4*i}]" for i in range(14)]
SRD_INFO = [
    (44, 80, 12582912), (20, 24, 8388608), (12, 8, 33554432), (40, 72, 16384), (8, 0, 16384), (52, 104, WS_END),
    (16, 16, 33554432), (24, 32, 8388608), (28, 48, 7340032), (32, 56, 7340032), (36, 64, 7340032),
    (48, 88, 16384)]

sW, sT, sX, sL, sSEL1 = "s3", "s4", "s5", "s6", "s7"
sEP = "s64"
sPOLL = "s80"
sLOG = "s88"
sHKV = "s65"
sM8 = "s[84:85]"
NS = 16
SLOTB = 8192
L_AUX = NS * SLOTB
L_CNT = L_AUX
L_ST = L_AUX + 256
L_Q = L_AUX + 512
L_P = L_Q + 8 * 272
L_ML = L_P + 4096
L_H = L_AUX + 512
L_OB = L_H + 2048
LDS_BYTES = L_AUX + 12288
assert L_OB + 8192 <= LDS_BYTES - 256 and L_ML + 640 <= LDS_BYTES - 256
SB = 272
C_LANDED, C_FREE = 0, 1
CNT = dict(S1=20, H=21, P1P=22, Q=23, P=24, ATTP=25, RM=26, P3=27, P3P=28, R3=29, R3P=30, P4=31, P5=32, GB=33, P0P=34,
           QG=35, P3G=36, R3G=37)

A = [64, 96, 128]
ACC, BB = 160, 48
vLANE, vG, vI, vB, vHI, vFF, vSTAMP = "v1", "v2", "v3", "v4", "v5", "v6", "v7"
vRW, vRR, vL4, vZ, vONE = "v11", "v12", "v13", "v14", "v15"
NVGPR = 168
TR = 160
TRA = 164
LOG2E = 0x3FB8AA3B
SCALE = struct.unpack("<I", struct.pack("<f", 128 ** -0.5))[0]
EPS = struct.unpack("<I", struct.pack("<f", 1e-5))[0]
SLOT = dict(P0A=0, P1=4, ATT=8, RM=12, P3=16, R3=20, P4=24, P5=28, GB=32, R5=36)


def v(n, cnt=1):
    return f"v{n}" if cnt == 1 else f"v[{n}:{n+cnt-1}]"


class Gen:
    def __init__(self, cfg):
        self.cfg = cfg
        self.a = Asm()
        self.stamps = cfg.get("stamps", False)
        self.poll_limit = cfg.get("poll_limit", 20000)

    def stamp(self, slot):
        if not self.stamps:
            return
        a = self.a
        a("s_memrealtime s[90:91]")
        a("s_waitcnt lgkmcnt(0)")
        a(f"v_writelane_b32 {vSTAMP}, s90, {slot}")

    def epoch(self):
        a = self.a
        a("s_waitcnt lgkmcnt(0)")
        a(f"s_add_u32 {sT}, {sEP}, 1")
        a(f"s_and_b32 {sT}, {sT}, 0xff")

    def xs(self, n):
        if self.cfg.get("xs"):
            self.stamp(58 + n)

    def bf16r_pairs(self, regs, tmp):
        a = self.a
        for i in range(0, len(regs), 2):
            a(f"v_cvt_pk_bf16_f32 v{tmp}, v{regs[i]}, v{regs[i+1]}")
            a(f"v_lshlrev_b32 v{regs[i]}, 16, v{tmp}")
            a(f"v_and_b32 v{regs[i+1]}, 0xffff0000, v{tmp}")

    def bf16r1(self, r):
        a = self.a
        a(f"v_cvt_pk_bf16_f32 v{r}, v{r}, v{r}")
        a(f"v_lshlrev_b32 v{r}, 16, v{r}")

    def unpack_bf16(self, src, dst, n):
        a = self.a
        for i in range(n):
            a(f"v_lshlrev_b32 v{dst+2*i}, 16, v{src+i}")
            a(f"v_and_b32 v{dst+2*i+1}, 0xffff0000, v{src+i}")

    def allred_g(self, regs, op, tmp):
        a = self.a
        for r, t in zip(regs, tmp):
            a(f"v_mov_b32 v{t}, v{r}")
        for r, t in zip(regs, tmp):
            a(f"v_permlane16_swap_b32 v{r}, v{t}")
        for r, t in zip(regs, tmp):
            a(f"{op} v{t}, v{r}, v{t}")
        for r, t in zip(regs, tmp):
            a(f"v_mov_b32 v{r}, v{t}")
        for r, t in zip(regs, tmp):
            a(f"v_permlane32_swap_b32 v{r}, v{t}")
        for r, t in zip(regs, tmp):
            a(f"{op} v{r}, v{r}, v{t}")

    def allred_wave(self, regs, tmp, op="v_add_f32", n32=False):
        a = self.a
        for r, t in zip(regs, tmp):
            a(f"{op}_dpp v{t}, v{r}, v{r} quad_perm:[1,0,3,2] row_mask:0xf bank_mask:0xf")
        for r, t in zip(regs, tmp):
            a(f"{op}_dpp v{r}, v{t}, v{t} quad_perm:[2,3,0,1] row_mask:0xf bank_mask:0xf")
        for r, t in zip(regs, tmp):
            a(f"{op}_dpp v{t}, v{r}, v{r} row_half_mirror row_mask:0xf bank_mask:0xf")
        for r, t in zip(regs, tmp):
            a(f"{op}_dpp v{r}, v{t}, v{t} row_ror:8 row_mask:0xf bank_mask:0xf")
        for r, t in zip(regs, tmp):
            a(f"v_mov_b32 v{t}, v{r}")
        for r, t in zip(regs, tmp):
            a(f"v_permlane16_swap_b32 v{r}, v{t}")
        for r, t in zip(regs, tmp):
            a(f"{op} v{r}, v{r}, v{t}")
        if n32:
            return
        for r, t in zip(regs, tmp):
            a(f"v_mov_b32 v{t}, v{r}")
        for r, t in zip(regs, tmp):
            a(f"v_permlane32_swap_b32 v{r}, v{t}")
        for r, t in zip(regs, tmp):
            a(f"{op} v{r}, v{r}, v{t}")

    def check(self, loads, acc, mid=None):
        a = self.a
        for t, _, _ in loads:
            a(t + (" nt" if self.cfg.get("gnt") and t.endswith("sc1") else ""))
        if mid:
            mid()
        first = True
        for n, (t, r, cnt) in enumerate(loads):
            a(f"s_waitcnt vmcnt({len(loads)-1-n})")
            for i in range(cnt):
                if first:
                    a(f"v_xor_b32 v{acc}, {sT}, v{r+i}")
                    first = False
                else:
                    a(f"v_bitop3_b32 v{acc}, v{r+i}, v{acc}, {sT} bitop3:0xde")
        a(f"v_and_b32 v{acc}, {vFF}, v{acc}")
        a(f"v_cmp_ne_u32 vcc, 0, v{acc}")

    def poll(self, loads, acc, gate=None, fs=None, vfs=None, gs=None, plain=False, mid=None, keep=False, gfs=True, hook=None, lhook=None, gbump=None):
        a = self.a
        if gate is not None:
            mask, greg, gsoff = gate
            a(f"s_mov_b32 exec_lo, 0x{mask & 0xffffffff:x}")
            a(f"s_mov_b32 exec_hi, 0x{mask >> 32:x}")
            self.poll([(f"buffer_load_dword v25, v{greg}, {WS_}, {gsoff} offen sc1", 25, 1)], acc, fs=fs if gfs else None, lhook=hook)
            a("s_mov_b64 exec, -1")
            keep = gfs
            if gs is not None:
                self.stamp(gs)
        L = a.newlabel("L_poll")
        D = a.newlabel("L_pdone")
        if fs and not keep:
            for so, base in fs:
                a(f"s_add_u32 {so}, {base}, {FS}")
        if gbump:
            mid = lambda: self.bump(CNT[gbump])
        if plain or mid:
            self.check([(t.replace(" sc1", "") if plain else t, r, c) for t, r, c in loads], acc, mid)
            a(f"s_mov_b32 {sPOLL}, {self.poll_limit | 7}")
            a(f"s_cbranch_vccz {D}")
        else:
            a(f"s_mov_b32 {sPOLL}, {self.poll_limit | 7}")
        a.label(L)
        self.check(loads, acc, lhook)
        a(f"s_sub_u32 {sPOLL}, {sPOLL}, 1")
        a(f"s_cbranch_vccz {D}")
        if fs or vfs:
            a(f"s_and_b32 s81, {sPOLL}, 7")
            a(f"s_cselect_b32 s81, {FS}, 0")
            for so, base in (fs or []):
                a(f"s_add_u32 {so}, {base}, s81")
            if vfs:
                a(f"v_mad_u32_u24 v{vfs[0]}, v{vfs[1]}, s81, v{vfs[2]}")
        a(f"s_cmp_lg_u32 {sPOLL}, 0")
        a(f"s_cbranch_scc1 {L}")
        a.label(D)
        if gs is not None and self.stamps:
            a(f"v_writelane_b32 {vSTAMP}, {sPOLL}, {gs+1}")

    def tag(self, regs):
        for r in regs:
            self.a(f"v_bfi_b32 v{r}, {vFF}, {sT}, v{r}")

    def bump(self, cnt, val=vONE):
        a = self.a
        a("s_mov_b64 exec, 1")
        a(f"ds_add_u32 {vZ}, {val} offset:{4*cnt}")
        a("s_mov_b64 exec, -1")

    def lds_wait(self, cnt, need, reads=(), tmp=16, slow=0, rl=False):
        a = self.a
        L = a.newlabel("L_lw")
        D = a.newlabel("L_lwd")
        E = a.newlabel("L_lwe")
        rd = f"ds_read_b32 v{tmp}, {vZ} offset:{4*cnt}"
        nr = len([t for t in reads if t.startswith("ds_")])
        if rl and self.cfg.get("rl", 1):
            a(f"s_mov_b32 {sPOLL}, {self.poll_limit * 8}")
            a.label(L)
            a(rd)
            for t in reads:
                a(t)
            a(f"s_sub_u32 {sPOLL}, {sPOLL}, 1")
            a(f"s_cbranch_scc1 {E}")
            a(f"s_waitcnt lgkmcnt({min(nr, 15)})")
            a(f"v_cmp_le_i32 vcc, {need}, v{tmp}")
            a(f"s_cbranch_vccz {L}")
            a.label(E)
            return
        if reads:
            a(rd)
            for t in reads:
                a(t)
            a(f"s_waitcnt lgkmcnt({min(nr, 15)})")
            a(f"v_cmp_le_i32 vcc, {need}, v{tmp}")
            a(f"s_cbranch_vccnz {E}")
        a(f"s_mov_b32 {sPOLL}, {self.poll_limit * 8}")
        a.label(L)
        a(rd)
        a(f"s_waitcnt lgkmcnt(0)")
        a(f"v_cmp_le_i32 vcc, {need}, v{tmp}")
        a(f"s_sub_u32 {sPOLL}, {sPOLL}, 1")
        a(f"s_cbranch_vccnz {D}")
        for _ in range(slow):
            a("s_nop 15")
        a(f"s_cmp_lg_u32 {sPOLL}, 0")
        a(f"s_cbranch_scc1 {L}")
        a.label(D)
        for t in reads:
            a(t)
        a.label(E)

    def early_pull(self, flag, need, reads, mask):
        a = self.a

        def hook():
            S = a.newlabel("L_hk")
            a(f"s_cmp_lg_u32 {flag}, 0")
            a(f"s_cbranch_scc1 {S}")
            a(f"ds_read_b32 v16, {vZ} offset:{4*C_LANDED}")
            a("s_waitcnt lgkmcnt(0)")
            a(f"v_cmp_le_i32 vcc, {need}, v16")
            a(f"s_cbranch_vccz {S}")
            a("s_mov_b64 exec, -1")
            for t in reads:
                if t[0] == "@":
                    a.label(t[1:])
                else:
                    a(t)
            a(f"s_mov_b32 exec_lo, 0x{mask & 0xffffffff:x}")
            a(f"s_mov_b32 exec_hi, 0x{mask >> 32:x}")
            a(f"s_mov_b32 {flag}, 1")
            a.label(S)
        return hook

    def late_pull(self, flag, need, reads):
        a = self.a
        S = a.newlabel("L_lp")
        a(f"s_cmp_lg_u32 {flag}, 0")
        a(f"s_cbranch_scc1 {S}")
        self.lds_wait(C_LANDED, need, reads, tmp=24)
        a.label(S)

    def slot_of(self, base, sdst, sunit):
        a = self.a
        a(f"s_add_u32 {sdst}, {sW}, {base}")
        a(f"s_add_u32 {sunit}, {sdst}, 1")
        a(f"s_and_b32 {sdst}, {sdst}, {NS-1}")
        a(f"s_lshl_b32 {sdst}, {sdst}, 13")

    def release(self, sslot, n=8):
        a = self.a
        a(f"s_lshr_b32 s67, {sslot}, 11")
        a(f"v_add_u32 v16, s67, {vZ}")
        a(f"v_mov_b32 v17, {n}")
        a("s_mov_b64 exec, 1")
        a(f"ds_add_u32 v16, v17 offset:{4*C_FREE}")
        a("s_mov_b64 exec, -1")

    def release_run(self, slot0, n, val=vONE):
        a = self.a
        a(f"v_add_u32 v16, {vL4}, {vZ}")
        a(f"s_mov_b64 exec, 0x{(1 << n) - 1:x}")
        a(f"ds_add_u32 v16, {val} offset:{4*(C_FREE+slot0)}")
        a("s_mov_b64 exec, -1")

    def pull(self, base, dst, release=False, red=None):
        a = self.a
        self.slot_of(base, "s78", "s79")
        for cg in range(4):
            a(f"v_add_u32 v{TRA+cg}, s78, v{TR+cg}")
        if red:
            self.red_addr(base, red)
        self.lds_wait(C_LANDED, "s79", slow=self.cfg["slow"])
        for cg in range(4):
            for hi in range(2):
                for q in range(2):
                    a(f"ds_read_b64_tr_b16 {v(dst+8*cg+4*hi+2*q,2)}, v{TRA+cg} offset:{(32*hi+16*q)*128}")
        a("s_waitcnt lgkmcnt(0)")
        if release:
            self.release("s78")

    def red_addr(self, base, kind):
        a = self.a
        a(f"v_mul_u32_u24 v16, {SB}, {vB}")
        a(f"v_lshl_add_u32 v16, {vG}, 4, v16")
        a(f"v_add_u32 {vRW}, s78, v16")
        if isinstance(base, int):
            a(f"s_mov_b32 s67, {(base % NS) * SLOTB}")
        else:
            a(f"s_and_b32 s67, {base}, {NS-1}")
            a(f"s_lshl_b32 s67, s67, 13")
        if kind == "row":
            a(f"s_mul_i32 s77, {sW}, {SB}")
            a(f"s_add_u32 s67, s67, s77")
            a(f"v_add_u32 {vRR}, s67, {vL4}")
        else:
            a(f"v_bfe_u32 v16, v0, 2, 3")
            a(f"v_mul_u32_u24 v16, {SB}, v16")
            a(f"v_bfe_u32 v17, v0, 5, 1")
            a(f"v_lshl_add_u32 v16, v17, 7, v16")
            a(f"v_and_b32 v17, 3, v0")
            a(f"v_lshl_add_u32 v16, v17, 2, v16")
            a(f"v_bfe_u32 v17, v0, 6, 2")
            a(f"v_lshl_add_u32 v16, v17, 4, v16")
            a(f"v_bfe_u32 v17, v0, 8, 1")
            a(f"v_lshl_add_u32 v16, v17, 6, v16")
            a(f"v_add_u32 {vRR}, s67, v16")

    def tail(self, tbs, nw, cnt, epilogue, acc=32, slow=0, BB=BB):
        a = self.a
        Lskip = a.newlabel("L_nomm")
        if nw < 8:
            a(f"s_cmp_ge_u32 {sW}, {nw}")
            a(f"s_cbranch_scc1 {Lskip}")
        first = True
        for u, tb in enumerate(tbs):
            for cg in range(4):
                c = "0" if first else v(acc + 4 * cg, 4)
                a(f"v_mfma_f32_16x16x32_bf16 {v(acc+4*cg,4)}, {v(tb+8*cg,4)}, {v(BB+8*u,4)}, {c}")
                a(f"v_mov_b32_dpp v{BB+8*u+4+cg}, v{BB+8*u+cg} row_ror:8 row_mask:0xf bank_mask:0xf")
            first = False
        for u, tb in enumerate(tbs):
            for cg in range(4):
                a(f"v_mfma_f32_16x16x32_bf16 {v(acc+4*cg,4)}, {v(tb+8*cg+4,4)}, {v(BB+8*u+4,4)}, {v(acc+4*cg,4)}")
        a(f"s_mov_b64 exec, {sM8}")
        for cg in range(4):
            a(f"ds_write_b128 {vRW}, {v(acc+4*cg,4)} offset:{64*cg}")
        self.bump(CNT[cnt])
        a.label(Lskip)
        np_ = (nw + 1) // 2
        rd = []
        for p in range(np_):
            if 2 * p + 1 < nw:
                rd.append(f"ds_read2st64_b32 {v(16+2*p,2)}, {vRR} offset0:{64*p} offset1:{64*p+32}")
            else:
                rd.append(f"ds_read_b32 v{16+2*p}, {vRR} offset:{SLOTB*2*p}")
        self.lds_wait(CNT[cnt], nw, rd, tmp=24, slow=slow, rl=not slow)
        for p in range(np_):
            a(f"s_waitcnt lgkmcnt({np_-1-p})")
            if p == 0:
                a("v_add_f32 v16, v16, v17")
            else:
                a(f"v_add_f32 v16, v16, v{16+2*p}")
                if 2 * p + 1 < nw:
                    a(f"v_add_f32 v16, v16, v{17+2*p}")
        epilogue()

    def publish1(self, voff, soff, fast=None):
        a = self.a
        self.tag([16])
        if fast:
            a(f"buffer_store_dword v16, {voff}, {WS_}, {fast} offen")
        a(f"buffer_store_dword v16, {voff}, {WS_}, {soff} offen sc1")

    def ln_consts(self, m, var, t):
        a = self.a
        self.bf16r_pairs([m, var], t)
        a(f"v_add_f32 v{var}, 0x{EPS:x}, v{var}")
        self.bf16r1(var)
        a(f"v_sqrt_f32 v{var}, v{var}")
        self.bf16r1(var)
        a(f"v_rcp_f32 v{var}, v{var}")

    def silu_c(self, src, dst):
        a = self.a
        self.unpack_bf16(src, 32, 4)
        for e in range(8):
            a(f"v_mul_f32 v{40+e}, 0x{LOG2E ^ 0x80000000:x}, v{32+e}")
        for e in range(8):
            a(f"v_exp_f32 v{40+e}, v{40+e}")
        for e in range(8):
            a(f"v_add_f32 v{40+e}, 1.0, v{40+e}")
        for e in range(8):
            a(f"v_rcp_f32 v{40+e}, v{40+e}")
        for e in range(8):
            a(f"v_mul_f32 v{32+e}, v{32+e}, v{40+e}")
        for p in range(4):
            a(f"v_cvt_pk_bf16_f32 v{dst+p}, v{32+2*p}, v{32+2*p+1}")

    def rot_addr(self, sh, c, dst):
        a = self.a
        a(f"v_lshrrev_b32 v16, 5, {vLANE}")
        a(f"v_sub_u32 v{dst+5}, 1, v16")
        a(f"v_add_u32 v16, {sX}, v16")
        for i in range(4):
            r = dst + 4 if i == 0 else dst + i
            a(f"v_add_u32 v17, {2*i}, v16")
            a(f"v_and_b32 v17, 7, v17")
            a(f"v_lshlrev_b32 v17, {sh}, v17")
            a(f"v_lshl_add_u32 v{r}, v{c}, 4, v17")
        a(f"v_lshl_add_u32 v{dst}, v{dst+5}, 22, v{dst+4}")

    def rm_task(self, k0, cg):
        a = self.a
        L1 = a.newlabel("L_rmt")
        a(f"s_and_b32 {k0}, {sL}, 1")
        a(f"s_lshl_b32 {k0}, {k0}, 9")
        a(f"s_bfe_u32 {cg}, {sL}, 0x20001")
        a(f"s_lshl2_add_u32 {cg}, {sX}, {cg}")
        a(f"s_add_u32 {cg}, {cg}, 48")
        a(f"s_cmp_lt_u32 {sL}, 24")
        a(f"s_cbranch_scc1 {L1}")
        a(f"s_and_b32 {k0}, {sL}, 3")
        a(f"s_lshl_b32 {k0}, {k0}, 8")
        a(f"s_bfe_u32 {cg}, {sL}, 0x10002")
        a(f"s_lshl1_add_u32 {cg}, {sX}, {cg}")
        a(f"s_add_u32 {cg}, {cg}, 32")
        a.label(L1)

    def p4_cg(self, d):
        a = self.a
        a(f"s_add_u32 {d}, {sX}, 3")
        a(f"s_and_b32 {d}, {d}, 7")
        a(f"s_lshr_b32 s67, {sL}, 1")
        a(f"s_add_u32 {d}, {d}, s67")
        a(f"s_add_u32 {d}, {d}, 1")
        for _ in range(2):
            a(f"s_cmp_ge_u32 {d}, 7")
            a(f"s_cselect_b32 s67, 7, 0")
            a(f"s_sub_u32 {d}, {d}, s67")
        a(f"s_mul_i32 s67, {sX}, 7")
        a(f"s_add_u32 {d}, {d}, s67")

    def swap_j(self, d, p, q):
        a = self.a
        a(f"s_sub_u32 {d}, {sL}, 16")
        if not self.cfg.get("swap", 1):
            return
        a(f"s_cmp_eq_u32 {sL}, {16+p}")
        a(f"s_cselect_b32 {d}, {q}, {d}")
        a(f"s_cmp_eq_u32 {sL}, {16+q}")
        a(f"s_cselect_b32 {d}, {p}, {d}")

    def koff(self, dst):
        a = self.a
        a(f"v_lshlrev_b32 v{dst}, 11, {vB}")
        a(f"v_lshl_add_u32 v{dst}, {vHI}, 6, v{dst}")
        a(f"v_lshl_add_u32 v{dst}, {vG}, 3, v{dst}")

    def load_bfrag(self, dst, srd, soff, extra=0):
        a = self.a
        a(f"buffer_load_dwordx2 {v(dst,2)}, v8, {srd}, {soff} offen offset:{extra}")
        a(f"buffer_load_dwordx2 {v(dst+2,2)}, v8, {srd}, {soff} offen offset:{extra+32}")

    def p0a_early(self):
        a = self.a
        a(f"v_bfe_u32 v8, {vLANE}, 1, 3")
        a(f"v_lshlrev_b32 v8, 11, v8")
        a(f"v_lshl_add_u32 v8, {vG}, 3, v8")
        a(f"v_and_b32 v9, 1, {vLANE}")
        a(f"v_lshl_add_u32 v8, v9, 5, v8")
        a(f"s_and_b32 s71, {sL}, 3")
        a(f"s_lshl_b32 s67, s71, 9")
        a(f"s_lshl_b32 s70, {sW}, 6")
        a(f"s_add_u32 s67, s67, s70")
        a("s_waitcnt lgkmcnt(0)")
        a(f"buffer_load_dwordx2 v[28:29], v8, {C_}, s67 offen")

    def p0a(self):
        a = self.a
        sb = SLOT["P0A"]
        BF, AF = 96, 128
        a(f"s_lshl_b32 s67, {sW}, 9")
        a(f"v_lshl_add_u32 v8, {vLANE}, 3, {vZ}")
        a(f"v_add_u32 v8, s67, v8")
        a(f"s_lshl_b32 s70, {sX}, 15")
        a(f"s_lshr_b32 s67, {sL}, 2")
        a(f"s_lshl_b32 s67, s67, 13")
        a(f"s_add_u32 s70, s70, s67")
        a(f"s_lshl_b32 s67, {sW}, 11")
        a(f"s_add_u32 s70, s70, s67")
        a(f"s_lshl_b32 s67, s71, 9")
        a(f"s_add_u32 s70, s70, s67")
        a(f"s_add_u32 s70, s70, {WS_SAC}")
        a(f"s_add_u32 s72, s70, {FS}")
        a(f"v_lshlrev_b32 v10, 4, {vB}")
        a(f"v_lshl_add_u32 v10, {vG}, 7, v10")
        a(f"v_add_u32 v30, v10, {vZ}")
        a(f"s_lshl_b32 s67, {sW}, 5")
        a(f"v_xor_b32 v9, s67, v{TR}")
        a(f"s_waitcnt vmcnt(0)")
        self.unpack_bf16(28, 32, 2)
        for e in range(4):
            a(f"v_mul_f32 v{40+e}, 0x{LOG2E ^ 0x80000000:x}, v{32+e}")
        for e in range(4):
            a(f"v_exp_f32 v{40+e}, v{40+e}")
        for e in range(4):
            a(f"v_add_f32 v{40+e}, 1.0, v{40+e}")
        for e in range(4):
            a(f"v_rcp_f32 v{40+e}, v{40+e}")
        for e in range(4):
            a(f"v_mul_f32 v{32+e}, v{32+e}, v{40+e}")
        for p in range(2):
            a(f"v_cvt_pk_bf16_f32 v{32+p}, v{32+2*p}, v{33+2*p}")
        self.epoch()
        self.stamp(sb)
        a(f"ds_write_b64 v8, v[32:33] offset:{L_P-L_AUX}")
        self.bump(CNT["S1"])
        a(f"s_cmp_ge_u32 {sW}, 4")
        a("s_cbranch_scc1 L_att")
        self.lds_wait(CNT["S1"], 8, [f"ds_read_b128 {v(BF+4*st,4)}, v30 offset:{L_P-L_AUX+512*st}" for st in range(8)], tmp=24)
        a("s_waitcnt lgkmcnt(0)")
        self.stamp(sb + 1)
        for u in range(4):
            rd = [f"ds_read_b64_tr_b16 {v(AF+8*u+4*hi+2*q,2)}, v9 offset:{u*SLOTB+(32*hi+16*q)*128}" for hi in range(2) for q in range(2)]
            self.lds_wait(C_LANDED, u + 1, rd, tmp=24)
            for hi in range(2):
                a(f"s_waitcnt lgkmcnt({2-2*hi})")
                c = "0" if u == 0 else v(16 + 4 * hi, 4)
                a(f"v_mfma_f32_16x16x32_bf16 {v(16+4*hi,4)}, {v(AF+8*u+4*hi,4)}, {v(BF+8*u+4*hi,4)}, {c}")
        for r in range(4):
            a(f"v_add_f32 v{16+r}, v{16+r}, v{20+r}")
        self.tag([16, 17, 18, 19])
        a(f"s_mov_b64 exec, {sM8}")
        a(f"buffer_store_dwordx4 v[16:19], v10, {WS_}, s72 offen")
        a(f"buffer_store_dwordx4 v[16:19], v10, {WS_}, s70 offen sc1")
        self.bump(CNT["P0P"])
        self.stamp(sb + 3)
        a("v_mov_b32 v20, 2")
        self.release_run(0, 4, "v20")

    def rm(self, tb):
        a = self.a
        name = "RM"
        self.stamp(SLOT[name])
        self.rm_task("s69", "s72")
        a("s_lshl_b32 s70, s69, 7")
        a("s_lshl_b32 s67, s72, 8")
        a("s_add_u32 s70, s70, s67")
        Lr = a.newlabel("L_rmr")
        Le = a.newlabel("L_rme")
        a(f"s_cmp_ge_u32 {sL}, 24")
        a(f"s_cbranch_scc1 {Lr}")
        a(f"s_lshl_b32 s67, {sW}, 13")
        a("s_add_u32 s70, s70, s67")
        a(f"s_add_u32 s70, s70, {WS_MSC-48*256}")
        self.pull(8, tb, red="row")
        self.stamp(SLOT[name] + 1)
        self.tail([tb], 8, name, lambda: self.publish1(vL4, "s70"), slow=self.cfg["slow"], BB=100)
        self.release_run(8, 8)
        a(f"s_branch {Le}")
        a.label(Lr)
        a(f"s_lshl_b32 s67, {sW}, 12")
        a("s_add_u32 s70, s70, s67")
        a(f"s_add_u32 s70, s70, {WS_MGA-32*256}")
        self.slot_of(12, "s78", "s79")
        self.red_addr(12, "row")
        Ls = a.newlabel("L_rms")
        a(f"s_cmp_ge_u32 {sW}, 4")
        a(f"s_cbranch_scc1 {Ls}")
        self.pull(12, tb)
        self.stamp(SLOT[name] + 1)
        a.label(Ls)
        self.tail([tb], 4, name, lambda: self.publish1(vL4, "s70"), slow=self.cfg["slow"], BB=100)
        self.release_run(12, 4)
        a.label(Le)
        self.stamp(SLOT[name] + 3)

    def p1_early(self):
        a = self.a
        a(f"v_lshlrev_b32 v9, 4, {vLANE}")
        a(f"s_lshl_b32 s70, {sW}, 11")
        a(f"v_bfe_u32 v10, {vLANE}, 3, 2")
        a(f"v_lshlrev_b32 v8, 11, {vB}")
        a(f"v_lshl_add_u32 v8, v10, 3, v8")
        a(f"v_lshrrev_b32 v10, 5, {vLANE}")
        a(f"v_lshl_add_u32 v8, v10, 2, v8")
        a(f"s_lshl_b32 s69, {sX}, 8")
        a(f"s_lshl_b32 s67, {sW}, 5")
        a(f"s_add_u32 s69, s69, s67")
        a("s_waitcnt lgkmcnt(0)")
        a(f"buffer_load_dwordx4 v[32:35], v9, {X_}, s70 offen")
        a(f"buffer_load_dwordx4 v[36:39], v9, {X_}, s70 offen offset:1024")
        a(f"buffer_load_dword v58, v8, {X_}, s69 offen")
        self.rm_task("s69", "s72")
        a(f"s_lshl_b32 s67, {sW}, 6")
        a("s_add_u32 s69, s69, s67")
        a("s_and_b32 s69, s69, 1023")
        a("s_lshl_b32 s69, s69, 1")
        self.koff(8)
        self.load_bfrag(96, C_, "s69")

    def p1(self, tb):
        a = self.a
        sb = SLOT["P1"]
        Y = [60, 61]
        a(f"s_lshl_b32 s70, {sX}, 17")
        a(f"s_lshl_b32 s67, s68, 10")
        a(f"s_add_u32 s70, s70, s67")
        a(f"s_lshl_b32 s67, {sW}, 7")
        a(f"s_add_u32 s70, s70, s67")
        a(f"s_add_u32 s70, s70, {WS_QP}")
        a(f"s_add_u32 s71, s70, {FS}")
        a(f"v_lshlrev_b32 v31, 14, {vB}")
        a(f"v_lshl_add_u32 v31, {vHI}, 6, v31")
        a(f"v_lshl_add_u32 v31, {vG}, 4, v31")
        a(f"v_and_b32 v30, 31, {vLANE}")
        a(f"v_lshl_add_u32 v28, v30, 4, {vZ}")
        a(f"s_lshr_b32 s67, {sW}, 1")
        a(f"s_lshl_b32 s67, s67, 9")
        a(f"s_and_b32 s72, {sW}, 1")
        a(f"s_lshl_b32 s72, s72, 3")
        a(f"s_add_u32 s67, s67, s72")
        a(f"v_add_u32 v28, s67, v28")
        a(f"v_lshl_add_u32 v29, {vB}, 4, {vZ}")
        a(f"v_lshl_add_u32 v29, {vG}, 7, v29")
        a(f"v_lshrrev_b32 v27, 5, {vLANE}")
        a(f"v_lshl_add_u32 v28, v27, 2, v28")
        a(f"v_lshlrev_b32 v27, 14, v27")
        a(f"v_lshl_add_u32 v27, v30, 4, v27")
        a(f"s_and_b32 s67, {sW}, 3")
        a(f"s_lshl_b32 s67, s67, 9")
        a(f"v_add_u32 v26, s67, v27")
        a(f"s_lshl_b32 s73, {sX}, 15")
        a(f"s_lshl_b32 s67, {sW}, 11")
        a(f"s_add_u32 s73, s73, s67")
        a(f"s_add_u32 s73, s73, {WS_SAC}")
        a("s_waitcnt vmcnt(3)")
        self.unpack_bf16(32, 40, 8)
        a("v_add_f32 v18, v40, v41")
        for e in range(2, 16):
            a(f"v_add_f32 v18, v18, v{40+e}")
        self.allred_wave([18], [19])
        a("v_mul_f32 v18, 0x3a800000, v18")
        a("v_mov_b32 v16, 0")
        for e in range(16):
            a(f"v_sub_f32 v17, v{40+e}, v18")
            a(f"v_fmac_f32 v16, v17, v17")
        self.allred_wave([16], [19])
        a("v_mul_f32 v19, 0x3a800000, v16")
        self.ln_consts(18, 19, 16)
        a(f"s_lshl_b32 s67, {sW}, 3")
        a(f"v_add_u32 v16, s67, {vZ}")
        self.epoch()
        self.stamp(sb)
        a("s_barrier")
        a(f"ds_write_b64 v16, v[18:19] offset:{L_ST-L_AUX}")
        self.bump(CNT["S1"])
        a(f"v_lshl_add_u32 v17, {vB}, 3, {vZ}")
        a("s_waitcnt vmcnt(0)")
        self.unpack_bf16(58, 60, 1)
        self.silu_c(96, 100)
        self.lds_wait(CNT["S1"], 8, [f"ds_read_b64 v[18:19], v17 offset:{L_ST-L_AUX}"])
        a("s_waitcnt lgkmcnt(0)")
        for y in Y:
            a(f"v_sub_f32 v{y}, v{y}, v18")
        self.bf16r_pairs(Y, 24)
        for y in Y:
            a(f"v_mul_f32 v{y}, v{y}, v19")
        self.bf16r_pairs(Y, 24)
        a(f"s_lshr_b32 s78, {sW}, 1")
        a(f"s_add_u32 s79, s78, 1")
        a(f"s_lshl_b32 s78, s78, 13")
        a(f"s_lshl_b32 s67, s72, 3")
        a(f"v_xor_b32 v16, s67, v{TR}")
        a(f"v_add_u32 v{TRA}, s78, v16")
        a(f"v_xor_b32 v16, s67, v{TR+1}")
        a(f"v_add_u32 v{TRA+1}, s78, v16")
        def wreads(rh):
            return [f"ds_read_b64_tr_b16 {v(tb+16*rh+8*c2+4*hi+2*q,2)}, v{TRA+c2} offset:{4*SLOTB*rh+(32*hi+16*q)*128}"
                    for c2 in range(2) for hi in range(2) for q in range(2)]
        self.lds_wait(C_LANDED, "s79", slow=self.cfg["slow"])
        for t in wreads(0):
            a(t)
        a(f"s_add_u32 s79, s79, 4")
        a("s_mov_b32 s75, 0")
        self.stamp(sb + 1)
        pl = [(f"buffer_load_dwordx4 {v(32+4*p,4)}, v27, {WS_}, s74 offen offset:{512*p} sc1", 32 + 4 * p, 4) for p in range(4)]
        GM = 0x100000001
        self.poll(pl, 24, gate=(GM, 26, "s74"), fs=[("s74", "s73")], gs=40, hook=self.early_pull("s75", "s79", wreads(1), GM))
        self.stamp(sb + 2)
        for e in range(4):
            a(f"v_add_f32 v{32+e}, v{32+e}, v{36+e}")
            a(f"v_add_f32 v{40+e}, v{40+e}, v{44+e}")
        for e in range(4):
            a(f"v_add_f32 v{32+e}, v{32+e}, v{40+e}")
        a("v_permlane32_swap_b32 v32, v34")
        a("v_permlane32_swap_b32 v33, v35")
        self.bf16r_pairs([34, 35], 24)
        for e in range(2):
            a(f"v_add_f32 v{34+e}, 1.0, v{34+e}")
        self.bf16r_pairs([34, 35], 24)
        self.bf16r_pairs([32, 33], 25)
        for e in range(2):
            a(f"v_mul_f32 v{34+e}, v{Y[e]}, v{34+e}")
        self.bf16r_pairs([34, 35], 24)
        for e in range(2):
            a(f"v_add_f32 v{32+e}, v{32+e}, v{34+e}")
        a("v_cvt_pk_bf16_f32 v32, v32, v33")
        a(f"ds_write_b32 v28, v32 offset:{L_H-L_AUX}")
        self.bump(CNT["H"])
        self.xs(0)
        self.late_pull("s75", "s79", wreads(1))
        self.lds_wait(CNT["H"], 8, [f"ds_read_b128 {v(32+4*st,4)}, v29 offset:{L_H-L_AUX+512*st}" for st in range(4)], tmp=24, rl=True)
        for st in range(4):
            a(f"s_waitcnt lgkmcnt({3-st})")
            for c2 in range(2):
                c = "0" if st == 0 else v(16 + 4 * c2, 4)
                a(f"v_mfma_f32_16x16x32_bf16 {v(16+4*c2,4)}, {v(tb+16*(st>>1)+8*c2+4*(st&1),4)}, {v(32+4*st,4)}, {c}")
        self.xs(1)
        a(f"s_lshr_b32 s67, s68, 2")
        a(f"s_cmp_lg_u32 s67, {sHKV}")
        for e in range(4):
            a(f"v_cndmask_b32 v{16+e}, v{20+e}, v{16+e}, {sM8}")
        self.tag([16, 17, 18, 19])
        a(f"buffer_store_dwordx4 v[16:19], v31, {WS_}, s70 offen sc1")
        Ln = a.newlabel("L_nopl")
        a(f"s_cbranch_scc1 {Ln}")
        a(f"buffer_store_dwordx4 v[16:19], v31, {WS_}, s71 offen")
        a.label(Ln)
        self.bump(CNT["P1P"])
        self.stamp(sb + 3)
        a(f"s_lshr_b32 s67, s78, 11")
        a(f"v_add_u32 v24, s67, {vZ}")
        a(f"v_mov_b32 v25, 4")
        a("s_mov_b64 exec, 1")
        a(f"ds_add_u32 v24, v25 offset:{4*C_FREE}")
        a(f"ds_add_u32 v24, v25 offset:{4*C_FREE+16}")
        a("s_mov_b64 exec, -1")

    def att(self, uK):
        a = self.a
        sb = SLOT["ATT"]
        uV = uK + 8
        KR, VR, PR = 64, 96, 128
        self.stamp(sb)
        a(f"s_and_b32 s72, s68, 3")
        a(f"s_and_b32 s73, {sX}, 1")
        a(f"s_lshl_b32 s73, s73, 2")
        a(f"s_lshr_b32 s67, s68, 2")
        a(f"s_add_u32 s73, s73, s67")
        a(f"s_mov_b32 s74, {sHKV}")
        a(f"v_and_b32 v8, 31, {vLANE}")
        self.rot_addr(17, 8, 56)
        a(f"s_lshl_b32 s66, s73, 14")
        a(f"s_lshl_b32 s67, s74, 12")
        a(f"s_add_u32 s66, s66, s67")
        a(f"s_lshl_b32 s67, {sW}, 9")
        a(f"s_add_u32 s66, s66, s67")
        a(f"s_add_u32 s66, s66, {WS_QP}")
        a(f"s_mul_i32 s67, {sW}, 272")
        a(f"v_lshl_add_u32 v28, v8, 3, {vZ}")
        a(f"v_add_u32 v28, s67, v28")
        a(f"v_lshrrev_b32 v16, 5, {vLANE}")
        a(f"v_lshl_add_u32 v28, v16, 2, v28")
        a(f"v_mul_u32_u24 v29, 272, {vB}")
        a(f"v_lshl_add_u32 v29, {vG}, 4, v29")
        a(f"v_add_u32 v29, v29, {vZ}")
        a(f"v_lshl_add_u32 v30, {vB}, 4, {vZ}")
        a(f"v_lshl_add_u32 v30, {vG}, 7, v30")
        a(f"s_lshl_b32 s67, {sW}, 9")
        a(f"v_add_u32 v31, s67, v30")
        a(f"v_lshl_add_u32 v31, {vHI}, 3, v31")
        a(f"v_mul_u32_u24 v26, 80, {vB}")
        a(f"v_add_u32 v26, v26, {vZ}")
        a(f"s_lshl_b32 s67, {sW}, 3")
        a(f"v_add_u32 v27, s67, v26")
        a(f"v_lshl_add_u32 v26, {vHI}, 5, v26")
        for r in range(PR, PR + 32):
            a(f"v_mov_b32 v{r}, 0")
        a(f"s_not_b64 s[86:87], {sM8}")
        a(f"s_lshl_b32 s75, s73, 2")
        a(f"s_add_u32 s75, s75, s72")
        a(f"s_lshl_b32 s76, s73, 7")
        a(f"s_lshl2_add_u32 s76, s72, s76")
        a(f"s_lshl_b32 s75, s75, 14")
        a(f"s_lshl_b32 s67, s74, 12")
        a(f"s_add_u32 s75, s75, s67")
        a(f"s_lshl_b32 s67, {sW}, 9")
        a(f"s_add_u32 s75, s75, s67")
        a(f"s_add_u32 s75, s75, {WS_OP}")
        a(f"s_lshl_b32 s67, s74, 10")
        a(f"s_add_u32 s76, s76, s67")
        a(f"s_add_u32 s76, s76, {WS_LSE}")
        a(f"v_sub_u32 v10, v30, {vZ}")
        a(f"v_lshrrev_b32 v16, 2, {vLANE}")
        a(f"v_and_b32 v17, 7, v16")
        a(f"v_xor_b32 v17, {sW}, v17")
        a(f"v_lshlrev_b32 v16, 8, v16")
        a(f"v_lshl_add_u32 v16, v17, 5, v16")
        a(f"v_and_b32 v17, 3, {vLANE}")
        a(f"v_lshl_add_u32 v62, v17, 3, v16")
        a(f"v_add_u32 v63, 0x10000, v62")
        self.slot_of(uK, "s78", "s79")
        a(f"v_xor_b32 v16, {vG}, {vI}")
        a(f"v_lshlrev_b32 v16, 4, v16")
        a(f"v_lshl_add_u32 v16, {vI}, 8, v16")
        for st in range(4):
            a(f"v_xor_b32 v17, {64*st}, v16")
            a(f"v_add_u32 v{TRA+st}, s78, v17")
        self.lds_wait(C_LANDED, "s79", slow=self.cfg["slow"])
        for kb in range(2):
            for st in range(4):
                a(f"ds_read_b128 {v(KR+16*kb+4*st,4)}, v{TRA+st} offset:{4096*kb}")
        a("s_waitcnt lgkmcnt(0)")
        self.release("s78")
        vr = []
        for t in range(8):
            sl = (uV + t) % NS
            for q in range(2):
                off = sl * SLOTB + 4096 * q
                vr.append(f"ds_read_b64_tr_b16 {v(VR+4*t+2*q,2)}, v{62 + off//65536} offset:{off % 65536}")
        a("s_mov_b32 s77, 0")
        GM = 0x100000001
        if self.cfg.get("qlate"):
            self.lds_wait(C_LANDED, uV + self.cfg["qlate"], slow=self.cfg["slow"])
            self.stamp(sb + 1)
        self.poll([(f"buffer_load_dwordx4 {v(32+4*i,4)}, v{56+i}, {WS_}, s66 offen sc1", 32 + 4 * i, 4) for i in range(4)], 24,
                  gate=(GM, 58, "s66") if self.cfg.get("qgate", 1) else None, vfs=(56, 61, 60), gs=54,
                  hook=self.early_pull("s77", uV + 8, vr, GM),
                  mid=self.early_pull("s77", uV + 8, vr, (1 << 64) - 1) if self.cfg.get("vp", 3) & 1 else None)
        self.stamp(sb + 2)
        for i in range(4):
            a(f"v_add_f32 v{32+i}, v{32+i}, v{36+i}")
            a(f"v_add_f32 v{40+i}, v{40+i}, v{44+i}")
        for i in range(4):
            a(f"v_add_f32 v{32+i}, v{32+i}, v{40+i}")
        a("v_permlane32_swap_b32 v32, v34")
        a("v_permlane32_swap_b32 v33, v35")
        a("v_add_f32 v32, v32, v34")
        a("v_add_f32 v33, v33, v35")
        a("v_cvt_pk_bf16_f32 v32, v32, v33")
        a(f"ds_write_b32 v28, v32 offset:{L_Q-L_AUX}")
        self.bump(CNT["Q"])
        if self.cfg.get("vp", 3) & 2:
            self.early_pull("s77", uV + 8, vr, (1 << 64) - 1)()
        self.lds_wait(CNT["Q"], 8, [f"ds_read_b128 {v(32+4*st,4)}, v29 offset:{L_Q-L_AUX+64*st}" for st in range(4)], tmp=24, rl=True)
        for st in range(4):
            a(f"s_waitcnt lgkmcnt({3-st})")
            for kb in range(2):
                c = "0" if st == 0 else v(16 + 4 * kb, 4)
                a(f"v_mfma_f32_16x16x32_bf16 {v(16+4*kb,4)}, {v(KR+16*kb+4*st,4)}, {v(32+4*st,4)}, {c}")
        self.xs(0)
        Z = [16, 17, 18, 19]
        for e in range(4):
            a(f"v_cndmask_b32 v{16+e}, v{20+e}, v{16+e}, {sM8}")
        self.bf16r_pairs(Z[:2], 24)
        self.bf16r_pairs(Z[2:], 25)
        for z in Z:
            a(f"v_mul_f32 v{z}, 0x{SCALE:x}, v{z}")
        self.bf16r_pairs(Z[:2], 24)
        self.bf16r_pairs(Z[2:], 25)
        a("v_max3_f32 v32, v16, v17, v18")
        a("v_max_f32 v33, v32, v19")
        a("v_max_f32_dpp v32, v33, v33 row_ror:8 row_mask:0xf bank_mask:0xf")
        self.allred_g([32], "v_max_f32", [33])
        a(f"v_mul_f32 v32, 0x{LOG2E:x}, v32")
        for z in Z:
            a(f"v_fma_f32 v{z}, v{z}, {sLOG}, -v32")
        for z in Z:
            a(f"v_exp_f32 v{z}, v{z}")
        a("v_cvt_pk_bf16_f32 v36, v16, v17")
        a("v_cvt_pk_bf16_f32 v37, v18, v19")
        a(f"ds_write_b64 v31, v[36:37] offset:{L_P-L_AUX}")
        a("v_add_f32 v16, v16, v17")
        a("v_add_f32 v18, v18, v19")
        a("v_add_f32 v34, v16, v18")
        a("v_add_f32_dpp v33, v34, v34 row_ror:8 row_mask:0xf bank_mask:0xf")
        self.allred_g([33], "v_add_f32", [34])
        a(f"ds_write_b64 v27, v[32:33] offset:{L_ML-L_AUX}")
        self.bump(CNT["P"])
        self.xs(1)
        self.late_pull("s77", uV + 8, vr)
        self.xs(2)
        rd = [f"ds_read_b128 {v(32+4*i,4)}, v26 offset:{L_ML-L_AUX+16*i}" for i in range(2)]
        rd += [f"s_mov_b64 exec, {sM8}"]
        rd += [f"ds_read_b128 {v(PR+4*t,4)}, v30 offset:{L_P-L_AUX+512*t}" for t in range(4)]
        rd += [f"s_mov_b64 exec, s[86:87]"]
        rd += [f"ds_read_b128 {v(PR+4*t,4)}, v30 offset:{L_P-L_AUX+512*t}" for t in range(4, 8)]
        rd += [f"s_mov_b64 exec, -1"]
        self.lds_wait(CNT["P"], 8, rd, tmp=24, rl=self.cfg.get("rlp", 0))
        self.xs(3)
        a("s_waitcnt lgkmcnt(8)")
        a("v_max3_f32 v16, v32, v34, v36")
        a("v_max_f32 v17, v16, v38")
        a("v_max_f32_dpp v16, v17, v17 row_ror:8 row_mask:0xf bank_mask:0xf")
        if self.cfg.get("lsef", 1):
            for t in range(4):
                a(f"v_sub_f32 v{32+2*t}, v{32+2*t}, v16")
            for t in range(4):
                a(f"v_exp_f32 v{32+2*t}, v{32+2*t}")
            for t in range(4):
                a(f"v_mul_f32 v18, v32, v33" if t == 0 else f"v_fmac_f32 v18, v{32+2*t}, v{33+2*t}")
            Ln = a.newlabel("L_nolse")
            a(f"s_cmp_lg_u32 {sW}, 7")
            a("v_add_f32_dpp v17, v18, v18 row_ror:8 row_mask:0xf bank_mask:0xf")
            a(f"s_cbranch_scc1 {Ln}")
            a("v_log_f32 v18, v17")
            a("s_mov_b64 exec, 0xff")
            a("v_add_f32 v18, v16, v18")
            self.tag([18])
            a(f"buffer_store_dword v18, v10, {WS_}, s76 offen sc1")
            a("s_mov_b64 exec, -1")
            a.label(Ln)
            for t in range(4):
                a(f"s_waitcnt lgkmcnt({7-t})")
                a(f"v_mfma_f32_16x16x32_bf16 {v(KR+4*t,4)}, {v(VR+4*t,4)}, {v(PR+4*t,4)}, 0")
            for t in range(4):
                a(f"s_waitcnt lgkmcnt({3-t})")
                a(f"v_mfma_f32_16x16x32_bf16 {v(KR+4*t,4)}, {v(VR+16+4*t,4)}, {v(PR+16+4*t,4)}, {v(KR+4*t,4)}")
                if t == 0:
                    a("v_rcp_f32 v18, v17")
            for i in range(4):
                a(f"v_mul_f32 v{20+i}, v32, v{KR+i}")
        else:
            for t in range(4):
                a(f"s_waitcnt lgkmcnt({7-t})")
                a(f"v_mfma_f32_16x16x32_bf16 {v(KR+4*t,4)}, {v(VR+4*t,4)}, {v(PR+4*t,4)}, 0")
                a(f"v_sub_f32 v{32+2*t}, v{32+2*t}, v16")
                a(f"v_exp_f32 v{32+2*t}, v{32+2*t}")
            for t in range(4):
                a(f"s_waitcnt lgkmcnt({3-t})")
                a(f"v_mfma_f32_16x16x32_bf16 {v(KR+4*t,4)}, {v(VR+16+4*t,4)}, {v(PR+16+4*t,4)}, {v(KR+4*t,4)}")
                a(f"v_mul_f32 v18, v32, v33" if t == 0 else f"v_fmac_f32 v18, v{32+2*t}, v{33+2*t}")
            a("v_add_f32_dpp v17, v18, v18 row_ror:8 row_mask:0xf bank_mask:0xf")
            a("v_rcp_f32 v18, v17")
            a("v_log_f32 v17, v17")
            for i in range(4):
                a(f"v_mul_f32 v{20+i}, v32, v{KR+i}")
            Ln = a.newlabel("L_nolse")
            a(f"s_cmp_lg_u32 {sW}, 7")
            a(f"s_cbranch_scc1 {Ln}")
            a("v_add_f32 v17, v16, v17")
            self.tag([17])
            a("s_mov_b64 exec, 0xff")
            a(f"buffer_store_dword v17, v10, {WS_}, s76 offen sc1")
            a("s_mov_b64 exec, -1")
            a.label(Ln)
        for t in range(1, 4):
            for i in range(4):
                a(f"v_fmac_f32 v{20+i}, v{32+2*t}, v{KR+4*t+i}")
        for i in range(4):
            a(f"v_add_f32_dpp v{40+i}, v{20+i}, v{20+i} row_ror:8 row_mask:0xf bank_mask:0xf")
        for i in range(4):
            a(f"v_mul_f32 v{40+i}, v{40+i}, v18")
        self.tag([40, 41, 42, 43])
        a(f"s_mov_b64 exec, {sM8}")
        a(f"buffer_store_dwordx4 v[40:43], v10, {WS_}, s75 offen sc1")
        self.bump(CNT["ATTP"])
        self.stamp(sb + 3)
        self.release_run(uV % NS, NS - uV % NS)
        self.release_run(0, 8 - (NS - uV % NS))

    def p3(self, ubase, tb):
        a = self.a
        sb = SLOT["P3"]
        self.stamp(sb)
        a(f"s_lshl_b32 s70, {sX}, 15")
        a(f"s_lshl_b32 s67, s68, 8")
        a(f"s_add_u32 s70, s70, s67")
        a(f"s_lshl_b32 s67, {sW}, 12")
        a(f"s_add_u32 s70, s70, s67")
        a(f"s_add_u32 s70, s70, {WS_AP}")
        a(f"s_add_u32 s69, s70, {FS}")
        a(f"v_lshlrev_b32 v8, 4, {vLANE}")
        a(f"s_lshl_b32 s72, {sX}, 11")
        a(f"s_lshl_b32 s67, {sW}, 16")
        a(f"s_add_u32 s72, s72, s67")
        a(f"s_add_u32 s72, s72, {WS_OP}")
        for i in range(1, 4):
            a(f"s_add_u32 s{72+i}, s72, {16384*i}")
        a(f"v_lshlrev_b32 v9, 4, {vB}")
        a(f"s_lshr_b32 s71, {sX}, 1")
        a(f"s_lshl_b32 s71, s71, 10")
        a(f"s_lshl_b32 s67, {sW}, 7")
        a(f"s_add_u32 s71, s71, s67")
        a(f"s_add_u32 s71, s71, {WS_LSE}")
        a(f"v_bfe_u32 v16, v0, 2, 1")
        a(f"v_lshl_add_u32 v16, {vG}, 1, v16")
        a(f"v_lshl_add_u32 v29, v16, 9, {vZ}")
        a(f"v_xor_b32 v16, {sW}, v16")
        a(f"v_lshl_add_u32 v29, v16, 4, v29")
        a(f"v_and_b32 v16, 1, v0")
        a(f"v_lshl_add_u32 v29, v16, 8, v29")
        a(f"v_lshl_add_u32 v29, {vHI}, 7, v29")
        a(f"v_bfe_u32 v16, v0, 1, 1")
        a(f"v_lshl_add_u32 v29, v16, 3, v29")
        a(f"s_and_b32 s67, {sW}, 3")
        a(f"s_lshl_b32 s67, s67, 1")
        a(f"v_xor_b32 v16, {vHI}, {vB}")
        a(f"v_xor_b32 v16, s67, v16")
        a(f"v_lshl_add_u32 v30, v16, 4, {vZ}")
        a(f"v_lshl_add_u32 v30, {vG}, 7, v30")
        a(f"v_lshl_add_u32 v30, {vHI}, 9, v30")
        a(f"s_lshl_b32 s67, {sW}, 10")
        a(f"v_add_u32 v30, s67, v30")
        self.slot_of(ubase, "s78", "s79")
        for cg in range(4):
            a(f"v_add_u32 v{TRA+cg}, s78, v{TR+cg}")
        self.red_addr(ubase, "row")
        wr = [f"ds_read_b64_tr_b16 {v(tb+8*cg+4*hi+2*q,2)}, v{TRA+cg} offset:{(32*hi+16*q)*128}" for cg in range(4) for hi in range(2) for q in range(2)]
        a("s_mov_b32 s77, 0")
        self.mod_addr()
        Lnm = a.newlabel("L_nomod")
        hk = wr + [f"s_cmp_lt_u32 {sL}, 24", f"s_cbranch_scc1 {Lnm}"] + [t for t, _, _ in self.mod_loads()] + [f"@{Lnm}"]
        self.stamp(sb + 1)
        self.poll([(f"buffer_load_dwordx4 v[32:35], v9, {WS_}, s71 offen sc1", 32, 4)], 24,
                  lhook=self.early_pull("s77", "s79", hk if self.cfg.get("hmod", 2) == 1 else wr, (1 << 64) - 1))
        self.stamp(42)
        G0 = 128
        pl = []
        for sp in range(4):
            for i in range(2):
                r = G0 + 8 * sp + 4 * i
                pl.append((f"buffer_load_dwordx4 {v(r,4)}, v8, {WS_}, s{72+sp} offen offset:{1024*i} sc1", r, 4))

        def weights():
            a("v_max3_f32 v36, v32, v33, v34")
            a("v_max_f32 v36, v36, v35")
            for w in range(32, 36):
                a(f"v_sub_f32 v{w}, v{w}, v36")
            for w in range(32, 36):
                a(f"v_exp_f32 v{w}, v{w}")
            a("v_add_f32 v36, v32, v33")
            a("v_add_f32 v37, v34, v35")
            a("v_add_f32 v36, v36, v37")
            a("v_rcp_f32 v36, v36")
            for w in range(32, 36):
                a(f"v_mul_f32 v{w}, v{w}, v36")
        self.poll(pl, 24, plain=self.cfg["plain"], mid=weights)
        if self.stamps:
            a(f"v_writelane_b32 {vSTAMP}, {sPOLL}, 43")
        self.stamp(sb + 2)
        for e in range(8):
            a(f"v_mul_f32 v{G0+e}, v32, v{G0+e}")
        for sp in range(1, 4):
            for e in range(8):
                a(f"v_fmac_f32 v{G0+e}, v{32+sp}, v{G0+8*sp+e}")
        for p in range(4):
            a(f"v_cvt_pk_bf16_f32 v{16+p}, v{G0+2*p}, v{G0+1+2*p}")
        a(f"ds_write_b64 v29, v[16:17] offset:{L_OB-L_AUX}")
        a(f"ds_write_b64 v29, v[18:19] offset:{L_OB-L_AUX+4096}")
        self.bump(CNT["P3G"])
        self.late_pull("s77", "s79", wr)
        self.lds_wait(CNT["P3G"], 8, [f"ds_read_b128 {v(BB,4)}, v30 offset:{L_OB-L_AUX}"], tmp=24, rl=True)
        if self.cfg.get("hmod", 2) == 2:
            a(f"s_cmp_lt_u32 {sL}, 24")
            a(f"s_cbranch_scc1 {Lnm}")
            for t, _, _ in self.mod_loads():
                a(t)
            a.label(Lnm)
        a("s_waitcnt lgkmcnt(0)")
        self.xs(2)
        self.tail([tb], 8, "P3", lambda: self.publish1(vL4, "s70", fast="s69"))
        self.bump(CNT["P3P"])
        self.stamp(sb + 3)

    def mod_addr(self):
        a = self.a
        a(f"v_and_b32 v16, 31, {vLANE}")
        a(f"v_lshlrev_b32 v16, 4, v16")
        a(f"v_lshrrev_b32 v17, 5, {vLANE}")
        a(f"v_lshl_add_u32 v112, v17, 15, v16")
        a(f"v_lshl_add_u32 v113, v17, 16, v16")
        a(f"s_and_b32 s97, {sL}, 7")
        a(f"s_lshl_b32 s67, {sW}, 9")
        a(f"s_lshl_b32 s94, s97, 12")
        a(f"s_add_u32 s94, s94, s67")
        a(f"s_add_u32 s94, s94, {WS_MGA}")
        a(f"s_add_u32 s95, s94, 65536")
        a(f"s_lshl_b32 s96, s97, 13")
        a(f"s_add_u32 s96, s96, s67")
        a(f"s_add_u32 s96, s96, {WS_MSC}")
        a(f"s_add_u32 s97, s96, 4096")
        a(f"v_not_b32 v96, {sT}")

    def mod_loads(self):
        return [(f"buffer_load_dwordx4 {v(r,4)}, v{ad}, {WS_}, {so} offen sc1", r, 4)
                for r, ad, so in ((96, 112, "s94"), (108, 112, "s95"), (100, 113, "s96"), (104, 113, "s97"))]

    def r3(self):
        a = self.a
        sb = SLOT["R3"]
        a(f"v_and_b32 v8, 31, {vLANE}")
        a(f"v_lshlrev_b32 v9, 4, v8")
        a(f"s_lshl_b32 s67, {sW}, 9")
        a(f"s_lshl_b32 s71, s69, 12")
        a(f"s_add_u32 s71, s71, s67")
        ml = self.mod_loads()
        a(f"v_lshrrev_b32 v16, 1, v9")
        a(f"s_lshr_b32 s67, s71, 1")
        a(f"buffer_load_dwordx2 v[28:29], v16, {X_}, s67 offen")
        self.rot_addr(15, 8, 64)
        a(f"s_add_u32 s77, s71, {WS_AP}")
        a(f"s_lshl_b32 s67, {sX}, 15")
        a(f"s_add_u32 s71, s71, s67")
        a(f"s_lshl_b32 s70, {sX}, 3")
        a(f"s_add_u32 s70, s70, s69")
        a(f"s_mul_i32 s70, s70, {H2R}")
        a(f"s_lshl_b32 s67, {sW}, 9")
        a(f"s_add_u32 s70, s70, s67")
        a(f"s_add_u32 s70, s70, {WS_H2}")
        a(f"s_add_u32 s76, s70, {FS}")
        a(f"s_add_u32 s71, s71, {WS_X1}")
        a(f"s_lshl_b32 s67, {sW}, 3")
        a(f"v_add_u32 v10, s67, {vZ}")
        gate = self.cfg.get("r3gate")

        def mod():
            Lok = a.newlabel("L_modok")
            a(f"s_waitcnt vmcnt({3 if gate else 7})")
            a(f"v_xor_b32 v25, {sT}, v96")
            for r in range(97, 112):
                a(f"v_bitop3_b32 v25, v{r}, v25, {sT} bitop3:0xde")
            a(f"v_and_b32 v25, {vFF}, v25")
            a(f"v_cmp_ne_u32 vcc, 0, v25")
            a(f"s_cbranch_vccz {Lok}")
            self.poll(ml, 25)
            a.label(Lok)
            for i in range(4):
                a(f"v_add_f32 v{96+i}, v{96+i}, v{108+i}")
            M = list(range(96, 108))
            T = list(range(116, 128))
            for r, t in zip(M, T):
                a(f"v_mov_b32 v{t}, v{r}")
            for r, t in zip(M, T):
                a(f"v_permlane32_swap_b32 v{r}, v{t}")
            for r, t in zip(M, T):
                a(f"v_add_f32 v{r}, v{r}, v{t}")
            self.bf16r_pairs(M, 25)
            for i in range(4):
                a(f"v_add_f32 v{104+i}, 1.0, v{104+i}")
            self.bf16r_pairs([104, 105, 106, 107], 25)
            a(f"s_waitcnt vmcnt({0 if gate else 4})")
            self.unpack_bf16(28, 108, 2)
            self.stamp(sb + 1)
        self.stamp(sb)
        if gate:
            mod()
        self.poll([(f"buffer_load_dwordx4 {v(32+4*k,4)}, v{64+k}, {WS_}, s77 offen sc1", 32 + 4 * k, 4) for k in range(4)], 24,
                  vfs=(64, 69, 68), gate=(0x100000001, 66, "s77") if gate else None, gs=56 if gate else None, mid=None if gate else mod)
        self.stamp(sb + 2)
        for i in range(4):
            a(f"v_add_f32 v{32+i}, v{32+i}, v{36+i}")
            a(f"v_add_f32 v{40+i}, v{40+i}, v{44+i}")
        for i in range(4):
            a(f"v_add_f32 v{32+i}, v{32+i}, v{40+i}")
        for i in range(4):
            a(f"v_mov_b32 v{36+i}, v{32+i}")
        for i in range(4):
            a(f"v_permlane32_swap_b32 v{32+i}, v{36+i}")
        for i in range(4):
            a(f"v_add_f32 v{32+i}, v{32+i}, v{36+i}")
        X = [32, 33, 34, 35]
        self.bf16r_pairs(X, 24)
        for i in range(4):
            a(f"v_mul_f32 v{32+i}, v{32+i}, v{96+i}")
        self.bf16r_pairs(X, 24)
        for i in range(4):
            a(f"v_add_f32 v{32+i}, v{32+i}, v{108+i}")
        self.bf16r_pairs(X, 24)
        a("v_add_f32 v16, v32, v33")
        a("v_mul_f32 v17, v32, v32")
        a("v_add_f32 v18, v34, v35")
        a("v_fmac_f32 v17, v33, v33")
        a("v_add_f32 v16, v16, v18")
        a("v_fmac_f32 v17, v34, v34")
        a("v_fmac_f32 v17, v35, v35")
        self.allred_wave([16, 17], [18, 19], n32=True)
        a(f"ds_write_b64 v10, v[16:17] offset:{L_ST+64-L_AUX}")
        self.bump(CNT["R3"])
        self.xs(3)
        for i in range(4):
            a(f"v_bfi_b32 v{36+i}, {vFF}, {sT}, v{32+i}")
        a("s_mov_b32 exec_hi, 0")
        a(f"buffer_store_dwordx4 v[36:39], v9, {WS_}, s71 offen sc1")
        a("s_mov_b32 exec_hi, -1")
        self.lds_wait(CNT["R3"], 8, [f"ds_read_b128 {v(16+4*q,4)}, {vZ} offset:{L_ST+64-L_AUX+16*q}" for q in range(4)], tmp=40)
        a("s_waitcnt lgkmcnt(2)")
        a("v_add_f32 v16, v16, v18")
        a("v_add_f32 v17, v17, v19")
        a("v_add_f32 v20, v20, v22")
        a("v_add_f32 v21, v21, v23")
        a("s_waitcnt lgkmcnt(0)")
        a("v_add_f32 v24, v24, v26")
        a("v_add_f32 v25, v25, v27")
        a("v_add_f32 v28, v28, v30")
        a("v_add_f32 v29, v29, v31")
        a("v_add_f32 v16, v16, v20")
        a("v_add_f32 v17, v17, v21")
        a("v_add_f32 v24, v24, v28")
        a("v_add_f32 v25, v25, v29")
        a("v_add_f32 v16, v16, v24")
        a("v_add_f32 v17, v17, v25")
        a("v_mul_f32 v16, 0x3a800000, v16")
        a("v_mul_f32 v17, 0x3a800000, v17")
        a("v_fma_f32 v17, -v16, v16, v17")
        a("v_max_f32 v17, 0, v17")
        self.ln_consts(16, 17, 18)
        for x in X:
            a(f"v_sub_f32 v{x}, v{x}, v16")
        self.bf16r_pairs(X, 24)
        for x in X:
            a(f"v_mul_f32 v{x}, v{x}, v17")
        self.bf16r_pairs(X, 24)
        for i in range(4):
            a(f"v_mul_f32 v{32+i}, v{32+i}, v{104+i}")
        self.bf16r_pairs(X, 24)
        for i in range(4):
            a(f"v_add_f32 v{32+i}, v{32+i}, v{100+i}")
        self.bf16r_pairs(X, 24)
        self.tag(X)
        a("s_mov_b32 exec_hi, 0")
        a(f"buffer_store_dwordx4 v[32:35], v9, {WS_}, s76 offen")
        a(f"buffer_store_dwordx4 v[32:35], v9, {WS_}, s70 offen sc1")
        self.bump(CNT["R3P"])
        self.stamp(sb + 3)

    def p4(self):
        a = self.a
        sb = SLOT["P4"]
        self.stamp(sb)
        self.p4_cg("s72")
        a(f"s_and_b32 s71, s68, 1")
        a(f"s_mul_i32 s70, s71, {56*2048}")
        a(f"s_lshl_b32 s67, s72, 11")
        a(f"s_add_u32 s70, s70, s67")
        a(f"s_lshl_b32 s67, {sW}, 8")
        a(f"s_add_u32 s70, s70, s67")
        a(f"s_add_u32 s70, s70, {WS_GU}")
        a(f"s_add_u32 s69, s70, {FS}")
        a(f"v_lshrrev_b32 v8, 5, {vLANE}")
        a(f"v_mul_u32_u24 v9, {H2R}, v8")
        a(f"v_lshl_add_u32 v9, {vI}, 4, v9")
        a(f"v_bfe_u32 v10, {vLANE}, 4, 1")
        a(f"v_lshl_add_u32 v9, v10, 11, v9")
        a(f"v_mul_u32_u24 v26, {H2R}, {vLANE}")
        a(f"s_and_b32 s67, s68, 1")
        a(f"s_lshl_b32 s67, s67, 11")
        a(f"v_add_u32 v26, s67, v26")
        self.slot_of(4, "s78", "s79")
        self.red_addr(4, "frag")
        a(f"s_add_u32 s67, s78, 4096")
        a(f"v_mul_u32_u24 v29, 272, v8")
        a(f"v_bfe_u32 v30, v0, 3, 2")
        a(f"v_lshl_add_u32 v29, v30, 6, v29")
        a(f"v_and_b32 v30, 3, v0")
        a(f"v_lshl_add_u32 v29, v30, 4, v29")
        a(f"v_bfe_u32 v30, v0, 2, 1")
        a(f"v_lshl_add_u32 v29, v30, 3, v29")
        a(f"v_add_u32 v29, s67, v29")
        a(f"v_mul_u32_u24 v30, 272, {vB}")
        a(f"v_lshl_add_u32 v30, {vHI}, 6, v30")
        a(f"v_lshl_add_u32 v30, {vG}, 4, v30")
        a(f"v_add_u32 v30, s67, v30")
        self.pull(20, A[0])
        self.pull(28, A[1])
        a(f"s_mul_i32 s72, {sX}, {8*H2R}")
        a(f"s_lshl_b32 s67, {sW}, 8")
        a(f"s_add_u32 s72, s72, s67")
        a(f"s_add_u32 s72, s72, {WS_H2}")
        for i in range(1, 4):
            a(f"s_add_u32 s{72+i}, s72, {2*H2R*i}")
        self.stamp(sb + 1)
        pl = []
        for i in range(4):
            r = 32 + 4 * i
            pl.append((f"buffer_load_dwordx4 {v(r,4)}, v9, {WS_}, s{76+i} offen sc1", r, 4))
        self.poll(pl, 24, gate=(self.cfg["p4gate"], 26, "s76"), fs=[(f"s{76+i}", f"s{72+i}") for i in range(4)], gs=44)
        self.stamp(sb + 2)
        for p in range(8):
            a(f"v_perm_b32 v{16+p}, v{33+2*p}, v{32+2*p}, {sSEL1}")
        for i in range(4):
            a(f"ds_write_b64 v29, {v(16+2*i,2)} offset:{544*i}")
        for u in range(2):
            a(f"ds_read_b128 {v(BB+8*u,4)}, v30 offset:{128*u}")
        a("s_waitcnt lgkmcnt(0)")

        def epi():
            self.bf16r1(16)
            Lu = a.newlabel("L_p4up")
            a("s_cmp_lg_u32 s71, 0")
            a(f"s_cbranch_scc1 {Lu}")
            a(f"v_mul_f32 v17, 0x{LOG2E ^ 0x80000000:x}, v16")
            a(f"v_exp_f32 v17, v17")
            a(f"v_add_f32 v17, 1.0, v17")
            a(f"v_rcp_f32 v17, v17")
            a(f"v_mul_f32 v16, v16, v17")
            self.bf16r1(16)
            a.label(Lu)
            self.publish1(vL4, "s70", fast="s69")
        self.tail([A[0], A[1]], 8, "P4", epi)
        self.stamp(sb + 3)

    def p5(self, ubase, tb):
        a = self.a
        sb = SLOT["P5"]
        self.stamp(sb)
        a(f"s_lshl_b32 s70, {sX}, 15")
        a(f"s_lshl_b32 s67, s68, 8")
        a(f"s_add_u32 s70, s70, s67")
        a(f"s_lshl_b32 s67, {sW}, 12")
        a(f"s_add_u32 s70, s70, s67")
        a(f"s_add_u32 s70, s70, {WS_DP}")
        a(f"s_add_u32 s69, s70, {FS}")
        a(f"v_lshlrev_b32 v8, 4, {vLANE}")
        a(f"s_mul_i32 s73, {sX}, {7*2048}")
        a(f"s_lshl_b32 s67, {sW}, 11")
        a(f"s_add_u32 s73, s73, s67")
        a(f"s_add_u32 s73, s73, {WS_GU}")
        a(f"s_add_u32 s74, s73, {56*2048}")
        a(f"v_mul_u32_u24 v26, {56*2048}, {vLANE}")
        a(f"s_lshl_b32 s67, s68, 7")
        a(f"v_add_u32 v26, s67, v26")
        self.slot_of(ubase, "s78", "s79")
        self.red_addr(ubase, "row")
        Lsk = a.newlabel("L_p5skip")
        a(f"s_cmp_ge_u32 {sW}, 7")
        a(f"s_cbranch_scc1 {Lsk}")
        self.pull(ubase, tb)
        self.stamp(sb + 1)
        pl = []
        for m, so in enumerate(("s75", "s76")):
            for q in range(2):
                r = 32 + 8 * m + 4 * q
                pl.append((f"buffer_load_dwordx4 {v(r,4)}, v8, {WS_}, {so} offen offset:{1024*q} sc1", r, 4))
        self.poll(pl, 24, gate=(0x3, 26, "s75"), fs=[("s75", "s73"), ("s76", "s74")], gs=46)
        self.stamp(sb + 2)
        for e in range(16):
            a(f"v_and_b32 v{32+e}, 0xffff0000, v{32+e}")
        for e in range(8):
            a(f"v_mul_f32 v{32+e}, v{32+e}, v{40+e}")
        for p in range(4):
            a(f"v_cvt_pk_bf16_f32 v{BB+p}, v{32+2*p}, v{33+2*p}")
        a.label(Lsk)
        self.tail([tb], 7, "P5", lambda: self.publish1(vL4, "s70", fast="s69"))
        self.stamp(sb + 3)

    def gb_r5(self):
        a = self.a
        sb = SLOT["GB"]
        self.stamp(sb)
        self.koff(8)
        a(f"s_lshl_b32 s67, {sW}, 7")
        self.load_bfrag(24, C_, "s67")
        self.load_bfrag(28, C_, "s67", 1024)
        a("s_waitcnt vmcnt(0)")
        self.silu_c(24, BB)
        self.silu_c(28, BB + 8)
        self.slot_of(4, "s78", "s79")
        self.red_addr(4, "row")
        self.pull(20, A[0])
        self.pull(28, A[1])
        self.stamp(sb + 1)

        def epi():
            self.bf16r1(16)
            a("v_mov_b32 v31, v16")
        self.tail([A[0], A[1]], 8, "GB", epi, slow=self.cfg["slow"])
        self.stamp(sb + 3)
        sb = SLOT["R5"]
        self.stamp(sb)
        a(f"s_lshl_b32 s69, s68, 8")
        a(f"s_lshl_b32 s67, {sW}, 12")
        a(f"s_add_u32 s69, s69, s67")
        a(f"s_add_u32 s67, {sX}, 1")
        a(f"s_and_b32 s67, s67, 7")
        a(f"s_lshl_b32 s67, s67, 15")
        a(f"s_add_u32 s70, s69, s67")
        a(f"s_add_u32 s70, s70, {WS_X1}")
        self.poll([(f"buffer_load_dword v30, {vL4}, {WS_}, s70 offen sc1", 30, 1)], 24)
        a("v_and_b32 v30, 0xffff0000, v30")
        a(f"s_add_u32 s70, s69, {WS_DP}")
        for k in range(8):
            a(f"s_add_u32 s67, {sX}, {k}")
            a(f"s_and_b32 s67, s67, 7")
            a(f"s_lshl_b32 s67, s67, 15")
            a(f"s_add_u32 s{72+k if k else 71}, s70, s67")
        a(f"v_lshlrev_b32 v10, 1, {vLANE}")
        a(f"s_lshr_b32 s69, s69, 1")
        self.stamp(sb + 1)
        self.poll([(f"buffer_load_dword v{32+k}, {vL4}, {WS_}, s{72+k} offen sc1", 32 + k, 1) for k in range(8)], 24,
                  fs=[("s72", "s71")], gate=(1, 13, "s76") if self.cfg.get("r5gate") else None, gfs=False)
        self.stamp(sb + 2)
        for k in range(4):
            a(f"v_add_f32 v{32+k}, v{32+k}, v{36+k}")
        a("v_add_f32 v32, v32, v33")
        a("v_add_f32 v34, v34, v35")
        a("v_add_f32 v32, v32, v34")
        self.bf16r1(32)
        a("v_mul_f32 v32, v32, v31")
        self.bf16r1(32)
        a("v_add_f32 v32, v32, v30")
        a("v_cvt_pk_bf16_f32 v32, v32, v32")
        a(f"buffer_store_short v32, v10, {OUT_}, s69 offen")
        Lnb = a.newlabel("L_nobump")
        a(f"s_or_b32 s67, s68, {sW}")
        a("s_cmp_lg_u32 s67, 0")
        a(f"s_cbranch_scc1 {Lnb}")
        a(f"s_add_u32 s67, {sEP}, 1")
        a("v_mov_b32 v33, s67")
        a("v_mov_b32 v34, 0")
        a("s_mov_b64 exec, 1")
        a(f"buffer_store_dword v33, v34, {WS_}, 0 offen")
        a("s_mov_b64 exec, -1")
        a.label(Lnb)
        self.stamp(sb + 3)

    def l_signal(self, lag):
        a = self.a
        a(f"s_sub_u32 s67, s72, {lag}")
        a("v_mov_b32 v20, s67")
        a(f"ds_max_i32 v19, v20 offset:{4*C_LANDED}")
        if self.stamps and self.cfg.get("ls"):
            S = a.newlabel("L_ls")
            a("s_cmp_le_i32 s67, s93")
            a(f"s_cbranch_scc1 {S}")
            self.l_flush()
            a("s_mov_b32 s93, s67")
            a("s_memrealtime s[98:99]")
            a.label(S)

    def l_flush(self):
        a = self.a
        if self.stamps and self.cfg.get("ls"):
            a("s_mov_b32 s92, m0")
            a("s_mov_b32 m0, s93")
            a("s_waitcnt lgkmcnt(1)")
            a("v_writelane_b32 v41, s98, m0")
            a("s_mov_b32 m0, s92")

    def l_drain(self):
        a = self.a
        for t in reversed(range((self.lD + 7) // 8)):
            a(f"s_waitcnt vmcnt({8*t})")
            if self.stamps and self.cfg.get("ls"):
                a("s_waitcnt lgkmcnt(0)")
            self.l_signal(t)
        self.lD = 0

    def l_wait(self, cnt, need):
        self.l_drain()
        self.lds_wait(CNT[cnt], need)

    def l_seg(self, srd, n, D, step, barrier=False, until=None):
        a = self.a
        credit = self.lU + n > NS
        wrap = self.lU + n >= NS
        if n > 1:
            a(f"s_mov_b32 s75, {-n}")
        if credit:
            a("s_lshr_b32 s67, s73, 11")
            a(f"v_add_u32 v22, s67, {vZ}")
            a(f"ds_read_b32 v21, v22 offset:{4*C_FREE}")
        if until:
            a(f"ds_read_b32 v23, {vZ} offset:{4*CNT[until[0]]}")
        E = a.newlabel("L_sege")
        L2 = a.newlabel("L_seg2")
        for ph, D in enumerate([D] + ([until[2]] if until else [])):
            assert D % 4 == 0 and D >= 4
            L = a.newlabel("L_seg") if ph == 0 else L2
            hs, lag = (1, D // 8 - 1) if D % 8 == 0 else (0, (D - 4) // 8)
            a.label(L)
            if credit or (until and ph == 0):
                a("s_waitcnt lgkmcnt(0)")
            if until and ph == 0:
                a(f"v_cmp_le_i32 vcc, {until[1]}, v23")
                a(f"s_cbranch_vccnz {L2}")
            if credit:
                Lok = a.newlabel("L_cok")
                Lsp = a.newlabel("L_csp")
                a("v_cmp_le_i32 vcc, s74, v21")
                a(f"s_cbranch_vccnz {Lok}")
                a(f"ds_read_b32 v21, v22 offset:{4*C_FREE}")
                a("s_waitcnt lgkmcnt(0)")
                a("v_cmp_le_i32 vcc, s74, v21")
                a(f"s_cbranch_vccnz {Lok}")
                a("s_waitcnt vmcnt(0)")
                self.l_signal(0)
                a(f"s_mov_b32 {sPOLL}, {self.poll_limit*8}")
                a.label(Lsp)
                a(f"ds_read_b32 v21, v22 offset:{4*C_FREE}")
                a("s_waitcnt lgkmcnt(0)")
                a("v_cmp_le_i32 vcc, s74, v21")
                a(f"s_sub_u32 {sPOLL}, {sPOLL}, 1")
                a(f"s_cbranch_vccnz {Lok}")
                a(f"s_cmp_lg_u32 {sPOLL}, 0")
                a(f"s_cbranch_scc1 {Lsp}")
                a.label(Lok)
            for h in range(2):
                a("s_add_u32 m0, s73, 4096" if h else "s_mov_b32 m0, s73")
                if not barrier:
                    a(f"s_waitcnt vmcnt({D-4})")
                    if h == hs:
                        self.l_signal(lag)
                for j in range(4):
                    a(f"buffer_load_dwordx4 v{24+4*h+j}, {srd}, s66 offen offset:{1024*j} nt lds")
                    if h == 1 and j == 0:
                        a(f"s_add_u32 s73, s73, {SLOTB}")
                        if wrap:
                            a(f"s_cmp_ge_u32 s73, {NS*SLOTB}")
                            a("s_cselect_b32 s73, 0, s73")
                            a("s_cselect_b32 s67, 8, 0")
                            a("s_add_u32 s74, s74, s67")
                    if h == 1 and j == 1 and n > 1:
                        if credit:
                            a("s_lshr_b32 s67, s73, 11")
                            a(f"v_add_u32 v22, s67, {vZ}")
                            a(f"ds_read_b32 v21, v22 offset:{4*C_FREE}")
                        if until and ph == 0:
                            a(f"ds_read_b32 v23, {vZ} offset:{4*CNT[until[0]]}")
                    if h == 1 and j == 2:
                        a("s_add_u32 s72, s72, 1")
            a(f"s_add_u32 s66, s66, {step}")
            if n > 1:
                a("s_add_u32 s75, s75, 1")
                a(f"s_cbranch_scc0 {L}")
            if until and ph == 0:
                a(f"s_branch {E}")
                D1 = D
        if until:
            a.label(E)
            D = max(D, D1)
        self.lU += n
        self.lD = D if not barrier else 8 * self.lU

    def l_tile(self, srd, segs, kind, RS=0, first=False, stamp=None, setup=True):
        a = self.a
        if stamp is not None:
            self.stamp(stamp)
        if kind in ("w", "wq", "wo"):
            js = (128 if kind == "wo" else 8) * RS
            step = {"w": 64 * RS, "wq": 128, "wo": 8 * RS}[kind]
            if setup:
                a(f"v_mul_u32_u24 v24, {RS}, v8")
                a(f"v_add_u32 v24, v24, v9")
                for j in range(1, 8):
                    a(f"v_add_u32 v{24+j}, {js*j - 1024*(j%4)}, v24")
        else:
            step = 8192
            if kind == "k":
                a(f"v_xor_b32 v16, {vI}, {vG}")
            else:
                a(f"v_lshlrev_b32 v16, 1, {vG}")
                a(f"v_xor_b32 v16, {vI}, v16")
            a(f"v_lshlrev_b32 v16, 4, v16")
            a(f"v_lshl_add_u32 v24, {vG}, 8, v16")
            for j in range(1, 8):
                a(f"v_xor_b32 v{24+j}, {(64*(j%4) if kind == 'k' else 128*(j%2)) + 4096*(j//4)}, v24")
        for sg in segs:
            if isinstance(sg[0], str):
                self.l_wait(*sg)
                continue
            n, D = sg[:2]
            if first:
                n0 = min(n, max(1, D // 8))
                self.l_seg(srd, n0, D, step, barrier=True)
                a("s_barrier")
                n -= n0
                first = False
            if n:
                self.l_seg(srd, n, D, step, until=sg[2:] or None)

    def loader(self):
        a = self.a
        cfg = self.cfg
        a("s_setprio 3")
        a("s_mov_b32 s93, 0")
        if cfg.get("pre"):
            a("s_getpc_b64 s[66:67]")
            a.label("L_pc")
            a(f"s_lshl_b32 s68, {sL}, 10")
            a(f"v_lshl_add_u32 v8, {vLANE}, 7, s68")
            a("v_min_u32 v8, L_exit-L_pc, v8")
            a("s_mov_b64 exec, 0xff")
            a("global_load_dword v40, v8, s[66:67]")
            a("s_mov_b64 exec, -1")
        a(f"v_lshrrev_b32 v8, 3, {vLANE}")
        a(f"v_lshlrev_b32 v9, 1, {vG}")
        a(f"v_xor_b32 v9, v9, {vB}")
        a("v_lshlrev_b32 v9, 4, v9")
        a(f"s_and_b32 s67, {sL}, 3")
        a(f"s_mul_i32 s66, s67, {256*12288}")
        a(f"s_lshr_b32 s67, {sL}, 3")
        a(f"s_lshl_b32 s67, s67, 11")
        a(f"s_add_u32 s66, s66, s67")
        a(f"s_lshl_b32 s67, {sX}, 8")
        a(f"s_add_u32 s66, s66, s67")
        a(f"s_bfe_u32 s67, {sL}, 0x10002")
        a(f"s_lshl_b32 s67, s67, 7")
        a(f"s_add_u32 s66, s66, s67")
        a(f"s_lshl_b32 s70, {sX}, 11")
        a(f"s_add_u32 s70, s70, {sL}")
        a(f"s_sub_u32 s70, s70, 16")
        a(f"s_lshl_b32 s70, s70, 9")
        a(f"s_cmp_ge_u32 {sL}, 16")
        a("s_cselect_b32 s66, s70, s66")
        a("s_cselect_b32 s70, 8192, 12288" if False else "s_cselect_b32 s70, 2, 3")
        a(f"s_cselect_b32 s71, 128, {64*12288}" if False else "s_cselect_b32 s71, 1, 6144")
        a("s_cselect_b32 s77, -2, -1")
        a("s_cselect_b32 s62, s22, s46")
        a("s_mov_b32 s63, 0x20000")
        a("s_lshl_b32 s71, s71, 7")
        a("s_lshl_b32 s70, s70, 12")
        a("v_mad_u32_u24 v24, v8, s70, v9")
        a("s_lshl_b32 s67, s70, 5")
        a("v_add_u32 v28, s67, v24")
        a("s_lshl_b32 s67, s70, 3")
        a("s_sub_u32 s67, s67, 1024")
        for j in (1, 2, 3, 5, 6, 7):
            a(f"v_add_u32 v{24+j}, s67, v{23+j}")
        a("s_mov_b32 s73, 0")
        a("s_mov_b32 s75, -4")
        a(f"s_cmp_ge_u32 {sL}, 16")
        a("s_waitcnt lgkmcnt(0)")
        a("s_cselect_b32 s60, s20, s44")
        a("s_cselect_b32 s61, s21, s45")
        self.stamp(48)
        a.label("L_l0")
        for h in range(2):
            a("s_add_u32 m0, s73, 4096" if h else "s_mov_b32 m0, s73")
            a(f"s_waitcnt vmcnt({cfg.get('D0', 56)-4})")
            for j in range(4):
                a(f"buffer_load_dwordx4 v{24+4*h+j}, {W_}, s66 offen offset:{1024*j} nt lds")
        a(f"s_add_u32 s73, s73, {SLOTB}")
        a("s_add_u32 s66, s66, s71")
        a("s_add_u32 s75, s75, 1")
        a("s_cbranch_scc0 L_l0")
        a(f"s_add_u32 s66, s66, {64*8192-512}")
        a("s_mov_b32 s75, -4")
        a("s_add_u32 s77, s77, 1")
        a("s_cbranch_scc0 L_l0")
        a(f"v_lshlrev_b32 v19, 2, {vLANE}")
        a(f"v_add_u32 v19, {LDS_BYTES-256}, v19")
        a(f"v_writelane_b32 v19, s63, 0")
        a("s_lshr_b32 s72, s73, 13")
        a("s_mov_b32 s74, 0")
        a(f"s_cmp_ge_u32 {sL}, 16")
        a("s_cbranch_scc1 L_LB")
        a("s_barrier")
        a("s_branch L_lrest")

    def loader_rest(self):
        a = self.a
        cfg = self.cfg
        a.label("L_lrest")

        def wait(key):
            if cfg.get(key):
                self.l_wait(*cfg[key])
        self.lU, self.lD = 4, 32
        a(f"s_and_b32 s69, {sX}, 1")
        a(f"s_lshl_b32 s69, s69, 2")
        a(f"s_lshr_b32 s67, {sL}, 2")
        a(f"s_add_u32 s69, s69, s67")
        a(f"s_lshl_b32 s69, s69, 2")
        a(f"s_add_u32 s69, s69, {sHKV}")
        a(f"s_lshl_b32 s69, s69, 20")
        a(f"s_and_b32 s67, {sL}, 3")
        a(f"s_lshl_b32 s67, s67, 16")
        a(f"s_add_u32 s69, s69, s67")
        a(f"s_add_u32 s69, s69, {3072*256}")
        wait("wK")
        a("s_mov_b32 s66, s69")
        self.l_tile(K_, cfg["K"], "k", stamp=49)
        a("s_mov_b32 s66, s69")
        self.l_tile(V_, cfg["V"], "v", stamp=50)
        if cfg.get("wP4s"):
            self.l_drain()
            a(f"s_cmp_lt_u32 {sL}, 12")
            a(f"s_cbranch_scc1 L_lw4")
            a(f"s_cmp_ge_u32 {sL}, 14")
            a(f"s_cbranch_scc1 L_lw4")
            wait("wP4s")
            a("s_branch L_lw5")
            a.label("L_lw4")
        wait("wP4")
        a.label("L_lw5")
        st = (self.lU, self.lD)
        a(f"s_cmp_ge_u32 {sL}, 14")
        a(f"s_cbranch_scc1 L_lgb")
        self.p4_cg("s66")
        a(f"s_lshl_b32 s66, s66, 7")
        a(f"s_and_b32 s67, {sL}, 1")
        a("s_cselect_b32 s60, s32, s28")
        a("s_cselect_b32 s61, s33, s29")
        a("s_mov_b32 s62, 7340032")
        a("s_mov_b32 s63, 0x20000")
        self.l_tile(W_, cfg["P4"], "w", 7168, stamp=51)
        self.l_drain()
        a("s_branch L_done")
        a.label("L_lgb")
        self.lU, self.lD = st
        a(f"s_lshl_b32 s66, {sX}, 1")
        a(f"s_add_u32 s66, s66, {sL}")
        a(f"s_lshl_b32 s66, s66, 7")
        a(f"s_add_u32 s66, s66, {5120*2-14*128}")
        self.l_tile(WM_, cfg["GB"], "w", 12288, stamp=51)
        self.l_drain()
        a("s_branch L_done")
        a.label("L_LB")
        self.lU, self.lD = 8, cfg.get("D0", 56)
        a("s_barrier")
        self.l_drain()
        self.rm_task("s70", "s71")
        a(f"s_mul_i32 s66, s70, 12288")
        a(f"s_lshl_b32 s71, s71, 7")
        a(f"s_add_u32 s66, s66, s71")

        def wotile(key):
            a(f"s_lshr_b32 s66, {sX}, 1")
            a(f"s_lshl_b32 s66, s66, 21")
            a(f"s_and_b32 s67, {sX}, 1")
            a(f"s_lshl_b32 s67, s67, 17")
            a(f"s_add_u32 s66, s66, s67")
            self.swap_j("s69", 3, 9)
            a(f"s_lshl_b32 s69, s69, 7")
            a(f"s_add_u32 s66, s66, s69")
            self.l_tile(WO_, cfg[key], "wo", 2048, stamp=50)

        def wdtile(key):
            a(f"s_mul_i32 s66, {sX}, {448*2048}")
            self.swap_j("s69", 5, 11)
            a(f"s_lshl_b32 s69, s69, 7")
            a(f"s_add_u32 s66, s66, s69")
            self.l_tile(WD_, cfg[key], "w", 2048, stamp=51)
            self.l_drain()
            a("s_branch L_done")
        st = (self.lU, self.lD)
        a(f"s_cmp_ge_u32 {sL}, 24")
        a(f"s_cbranch_scc1 L_lr3")
        wait("wB")
        self.l_tile(WM_, cfg["RM"], "w", 12288, stamp=53)
        wotile("P3")
        wait("wP5")
        wdtile("P5")
        a.label("L_lr3")
        self.lU, self.lD = st
        self.l_drain()
        a("v_mov_b32 v20, 8")
        a(f"v_lshl_add_u32 v22, {vLANE}, 2, {vZ}")
        a("s_mov_b64 exec, 15")
        a(f"ds_add_u32 v22, v20 offset:{4*(C_FREE+8)}")
        a("s_mov_b64 exec, -1")
        a("s_mov_b32 s72, 12")
        a(f"s_mov_b32 s73, {12*SLOTB}")
        self.lU = 12
        wait("wB")
        self.l_tile(WM_, cfg["RMr"], "w", 12288, stamp=53)
        wotile("P3r")
        wait("wP5r")
        wdtile("P5r")

    def build(self):
        a = self.a
        cfg = self.cfg
        hdr = open(os.path.join(os.path.dirname(os.path.abspath(__file__)), "..", "cdna_kernels", NAME + ".s.ref")).read()
        for line in hdr.split("\n"):
            if line.startswith("; @launch"):
                break
            a.raw(line)
        a.raw(f"; @launch grid=(256,1,1) block=(576,1,1) lds={LDS_BYTES}")
        a.raw('.amdgcn_target "amdgcn-amd-amdhsa--gfx950"')
        a.raw(".text")
        a.raw(f".globl {NAME}_kernel")
        a.raw(".p2align 8")
        a.raw(f".type {NAME}_kernel,@function")
        a.raw(f"{NAME}_kernel:")
        a("s_cmp_ge_u32 s2, 256")
        a("s_cbranch_scc1 L_exit")
        if cfg.get("dbg"):
            a("s_memrealtime s[100:101]")
            a("s_load_dwordx2 s[56:57], s[0:1], 96")
            a("s_mov_b32 s58, 256")
            a("s_mov_b32 s59, 0x20000")
        for (s0, ko, nb) in SRD_INFO:
            a(f"s_load_dwordx2 s[{s0}:{s0+1}], s[0:1], {ko}")
        for (s0, ko, nb) in SRD_INFO:
            a(f"s_mov_b32 s{s0+2}, {nb}")
            a(f"s_mov_b32 s{s0+3}, 0x20000")
        a(f"v_and_b32 {vLANE}, 63, v0")
        a("v_lshrrev_b32 v7, 6, v0")
        a(f"v_lshrrev_b32 {vG}, 4, {vLANE}")
        a(f"v_readfirstlane_b32 {sW}, v7")
        a(f"v_and_b32 {vI}, 15, v0")
        a(f"v_and_b32 {vB}, 7, v0")
        a(f"v_bfe_u32 {vHI}, v0, 3, 1")
        a(f"v_mov_b32 {vSTAMP}, 0")
        if self.stamps:
            a(f"v_mov_b32 v41, 0")
        a(f"v_mov_b32 {vZ}, 0x20000")
        a(f"s_and_b32 {sX}, s2, 7")
        a(f"s_lshr_b32 {sL}, s2, 3")
        a(f"s_lshr_b32 {sHKV}, {sX}, 1")
        a(f"s_xor_b32 {sHKV}, {sHKV}, 1")
        a(f"s_cmp_lt_u32 {sW}, 8")
        a("s_cbranch_scc1 L_compute")
        self.loader()
        a.label("L_compute")
        a(f"v_lshlrev_b32 {vL4}, 2, {vLANE}")
        a("v_mov_b32 v16, 0")
        a(f"v_add_u32 v17, {vL4}, {vZ}")
        a(f"ds_write_b32 v17, v16 offset:{L_CNT-L_AUX}")
        a(f"s_cmp_ge_u32 {sL}, 16")
        a("s_cbranch_scc1 L_eB")
        self.p0a_early()
        a(f"s_load_dword {sEP}, s[52:53], 0")
        a("s_barrier")
        a("s_branch L_eD")
        a.label("L_eB")
        self.p1_early()
        a(f"s_load_dword {sEP}, s[52:53], 0")
        a.label("L_eD")
        a(f"v_mov_b32 {vFF}, 0xff")
        a(f"v_mov_b32 {vONE}, 1")
        a(f"s_mov_b32 {sSEL1}, 0x07060302")
        a("s_mov_b32 s84, 0x00ff00ff")
        a("s_mov_b32 s85, 0x00ff00ff")
        a(f"s_mov_b32 {sLOG}, 0x{LOG2E:x}")
        a(f"v_lshrrev_b32 v8, 2, {vLANE}")
        a(f"v_lshlrev_b32 v8, 7, v8")
        a(f"v_and_b32 v9, 3, {vLANE}")
        a(f"v_lshl_add_u32 v8, v9, 3, v8")
        a(f"v_bfe_u32 v9, {vLANE}, 3, 2")
        a(f"v_lshl_add_u32 v{TR}, v9, 5, v8")
        for cg in range(1, 4):
            a(f"v_xor_b32 v{TR+cg}, {32*cg}, v{TR}")
        a(f"s_cmp_ge_u32 {sL}, 16")
        a("s_cbranch_scc1 L_B")
        a("; ======== A")
        self.p0a()
        a("s_branch L_att")
        a.label("L_B")
        a("; ======== B")
        a(f"s_sub_u32 s68, {sL}, 16")
        self.p1(A[0])
        self.rm(A[0])
        self.swap_j("s68", 3, 9)
        self.p3(16, A[0])
        a(f"s_cmp_lt_u32 {sL}, 24")
        a(f"s_cbranch_scc1 L_nor3")
        a(f"s_sub_u32 s69, {sL}, 24")
        self.r3()
        a.label("L_nor3")
        self.swap_j("s68", 5, 11)
        self.p5(24, A[0])
        a("s_branch L_done")
        self.loader_rest()
        a.label("L_att")
        a(f"s_mov_b32 s68, {sL}")
        self.att(4)
        a(f"s_mov_b32 s68, {sL}")
        a(f"s_cmp_lt_u32 {sL}, 14")
        a(f"s_cbranch_scc1 L_P4")
        a(f"s_lshl_b32 s68, {sX}, 1")
        a(f"s_add_u32 s68, s68, {sL}")
        a(f"s_sub_u32 s68, s68, 14")
        self.gb_r5()
        a("s_branch L_done")
        a.label("L_P4")
        self.p4()
        a.label("L_done")
        if cfg.get("dbg"):
            a(f"s_cmp_lg_u32 {sL}, 15")
            a("s_cbranch_scc1 L_nodbg")
            a(f"s_cmp_lg_u32 {sW}, 0")
            a("s_cbranch_scc1 L_nodbg")
            a("s_memrealtime s[90:91]")
            a("s_waitcnt lgkmcnt(0)")
            a("v_mov_b32 v16, s100")
            a("v_mov_b32 v17, s90")
            a(f"s_lshl_b32 s66, {sX}, 2")
            a("v_mov_b32 v18, 0")
            a("s_mov_b64 exec, 1")
            a(f"buffer_store_dword v16, v18, {DBG_}, s66 offen")
            a(f"buffer_store_dword v17, v18, {DBG_}, s66 offen offset:32")
            a("s_mov_b64 exec, -1")
            a.label("L_nodbg")
        if self.stamps:
            self.stamp(52)
            a(f"s_lshl_b32 s66, s2, 4")
            a(f"s_add_u32 s66, s66, {sW}")
            a(f"s_lshl_b32 s66, s66, 8")
            a(f"s_add_u32 s66, s66, {WS_STAMP}")
            a(f"v_lshlrev_b32 v8, 2, {vLANE}")
            a(f"buffer_store_dword {vSTAMP}, v8, {WS_}, s66 offen sc1")
            a(f"s_cmp_lt_u32 {sW}, 8")
            a("s_cbranch_scc1 L_exit")
            self.l_flush()
            a(f"buffer_store_dword v41, v8, {WS_}, s66 offen offset:256 sc1")
        a.label("L_exit")
        a("s_endpgm")
        a.raw('.section .rodata,"a"')
        a.raw(".p2align 6")
        a.raw(f".amdhsa_kernel {NAME}_kernel")
        a.raw(f"  .amdhsa_next_free_vgpr {NVGPR}")
        a.raw("  .amdhsa_next_free_sgpr 102")
        a.raw(f"  .amdhsa_accum_offset {NVGPR}")
        a.raw("  .amdhsa_group_segment_fixed_size 0")
        a.raw("  .amdhsa_kernarg_size 112")
        a.raw("  .amdhsa_user_sgpr_count 2")
        a.raw("  .amdhsa_user_sgpr_kernarg_segment_ptr 1")
        a.raw("  .amdhsa_system_sgpr_workgroup_id_x 1")
        a.raw(".end_amdhsa_kernel")
        return a.text()


DEFAULT = dict(slow=3, plain=True, p4gate=1, r3gate=0, wP4s=("Q", 8),
               P0A=[(4, 32)], wK=("P0P", 4), K=[(8, 56)], V=[(8, 56)], wP4=("ATTP", 8), P4=[(16, 16, "ATTP", 8, 56)], GB=[(16, 32)],
               P1a=[(4, 32)], P1b=[(4, 56)], wB=("P1P", 8), RM=[(3, 16), (5, 56)], P3=[(8, 56)], wP5=("P3P", 8), P5=[(7, 56)],
               RMr=[(3, 16), (1, 56)], P3r=[(8, 56)], wP5r=("R3P", 8), P5r=[(7, 56)])

if __name__ == "__main__":
    cfg = dict(DEFAULT)
    out = sys.argv[1]
    for arg in sys.argv[2:]:
        k, _, val = arg.partition("=")
        cfg[k] = eval(val) if val else True
    open(out, "w").write(Gen(cfg).build())
    print("wrote", out)
```

```python
import sys, os, struct
sys.path.insert(0, os.path.dirname(os.path.abspath(__file__)))
from asmlib import Asm

NAME = "adaLN_cond__sliding_block_cached__swiglu_ffn__decode"

FS = 4 << 20
WS_SAC = 4096
WS_MGA = WS_SAC + 8 * 32768
WS_MSC = WS_MGA + 4 * 8 * 1024 * 4
WS_QP = WS_MSC + 2 * 8 * 2048 * 4
WS_OP = WS_QP + 8 * 8 * 4096 * 4
WS_LSE = WS_OP + 8 * 4 * 32 * 128 * 4
WS_AP = WS_LSE + 4096
WS_X1 = WS_AP + 8 * 8 * 1024 * 4
WS_DP = WS_X1 + 8 * 8 * 1024 * 4
H2R = 4096 + 128
WS_H2 = WS_DP + 8 * 8 * 1024 * 4
WS_GU = WS_H2 + 8 * 8 * H2R + 1024 * 8
assert WS_GU + 2 * 8 * 3584 * 4 <= FS
WS_STAMP = 2 * FS
WS_END = WS_STAMP + 256 * 16 * 64 * 4

X_, K_, V_, WQ_, WO_, WG_, WU_, WD_, C_, WM_, OUT_, WS_, DBG_, W_ = [f"s[{8+4*i}:{11+4*i}]" for i in range(14)]
SRD_INFO = [
    (44, 80, 12582912), (20, 24, 8388608), (12, 8, 33554432), (40, 72, 16384), (8, 0, 16384), (52, 104, WS_END),
    (16, 16, 33554432), (24, 32, 8388608), (28, 48, 7340032), (32, 56, 7340032), (36, 64, 7340032),
    (48, 88, 16384)]

sW, sT, sX, sL, sSEL1 = "s3", "s4", "s5", "s6", "s7"
sEP = "s64"
sPOLL = "s80"
sLOG = "s88"
sHKV = "s65"
sM8 = "s[84:85]"
NS = 16
SLOTB = 8192
L_AUX = NS * SLOTB
L_CNT = L_AUX
L_ST = L_AUX + 256
L_Q = L_AUX + 512
L_P = L_Q + 8 * 272
L_ML = L_P + 4096
L_H = L_AUX + 512
L_OB = L_H + 2048
LDS_BYTES = L_AUX + 12288
assert L_OB + 8192 <= LDS_BYTES - 256 and L_ML + 640 <= LDS_BYTES - 256
SB = 272
C_LANDED, C_FREE = 0, 1
CNT = dict(S1=20, H=21, P1P=22, Q=23, P=24, ATTP=25, RM=26, P3=27, P3P=28, R3=29, R3P=30, P4=31, P5=32, GB=33, P0P=34,
           QG=35, P3G=36, R3G=37)

A = [64, 96, 128]
ACC, BB = 160, 48
vLANE, vG, vI, vB, vHI, vFF, vSTAMP = "v1", "v2", "v3", "v4", "v5", "v6", "v7"
vRW, vRR, vL4, vZ, vONE = "v11", "v12", "v13", "v14", "v15"
NVGPR = 168
TR = 160
TRA = 164
LOG2E = 0x3FB8AA3B
SCALE = struct.unpack("<I", struct.pack("<f", 128 ** -0.5))[0]
EPS = struct.unpack("<I", struct.pack("<f", 1e-5))[0]
SLOT = dict(P0A=0, P1=4, ATT=8, RM=12, P3=16, R3=20, P4=24, P5=28, GB=32, R5=36)


def v(n, cnt=1):
    return f"v{n}" if cnt == 1 else f"v[{n}:{n+cnt-1}]"


class Gen:
    def __init__(self, cfg):
        self.cfg = cfg
        self.a = Asm()
        self.stamps = cfg.get("stamps", False)
        self.poll_limit = cfg.get("poll_limit", 20000)

    def stamp(self, slot):
        if self.cfg.get("probe") == slot:
            self.a("s_memrealtime s[96:97]")
            self.a("s_waitcnt lgkmcnt(0)")
        if not self.stamps:
            return
        a = self.a
        a("s_memrealtime s[90:91]")
        a("s_waitcnt lgkmcnt(0)")
        a(f"v_writelane_b32 {vSTAMP}, s90, {slot}")

    def epoch(self):
        a = self.a
        a("s_waitcnt lgkmcnt(0)")
        a(f"s_add_u32 {sT}, {sEP}, 1")
        a(f"s_and_b32 {sT}, {sT}, 0xff")

    def xs(self, n):
        if self.cfg.get("xs"):
            self.stamp(58 + n)

    def bf16r_pairs(self, regs, tmp):
        a = self.a
        for i in range(0, len(regs), 2):
            a(f"v_cvt_pk_bf16_f32 v{tmp}, v{regs[i]}, v{regs[i+1]}")
            a(f"v_lshlrev_b32 v{regs[i]}, 16, v{tmp}")
            a(f"v_and_b32 v{regs[i+1]}, 0xffff0000, v{tmp}")

    def bf16r1(self, r):
        a = self.a
        a(f"v_cvt_pk_bf16_f32 v{r}, v{r}, v{r}")
        a(f"v_lshlrev_b32 v{r}, 16, v{r}")

    def unpack_bf16(self, src, dst, n):
        a = self.a
        for i in range(n):
            a(f"v_lshlrev_b32 v{dst+2*i}, 16, v{src+i}")
            a(f"v_and_b32 v{dst+2*i+1}, 0xffff0000, v{src+i}")

    def allred_g(self, regs, op, tmp):
        a = self.a
        for r, t in zip(regs, tmp):
            a(f"v_mov_b32 v{t}, v{r}")
        for r, t in zip(regs, tmp):
            a(f"v_permlane16_swap_b32 v{r}, v{t}")
        for r, t in zip(regs, tmp):
            a(f"{op} v{t}, v{r}, v{t}")
        for r, t in zip(regs, tmp):
            a(f"v_mov_b32 v{r}, v{t}")
        for r, t in zip(regs, tmp):
            a(f"v_permlane32_swap_b32 v{r}, v{t}")
        for r, t in zip(regs, tmp):
            a(f"{op} v{r}, v{r}, v{t}")

    def allred_wave(self, regs, tmp, op="v_add_f32", n32=False):
        a = self.a
        for r, t in zip(regs, tmp):
            a(f"{op}_dpp v{t}, v{r}, v{r} quad_perm:[1,0,3,2] row_mask:0xf bank_mask:0xf")
        for r, t in zip(regs, tmp):
            a(f"{op}_dpp v{r}, v{t}, v{t} quad_perm:[2,3,0,1] row_mask:0xf bank_mask:0xf")
        for r, t in zip(regs, tmp):
            a(f"{op}_dpp v{t}, v{r}, v{r} row_half_mirror row_mask:0xf bank_mask:0xf")
        for r, t in zip(regs, tmp):
            a(f"{op}_dpp v{r}, v{t}, v{t} row_ror:8 row_mask:0xf bank_mask:0xf")
        for r, t in zip(regs, tmp):
            a(f"v_mov_b32 v{t}, v{r}")
        for r, t in zip(regs, tmp):
            a(f"v_permlane16_swap_b32 v{r}, v{t}")
        for r, t in zip(regs, tmp):
            a(f"{op} v{r}, v{r}, v{t}")
        if n32:
            return
        for r, t in zip(regs, tmp):
            a(f"v_mov_b32 v{t}, v{r}")
        for r, t in zip(regs, tmp):
            a(f"v_permlane32_swap_b32 v{r}, v{t}")
        for r, t in zip(regs, tmp):
            a(f"{op} v{r}, v{r}, v{t}")

    def check(self, loads, acc, mid=None):
        a = self.a
        for t, _, _ in loads:
            a(t + (" nt" if self.cfg.get("gnt") and t.endswith("sc1") else ""))
        if mid:
            mid()
        first = True
        for n, (t, r, cnt) in enumerate(loads):
            a(f"s_waitcnt vmcnt({len(loads)-1-n})")
            for i in range(cnt):
                if first:
                    a(f"v_xor_b32 v{acc}, {sT}, v{r+i}")
                    first = False
                else:
                    a(f"v_bitop3_b32 v{acc}, v{r+i}, v{acc}, {sT} bitop3:0xde")
        a(f"v_and_b32 v{acc}, {vFF}, v{acc}")
        a(f"v_cmp_ne_u32 vcc, 0, v{acc}")

    def poll(self, loads, acc, gate=None, fs=None, vfs=None, gs=None, plain=False, mid=None, keep=False, gfs=True, hook=None, lhook=None, gbump=None):
        a = self.a
        if gate is not None:
            mask, greg, gsoff = gate
            a(f"s_mov_b32 exec_lo, 0x{mask & 0xffffffff:x}")
            a(f"s_mov_b32 exec_hi, 0x{mask >> 32:x}")
            self.poll([(f"buffer_load_dword v25, v{greg}, {WS_}, {gsoff} offen sc1", 25, 1)], acc, fs=fs if gfs else None, lhook=hook)
            a("s_mov_b64 exec, -1")
            keep = gfs
            if gs is not None:
                self.stamp(gs)
        L = a.newlabel("L_poll")
        D = a.newlabel("L_pdone")
        if fs and not keep:
            for so, base in fs:
                a(f"s_add_u32 {so}, {base}, {FS}")
        if gbump:
            mid = lambda: self.bump(CNT[gbump])
        if plain or mid:
            self.check([(t.replace(" sc1", "") if plain else t, r, c) for t, r, c in loads], acc, mid)
            a(f"s_mov_b32 {sPOLL}, {self.poll_limit | 7}")
            a(f"s_cbranch_vccz {D}")
        else:
            a(f"s_mov_b32 {sPOLL}, {self.poll_limit | 7}")
        a.label(L)
        self.check(loads, acc, lhook)
        a(f"s_sub_u32 {sPOLL}, {sPOLL}, 1")
        a(f"s_cbranch_vccz {D}")
        if fs or vfs:
            a(f"s_and_b32 s81, {sPOLL}, 7")
            a(f"s_cselect_b32 s81, {FS}, 0")
            for so, base in (fs or []):
                a(f"s_add_u32 {so}, {base}, s81")
            if vfs:
                a(f"v_mad_u32_u24 v{vfs[0]}, v{vfs[1]}, s81, v{vfs[2]}")
        a(f"s_cmp_lg_u32 {sPOLL}, 0")
        a(f"s_cbranch_scc1 {L}")
        a.label(D)
        if gs is not None and self.stamps:
            a(f"v_writelane_b32 {vSTAMP}, {sPOLL}, {gs+1}")

    def tag(self, regs):
        for r in regs:
            self.a(f"v_bfi_b32 v{r}, {vFF}, {sT}, v{r}")

    def bump(self, cnt, val=vONE):
        a = self.a
        a("s_mov_b64 exec, 1")
        a(f"ds_add_u32 {vZ}, {val} offset:{4*cnt}")
        a("s_mov_b64 exec, -1")

    def lds_wait(self, cnt, need, reads=(), tmp=16, slow=0, rl=False):
        a = self.a
        L = a.newlabel("L_lw")
        D = a.newlabel("L_lwd")
        E = a.newlabel("L_lwe")
        rd = f"ds_read_b32 v{tmp}, {vZ} offset:{4*cnt}"
        nr = len([t for t in reads if t.startswith("ds_")])
        if rl and self.cfg.get("rl", 1):
            a(f"s_mov_b32 {sPOLL}, {self.poll_limit * 8}")
            a.label(L)
            a(rd)
            for t in reads:
                a(t)
            a(f"s_sub_u32 {sPOLL}, {sPOLL}, 1")
            a(f"s_cbranch_scc1 {E}")
            a(f"s_waitcnt lgkmcnt({min(nr, 15)})")
            a(f"v_cmp_le_i32 vcc, {need}, v{tmp}")
            a(f"s_cbranch_vccz {L}")
            a.label(E)
            return
        if reads:
            a(rd)
            for t in reads:
                a(t)
            a(f"s_waitcnt lgkmcnt({min(nr, 15)})")
            a(f"v_cmp_le_i32 vcc, {need}, v{tmp}")
            a(f"s_cbranch_vccnz {E}")
        a(f"s_mov_b32 {sPOLL}, {self.poll_limit * 8}")
        a.label(L)
        a(rd)
        a(f"s_waitcnt lgkmcnt(0)")
        a(f"v_cmp_le_i32 vcc, {need}, v{tmp}")
        a(f"s_sub_u32 {sPOLL}, {sPOLL}, 1")
        a(f"s_cbranch_vccnz {D}")
        for _ in range(slow):
            a("s_nop 15")
        a(f"s_cmp_lg_u32 {sPOLL}, 0")
        a(f"s_cbranch_scc1 {L}")
        a.label(D)
        for t in reads:
            a(t)
        a.label(E)

    def early_pull(self, flag, need, reads, mask):
        a = self.a

        def hook():
            S = a.newlabel("L_hk")
            a(f"s_cmp_lg_u32 {flag}, 0")
            a(f"s_cbranch_scc1 {S}")
            a(f"ds_read_b32 v16, {vZ} offset:{4*C_LANDED}")
            a("s_waitcnt lgkmcnt(0)")
            a(f"v_cmp_le_i32 vcc, {need}, v16")
            a(f"s_cbranch_vccz {S}")
            a("s_mov_b64 exec, -1")
            for t in reads:
                if t[0] == "@":
                    a.label(t[1:])
                else:
                    a(t)
            a(f"s_mov_b32 exec_lo, 0x{mask & 0xffffffff:x}")
            a(f"s_mov_b32 exec_hi, 0x{mask >> 32:x}")
            a(f"s_mov_b32 {flag}, 1")
            a.label(S)
        return hook

    def late_pull(self, flag, need, reads):
        a = self.a
        S = a.newlabel("L_lp")
        a(f"s_cmp_lg_u32 {flag}, 0")
        a(f"s_cbranch_scc1 {S}")
        self.lds_wait(C_LANDED, need, reads, tmp=24)
        a.label(S)

    def slot_of(self, base, sdst, sunit):
        a = self.a
        a(f"s_add_u32 {sdst}, {sW}, {base}")
        a(f"s_add_u32 {sunit}, {sdst}, 1")
        a(f"s_and_b32 {sdst}, {sdst}, {NS-1}")
        a(f"s_lshl_b32 {sdst}, {sdst}, 13")

    def release(self, sslot, n=8):
        a = self.a
        a(f"s_lshr_b32 s67, {sslot}, 11")
        a(f"v_add_u32 v16, s67, {vZ}")
        a(f"v_mov_b32 v17, {n}")
        a("s_mov_b64 exec, 1")
        a(f"ds_add_u32 v16, v17 offset:{4*C_FREE}")
        a("s_mov_b64 exec, -1")

    def release_run(self, slot0, n, val=vONE):
        a = self.a
        a(f"v_add_u32 v16, {vL4}, {vZ}")
        a(f"s_mov_b64 exec, 0x{(1 << n) - 1:x}")
        a(f"ds_add_u32 v16, {val} offset:{4*(C_FREE+slot0)}")
        a("s_mov_b64 exec, -1")

    def pull(self, base, dst, release=False, red=None):
        a = self.a
        self.slot_of(base, "s78", "s79")
        for cg in range(4):
            a(f"v_add_u32 v{TRA+cg}, s78, v{TR+cg}")
        if red:
            self.red_addr(base, red)
        self.lds_wait(C_LANDED, "s79", slow=self.cfg["slow"])
        for cg in range(4):
            for hi in range(2):
                for q in range(2):
                    a(f"ds_read_b64_tr_b16 {v(dst+8*cg+4*hi+2*q,2)}, v{TRA+cg} offset:{(32*hi+16*q)*128}")
        a("s_waitcnt lgkmcnt(0)")
        if release:
            self.release("s78")

    def red_addr(self, base, kind):
        a = self.a
        a(f"v_mul_u32_u24 v16, {SB}, {vB}")
        a(f"v_lshl_add_u32 v16, {vG}, 4, v16")
        a(f"v_add_u32 {vRW}, s78, v16")
        if isinstance(base, int):
            a(f"s_mov_b32 s67, {(base % NS) * SLOTB}")
        else:
            a(f"s_and_b32 s67, {base}, {NS-1}")
            a(f"s_lshl_b32 s67, s67, 13")
        if kind == "row":
            a(f"s_mul_i32 s77, {sW}, {SB}")
            a(f"s_add_u32 s67, s67, s77")
            a(f"v_add_u32 {vRR}, s67, {vL4}")
        else:
            a(f"v_bfe_u32 v16, v0, 2, 3")
            a(f"v_mul_u32_u24 v16, {SB}, v16")
            a(f"v_bfe_u32 v17, v0, 5, 1")
            a(f"v_lshl_add_u32 v16, v17, 7, v16")
            a(f"v_and_b32 v17, 3, v0")
            a(f"v_lshl_add_u32 v16, v17, 2, v16")
            a(f"v_bfe_u32 v17, v0, 6, 2")
            a(f"v_lshl_add_u32 v16, v17, 4, v16")
            a(f"v_bfe_u32 v17, v0, 8, 1")
            a(f"v_lshl_add_u32 v16, v17, 6, v16")
            a(f"v_add_u32 {vRR}, s67, v16")

    def tail(self, tbs, nw, cnt, epilogue, acc=32, slow=0, BB=BB):
        a = self.a
        Lskip = a.newlabel("L_nomm")
        if nw < 8:
            a(f"s_cmp_ge_u32 {sW}, {nw}")
            a(f"s_cbranch_scc1 {Lskip}")
        first = True
        for u, tb in enumerate(tbs):
            for cg in range(4):
                c = "0" if first else v(acc + 4 * cg, 4)
                a(f"v_mfma_f32_16x16x32_bf16 {v(acc+4*cg,4)}, {v(tb+8*cg,4)}, {v(BB+8*u,4)}, {c}")
                a(f"v_mov_b32_dpp v{BB+8*u+4+cg}, v{BB+8*u+cg} row_ror:8 row_mask:0xf bank_mask:0xf")
            first = False
        for u, tb in enumerate(tbs):
            for cg in range(4):
                a(f"v_mfma_f32_16x16x32_bf16 {v(acc+4*cg,4)}, {v(tb+8*cg+4,4)}, {v(BB+8*u+4,4)}, {v(acc+4*cg,4)}")
        a(f"s_mov_b64 exec, {sM8}")
        for cg in range(4):
            a(f"ds_write_b128 {vRW}, {v(acc+4*cg,4)} offset:{64*cg}")
        self.bump(CNT[cnt])
        a.label(Lskip)
        np_ = (nw + 1) // 2
        rd = []
        for p in range(np_):
            if 2 * p + 1 < nw:
                rd.append(f"ds_read2st64_b32 {v(16+2*p,2)}, {vRR} offset0:{64*p} offset1:{64*p+32}")
            else:
                rd.append(f"ds_read_b32 v{16+2*p}, {vRR} offset:{SLOTB*2*p}")
        self.lds_wait(CNT[cnt], nw, rd, tmp=24, slow=slow, rl=not slow)
        for p in range(np_):
            a(f"s_waitcnt lgkmcnt({np_-1-p})")
            if p == 0:
                a("v_add_f32 v16, v16, v17")
            else:
                a(f"v_add_f32 v16, v16, v{16+2*p}")
                if 2 * p + 1 < nw:
                    a(f"v_add_f32 v16, v16, v{17+2*p}")
        epilogue()

    def publish1(self, voff, soff, fast=None):
        a = self.a
        self.tag([16])
        if fast:
            a(f"buffer_store_dword v16, {voff}, {WS_}, {fast} offen")
        a(f"buffer_store_dword v16, {voff}, {WS_}, {soff} offen sc1")

    def ln_consts(self, m, var, t):
        a = self.a
        self.bf16r_pairs([m, var], t)
        a(f"v_add_f32 v{var}, 0x{EPS:x}, v{var}")
        self.bf16r1(var)
        a(f"v_sqrt_f32 v{var}, v{var}")
        self.bf16r1(var)
        a(f"v_rcp_f32 v{var}, v{var}")

    def silu_c(self, src, dst):
        a = self.a
        self.unpack_bf16(src, 32, 4)
        for e in range(8):
            a(f"v_mul_f32 v{40+e}, 0x{LOG2E ^ 0x80000000:x}, v{32+e}")
        for e in range(8):
            a(f"v_exp_f32 v{40+e}, v{40+e}")
        for e in range(8):
            a(f"v_add_f32 v{40+e}, 1.0, v{40+e}")
        for e in range(8):
            a(f"v_rcp_f32 v{40+e}, v{40+e}")
        for e in range(8):
            a(f"v_mul_f32 v{32+e}, v{32+e}, v{40+e}")
        for p in range(4):
            a(f"v_cvt_pk_bf16_f32 v{dst+p}, v{32+2*p}, v{32+2*p+1}")

    def rot_addr(self, sh, c, dst):
        a = self.a
        a(f"v_lshrrev_b32 v16, 5, {vLANE}")
        a(f"v_sub_u32 v{dst+5}, 1, v16")
        a(f"v_add_u32 v16, {sX}, v16")
        for i in range(4):
            r = dst + 4 if i == 0 else dst + i
            a(f"v_add_u32 v17, {2*i}, v16")
            a(f"v_and_b32 v17, 7, v17")
            a(f"v_lshlrev_b32 v17, {sh}, v17")
            a(f"v_lshl_add_u32 v{r}, v{c}, 4, v17")
        a(f"v_lshl_add_u32 v{dst}, v{dst+5}, 22, v{dst+4}")

    def rm_task(self, k0, cg):
        a = self.a
        L1 = a.newlabel("L_rmt")
        a(f"s_and_b32 {k0}, {sL}, 1")
        a(f"s_lshl_b32 {k0}, {k0}, 9")
        a(f"s_bfe_u32 {cg}, {sL}, 0x20001")
        a(f"s_lshl2_add_u32 {cg}, {sX}, {cg}")
        a(f"s_add_u32 {cg}, {cg}, 48")
        a(f"s_cmp_lt_u32 {sL}, 24")
        a(f"s_cbranch_scc1 {L1}")
        a(f"s_and_b32 {k0}, {sL}, 3")
        a(f"s_lshl_b32 {k0}, {k0}, 8")
        a(f"s_bfe_u32 {cg}, {sL}, 0x10002")
        a(f"s_lshl1_add_u32 {cg}, {sX}, {cg}")
        a(f"s_add_u32 {cg}, {cg}, 32")
        a.label(L1)

    def p4_cg(self, d):
        a = self.a
        a(f"s_add_u32 {d}, {sX}, 3")
        a(f"s_and_b32 {d}, {d}, 7")
        a(f"s_lshr_b32 s67, {sL}, 1")
        a(f"s_add_u32 {d}, {d}, s67")
        a(f"s_add_u32 {d}, {d}, 1")
        for _ in range(2):
            a(f"s_cmp_ge_u32 {d}, 7")
            a(f"s_cselect_b32 s67, 7, 0")
            a(f"s_sub_u32 {d}, {d}, s67")
        a(f"s_mul_i32 s67, {sX}, 7")
        a(f"s_add_u32 {d}, {d}, s67")

    def swap_j(self, d, p, q):
        a = self.a
        a(f"s_sub_u32 {d}, {sL}, 16")
        if not self.cfg.get("swap", 1):
            return
        a(f"s_cmp_eq_u32 {sL}, {16+p}")
        a(f"s_cselect_b32 {d}, {q}, {d}")
        a(f"s_cmp_eq_u32 {sL}, {16+q}")
        a(f"s_cselect_b32 {d}, {p}, {d}")

    def koff(self, dst):
        a = self.a
        a(f"v_lshlrev_b32 v{dst}, 11, {vB}")
        a(f"v_lshl_add_u32 v{dst}, {vHI}, 6, v{dst}")
        a(f"v_lshl_add_u32 v{dst}, {vG}, 3, v{dst}")

    def load_bfrag(self, dst, srd, soff, extra=0):
        a = self.a
        a(f"buffer_load_dwordx2 {v(dst,2)}, v8, {srd}, {soff} offen offset:{extra}")
        a(f"buffer_load_dwordx2 {v(dst+2,2)}, v8, {srd}, {soff} offen offset:{extra+32}")

    def p0a_early(self):
        a = self.a
        a(f"v_bfe_u32 v8, {vLANE}, 1, 3")
        a(f"v_lshlrev_b32 v8, 11, v8")
        a(f"v_lshl_add_u32 v8, {vG}, 3, v8")
        a(f"v_and_b32 v9, 1, {vLANE}")
        a(f"v_lshl_add_u32 v8, v9, 5, v8")
        a(f"s_and_b32 s71, {sL}, 3")
        a(f"s_lshl_b32 s67, s71, 9")
        a(f"s_lshl_b32 s70, {sW}, 6")
        a(f"s_add_u32 s67, s67, s70")
        a("s_waitcnt lgkmcnt(0)")
        a(f"buffer_load_dwordx2 v[28:29], v8, {C_}, s67 offen")

    def p0a(self):
        a = self.a
        sb = SLOT["P0A"]
        BF, AF = 96, 128
        a(f"s_lshl_b32 s67, {sW}, 9")
        a(f"v_lshl_add_u32 v8, {vLANE}, 3, {vZ}")
        a(f"v_add_u32 v8, s67, v8")
        a(f"s_lshl_b32 s70, {sX}, 15")
        a(f"s_lshr_b32 s67, {sL}, 2")
        a(f"s_lshl_b32 s67, s67, 13")
        a(f"s_add_u32 s70, s70, s67")
        a(f"s_lshl_b32 s67, {sW}, 11")
        a(f"s_add_u32 s70, s70, s67")
        a(f"s_lshl_b32 s67, s71, 9")
        a(f"s_add_u32 s70, s70, s67")
        a(f"s_add_u32 s70, s70, {WS_SAC}")
        a(f"s_add_u32 s72, s70, {FS}")
        a(f"v_lshlrev_b32 v10, 4, {vB}")
        a(f"v_lshl_add_u32 v10, {vG}, 7, v10")
        a(f"v_add_u32 v30, v10, {vZ}")
        a(f"s_lshl_b32 s67, {sW}, 5")
        a(f"v_xor_b32 v9, s67, v{TR}")
        a(f"s_waitcnt vmcnt(0)")
        self.unpack_bf16(28, 32, 2)
        for e in range(4):
            a(f"v_mul_f32 v{40+e}, 0x{LOG2E ^ 0x80000000:x}, v{32+e}")
        for e in range(4):
            a(f"v_exp_f32 v{40+e}, v{40+e}")
        for e in range(4):
            a(f"v_add_f32 v{40+e}, 1.0, v{40+e}")
        for e in range(4):
            a(f"v_rcp_f32 v{40+e}, v{40+e}")
        for e in range(4):
            a(f"v_mul_f32 v{32+e}, v{32+e}, v{40+e}")
        for p in range(2):
            a(f"v_cvt_pk_bf16_f32 v{32+p}, v{32+2*p}, v{33+2*p}")
        self.epoch()
        self.stamp(sb)
        a(f"ds_write_b64 v8, v[32:33] offset:{L_P-L_AUX}")
        self.bump(CNT["S1"])
        a(f"s_cmp_ge_u32 {sW}, 4")
        a("s_cbranch_scc1 L_att")
        self.lds_wait(CNT["S1"], 8, [f"ds_read_b128 {v(BF+4*st,4)}, v30 offset:{L_P-L_AUX+512*st}" for st in range(8)], tmp=24)
        a("s_waitcnt lgkmcnt(0)")
        self.stamp(sb + 1)
        for u in range(4):
            rd = [f"ds_read_b64_tr_b16 {v(AF+8*u+4*hi+2*q,2)}, v9 offset:{u*SLOTB+(32*hi+16*q)*128}" for hi in range(2) for q in range(2)]
            self.lds_wait(C_LANDED, u + 1, rd, tmp=24)
            for hi in range(2):
                a(f"s_waitcnt lgkmcnt({2-2*hi})")
                c = "0" if u == 0 else v(16 + 4 * hi, 4)
                a(f"v_mfma_f32_16x16x32_bf16 {v(16+4*hi,4)}, {v(AF+8*u+4*hi,4)}, {v(BF+8*u+4*hi,4)}, {c}")
        for r in range(4):
            a(f"v_add_f32 v{16+r}, v{16+r}, v{20+r}")
        self.tag([16, 17, 18, 19])
        a(f"s_mov_b64 exec, {sM8}")
        a(f"buffer_store_dwordx4 v[16:19], v10, {WS_}, s72 offen")
        a(f"buffer_store_dwordx4 v[16:19], v10, {WS_}, s70 offen sc1")
        self.bump(CNT["P0P"])
        self.stamp(sb + 3)
        a("v_mov_b32 v20, 2")
        self.release_run(0, 4, "v20")

    def rm(self, tb):
        a = self.a
        name = "RM"
        self.stamp(SLOT[name])
        self.rm_task("s69", "s72")
        a("s_lshl_b32 s70, s69, 7")
        a("s_lshl_b32 s67, s72, 8")
        a("s_add_u32 s70, s70, s67")
        Lr = a.newlabel("L_rmr")
        Le = a.newlabel("L_rme")
        a(f"s_cmp_ge_u32 {sL}, 24")
        a(f"s_cbranch_scc1 {Lr}")
        a(f"s_lshl_b32 s67, {sW}, 13")
        a("s_add_u32 s70, s70, s67")
        a(f"s_add_u32 s70, s70, {WS_MSC-48*256}")
        self.pull(8, tb, red="row")
        self.stamp(SLOT[name] + 1)
        self.tail([tb], 8, name, lambda: self.publish1(vL4, "s70"), slow=self.cfg["slow"], BB=100)
        self.release_run(8, 8)
        a(f"s_branch {Le}")
        a.label(Lr)
        a(f"s_lshl_b32 s67, {sW}, 12")
        a("s_add_u32 s70, s70, s67")
        a(f"s_add_u32 s70, s70, {WS_MGA-32*256}")
        self.slot_of(12, "s78", "s79")
        self.red_addr(12, "row")
        Ls = a.newlabel("L_rms")
        a(f"s_cmp_ge_u32 {sW}, 4")
        a(f"s_cbranch_scc1 {Ls}")
        self.pull(12, tb)
        self.stamp(SLOT[name] + 1)
        a.label(Ls)
        self.tail([tb], 4, name, lambda: self.publish1(vL4, "s70"), slow=self.cfg["slow"], BB=100)
        self.release_run(12, 4)
        a.label(Le)
        self.stamp(SLOT[name] + 3)

    def p1_early(self):
        a = self.a
        a(f"v_lshlrev_b32 v9, 4, {vLANE}")
        a(f"s_lshl_b32 s70, {sW}, 11")
        a(f"v_bfe_u32 v10, {vLANE}, 3, 2")
        a(f"v_lshlrev_b32 v8, 11, {vB}")
        a(f"v_lshl_add_u32 v8, v10, 3, v8")
        a(f"v_lshrrev_b32 v10, 5, {vLANE}")
        a(f"v_lshl_add_u32 v8, v10, 2, v8")
        a(f"s_lshl_b32 s69, {sX}, 8")
        a(f"s_lshl_b32 s67, {sW}, 5")
        a(f"s_add_u32 s69, s69, s67")
        a("s_waitcnt lgkmcnt(0)")
        a(f"buffer_load_dwordx4 v[32:35], v9, {X_}, s70 offen")
        a(f"buffer_load_dwordx4 v[36:39], v9, {X_}, s70 offen offset:1024")
        a(f"buffer_load_dword v58, v8, {X_}, s69 offen")
        self.rm_task("s69", "s72")
        a(f"s_lshl_b32 s67, {sW}, 6")
        a("s_add_u32 s69, s69, s67")
        a("s_and_b32 s69, s69, 1023")
        a("s_lshl_b32 s69, s69, 1")
        self.koff(8)
        self.load_bfrag(96, C_, "s69")

    def p1(self, tb):
        a = self.a
        sb = SLOT["P1"]
        Y = [60, 61]
        a(f"s_lshl_b32 s70, {sX}, 17")
        a(f"s_lshl_b32 s67, s68, 10")
        a(f"s_add_u32 s70, s70, s67")
        a(f"s_lshl_b32 s67, {sW}, 7")
        a(f"s_add_u32 s70, s70, s67")
        a(f"s_add_u32 s70, s70, {WS_QP}")
        a(f"s_add_u32 s71, s70, {FS}")
        a(f"v_lshlrev_b32 v31, 14, {vB}")
        a(f"v_lshl_add_u32 v31, {vHI}, 6, v31")
        a(f"v_lshl_add_u32 v31, {vG}, 4, v31")
        a(f"v_and_b32 v30, 31, {vLANE}")
        a(f"v_lshl_add_u32 v28, v30, 4, {vZ}")
        a(f"s_lshr_b32 s67, {sW}, 1")
        a(f"s_lshl_b32 s67, s67, 9")
        a(f"s_and_b32 s72, {sW}, 1")
        a(f"s_lshl_b32 s72, s72, 3")
        a(f"s_add_u32 s67, s67, s72")
        a(f"v_add_u32 v28, s67, v28")
        a(f"v_lshl_add_u32 v29, {vB}, 4, {vZ}")
        a(f"v_lshl_add_u32 v29, {vG}, 7, v29")
        a(f"v_lshrrev_b32 v27, 5, {vLANE}")
        a(f"v_lshl_add_u32 v28, v27, 2, v28")
        a(f"v_lshlrev_b32 v27, 14, v27")
        a(f"v_lshl_add_u32 v27, v30, 4, v27")
        a(f"s_and_b32 s67, {sW}, 3")
        a(f"s_lshl_b32 s67, s67, 9")
        a(f"v_add_u32 v26, s67, v27")
        a(f"s_lshl_b32 s73, {sX}, 15")
        a(f"s_lshl_b32 s67, {sW}, 11")
        a(f"s_add_u32 s73, s73, s67")
        a(f"s_add_u32 s73, s73, {WS_SAC}")
        a("s_waitcnt vmcnt(3)")
        self.unpack_bf16(32, 40, 8)
        a("v_add_f32 v18, v40, v41")
        for e in range(2, 16):
            a(f"v_add_f32 v18, v18, v{40+e}")
        self.allred_wave([18], [19])
        a("v_mul_f32 v18, 0x3a800000, v18")
        a("v_mov_b32 v16, 0")
        for e in range(16):
            a(f"v_sub_f32 v17, v{40+e}, v18")
            a(f"v_fmac_f32 v16, v17, v17")
        self.allred_wave([16], [19])
        a("v_mul_f32 v19, 0x3a800000, v16")
        self.ln_consts(18, 19, 16)
        a(f"s_lshl_b32 s67, {sW}, 3")
        a(f"v_add_u32 v16, s67, {vZ}")
        self.epoch()
        self.stamp(sb)
        a("s_barrier")
        a(f"ds_write_b64 v16, v[18:19] offset:{L_ST-L_AUX}")
        self.bump(CNT["S1"])
        a(f"v_lshl_add_u32 v17, {vB}, 3, {vZ}")
        a("s_waitcnt vmcnt(0)")
        self.unpack_bf16(58, 60, 1)
        self.silu_c(96, 100)
        self.lds_wait(CNT["S1"], 8, [f"ds_read_b64 v[18:19], v17 offset:{L_ST-L_AUX}"])
        a("s_waitcnt lgkmcnt(0)")
        for y in Y:
            a(f"v_sub_f32 v{y}, v{y}, v18")
        self.bf16r_pairs(Y, 24)
        for y in Y:
            a(f"v_mul_f32 v{y}, v{y}, v19")
        self.bf16r_pairs(Y, 24)
        a(f"s_lshr_b32 s78, {sW}, 1")
        a(f"s_add_u32 s79, s78, 1")
        a(f"s_lshl_b32 s78, s78, 13")
        a(f"s_lshl_b32 s67, s72, 3")
        a(f"v_xor_b32 v16, s67, v{TR}")
        a(f"v_add_u32 v{TRA}, s78, v16")
        a(f"v_xor_b32 v16, s67, v{TR+1}")
        a(f"v_add_u32 v{TRA+1}, s78, v16")
        def wreads(rh):
            return [f"ds_read_b64_tr_b16 {v(tb+16*rh+8*c2+4*hi+2*q,2)}, v{TRA+c2} offset:{4*SLOTB*rh+(32*hi+16*q)*128}"
                    for c2 in range(2) for hi in range(2) for q in range(2)]
        self.lds_wait(C_LANDED, "s79", slow=self.cfg["slow"])
        for t in wreads(0):
            a(t)
        a(f"s_add_u32 s79, s79, 4")
        a("s_mov_b32 s75, 0")
        self.stamp(sb + 1)
        pl = [(f"buffer_load_dwordx4 {v(32+4*p,4)}, v27, {WS_}, s74 offen offset:{512*p} sc1", 32 + 4 * p, 4) for p in range(4)]
        GM = 0x100000001
        self.poll(pl, 24, gate=(GM, 26, "s74"), fs=[("s74", "s73")], gs=40, hook=self.early_pull("s75", "s79", wreads(1), GM))
        self.stamp(sb + 2)
        for e in range(4):
            a(f"v_add_f32 v{32+e}, v{32+e}, v{36+e}")
            a(f"v_add_f32 v{40+e}, v{40+e}, v{44+e}")
        for e in range(4):
            a(f"v_add_f32 v{32+e}, v{32+e}, v{40+e}")
        a("v_permlane32_swap_b32 v32, v34")
        a("v_permlane32_swap_b32 v33, v35")
        self.bf16r_pairs([34, 35], 24)
        for e in range(2):
            a(f"v_add_f32 v{34+e}, 1.0, v{34+e}")
        self.bf16r_pairs([34, 35], 24)
        self.bf16r_pairs([32, 33], 25)
        for e in range(2):
            a(f"v_mul_f32 v{34+e}, v{Y[e]}, v{34+e}")
        self.bf16r_pairs([34, 35], 24)
        for e in range(2):
            a(f"v_add_f32 v{32+e}, v{32+e}, v{34+e}")
        a("v_cvt_pk_bf16_f32 v32, v32, v33")
        a(f"ds_write_b32 v28, v32 offset:{L_H-L_AUX}")
        self.bump(CNT["H"])
        self.xs(0)
        self.late_pull("s75", "s79", wreads(1))
        self.lds_wait(CNT["H"], 8, [f"ds_read_b128 {v(32+4*st,4)}, v29 offset:{L_H-L_AUX+512*st}" for st in range(4)], tmp=24, rl=True)
        for st in range(4):
            a(f"s_waitcnt lgkmcnt({3-st})")
            for c2 in range(2):
                c = "0" if st == 0 else v(16 + 4 * c2, 4)
                a(f"v_mfma_f32_16x16x32_bf16 {v(16+4*c2,4)}, {v(tb+16*(st>>1)+8*c2+4*(st&1),4)}, {v(32+4*st,4)}, {c}")
        self.xs(1)
        a(f"s_lshr_b32 s67, s68, 2")
        a(f"s_cmp_lg_u32 s67, {sHKV}")
        for e in range(4):
            a(f"v_cndmask_b32 v{16+e}, v{20+e}, v{16+e}, {sM8}")
        self.tag([16, 17, 18, 19])
        a(f"buffer_store_dwordx4 v[16:19], v31, {WS_}, s70 offen sc1")
        Ln = a.newlabel("L_nopl")
        a(f"s_cbranch_scc1 {Ln}")
        a(f"buffer_store_dwordx4 v[16:19], v31, {WS_}, s71 offen")
        a.label(Ln)
        self.bump(CNT["P1P"])
        self.stamp(sb + 3)
        a(f"s_lshr_b32 s67, s78, 11")
        a(f"v_add_u32 v24, s67, {vZ}")
        a(f"v_mov_b32 v25, 4")
        a("s_mov_b64 exec, 1")
        a(f"ds_add_u32 v24, v25 offset:{4*C_FREE}")
        a(f"ds_add_u32 v24, v25 offset:{4*C_FREE+16}")
        a("s_mov_b64 exec, -1")

    def att(self, uK):
        a = self.a
        sb = SLOT["ATT"]
        uV = uK + 8
        KR, VR, PR = 64, 96, 128
        self.stamp(sb)
        a(f"s_and_b32 s72, s68, 3")
        a(f"s_and_b32 s73, {sX}, 1")
        a(f"s_lshl_b32 s73, s73, 2")
        a(f"s_lshr_b32 s67, s68, 2")
        a(f"s_add_u32 s73, s73, s67")
        a(f"s_mov_b32 s74, {sHKV}")
        a(f"v_and_b32 v8, 31, {vLANE}")
        self.rot_addr(17, 8, 56)
        a(f"s_lshl_b32 s66, s73, 14")
        a(f"s_lshl_b32 s67, s74, 12")
        a(f"s_add_u32 s66, s66, s67")
        a(f"s_lshl_b32 s67, {sW}, 9")
        a(f"s_add_u32 s66, s66, s67")
        a(f"s_add_u32 s66, s66, {WS_QP}")
        a(f"s_mul_i32 s67, {sW}, 272")
        a(f"v_lshl_add_u32 v28, v8, 3, {vZ}")
        a(f"v_add_u32 v28, s67, v28")
        a(f"v_lshrrev_b32 v16, 5, {vLANE}")
        a(f"v_lshl_add_u32 v28, v16, 2, v28")
        a(f"v_mul_u32_u24 v29, 272, {vB}")
        a(f"v_lshl_add_u32 v29, {vG}, 4, v29")
        a(f"v_add_u32 v29, v29, {vZ}")
        a(f"v_lshl_add_u32 v30, {vB}, 4, {vZ}")
        a(f"v_lshl_add_u32 v30, {vG}, 7, v30")
        a(f"s_lshl_b32 s67, {sW}, 9")
        a(f"v_add_u32 v31, s67, v30")
        a(f"v_lshl_add_u32 v31, {vHI}, 3, v31")
        a(f"v_mul_u32_u24 v26, 80, {vB}")
        a(f"v_add_u32 v26, v26, {vZ}")
        a(f"s_lshl_b32 s67, {sW}, 3")
        a(f"v_add_u32 v27, s67, v26")
        a(f"v_lshl_add_u32 v26, {vHI}, 5, v26")
        for r in range(PR, PR + 32):
            a(f"v_mov_b32 v{r}, 0")
        a(f"s_not_b64 s[86:87], {sM8}")
        a(f"s_lshl_b32 s75, s73, 2")
        a(f"s_add_u32 s75, s75, s72")
        a(f"s_lshl_b32 s76, s73, 7")
        a(f"s_lshl2_add_u32 s76, s72, s76")
        a(f"s_lshl_b32 s75, s75, 14")
        a(f"s_lshl_b32 s67, s74, 12")
        a(f"s_add_u32 s75, s75, s67")
        a(f"s_lshl_b32 s67, {sW}, 9")
        a(f"s_add_u32 s75, s75, s67")
        a(f"s_add_u32 s75, s75, {WS_OP}")
        a(f"s_lshl_b32 s67, s74, 10")
        a(f"s_add_u32 s76, s76, s67")
        a(f"s_add_u32 s76, s76, {WS_LSE}")
        a(f"v_sub_u32 v10, v30, {vZ}")
        a(f"v_lshrrev_b32 v16, 2, {vLANE}")
        a(f"v_and_b32 v17, 7, v16")
        a(f"v_xor_b32 v17, {sW}, v17")
        a(f"v_lshlrev_b32 v16, 8, v16")
        a(f"v_lshl_add_u32 v16, v17, 5, v16")
        a(f"v_and_b32 v17, 3, {vLANE}")
        a(f"v_lshl_add_u32 v62, v17, 3, v16")
        a(f"v_add_u32 v63, 0x10000, v62")
        self.slot_of(uK, "s78", "s79")
        a(f"v_xor_b32 v16, {vG}, {vI}")
        a(f"v_lshlrev_b32 v16, 4, v16")
        a(f"v_lshl_add_u32 v16, {vI}, 8, v16")
        for st in range(4):
            a(f"v_xor_b32 v17, {64*st}, v16")
            a(f"v_add_u32 v{TRA+st}, s78, v17")
        self.lds_wait(C_LANDED, "s79", slow=self.cfg["slow"])
        for kb in range(2):
            for st in range(4):
                a(f"ds_read_b128 {v(KR+16*kb+4*st,4)}, v{TRA+st} offset:{4096*kb}")
        a("s_waitcnt lgkmcnt(0)")
        self.release("s78")
        vr = []
        for t in range(8):
            sl = (uV + t) % NS
            for q in range(2):
                off = sl * SLOTB + 4096 * q
                vr.append(f"ds_read_b64_tr_b16 {v(VR+4*t+2*q,2)}, v{62 + off//65536} offset:{off % 65536}")
        a("s_mov_b32 s77, 0")
        GM = 0x100000001
        if self.cfg.get("qlate"):
            self.lds_wait(C_LANDED, uV + self.cfg["qlate"], slow=self.cfg["slow"])
            self.stamp(sb + 1)
        self.poll([(f"buffer_load_dwordx4 {v(32+4*i,4)}, v{56+i}, {WS_}, s66 offen sc1", 32 + 4 * i, 4) for i in range(4)], 24,
                  gate=(GM, 58, "s66") if self.cfg.get("qgate", 1) else None, vfs=(56, 61, 60), gs=54,
                  hook=self.early_pull("s77", uV + 8, vr, GM),
                  mid=self.early_pull("s77", uV + 8, vr, (1 << 64) - 1) if self.cfg.get("vp", 3) & 1 else None)
        self.stamp(sb + 2)
        for i in range(4):
            a(f"v_add_f32 v{32+i}, v{32+i}, v{36+i}")
            a(f"v_add_f32 v{40+i}, v{40+i}, v{44+i}")
        for i in range(4):
            a(f"v_add_f32 v{32+i}, v{32+i}, v{40+i}")
        a("v_permlane32_swap_b32 v32, v34")
        a("v_permlane32_swap_b32 v33, v35")
        a("v_add_f32 v32, v32, v34")
        a("v_add_f32 v33, v33, v35")
        a("v_cvt_pk_bf16_f32 v32, v32, v33")
        a(f"ds_write_b32 v28, v32 offset:{L_Q-L_AUX}")
        self.bump(CNT["Q"])
        if self.cfg.get("vp", 3) & 2:
            self.early_pull("s77", uV + 8, vr, (1 << 64) - 1)()
        self.lds_wait(CNT["Q"], 8, [f"ds_read_b128 {v(32+4*st,4)}, v29 offset:{L_Q-L_AUX+64*st}" for st in range(4)], tmp=24, rl=True)
        for st in range(4):
            a(f"s_waitcnt lgkmcnt({3-st})")
            for kb in range(2):
                c = "0" if st == 0 else v(16 + 4 * kb, 4)
                a(f"v_mfma_f32_16x16x32_bf16 {v(16+4*kb,4)}, {v(KR+16*kb+4*st,4)}, {v(32+4*st,4)}, {c}")
        self.xs(0)
        Z = [16, 17, 18, 19]
        for e in range(4):
            a(f"v_cndmask_b32 v{16+e}, v{20+e}, v{16+e}, {sM8}")
        self.bf16r_pairs(Z[:2], 24)
        self.bf16r_pairs(Z[2:], 25)
        for z in Z:
            a(f"v_mul_f32 v{z}, 0x{SCALE:x}, v{z}")
        self.bf16r_pairs(Z[:2], 24)
        self.bf16r_pairs(Z[2:], 25)
        a("v_max3_f32 v32, v16, v17, v18")
        a("v_max_f32 v33, v32, v19")
        a("v_max_f32_dpp v32, v33, v33 row_ror:8 row_mask:0xf bank_mask:0xf")
        self.allred_g([32], "v_max_f32", [33])
        a(f"v_mul_f32 v32, 0x{LOG2E:x}, v32")
        for z in Z:
            a(f"v_fma_f32 v{z}, v{z}, {sLOG}, -v32")
        for z in Z:
            a(f"v_exp_f32 v{z}, v{z}")
        a("v_cvt_pk_bf16_f32 v36, v16, v17")
        a("v_cvt_pk_bf16_f32 v37, v18, v19")
        a(f"ds_write_b64 v31, v[36:37] offset:{L_P-L_AUX}")
        a("v_add_f32 v16, v16, v17")
        a("v_add_f32 v18, v18, v19")
        a("v_add_f32 v34, v16, v18")
        a("v_add_f32_dpp v33, v34, v34 row_ror:8 row_mask:0xf bank_mask:0xf")
        self.allred_g([33], "v_add_f32", [34])
        a(f"ds_write_b64 v27, v[32:33] offset:{L_ML-L_AUX}")
        self.bump(CNT["P"])
        self.xs(1)
        self.late_pull("s77", uV + 8, vr)
        self.xs(2)
        rd = [f"ds_read_b128 {v(32+4*i,4)}, v26 offset:{L_ML-L_AUX+16*i}" for i in range(2)]
        rd += [f"s_mov_b64 exec, {sM8}"]
        rd += [f"ds_read_b128 {v(PR+4*t,4)}, v30 offset:{L_P-L_AUX+512*t}" for t in range(4)]
        rd += [f"s_mov_b64 exec, s[86:87]"]
        rd += [f"ds_read_b128 {v(PR+4*t,4)}, v30 offset:{L_P-L_AUX+512*t}" for t in range(4, 8)]
        rd += [f"s_mov_b64 exec, -1"]
        self.lds_wait(CNT["P"], 8, rd, tmp=24, rl=self.cfg.get("rlp", 0))
        self.xs(3)
        a("s_waitcnt lgkmcnt(8)")
        a("v_max3_f32 v16, v32, v34, v36")
        a("v_max_f32 v17, v16, v38")
        a("v_max_f32_dpp v16, v17, v17 row_ror:8 row_mask:0xf bank_mask:0xf")
        if self.cfg.get("lsef", 1):
            for t in range(4):
                a(f"v_sub_f32 v{32+2*t}, v{32+2*t}, v16")
            for t in range(4):
                a(f"v_exp_f32 v{32+2*t}, v{32+2*t}")
            for t in range(4):
                a(f"v_mul_f32 v18, v32, v33" if t == 0 else f"v_fmac_f32 v18, v{32+2*t}, v{33+2*t}")
            Ln = a.newlabel("L_nolse")
            a(f"s_cmp_lg_u32 {sW}, 7")
            a("v_add_f32_dpp v17, v18, v18 row_ror:8 row_mask:0xf bank_mask:0xf")
            a(f"s_cbranch_scc1 {Ln}")
            a("v_log_f32 v18, v17")
            a("s_mov_b64 exec, 0xff")
            a("v_add_f32 v18, v16, v18")
            self.tag([18])
            a(f"buffer_store_dword v18, v10, {WS_}, s76 offen sc1")
            a("s_mov_b64 exec, -1")
            a.label(Ln)
            for t in range(4):
                a(f"s_waitcnt lgkmcnt({7-t})")
                a(f"v_mfma_f32_16x16x32_bf16 {v(KR+4*t,4)}, {v(VR+4*t,4)}, {v(PR+4*t,4)}, 0")
            for t in range(4):
                a(f"s_waitcnt lgkmcnt({3-t})")
                a(f"v_mfma_f32_16x16x32_bf16 {v(KR+4*t,4)}, {v(VR+16+4*t,4)}, {v(PR+16+4*t,4)}, {v(KR+4*t,4)}")
                if t == 0:
                    a("v_rcp_f32 v18, v17")
            for i in range(4):
                a(f"v_mul_f32 v{20+i}, v32, v{KR+i}")
        else:
            for t in range(4):
                a(f"s_waitcnt lgkmcnt({7-t})")
                a(f"v_mfma_f32_16x16x32_bf16 {v(KR+4*t,4)}, {v(VR+4*t,4)}, {v(PR+4*t,4)}, 0")
                a(f"v_sub_f32 v{32+2*t}, v{32+2*t}, v16")
                a(f"v_exp_f32 v{32+2*t}, v{32+2*t}")
            for t in range(4):
                a(f"s_waitcnt lgkmcnt({3-t})")
                a(f"v_mfma_f32_16x16x32_bf16 {v(KR+4*t,4)}, {v(VR+16+4*t,4)}, {v(PR+16+4*t,4)}, {v(KR+4*t,4)}")
                a(f"v_mul_f32 v18, v32, v33" if t == 0 else f"v_fmac_f32 v18, v{32+2*t}, v{33+2*t}")
            a("v_add_f32_dpp v17, v18, v18 row_ror:8 row_mask:0xf bank_mask:0xf")
            a("v_rcp_f32 v18, v17")
            a("v_log_f32 v17, v17")
            for i in range(4):
                a(f"v_mul_f32 v{20+i}, v32, v{KR+i}")
            Ln = a.newlabel("L_nolse")
            a(f"s_cmp_lg_u32 {sW}, 7")
            a(f"s_cbranch_scc1 {Ln}")
            a("v_add_f32 v17, v16, v17")
            self.tag([17])
            a("s_mov_b64 exec, 0xff")
            a(f"buffer_store_dword v17, v10, {WS_}, s76 offen sc1")
            a("s_mov_b64 exec, -1")
            a.label(Ln)
        for t in range(1, 4):
            for i in range(4):
                a(f"v_fmac_f32 v{20+i}, v{32+2*t}, v{KR+4*t+i}")
        for i in range(4):
            a(f"v_add_f32_dpp v{40+i}, v{20+i}, v{20+i} row_ror:8 row_mask:0xf bank_mask:0xf")
        for i in range(4):
            a(f"v_mul_f32 v{40+i}, v{40+i}, v18")
        self.tag([40, 41, 42, 43])
        a(f"s_mov_b64 exec, {sM8}")
        a(f"buffer_store_dwordx4 v[40:43], v10, {WS_}, s75 offen sc1")
        self.bump(CNT["ATTP"])
        self.stamp(sb + 3)
        self.release_run(uV % NS, NS - uV % NS)
        self.release_run(0, 8 - (NS - uV % NS))

    def p3(self, ubase, tb):
        a = self.a
        sb = SLOT["P3"]
        self.stamp(sb)
        a(f"s_lshl_b32 s70, {sX}, 15")
        a(f"s_lshl_b32 s67, s68, 8")
        a(f"s_add_u32 s70, s70, s67")
        a(f"s_lshl_b32 s67, {sW}, 12")
        a(f"s_add_u32 s70, s70, s67")
        a(f"s_add_u32 s70, s70, {WS_AP}")
        a(f"s_add_u32 s69, s70, {FS}")
        a(f"v_lshlrev_b32 v8, 4, {vLANE}")
        a(f"s_lshl_b32 s72, {sX}, 11")
        a(f"s_lshl_b32 s67, {sW}, 16")
        a(f"s_add_u32 s72, s72, s67")
        a(f"s_add_u32 s72, s72, {WS_OP}")
        for i in range(1, 4):
            a(f"s_add_u32 s{72+i}, s72, {16384*i}")
        a(f"v_lshlrev_b32 v9, 4, {vB}")
        a(f"s_lshr_b32 s71, {sX}, 1")
        a(f"s_lshl_b32 s71, s71, 10")
        a(f"s_lshl_b32 s67, {sW}, 7")
        a(f"s_add_u32 s71, s71, s67")
        a(f"s_add_u32 s71, s71, {WS_LSE}")
        a(f"v_bfe_u32 v16, v0, 2, 1")
        a(f"v_lshl_add_u32 v16, {vG}, 1, v16")
        a(f"v_lshl_add_u32 v29, v16, 9, {vZ}")
        a(f"v_xor_b32 v16, {sW}, v16")
        a(f"v_lshl_add_u32 v29, v16, 4, v29")
        a(f"v_and_b32 v16, 1, v0")
        a(f"v_lshl_add_u32 v29, v16, 8, v29")
        a(f"v_lshl_add_u32 v29, {vHI}, 7, v29")
        a(f"v_bfe_u32 v16, v0, 1, 1")
        a(f"v_lshl_add_u32 v29, v16, 3, v29")
        a(f"s_and_b32 s67, {sW}, 3")
        a(f"s_lshl_b32 s67, s67, 1")
        a(f"v_xor_b32 v16, {vHI}, {vB}")
        a(f"v_xor_b32 v16, s67, v16")
        a(f"v_lshl_add_u32 v30, v16, 4, {vZ}")
        a(f"v_lshl_add_u32 v30, {vG}, 7, v30")
        a(f"v_lshl_add_u32 v30, {vHI}, 9, v30")
        a(f"s_lshl_b32 s67, {sW}, 10")
        a(f"v_add_u32 v30, s67, v30")
        self.slot_of(ubase, "s78", "s79")
        for cg in range(4):
            a(f"v_add_u32 v{TRA+cg}, s78, v{TR+cg}")
        self.red_addr(ubase, "row")
        wr = [f"ds_read_b64_tr_b16 {v(tb+8*cg+4*hi+2*q,2)}, v{TRA+cg} offset:{(32*hi+16*q)*128}" for cg in range(4) for hi in range(2) for q in range(2)]
        a("s_mov_b32 s77, 0")
        self.mod_addr()
        Lnm = a.newlabel("L_nomod")
        hk = wr + [f"s_cmp_lt_u32 {sL}, 24", f"s_cbranch_scc1 {Lnm}"] + [t for t, _, _ in self.mod_loads()] + [f"@{Lnm}"]
        self.stamp(sb + 1)
        self.poll([(f"buffer_load_dwordx4 v[32:35], v9, {WS_}, s71 offen sc1", 32, 4)], 24,
                  lhook=self.early_pull("s77", "s79", hk if self.cfg.get("hmod", 2) == 1 else wr, (1 << 64) - 1))
        self.stamp(42)
        G0 = 128
        pl = []
        for sp in range(4):
            for i in range(2):
                r = G0 + 8 * sp + 4 * i
                pl.append((f"buffer_load_dwordx4 {v(r,4)}, v8, {WS_}, s{72+sp} offen offset:{1024*i} sc1", r, 4))

        def weights():
            a("v_max3_f32 v36, v32, v33, v34")
            a("v_max_f32 v36, v36, v35")
            for w in range(32, 36):
                a(f"v_sub_f32 v{w}, v{w}, v36")
            for w in range(32, 36):
                a(f"v_exp_f32 v{w}, v{w}")
            a("v_add_f32 v36, v32, v33")
            a("v_add_f32 v37, v34, v35")
            a("v_add_f32 v36, v36, v37")
            a("v_rcp_f32 v36, v36")
            for w in range(32, 36):
                a(f"v_mul_f32 v{w}, v{w}, v36")
        self.poll(pl, 24, plain=self.cfg["plain"], mid=weights)
        if self.stamps:
            a(f"v_writelane_b32 {vSTAMP}, {sPOLL}, 43")
        self.stamp(sb + 2)
        for e in range(8):
            a(f"v_mul_f32 v{G0+e}, v32, v{G0+e}")
        for sp in range(1, 4):
            for e in range(8):
                a(f"v_fmac_f32 v{G0+e}, v{32+sp}, v{G0+8*sp+e}")
        for p in range(4):
            a(f"v_cvt_pk_bf16_f32 v{16+p}, v{G0+2*p}, v{G0+1+2*p}")
        a(f"ds_write_b64 v29, v[16:17] offset:{L_OB-L_AUX}")
        a(f"ds_write_b64 v29, v[18:19] offset:{L_OB-L_AUX+4096}")
        self.bump(CNT["P3G"])
        self.late_pull("s77", "s79", wr)
        self.lds_wait(CNT["P3G"], 8, [f"ds_read_b128 {v(BB,4)}, v30 offset:{L_OB-L_AUX}"], tmp=24, rl=True)
        if self.cfg.get("hmod", 2) == 2:
            a(f"s_cmp_lt_u32 {sL}, 24")
            a(f"s_cbranch_scc1 {Lnm}")
            for t, _, _ in self.mod_loads():
                a(t)
            a.label(Lnm)
        a("s_waitcnt lgkmcnt(0)")
        self.xs(2)
        self.tail([tb], 8, "P3", lambda: self.publish1(vL4, "s70", fast="s69"))
        self.bump(CNT["P3P"])
        self.stamp(sb + 3)

    def mod_addr(self):
        a = self.a
        a(f"v_and_b32 v16, 31, {vLANE}")
        a(f"v_lshlrev_b32 v16, 4, v16")
        a(f"v_lshrrev_b32 v17, 5, {vLANE}")
        a(f"v_lshl_add_u32 v112, v17, 15, v16")
        a(f"v_lshl_add_u32 v113, v17, 16, v16")
        a(f"s_and_b32 s97, {sL}, 7")
        a(f"s_lshl_b32 s67, {sW}, 9")
        a(f"s_lshl_b32 s94, s97, 12")
        a(f"s_add_u32 s94, s94, s67")
        a(f"s_add_u32 s94, s94, {WS_MGA}")
        a(f"s_add_u32 s95, s94, 65536")
        a(f"s_lshl_b32 s96, s97, 13")
        a(f"s_add_u32 s96, s96, s67")
        a(f"s_add_u32 s96, s96, {WS_MSC}")
        a(f"s_add_u32 s97, s96, 4096")
        a(f"v_not_b32 v96, {sT}")

    def mod_loads(self):
        return [(f"buffer_load_dwordx4 {v(r,4)}, v{ad}, {WS_}, {so} offen sc1", r, 4)
                for r, ad, so in ((96, 112, "s94"), (108, 112, "s95"), (100, 113, "s96"), (104, 113, "s97"))]

    def r3(self):
        a = self.a
        sb = SLOT["R3"]
        a(f"v_and_b32 v8, 31, {vLANE}")
        a(f"v_lshlrev_b32 v9, 4, v8")
        a(f"s_lshl_b32 s67, {sW}, 9")
        a(f"s_lshl_b32 s71, s69, 12")
        a(f"s_add_u32 s71, s71, s67")
        ml = self.mod_loads()
        a(f"v_lshrrev_b32 v16, 1, v9")
        a(f"s_lshr_b32 s67, s71, 1")
        a(f"buffer_load_dwordx2 v[28:29], v16, {X_}, s67 offen")
        self.rot_addr(15, 8, 64)
        a(f"s_add_u32 s77, s71, {WS_AP}")
        a(f"s_lshl_b32 s67, {sX}, 15")
        a(f"s_add_u32 s71, s71, s67")
        a(f"s_lshl_b32 s70, {sX}, 3")
        a(f"s_add_u32 s70, s70, s69")
        a(f"s_mul_i32 s70, s70, {H2R}")
        a(f"s_lshl_b32 s67, {sW}, 9")
        a(f"s_add_u32 s70, s70, s67")
        a(f"s_add_u32 s70, s70, {WS_H2}")
        a(f"s_add_u32 s76, s70, {FS}")
        a(f"s_add_u32 s71, s71, {WS_X1}")
        a(f"s_lshl_b32 s67, {sW}, 3")
        a(f"v_add_u32 v10, s67, {vZ}")
        gate = self.cfg.get("r3gate")

        def mod():
            Lok = a.newlabel("L_modok")
            a(f"s_waitcnt vmcnt({3 if gate else 7})")
            a(f"v_xor_b32 v25, {sT}, v96")
            for r in range(97, 112):
                a(f"v_bitop3_b32 v25, v{r}, v25, {sT} bitop3:0xde")
            a(f"v_and_b32 v25, {vFF}, v25")
            a(f"v_cmp_ne_u32 vcc, 0, v25")
            a(f"s_cbranch_vccz {Lok}")
            self.poll(ml, 25)
            a.label(Lok)
            for i in range(4):
                a(f"v_add_f32 v{96+i}, v{96+i}, v{108+i}")
            M = list(range(96, 108))
            T = list(range(116, 128))
            for r, t in zip(M, T):
                a(f"v_mov_b32 v{t}, v{r}")
            for r, t in zip(M, T):
                a(f"v_permlane32_swap_b32 v{r}, v{t}")
            for r, t in zip(M, T):
                a(f"v_add_f32 v{r}, v{r}, v{t}")
            self.bf16r_pairs(M, 25)
            for i in range(4):
                a(f"v_add_f32 v{104+i}, 1.0, v{104+i}")
            self.bf16r_pairs([104, 105, 106, 107], 25)
            a(f"s_waitcnt vmcnt({0 if gate else 4})")
            self.unpack_bf16(28, 108, 2)
            self.stamp(sb + 1)
        self.stamp(sb)
        if gate:
            mod()
        self.poll([(f"buffer_load_dwordx4 {v(32+4*k,4)}, v{64+k}, {WS_}, s77 offen sc1", 32 + 4 * k, 4) for k in range(4)], 24,
                  vfs=(64, 69, 68), gate=(0x100000001, 66, "s77") if gate else None, gs=56 if gate else None, mid=None if gate else mod)
        self.stamp(sb + 2)
        for i in range(4):
            a(f"v_add_f32 v{32+i}, v{32+i}, v{36+i}")
            a(f"v_add_f32 v{40+i}, v{40+i}, v{44+i}")
        for i in range(4):
            a(f"v_add_f32 v{32+i}, v{32+i}, v{40+i}")
        for i in range(4):
            a(f"v_mov_b32 v{36+i}, v{32+i}")
        for i in range(4):
            a(f"v_permlane32_swap_b32 v{32+i}, v{36+i}")
        for i in range(4):
            a(f"v_add_f32 v{32+i}, v{32+i}, v{36+i}")
        X = [32, 33, 34, 35]
        self.bf16r_pairs(X, 24)
        for i in range(4):
            a(f"v_mul_f32 v{32+i}, v{32+i}, v{96+i}")
        self.bf16r_pairs(X, 24)
        for i in range(4):
            a(f"v_add_f32 v{32+i}, v{32+i}, v{108+i}")
        self.bf16r_pairs(X, 24)
        a("v_add_f32 v16, v32, v33")
        a("v_mul_f32 v17, v32, v32")
        a("v_add_f32 v18, v34, v35")
        a("v_fmac_f32 v17, v33, v33")
        a("v_add_f32 v16, v16, v18")
        a("v_fmac_f32 v17, v34, v34")
        a("v_fmac_f32 v17, v35, v35")
        self.allred_wave([16, 17], [18, 19], n32=True)
        a(f"ds_write_b64 v10, v[16:17] offset:{L_ST+64-L_AUX}")
        self.bump(CNT["R3"])
        self.xs(3)
        for i in range(4):
            a(f"v_bfi_b32 v{36+i}, {vFF}, {sT}, v{32+i}")
        a("s_mov_b32 exec_hi, 0")
        a(f"buffer_store_dwordx4 v[36:39], v9, {WS_}, s71 offen sc1")
        a("s_mov_b32 exec_hi, -1")
        self.lds_wait(CNT["R3"], 8, [f"ds_read_b128 {v(16+4*q,4)}, {vZ} offset:{L_ST+64-L_AUX+16*q}" for q in range(4)], tmp=40)
        a("s_waitcnt lgkmcnt(2)")
        a("v_add_f32 v16, v16, v18")
        a("v_add_f32 v17, v17, v19")
        a("v_add_f32 v20, v20, v22")
        a("v_add_f32 v21, v21, v23")
        a("s_waitcnt lgkmcnt(0)")
        a("v_add_f32 v24, v24, v26")
        a("v_add_f32 v25, v25, v27")
        a("v_add_f32 v28, v28, v30")
        a("v_add_f32 v29, v29, v31")
        a("v_add_f32 v16, v16, v20")
        a("v_add_f32 v17, v17, v21")
        a("v_add_f32 v24, v24, v28")
        a("v_add_f32 v25, v25, v29")
        a("v_add_f32 v16, v16, v24")
        a("v_add_f32 v17, v17, v25")
        a("v_mul_f32 v16, 0x3a800000, v16")
        a("v_mul_f32 v17, 0x3a800000, v17")
        a("v_fma_f32 v17, -v16, v16, v17")
        a("v_max_f32 v17, 0, v17")
        self.ln_consts(16, 17, 18)
        for x in X:
            a(f"v_sub_f32 v{x}, v{x}, v16")
        self.bf16r_pairs(X, 24)
        for x in X:
            a(f"v_mul_f32 v{x}, v{x}, v17")
        self.bf16r_pairs(X, 24)
        for i in range(4):
            a(f"v_mul_f32 v{32+i}, v{32+i}, v{104+i}")
        self.bf16r_pairs(X, 24)
        for i in range(4):
            a(f"v_add_f32 v{32+i}, v{32+i}, v{100+i}")
        self.bf16r_pairs(X, 24)
        self.tag(X)
        a("s_mov_b32 exec_hi, 0")
        a(f"buffer_store_dwordx4 v[32:35], v9, {WS_}, s76 offen")
        a(f"buffer_store_dwordx4 v[32:35], v9, {WS_}, s70 offen sc1")
        self.bump(CNT["R3P"])
        self.stamp(sb + 3)

    def p4(self):
        a = self.a
        sb = SLOT["P4"]
        self.stamp(sb)
        self.p4_cg("s72")
        a(f"s_and_b32 s71, s68, 1")
        a(f"s_mul_i32 s70, s71, {56*2048}")
        a(f"s_lshl_b32 s67, s72, 11")
        a(f"s_add_u32 s70, s70, s67")
        a(f"s_lshl_b32 s67, {sW}, 8")
        a(f"s_add_u32 s70, s70, s67")
        a(f"s_add_u32 s70, s70, {WS_GU}")
        a(f"s_add_u32 s69, s70, {FS}")
        a(f"v_lshrrev_b32 v8, 5, {vLANE}")
        a(f"v_mul_u32_u24 v9, {H2R}, v8")
        a(f"v_lshl_add_u32 v9, {vI}, 4, v9")
        a(f"v_bfe_u32 v10, {vLANE}, 4, 1")
        a(f"v_lshl_add_u32 v9, v10, 11, v9")
        a(f"v_mul_u32_u24 v26, {H2R}, {vLANE}")
        a(f"s_and_b32 s67, s68, 1")
        a(f"s_lshl_b32 s67, s67, 11")
        a(f"v_add_u32 v26, s67, v26")
        self.slot_of(4, "s78", "s79")
        self.red_addr(4, "frag")
        a(f"s_add_u32 s67, s78, 4096")
        a(f"v_mul_u32_u24 v29, 272, v8")
        a(f"v_bfe_u32 v30, v0, 3, 2")
        a(f"v_lshl_add_u32 v29, v30, 6, v29")
        a(f"v_and_b32 v30, 3, v0")
        a(f"v_lshl_add_u32 v29, v30, 4, v29")
        a(f"v_bfe_u32 v30, v0, 2, 1")
        a(f"v_lshl_add_u32 v29, v30, 3, v29")
        a(f"v_add_u32 v29, s67, v29")
        a(f"v_mul_u32_u24 v30, 272, {vB}")
        a(f"v_lshl_add_u32 v30, {vHI}, 6, v30")
        a(f"v_lshl_add_u32 v30, {vG}, 4, v30")
        a(f"v_add_u32 v30, s67, v30")
        self.pull(20, A[0])
        self.pull(28, A[1])
        a(f"s_mul_i32 s72, {sX}, {8*H2R}")
        a(f"s_lshl_b32 s67, {sW}, 8")
        a(f"s_add_u32 s72, s72, s67")
        a(f"s_add_u32 s72, s72, {WS_H2}")
        for i in range(1, 4):
            a(f"s_add_u32 s{72+i}, s72, {2*H2R*i}")
        self.stamp(sb + 1)
        pl = []
        for i in range(4):
            r = 32 + 4 * i
            pl.append((f"buffer_load_dwordx4 {v(r,4)}, v9, {WS_}, s{76+i} offen sc1", r, 4))
        self.poll(pl, 24, gate=(self.cfg["p4gate"], 26, "s76"), fs=[(f"s{76+i}", f"s{72+i}") for i in range(4)], gs=44)
        self.stamp(sb + 2)
        for p in range(8):
            a(f"v_perm_b32 v{16+p}, v{33+2*p}, v{32+2*p}, {sSEL1}")
        for i in range(4):
            a(f"ds_write_b64 v29, {v(16+2*i,2)} offset:{544*i}")
        for u in range(2):
            a(f"ds_read_b128 {v(BB+8*u,4)}, v30 offset:{128*u}")
        a("s_waitcnt lgkmcnt(0)")

        def epi():
            self.bf16r1(16)
            Lu = a.newlabel("L_p4up")
            a("s_cmp_lg_u32 s71, 0")
            a(f"s_cbranch_scc1 {Lu}")
            a(f"v_mul_f32 v17, 0x{LOG2E ^ 0x80000000:x}, v16")
            a(f"v_exp_f32 v17, v17")
            a(f"v_add_f32 v17, 1.0, v17")
            a(f"v_rcp_f32 v17, v17")
            a(f"v_mul_f32 v16, v16, v17")
            self.bf16r1(16)
            a.label(Lu)
            self.publish1(vL4, "s70", fast="s69")
        self.tail([A[0], A[1]], 8, "P4", epi)
        self.stamp(sb + 3)

    def p5(self, ubase, tb):
        a = self.a
        sb = SLOT["P5"]
        self.stamp(sb)
        a(f"s_lshl_b32 s70, {sX}, 15")
        a(f"s_lshl_b32 s67, s68, 8")
        a(f"s_add_u32 s70, s70, s67")
        a(f"s_lshl_b32 s67, {sW}, 12")
        a(f"s_add_u32 s70, s70, s67")
        a(f"s_add_u32 s70, s70, {WS_DP}")
        a(f"s_add_u32 s69, s70, {FS}")
        a(f"v_lshlrev_b32 v8, 4, {vLANE}")
        a(f"s_mul_i32 s73, {sX}, {7*2048}")
        a(f"s_lshl_b32 s67, {sW}, 11")
        a(f"s_add_u32 s73, s73, s67")
        a(f"s_add_u32 s73, s73, {WS_GU}")
        a(f"s_add_u32 s74, s73, {56*2048}")
        a(f"v_mul_u32_u24 v26, {56*2048}, {vLANE}")
        a(f"s_lshl_b32 s67, s68, 7")
        a(f"v_add_u32 v26, s67, v26")
        self.slot_of(ubase, "s78", "s79")
        self.red_addr(ubase, "row")
        Lsk = a.newlabel("L_p5skip")
        a(f"s_cmp_ge_u32 {sW}, 7")
        a(f"s_cbranch_scc1 {Lsk}")
        self.pull(ubase, tb)
        self.stamp(sb + 1)
        pl = []
        for m, so in enumerate(("s75", "s76")):
            for q in range(2):
                r = 32 + 8 * m + 4 * q
                pl.append((f"buffer_load_dwordx4 {v(r,4)}, v8, {WS_}, {so} offen offset:{1024*q} sc1", r, 4))
        self.poll(pl, 24, gate=(0x3, 26, "s75"), fs=[("s75", "s73"), ("s76", "s74")], gs=46)
        self.stamp(sb + 2)
        for e in range(16):
            a(f"v_and_b32 v{32+e}, 0xffff0000, v{32+e}")
        for e in range(8):
            a(f"v_mul_f32 v{32+e}, v{32+e}, v{40+e}")
        for p in range(4):
            a(f"v_cvt_pk_bf16_f32 v{BB+p}, v{32+2*p}, v{33+2*p}")
        a.label(Lsk)
        self.tail([tb], 7, "P5", lambda: self.publish1(vL4, "s70", fast="s69"))
        self.stamp(sb + 3)

    def gb_r5(self):
        a = self.a
        sb = SLOT["GB"]
        self.stamp(sb)
        self.koff(8)
        a(f"s_lshl_b32 s67, {sW}, 7")
        self.load_bfrag(24, C_, "s67")
        self.load_bfrag(28, C_, "s67", 1024)
        a("s_waitcnt vmcnt(0)")
        self.silu_c(24, BB)
        self.silu_c(28, BB + 8)
        self.slot_of(4, "s78", "s79")
        self.red_addr(4, "row")
        self.pull(20, A[0])
        self.pull(28, A[1])
        self.stamp(sb + 1)

        def epi():
            self.bf16r1(16)
            a("v_mov_b32 v31, v16")
        self.tail([A[0], A[1]], 8, "GB", epi, slow=self.cfg["slow"])
        self.stamp(sb + 3)
        sb = SLOT["R5"]
        self.stamp(sb)
        a(f"s_lshl_b32 s69, s68, 8")
        a(f"s_lshl_b32 s67, {sW}, 12")
        a(f"s_add_u32 s69, s69, s67")
        a(f"s_add_u32 s67, {sX}, 1")
        a(f"s_and_b32 s67, s67, 7")
        a(f"s_lshl_b32 s67, s67, 15")
        a(f"s_add_u32 s70, s69, s67")
        a(f"s_add_u32 s70, s70, {WS_X1}")
        self.poll([(f"buffer_load_dword v30, {vL4}, {WS_}, s70 offen sc1", 30, 1)], 24)
        a("v_and_b32 v30, 0xffff0000, v30")
        a(f"s_add_u32 s70, s69, {WS_DP}")
        for k in range(8):
            a(f"s_add_u32 s67, {sX}, {k}")
            a(f"s_and_b32 s67, s67, 7")
            a(f"s_lshl_b32 s67, s67, 15")
            a(f"s_add_u32 s{72+k if k else 71}, s70, s67")
        a(f"v_lshlrev_b32 v10, 1, {vLANE}")
        a(f"s_lshr_b32 s69, s69, 1")
        self.stamp(sb + 1)
        self.poll([(f"buffer_load_dword v{32+k}, {vL4}, {WS_}, s{72+k} offen sc1", 32 + k, 1) for k in range(8)], 24,
                  fs=[("s72", "s71")], gate=(1, 13, "s76") if self.cfg.get("r5gate") else None, gfs=False)
        self.stamp(sb + 2)
        for k in range(4):
            a(f"v_add_f32 v{32+k}, v{32+k}, v{36+k}")
        a("v_add_f32 v32, v32, v33")
        a("v_add_f32 v34, v34, v35")
        a("v_add_f32 v32, v32, v34")
        self.bf16r1(32)
        a("v_mul_f32 v32, v32, v31")
        self.bf16r1(32)
        a("v_add_f32 v32, v32, v30")
        a("v_cvt_pk_bf16_f32 v32, v32, v32")
        a(f"buffer_store_short v32, v10, {OUT_}, s69 offen")
        Lnb = a.newlabel("L_nobump")
        a(f"s_or_b32 s67, s68, {sW}")
        a("s_cmp_lg_u32 s67, 0")
        a(f"s_cbranch_scc1 {Lnb}")
        a(f"s_add_u32 s67, {sEP}, 1")
        a("v_mov_b32 v33, s67")
        a("v_mov_b32 v34, 0")
        a("s_mov_b64 exec, 1")
        a(f"buffer_store_dword v33, v34, {WS_}, 0 offen")
        a("s_mov_b64 exec, -1")
        a.label(Lnb)
        self.stamp(sb + 3)

    def l_signal(self, lag):
        a = self.a
        a(f"s_sub_u32 s67, s72, {lag}")
        a("v_mov_b32 v20, s67")
        a(f"ds_max_i32 v19, v20 offset:{4*C_LANDED}")
        if self.stamps and self.cfg.get("ls"):
            S = a.newlabel("L_ls")
            a("s_cmp_le_i32 s67, s93")
            a(f"s_cbranch_scc1 {S}")
            self.l_flush()
            a("s_mov_b32 s93, s67")
            a("s_memrealtime s[98:99]")
            a.label(S)

    def l_flush(self):
        a = self.a
        if self.stamps and self.cfg.get("ls"):
            a("s_mov_b32 s92, m0")
            a("s_mov_b32 m0, s93")
            a("s_waitcnt lgkmcnt(1)")
            a("v_writelane_b32 v41, s98, m0")
            a("s_mov_b32 m0, s92")

    def l_drain(self):
        a = self.a
        for t in reversed(range((self.lD + 7) // 8)):
            a(f"s_waitcnt vmcnt({8*t})")
            if self.stamps and self.cfg.get("ls"):
                a("s_waitcnt lgkmcnt(0)")
            self.l_signal(t)
        self.lD = 0

    def l_wait(self, cnt, need):
        self.l_drain()
        self.lds_wait(CNT[cnt], need)

    def l_seg(self, srd, n, D, step, barrier=False, until=None):
        a = self.a
        credit = self.lU + n > NS
        wrap = self.lU + n >= NS
        if n > 1:
            a(f"s_mov_b32 s75, {-n}")
        if credit:
            a("s_lshr_b32 s67, s73, 11")
            a(f"v_add_u32 v22, s67, {vZ}")
            a(f"ds_read_b32 v21, v22 offset:{4*C_FREE}")
        if until:
            a(f"ds_read_b32 v23, {vZ} offset:{4*CNT[until[0]]}")
        E = a.newlabel("L_sege")
        L2 = a.newlabel("L_seg2")
        for ph, D in enumerate([D] + ([until[2]] if until else [])):
            assert D % 4 == 0 and D >= 4
            L = a.newlabel("L_seg") if ph == 0 else L2
            hs, lag = (1, D // 8 - 1) if D % 8 == 0 else (0, (D - 4) // 8)
            a.label(L)
            if credit or (until and ph == 0):
                a("s_waitcnt lgkmcnt(0)")
            if until and ph == 0:
                a(f"v_cmp_le_i32 vcc, {until[1]}, v23")
                a(f"s_cbranch_vccnz {L2}")
            if credit:
                Lok = a.newlabel("L_cok")
                Lsp = a.newlabel("L_csp")
                a("v_cmp_le_i32 vcc, s74, v21")
                a(f"s_cbranch_vccnz {Lok}")
                a(f"ds_read_b32 v21, v22 offset:{4*C_FREE}")
                a("s_waitcnt lgkmcnt(0)")
                a("v_cmp_le_i32 vcc, s74, v21")
                a(f"s_cbranch_vccnz {Lok}")
                a("s_waitcnt vmcnt(0)")
                self.l_signal(0)
                a(f"s_mov_b32 {sPOLL}, {self.poll_limit*8}")
                a.label(Lsp)
                a(f"ds_read_b32 v21, v22 offset:{4*C_FREE}")
                a("s_waitcnt lgkmcnt(0)")
                a("v_cmp_le_i32 vcc, s74, v21")
                a(f"s_sub_u32 {sPOLL}, {sPOLL}, 1")
                a(f"s_cbranch_vccnz {Lok}")
                a(f"s_cmp_lg_u32 {sPOLL}, 0")
                a(f"s_cbranch_scc1 {Lsp}")
                a.label(Lok)
            for h in range(2):
                a("s_add_u32 m0, s73, 4096" if h else "s_mov_b32 m0, s73")
                if not barrier:
                    a(f"s_waitcnt vmcnt({D-4})")
                    if h == hs:
                        self.l_signal(lag)
                for j in range(4):
                    a(f"buffer_load_dwordx4 v{24+4*h+j}, {srd}, s66 offen offset:{1024*j} nt lds")
                    if h == 1 and j == 0:
                        a(f"s_add_u32 s73, s73, {SLOTB}")
                        if wrap:
                            a(f"s_cmp_ge_u32 s73, {NS*SLOTB}")
                            a("s_cselect_b32 s73, 0, s73")
                            a("s_cselect_b32 s67, 8, 0")
                            a("s_add_u32 s74, s74, s67")
                    if h == 1 and j == 1 and n > 1:
                        if credit:
                            a("s_lshr_b32 s67, s73, 11")
                            a(f"v_add_u32 v22, s67, {vZ}")
                            a(f"ds_read_b32 v21, v22 offset:{4*C_FREE}")
                        if until and ph == 0:
                            a(f"ds_read_b32 v23, {vZ} offset:{4*CNT[until[0]]}")
                    if h == 1 and j == 2:
                        a("s_add_u32 s72, s72, 1")
            a(f"s_add_u32 s66, s66, {step}")
            if n > 1:
                a("s_add_u32 s75, s75, 1")
                a(f"s_cbranch_scc0 {L}")
            if until and ph == 0:
                a(f"s_branch {E}")
                D1 = D
        if until:
            a.label(E)
            D = max(D, D1)
        self.lU += n
        self.lD = D if not barrier else 8 * self.lU

    def l_tile(self, srd, segs, kind, RS=0, first=False, stamp=None, setup=True):
        a = self.a
        if stamp is not None:
            self.stamp(stamp)
        if kind in ("w", "wq", "wo"):
            js = (128 if kind == "wo" else 8) * RS
            step = {"w": 64 * RS, "wq": 128, "wo": 8 * RS}[kind]
            if setup:
                a(f"v_mul_u32_u24 v24, {RS}, v8")
                a(f"v_add_u32 v24, v24, v9")
                for j in range(1, 8):
                    a(f"v_add_u32 v{24+j}, {js*j - 1024*(j%4)}, v24")
        else:
            step = 8192
            if kind == "k":
                a(f"v_xor_b32 v16, {vI}, {vG}")
            else:
                a(f"v_lshlrev_b32 v16, 1, {vG}")
                a(f"v_xor_b32 v16, {vI}, v16")
            a(f"v_lshlrev_b32 v16, 4, v16")
            a(f"v_lshl_add_u32 v24, {vG}, 8, v16")
            for j in range(1, 8):
                a(f"v_xor_b32 v{24+j}, {(64*(j%4) if kind == 'k' else 128*(j%2)) + 4096*(j//4)}, v24")
        for sg in segs:
            if isinstance(sg[0], str):
                self.l_wait(*sg)
                continue
            n, D = sg[:2]
            if first:
                n0 = min(n, max(1, D // 8))
                self.l_seg(srd, n0, D, step, barrier=True)
                a("s_barrier")
                n -= n0
                first = False
            if n:
                self.l_seg(srd, n, D, step, until=sg[2:] or None)

    def loader(self):
        a = self.a
        cfg = self.cfg
        a("s_setprio 3")
        a("s_mov_b32 s93, 0")
        if cfg.get("pre"):
            a("s_getpc_b64 s[66:67]")
            a.label("L_pc")
            a(f"s_lshl_b32 s68, {sL}, 10")
            a(f"v_lshl_add_u32 v8, {vLANE}, 7, s68")
            a("v_min_u32 v8, L_exit-L_pc, v8")
            a("s_mov_b64 exec, 0xff")
            a("global_load_dword v40, v8, s[66:67]")
            a("s_mov_b64 exec, -1")
        a(f"v_lshrrev_b32 v8, 3, {vLANE}")
        a(f"v_lshlrev_b32 v9, 1, {vG}")
        a(f"v_xor_b32 v9, v9, {vB}")
        a("v_lshlrev_b32 v9, 4, v9")
        a(f"s_and_b32 s67, {sL}, 3")
        a(f"s_mul_i32 s66, s67, {256*12288}")
        a(f"s_lshr_b32 s67, {sL}, 3")
        a(f"s_lshl_b32 s67, s67, 11")
        a(f"s_add_u32 s66, s66, s67")
        a(f"s_lshl_b32 s67, {sX}, 8")
        a(f"s_add_u32 s66, s66, s67")
        a(f"s_bfe_u32 s67, {sL}, 0x10002")
        a(f"s_lshl_b32 s67, s67, 7")
        a(f"s_add_u32 s66, s66, s67")
        a(f"s_lshl_b32 s70, {sX}, 11")
        a(f"s_add_u32 s70, s70, {sL}")
        a(f"s_sub_u32 s70, s70, 16")
        a(f"s_lshl_b32 s70, s70, 9")
        a(f"s_cmp_ge_u32 {sL}, 16")
        a("s_cselect_b32 s66, s70, s66")
        a("s_cselect_b32 s70, 8192, 12288" if False else "s_cselect_b32 s70, 2, 3")
        a(f"s_cselect_b32 s71, 128, {64*12288}" if False else "s_cselect_b32 s71, 1, 6144")
        a("s_cselect_b32 s77, -2, -1")
        a("s_cselect_b32 s62, s22, s46")
        a("s_mov_b32 s63, 0x20000")
        a("s_lshl_b32 s71, s71, 7")
        a("s_lshl_b32 s70, s70, 12")
        a("v_mad_u32_u24 v24, v8, s70, v9")
        a("s_lshl_b32 s67, s70, 5")
        a("v_add_u32 v28, s67, v24")
        a("s_lshl_b32 s67, s70, 3")
        a("s_sub_u32 s67, s67, 1024")
        for j in (1, 2, 3, 5, 6, 7):
            a(f"v_add_u32 v{24+j}, s67, v{23+j}")
        a("s_mov_b32 s73, 0")
        a("s_mov_b32 s75, -4")
        a(f"s_cmp_ge_u32 {sL}, 16")
        a("s_waitcnt lgkmcnt(0)")
        a("s_cselect_b32 s60, s20, s44")
        a("s_cselect_b32 s61, s21, s45")
        self.stamp(48)
        a.label("L_l0")
        for h in range(2):
            a("s_add_u32 m0, s73, 4096" if h else "s_mov_b32 m0, s73")
            a(f"s_waitcnt vmcnt({cfg.get('D0', 56)-4})")
            for j in range(4):
                a(f"buffer_load_dwordx4 v{24+4*h+j}, {W_}, s66 offen offset:{1024*j} nt lds")
        a(f"s_add_u32 s73, s73, {SLOTB}")
        a("s_add_u32 s66, s66, s71")
        a("s_add_u32 s75, s75, 1")
        a("s_cbranch_scc0 L_l0")
        a(f"s_add_u32 s66, s66, {64*8192-512}")
        a("s_mov_b32 s75, -4")
        a("s_add_u32 s77, s77, 1")
        a("s_cbranch_scc0 L_l0")
        a(f"v_lshlrev_b32 v19, 2, {vLANE}")
        a(f"v_add_u32 v19, {LDS_BYTES-256}, v19")
        a(f"v_writelane_b32 v19, s63, 0")
        a("s_lshr_b32 s72, s73, 13")
        a("s_mov_b32 s74, 0")
        a(f"s_cmp_ge_u32 {sL}, 16")
        a("s_cbranch_scc1 L_LB")
        a("s_barrier")
        a("s_branch L_lrest")

    def loader_rest(self):
        a = self.a
        cfg = self.cfg
        a.label("L_lrest")

        def wait(key):
            if cfg.get(key):
                self.l_wait(*cfg[key])
        self.lU, self.lD = 4, 32
        a(f"s_and_b32 s69, {sX}, 1")
        a(f"s_lshl_b32 s69, s69, 2")
        a(f"s_lshr_b32 s67, {sL}, 2")
        a(f"s_add_u32 s69, s69, s67")
        a(f"s_lshl_b32 s69, s69, 2")
        a(f"s_add_u32 s69, s69, {sHKV}")
        a(f"s_lshl_b32 s69, s69, 20")
        a(f"s_and_b32 s67, {sL}, 3")
        a(f"s_lshl_b32 s67, s67, 16")
        a(f"s_add_u32 s69, s69, s67")
        a(f"s_add_u32 s69, s69, {3072*256}")
        wait("wK")
        a("s_mov_b32 s66, s69")
        self.l_tile(K_, cfg["K"], "k", stamp=49)
        a("s_mov_b32 s66, s69")
        self.l_tile(V_, cfg["V"], "v", stamp=50)
        if cfg.get("wP4s"):
            self.l_drain()
            a(f"s_cmp_lt_u32 {sL}, 12")
            a(f"s_cbranch_scc1 L_lw4")
            a(f"s_cmp_ge_u32 {sL}, 14")
            a(f"s_cbranch_scc1 L_lw4")
            wait("wP4s")
            a("s_branch L_lw5")
            a.label("L_lw4")
        wait("wP4")
        a.label("L_lw5")
        st = (self.lU, self.lD)
        a(f"s_cmp_ge_u32 {sL}, 14")
        a(f"s_cbranch_scc1 L_lgb")
        self.p4_cg("s66")
        a(f"s_lshl_b32 s66, s66, 7")
        a(f"s_and_b32 s67, {sL}, 1")
        a("s_cselect_b32 s60, s32, s28")
        a("s_cselect_b32 s61, s33, s29")
        a("s_mov_b32 s62, 7340032")
        a("s_mov_b32 s63, 0x20000")
        self.l_tile(W_, cfg["P4"], "w", 7168, stamp=51)
        self.l_drain()
        a("s_branch L_done")
        a.label("L_lgb")
        self.lU, self.lD = st
        a(f"s_lshl_b32 s66, {sX}, 1")
        a(f"s_add_u32 s66, s66, {sL}")
        a(f"s_lshl_b32 s66, s66, 7")
        a(f"s_add_u32 s66, s66, {5120*2-14*128}")
        self.l_tile(WM_, cfg["GB"], "w", 12288, stamp=51)
        self.l_drain()
        a("s_branch L_done")
        a.label("L_LB")
        self.lU, self.lD = 8, cfg.get("D0", 56)
        a("s_barrier")
        self.l_drain()
        self.rm_task("s70", "s71")
        a(f"s_mul_i32 s66, s70, 12288")
        a(f"s_lshl_b32 s71, s71, 7")
        a(f"s_add_u32 s66, s66, s71")

        def wotile(key):
            a(f"s_lshr_b32 s66, {sX}, 1")
            a(f"s_lshl_b32 s66, s66, 21")
            a(f"s_and_b32 s67, {sX}, 1")
            a(f"s_lshl_b32 s67, s67, 17")
            a(f"s_add_u32 s66, s66, s67")
            self.swap_j("s69", 3, 9)
            a(f"s_lshl_b32 s69, s69, 7")
            a(f"s_add_u32 s66, s66, s69")
            self.l_tile(WO_, cfg[key], "wo", 2048, stamp=50)

        def wdtile(key):
            a(f"s_mul_i32 s66, {sX}, {448*2048}")
            self.swap_j("s69", 5, 11)
            a(f"s_lshl_b32 s69, s69, 7")
            a(f"s_add_u32 s66, s66, s69")
            self.l_tile(WD_, cfg[key], "w", 2048, stamp=51)
            self.l_drain()
            a("s_branch L_done")
        st = (self.lU, self.lD)
        a(f"s_cmp_ge_u32 {sL}, 24")
        a(f"s_cbranch_scc1 L_lr3")
        wait("wB")
        self.l_tile(WM_, cfg["RM"], "w", 12288, stamp=53)
        wotile("P3")
        wait("wP5")
        wdtile("P5")
        a.label("L_lr3")
        self.lU, self.lD = st
        self.l_drain()
        a("v_mov_b32 v20, 8")
        a(f"v_lshl_add_u32 v22, {vLANE}, 2, {vZ}")
        a("s_mov_b64 exec, 15")
        a(f"ds_add_u32 v22, v20 offset:{4*(C_FREE+8)}")
        a("s_mov_b64 exec, -1")
        a("s_mov_b32 s72, 12")
        a(f"s_mov_b32 s73, {12*SLOTB}")
        self.lU = 12
        wait("wB")
        self.l_tile(WM_, cfg["RMr"], "w", 12288, stamp=53)
        wotile("P3r")
        wait("wP5r")
        wdtile("P5r")

    def build(self):
        a = self.a
        cfg = self.cfg
        hdr = open(os.path.join(os.path.dirname(os.path.abspath(__file__)), "..", "cdna_kernels", NAME + ".s.ref")).read()
        for line in hdr.split("\n"):
            if line.startswith("; @launch"):
                break
            a.raw(line)
        a.raw(f"; @launch grid=(256,1,1) block=(576,1,1) lds={LDS_BYTES}")
        a.raw('.amdgcn_target "amdgcn-amd-amdhsa--gfx950"')
        a.raw(".text")
        a.raw(f".globl {NAME}_kernel")
        a.raw(".p2align 8")
        a.raw(f".type {NAME}_kernel,@function")
        a.raw(f"{NAME}_kernel:")
        a("s_cmp_ge_u32 s2, 256")
        a("s_cbranch_scc1 L_exit")
        if cfg.get("probe") is not None:
            a("s_memrealtime s[100:101]")
            a("s_memrealtime s[96:97]")
        if cfg.get("dbg"):
            a("s_memrealtime s[100:101]")
            a("s_load_dwordx2 s[56:57], s[0:1], 96")
            a("s_mov_b32 s58, 256")
            a("s_mov_b32 s59, 0x20000")
        for (s0, ko, nb) in SRD_INFO:
            a(f"s_load_dwordx2 s[{s0}:{s0+1}], s[0:1], {ko}")
        for (s0, ko, nb) in SRD_INFO:
            a(f"s_mov_b32 s{s0+2}, {nb}")
            a(f"s_mov_b32 s{s0+3}, 0x20000")
        a(f"v_and_b32 {vLANE}, 63, v0")
        a("v_lshrrev_b32 v7, 6, v0")
        a(f"v_lshrrev_b32 {vG}, 4, {vLANE}")
        a(f"v_readfirstlane_b32 {sW}, v7")
        a(f"v_and_b32 {vI}, 15, v0")
        a(f"v_and_b32 {vB}, 7, v0")
        a(f"v_bfe_u32 {vHI}, v0, 3, 1")
        a(f"v_mov_b32 {vSTAMP}, 0")
        if self.stamps:
            a(f"v_mov_b32 v41, 0")
        a(f"v_mov_b32 {vZ}, 0x20000")
        a(f"s_and_b32 {sX}, s2, 7")
        a(f"s_lshr_b32 {sL}, s2, 3")
        a(f"s_lshr_b32 {sHKV}, {sX}, 1")
        a(f"s_xor_b32 {sHKV}, {sHKV}, 1")
        a(f"s_cmp_lt_u32 {sW}, 8")
        a("s_cbranch_scc1 L_compute")
        self.loader()
        a.label("L_compute")
        a(f"v_lshlrev_b32 {vL4}, 2, {vLANE}")
        a("v_mov_b32 v16, 0")
        a(f"v_add_u32 v17, {vL4}, {vZ}")
        a(f"ds_write_b32 v17, v16 offset:{L_CNT-L_AUX}")
        a(f"s_cmp_ge_u32 {sL}, 16")
        a("s_cbranch_scc1 L_eB")
        self.p0a_early()
        a(f"s_load_dword {sEP}, s[52:53], 0")
        a("s_barrier")
        a("s_branch L_eD")
        a.label("L_eB")
        self.p1_early()
        a(f"s_load_dword {sEP}, s[52:53], 0")
        a.label("L_eD")
        a(f"v_mov_b32 {vFF}, 0xff")
        a(f"v_mov_b32 {vONE}, 1")
        a(f"s_mov_b32 {sSEL1}, 0x07060302")
        a("s_mov_b32 s84, 0x00ff00ff")
        a("s_mov_b32 s85, 0x00ff00ff")
        a(f"s_mov_b32 {sLOG}, 0x{LOG2E:x}")
        a(f"v_lshrrev_b32 v8, 2, {vLANE}")
        a(f"v_lshlrev_b32 v8, 7, v8")
        a(f"v_and_b32 v9, 3, {vLANE}")
        a(f"v_lshl_add_u32 v8, v9, 3, v8")
        a(f"v_bfe_u32 v9, {vLANE}, 3, 2")
        a(f"v_lshl_add_u32 v{TR}, v9, 5, v8")
        for cg in range(1, 4):
            a(f"v_xor_b32 v{TR+cg}, {32*cg}, v{TR}")
        a(f"s_cmp_ge_u32 {sL}, 16")
        a("s_cbranch_scc1 L_B")
        a("; ======== A")
        self.p0a()
        a("s_branch L_att")
        a.label("L_B")
        a("; ======== B")
        a(f"s_sub_u32 s68, {sL}, 16")
        self.p1(A[0])
        self.rm(A[0])
        self.swap_j("s68", 3, 9)
        self.p3(16, A[0])
        a(f"s_cmp_lt_u32 {sL}, 24")
        a(f"s_cbranch_scc1 L_nor3")
        a(f"s_sub_u32 s69, {sL}, 24")
        self.r3()
        a.label("L_nor3")
        self.swap_j("s68", 5, 11)
        self.p5(24, A[0])
        a("s_branch L_done")
        self.loader_rest()
        a.label("L_att")
        a(f"s_mov_b32 s68, {sL}")
        self.att(4)
        a(f"s_mov_b32 s68, {sL}")
        a(f"s_cmp_lt_u32 {sL}, 14")
        a(f"s_cbranch_scc1 L_P4")
        a(f"s_lshl_b32 s68, {sX}, 1")
        a(f"s_add_u32 s68, s68, {sL}")
        a(f"s_sub_u32 s68, s68, 14")
        self.gb_r5()
        a("s_branch L_done")
        a.label("L_P4")
        self.p4()
        a.label("L_done")
        if cfg.get("probe") is not None:
            a(f"s_cmp_lg_u32 {sL}, {cfg.get('probel', 15)}")
            a("s_cbranch_scc1 L_nopr")
            a(f"s_cmp_lg_u32 {sW}, 0")
            a("s_cbranch_scc1 L_nopr")
            a("s_sub_u32 s66, s96, s100")
            a("s_min_u32 s66, s66, 4000")
            a("s_lshl_b32 s66, s66, 3")
            a("s_add_u32 s66, s66, s100")
            a("s_add_u32 s66, s66, 3000")
            a("s_mov_b32 s67, 200000")
            a.label("L_pr")
            a("s_memrealtime s[90:91]")
            a("s_waitcnt lgkmcnt(0)")
            a("s_sub_u32 s67, s67, 1")
            a("s_cbranch_scc1 L_nopr")
            a("s_sub_u32 s68, s90, s66")
            a("s_cmp_lt_i32 s68, 0")
            a("s_cbranch_scc1 L_pr")
            a.label("L_nopr")
        if cfg.get("dbg"):
            a(f"s_cmp_lg_u32 {sL}, 15")
            a("s_cbranch_scc1 L_nodbg")
            a(f"s_cmp_lg_u32 {sW}, 0")
            a("s_cbranch_scc1 L_nodbg")
            a("s_memrealtime s[90:91]")
            a("s_waitcnt lgkmcnt(0)")
            a("v_mov_b32 v16, s100")
            a("v_mov_b32 v17, s90")
            a(f"s_lshl_b32 s66, {sX}, 2")
            a("v_mov_b32 v18, 0")
            a("s_mov_b64 exec, 1")
            a(f"buffer_store_dword v16, v18, {DBG_}, s66 offen")
            a(f"buffer_store_dword v17, v18, {DBG_}, s66 offen offset:32")
            a("s_mov_b64 exec, -1")
            a.label("L_nodbg")
        if self.stamps:
            self.stamp(52)
            a(f"s_lshl_b32 s66, s2, 4")
            a(f"s_add_u32 s66, s66, {sW}")
            a(f"s_lshl_b32 s66, s66, 8")
            a(f"s_add_u32 s66, s66, {WS_STAMP}")
            a(f"v_lshlrev_b32 v8, 2, {vLANE}")
            a(f"buffer_store_dword {vSTAMP}, v8, {WS_}, s66 offen sc1")
            a(f"s_cmp_lt_u32 {sW}, 8")
            a("s_cbranch_scc1 L_exit")
            self.l_flush()
            a(f"buffer_store_dword v41, v8, {WS_}, s66 offen offset:256 sc1")
        a.label("L_exit")
        a("s_endpgm")
        a.raw('.section .rodata,"a"')
        a.raw(".p2align 6")
        a.raw(f".amdhsa_kernel {NAME}_kernel")
        a.raw(f"  .amdhsa_next_free_vgpr {NVGPR}")
        a.raw("  .amdhsa_next_free_sgpr 102")
        a.raw(f"  .amdhsa_accum_offset {NVGPR}")
        a.raw("  .amdhsa_group_segment_fixed_size 0")
        a.raw("  .amdhsa_kernarg_size 112")
        a.raw("  .amdhsa_user_sgpr_count 2")
        a.raw("  .amdhsa_user_sgpr_kernarg_segment_ptr 1")
        a.raw("  .amdhsa_system_sgpr_workgroup_id_x 1")
        a.raw(".end_amdhsa_kernel")
        return a.text()


DEFAULT = dict(slow=3, plain=True, p4gate=1, r3gate=0, wP4s=("Q", 8),
               P0A=[(4, 32)], wK=("P0P", 4), K=[(8, 56)], V=[(8, 56)], wP4=("ATTP", 8), P4=[(16, 16, "ATTP", 8, 56)], GB=[(16, 32)],
               P1a=[(4, 32)], P1b=[(4, 56)], wB=("P1P", 8), RM=[(3, 16), (5, 56)], P3=[(8, 56)], wP5=("P3P", 8), P5=[(7, 56)],
               RMr=[(3, 16), (1, 56)], P3r=[(8, 56)], wP5r=("R3P", 8), P5r=[(7, 56)])

if __name__ == "__main__":
    cfg = dict(DEFAULT)
    out = sys.argv[1]
    for arg in sys.argv[2:]:
        k, _, val = arg.partition("=")
        cfg[k] = eval(val) if val else True
    open(out, "w").write(Gen(cfg).build())
    print("wrote", out)
```

```python
import re

TRANS = ("v_exp_f32", "v_log_f32", "v_rcp_f32", "v_rsq_f32", "v_sqrt_f32", "v_sin_f32", "v_cos_f32")
_reg_re = re.compile(r"^(-?)(abs\()?([vsa])(\d+|\[(\d+):(\d+)\])\)?$")


def regs_of(tok):
    tok = tok.strip()
    if tok in ("vcc",):
        return {("s", 106), ("s", 107)}
    if tok == "vcc_lo":
        return {("s", 106)}
    if tok == "vcc_hi":
        return {("s", 107)}
    if tok == "exec":
        return {("s", 126), ("s", 127)}
    if tok == "exec_lo":
        return {("s", 126)}
    if tok == "exec_hi":
        return {("s", 127)}
    if tok == "m0":
        return {("s", 124)}
    m = _reg_re.match(tok)
    if not m:
        return set()
    k = m.group(3)
    if m.group(5) is not None:
        return {(k, i) for i in range(int(m.group(5)), int(m.group(6)) + 1)}
    return {(k, int(m.group(4)))}


class Ins:
    pass


def parse(text):
    t = text.split(";")[0].strip()
    sp = t.split(None, 1)
    op = sp[0]
    rest = sp[1] if len(sp) > 1 else ""
    ops, cur, depth = [], "", 0
    for ch in rest:
        if ch == "[":
            depth += 1
        if ch == "]":
            depth -= 1
        if ch == "," and depth == 0:
            ops.append(cur.strip())
            cur = ""
        else:
            cur += ch
    if cur.strip():
        ops.append(cur.strip())
    mods = ""
    if ops:
        parts = ops[-1].split(None, 1)
        ops[-1] = parts[0]
        if len(parts) > 1:
            mods = parts[1]
    I = Ins()
    I.text = text
    I.op = op
    I.dpp = op.endswith("_dpp")
    I.srcc = set()
    I.dtuple = None
    I.stdata = set()
    I.states = 1
    R = [regs_of(o) for o in ops]
    allr = set().union(*R) if R else set()
    if op == "s_nop":
        I.kind = "nop"
        I.states = int(ops[0], 0) + 1
        I.wr, I.rd = set(), set()
    elif op.startswith("v_mfma"):
        I.kind = "mfma"
        I.wr = R[0]
        I.rd = R[1] | R[2] | R[3]
        I.srcc = R[3]
        I.dtuple = ops[0]
        I.dpp = False
    elif op.startswith("v_permlane"):
        I.kind = "perml"
        I.wr = R[0] | R[1]
        I.rd = R[0] | R[1]
    elif op.startswith("v_cmp"):
        I.kind = "valu"
        I.wr = R[0]
        I.rd = set().union(*R[1:])
    elif op.startswith("v_readfirstlane") or op.startswith("v_readlane"):
        I.kind = "rdlane"
        I.wr = R[0]
        I.rd = set().union(*R[1:])
    elif op.startswith("v_"):
        I.kind = "trans" if op.replace("_e32", "").replace("_e64", "") in TRANS else "valu"
        I.wr = R[0]
        I.rd = set().union(*R[1:]) if len(R) > 1 else set()
        if op.startswith(("v_fmac", "v_pk_fmac")) or I.dpp:
            I.rd = I.rd | R[0]
        if op.startswith("v_cndmask") and len(ops) == 3:
            I.rd = I.rd | regs_of("vcc")
        if "_co_" in op:
            I.wr = R[0] | R[1]
            I.rd = set().union(*R[2:])
    elif op.startswith(("buffer_store", "global_store")):
        I.kind = "vmem"
        I.wr = set()
        I.rd = allr
        if "x4" in op or "x3" in op:
            I.stdata = R[0] if op.startswith("buffer") else R[1]
    elif op.startswith(("buffer_load", "global_load")):
        I.kind = "vmem"
        I.wr = R[0]
        I.rd = set().union(*R[1:])
        if mods.split()[-1:] == ["lds"]:
            I.wr = set()
            I.rd = allr
    elif op.startswith("buffer_atomic"):
        I.kind = "vmem"
        I.wr = R[0] if "sc0" in mods else set()
        I.rd = allr
    elif op.startswith("ds_read") or op.startswith("ds_bpermute") or op.startswith("ds_swizzle"):
        I.kind = "ds"
        I.wr = R[0]
        I.rd = set().union(*R[1:])
    elif op.startswith("ds_"):
        I.kind = "ds"
        I.wr = set()
        I.rd = allr
    elif op.startswith("s_"):
        I.kind = "salu"
        if op.startswith(("s_cmp", "s_cbranch", "s_branch", "s_waitcnt", "s_barrier", "s_endpgm", "s_setprio", "s_setpc", "s_bitcmp")):
            I.wr = set()
            I.rd = allr
        else:
            I.wr = R[0] if R else set()
            I.rd = set().union(*R[1:]) if len(R) > 1 else set()
            if "saveexec" in op:
                I.wr = I.wr | regs_of("exec")
    else:
        raise ValueError("unknown op " + text)
    I.srcc_text = ops[3] if I.kind == "mfma" else None
    return I


def is_valu(I):
    return I.kind in ("valu", "trans", "perml", "rdlane")


def need(P, C):
    n = 0
    vw = {r for r in P.wr if r[0] == "v"}
    sw = {r for r in P.wr if r[0] == "s"}
    if is_valu(P):
        if C.kind == "mfma" and vw & C.rd:
            n = max(n, 2)
        if C.dpp and vw & C.rd:
            n = max(n, 2)
        if C.kind == "perml" and vw & C.rd:
            n = max(n, 2)
        if C.kind == "rdlane" and vw & C.rd:
            n = max(n, 1)
        if P.kind == "trans" and is_valu(C) and vw & C.rd:
            n = max(n, 1)
        if sw:
            if is_valu(C) and sw & C.rd:
                n = max(n, 4 if C.kind == "rdlane" else 2)
            if C.kind == "vmem" and sw & C.rd:
                n = max(n, 5)
            if C.kind == "salu" and sw & C.rd:
                n = max(n, 1)
    if P.kind == "mfma":
        if C.kind == "mfma":
            ab = C.rd - C.srcc
            if vw & ab:
                n = max(n, 8)
            if vw & C.srcc and C.srcc_text != P.dtuple:
                n = max(n, 8)
            if vw & C.wr and C.dtuple != P.dtuple:
                n = max(n, 8)
        else:
            if vw & (C.rd | C.wr):
                n = max(n, 8)
            if is_valu(C) and P.srcc & C.wr:
                n = max(n, 3)
    if P.stdata and (C.wr & P.stdata):
        n = max(n, 2)
    if P.kind == "salu" and ("s", 124) in P.wr and C.kind in ("vmem", "ds"):
        n = max(n, 1)
    return n


class Asm:
    def __init__(self):
        self.out = []
        self.hist = []
        self.nlab = 0

    def raw(self, s):
        self.out.append(s)

    def __call__(self, text):
        for t in text.split("\n"):
            t = t.strip()
            if not t:
                continue
            if t.startswith(";"):
                self.out.append("    " + t)
                continue
            self._emit(t)

    def _emit(self, t):
        I = parse(t)
        dist = 0
        pad = 0
        for P in reversed(self.hist):
            if dist >= 9:
                break
            r = need(P, I)
            if r > dist:
                pad = max(pad, r - dist)
            dist += P.states
        if pad:
            N = parse(f"s_nop {pad-1}")
            self.hist.append(N)
            self.out.append(f"    s_nop {pad-1}")
        self.hist.append(I)
        if len(self.hist) > 12:
            self.hist = self.hist[-12:]
        self.out.append("    " + t)

    def label(self, name):
        self.out.append(name + ":")

    def newlabel(self, base="L"):
        self.nlab += 1
        return f"{base}_{self.nlab}"

    def text(self, padb=64):
        out = []
        name, n, acc, ok = None, 0, 0, True
        for l in self.out:
            t = l.strip()
            if t.startswith(";@"):
                w = t[2:].split()
                if w[0] == "nopad":
                    ok = False
                elif w[0] == "pad":
                    ok = True
                elif w[0] == "tb":
                    name, n, acc = w[1], 0, 1 << 20
                elif w[0] == "te":
                    out.append(f"T_{name}_{n}:")
                    out.append(f"    s_cbranch_execz {w[1]}")
                    name = None
                continue
            if name and l.startswith("    ") and not t.startswith(";"):
                z = isize(t)
                if ok and acc + z + 4 > padb:
                    out.append(f"T_{name}_{n}:")
                    out.append(f"    s_cbranch_execz T_{name}_{n+1}")
                    n += 1
                    acc = 0
                acc += z
            out.append(l)
        return "\n".join(out) + "\n"


V4 = ("v_mov_b32", "v_add_f32", "v_mul_f32", "v_sub_f32", "v_and_b32", "v_xor_b32", "v_lshlrev_b32", "v_lshrrev_b32", "v_add_u32", "v_sub_u32",
      "v_fmac_f32", "v_exp_f32", "v_rcp_f32", "v_max_f32", "v_log_f32", "v_sqrt_f32", "v_not_b32", "v_permlane16_swap_b32", "v_permlane32_swap_b32",
      "v_readfirstlane_b32", "v_mul_u32_u24")


def isize(t):
    sp = t.split(None, 1)
    op = sp[0]
    ops = [o.strip() for o in sp[1].split(",")] if len(sp) > 1 else []

    def lit(o):
        if re.match(r"^(s|v)(\d+|\[)", o) or o in ("vcc", "exec", "exec_lo", "exec_hi", "m0", "1.0", "0.5", "2.0"):
            return False
        try:
            return not -16 <= int(o, 0) <= 64
        except ValueError:
            return True
    if op.startswith("s_"):
        if op.startswith(("s_load", "s_memrealtime")):
            return 8
        if op.startswith(("s_waitcnt", "s_branch", "s_cbranch", "s_nop", "s_barrier", "s_setprio", "s_endpgm")):
            return 4
        return 8 if any(lit(o) for o in ops) else 4
    if op in V4 and re.match(r"^v\d+$", ops[-1]) or op in V4 and len(ops) == 2:
        return 8 if any(lit(o) for o in ops) else 4
    if op.startswith("v_cmp") and ops[0] == "vcc" and re.match(r"^v\d+$", ops[-1]):
        return 8 if any(lit(o) for o in ops) else 4
    return 8
```

```python
import sys, os, struct
sys.path.insert(0, os.path.dirname(os.path.abspath(__file__)))
from asmlib import Asm

NAME = "adaLN_cond__sliding_block_cached__swiglu_ffn__decode"

FS = 4 << 20
WS_SAC = 4096
WS_MOD = WS_SAC + 8 * 32768
MODS = 8 * 3072 * 4
WS_QP = WS_MOD + 4 * MODS
WS_OP = WS_QP + 8 * 8 * 4096 * 4
WS_LSE = WS_OP + 8 * 4 * 32 * 128 * 4
WS_AP = WS_LSE + 4096
WS_X1 = WS_AP + 8 * 8 * 1024 * 4
WS_DP = WS_X1 + 8 * 8 * 1024 * 4
H2R = 4096 + 128
WS_H2 = WS_DP + 8 * 8 * 1024 * 4
WS_GU = WS_H2 + 8 * 8 * H2R + 1024 * 8
WS_FA = WS_GU + 2 * 8 * 3584 * 4
WS_FR = WS_FA + 4096
WS_FG = WS_FR + 1024
assert WS_FG + 1024 <= FS
WS_STAMP = 2 * FS
WS_END = WS_STAMP + 256 * 16 * 64 * 4

X_, K_, V_, WQ_, WO_, WG_, WU_, WD_, C_, WM_, OUT_, WS_, DBG_, W_ = [f"s[{8+4*i}:{11+4*i}]" for i in range(14)]
SRD_INFO = [
    (44, 80, 12582912), (20, 24, 8388608), (12, 8, 33554432), (40, 72, 16384), (8, 0, 16384), (52, 104, WS_END),
    (16, 16, 33554432), (24, 32, 8388608), (28, 48, 7340032), (32, 56, 7340032), (36, 64, 7340032),
    (48, 88, 16384)]

sW, sT, sX, sL, sSEL1 = "s3", "s4", "s5", "s6", "s7"
sEP = "s64"
sPOLL = "s80"
sLOG = "s88"
sHKV = "s65"
sM8 = "s[84:85]"
NS = 16
SLOTB = 8192
L_AUX = NS * SLOTB
L_CNT = L_AUX
L_ST = L_AUX + 256
L_Q = L_AUX + 512
L_P = L_Q + 8 * 272
L_ML = L_P + 4096
L_H = L_AUX + 512
L_OB = L_H + 2048
LDS_BYTES = L_AUX + 12288
assert L_OB + 8192 <= LDS_BYTES - 256 and L_ML + 640 <= LDS_BYTES - 256
SB = 272
C_LANDED, C_FREE = 0, 1
CNT = dict(S1=20, H=21, P1P=22, Q=23, P=24, ATTP=25, RM=26, P3=27, P3P=28, R3=29, R3P=30, P4=31, P5=32, GB=33, P0P=34,
           QG=35, P3G=36, R3G=37, S2=38)

A = [64, 96, 128]
ACC, BB = 160, 48
vLANE, vG, vI, vB, vHI, vFF, vSTAMP = "v1", "v2", "v3", "v4", "v5", "v6", "v7"
vRW, vRR, vL4, vZ, vONE = "v11", "v12", "v13", "v14", "v15"
NVGPR = 168
TR = 160
TRA = 164
LOG2E = 0x3FB8AA3B
SCALE = struct.unpack("<I", struct.pack("<f", 128 ** -0.5))[0]
EPS = struct.unpack("<I", struct.pack("<f", 1e-5))[0]
SLOT = dict(P0A=0, P1=4, ATT=8, RM=12, P3=16, R3=20, P4=24, P5=28, GB=32, R5=36)


QMASK = 0
for _x in range(8):
    for _n in (5 * _x + 4, _x + 34 if _x >= 6 else None):
        if _n is not None:
            QMASK |= 1 << (_n + ((_n + 4) * 37 >> 8))
    if _x < 6:
        QMASK |= 1 << (8 * _x + 3)


def v(n, cnt=1):
    return f"v{n}" if cnt == 1 else f"v[{n}:{n+cnt-1}]"


class Gen:
    def __init__(self, cfg):
        self.cfg = cfg
        self.a = Asm()
        self.stamps = cfg.get("stamps", False)
        self.poll_limit = cfg.get("poll_limit", 20000)

    def stamp(self, slot):
        if self.cfg.get("probe") == slot:
            self.a("s_memrealtime s[96:97]")
            self.a("s_waitcnt lgkmcnt(0)")
        if not self.stamps:
            return
        a = self.a
        a("s_memrealtime s[90:91]")
        a("s_waitcnt lgkmcnt(0)")
        a(f"v_writelane_b32 {vSTAMP}, s90, {slot}")

    def tb(self, name):
        if name in self.cfg.get("tc", ()):
            self.a(f";@tb {name}")

    def te(self, name):
        if name in self.cfg.get("tc", ()):
            self.a(f";@te T_{name}_ret")

    def touch(self, name):
        if name in self.cfg.get("tc", ()):
            a = self.a
            a(";@nopad")
            a("s_mov_b64 exec, 0")
            a(f"s_branch T_{name}_0")
            a.label(f"T_{name}_ret")
            a("s_mov_b64 exec, -1")
            a(";@pad")

    def epoch(self):
        a = self.a
        a("s_waitcnt lgkmcnt(0)")
        a(f"s_add_u32 {sT}, {sEP}, 1")
        a(f"s_and_b32 {sT}, {sT}, 0xff")

    def xs(self, n):
        if self.cfg.get("xs"):
            self.stamp(58 + n)

    def bf16r_pairs(self, regs, tmp):
        a = self.a
        for i in range(0, len(regs), 2):
            a(f"v_cvt_pk_bf16_f32 v{tmp}, v{regs[i]}, v{regs[i+1]}")
            a(f"v_lshlrev_b32 v{regs[i]}, 16, v{tmp}")
            a(f"v_and_b32 v{regs[i+1]}, 0xffff0000, v{tmp}")

    def bf16r1(self, r):
        a = self.a
        a(f"v_cvt_pk_bf16_f32 v{r}, v{r}, v{r}")
        a(f"v_lshlrev_b32 v{r}, 16, v{r}")

    def unpack_bf16(self, src, dst, n):
        a = self.a
        for i in range(n):
            a(f"v_lshlrev_b32 v{dst+2*i}, 16, v{src+i}")
            a(f"v_and_b32 v{dst+2*i+1}, 0xffff0000, v{src+i}")

    def allred_g(self, regs, op, tmp):
        a = self.a
        for r, t in zip(regs, tmp):
            a(f"v_mov_b32 v{t}, v{r}")
        for r, t in zip(regs, tmp):
            a(f"v_permlane16_swap_b32 v{r}, v{t}")
        for r, t in zip(regs, tmp):
            a(f"{op} v{t}, v{r}, v{t}")
        for r, t in zip(regs, tmp):
            a(f"v_mov_b32 v{r}, v{t}")
        for r, t in zip(regs, tmp):
            a(f"v_permlane32_swap_b32 v{r}, v{t}")
        for r, t in zip(regs, tmp):
            a(f"{op} v{r}, v{r}, v{t}")

    def allred_wave(self, regs, tmp, op="v_add_f32", n32=False):
        a = self.a
        for r, t in zip(regs, tmp):
            a(f"{op}_dpp v{t}, v{r}, v{r} quad_perm:[1,0,3,2] row_mask:0xf bank_mask:0xf")
        for r, t in zip(regs, tmp):
            a(f"{op}_dpp v{r}, v{t}, v{t} quad_perm:[2,3,0,1] row_mask:0xf bank_mask:0xf")
        for r, t in zip(regs, tmp):
            a(f"{op}_dpp v{t}, v{r}, v{r} row_half_mirror row_mask:0xf bank_mask:0xf")
        for r, t in zip(regs, tmp):
            a(f"{op}_dpp v{r}, v{t}, v{t} row_ror:8 row_mask:0xf bank_mask:0xf")
        for r, t in zip(regs, tmp):
            a(f"v_mov_b32 v{t}, v{r}")
        for r, t in zip(regs, tmp):
            a(f"v_permlane16_swap_b32 v{r}, v{t}")
        for r, t in zip(regs, tmp):
            a(f"{op} v{r}, v{r}, v{t}")
        if n32:
            return
        for r, t in zip(regs, tmp):
            a(f"v_mov_b32 v{t}, v{r}")
        for r, t in zip(regs, tmp):
            a(f"v_permlane32_swap_b32 v{r}, v{t}")
        for r, t in zip(regs, tmp):
            a(f"{op} v{r}, v{r}, v{t}")

    def check(self, loads, acc, mid=None):
        a = self.a
        for t, _, _ in loads:
            self.emit(t)
        if mid:
            mid()
        first = True
        for n, (t, r, cnt) in enumerate(loads):
            a(f"s_waitcnt vmcnt({len(loads)-1-n})")
            for i in range(cnt):
                if first:
                    a(f"v_xor_b32 v{acc}, {sT}, v{r+i}")
                    first = False
                else:
                    a(f"v_bitop3_b32 v{acc}, v{r+i}, v{acc}, {sT} bitop3:0xde")
        a(f"v_and_b32 v{acc}, {vFF}, v{acc}")
        a(f"v_cmp_ne_u32 vcc, 0, v{acc}")

    def poll(self, loads, acc, gate=None, fs=None, vfs=None, gs=None, plain=False, mid=None, keep=False, gfs=True, hook=None, lhook=None, gbump=None):
        a = self.a
        if gate is not None:
            mask, greg, gsoff = gate
            a(f"s_mov_b32 exec_lo, 0x{mask & 0xffffffff:x}")
            a(f"s_mov_b32 exec_hi, 0x{mask >> 32:x}")
            self.poll([(f"buffer_load_dword v25, v{greg}, {WS_}, {gsoff} offen sc1", 25, 1)], acc, fs=fs if gfs else None, lhook=hook)
            a("s_mov_b64 exec, -1")
            keep = gfs
            if gs is not None:
                self.stamp(gs)
        L = a.newlabel("L_poll")
        D = a.newlabel("L_pdone")
        if fs and not keep:
            for so, base in fs:
                a(f"s_add_u32 {so}, {base}, {FS}")
        if gbump:
            mid = lambda: self.bump(CNT[gbump])
        if plain or mid:
            self.check([(t.replace(" sc1", "") if plain else t, r, c) for t, r, c in loads], acc, mid)
            a(f"s_mov_b32 {sPOLL}, {self.poll_limit | 7}")
            a(f"s_cbranch_vccz {D}")
        else:
            a(f"s_mov_b32 {sPOLL}, {self.poll_limit | 7}")
        a.label(L)
        self.check(loads, acc, lhook)
        a(f"s_sub_u32 {sPOLL}, {sPOLL}, 1")
        a(f"s_cbranch_vccz {D}")
        if fs or vfs:
            a(f"s_and_b32 s81, {sPOLL}, 7")
            a(f"s_cselect_b32 s81, {FS}, 0")
            for so, base in (fs or []):
                a(f"s_add_u32 {so}, {base}, s81")
            if vfs:
                a(f"v_mad_u32_u24 v{vfs[0]}, v{vfs[1]}, s81, v{vfs[2]}")
        a(f"s_cmp_lg_u32 {sPOLL}, 0")
        a(f"s_cbranch_scc1 {L}")
        a.label(D)
        if gs is not None and self.stamps:
            a(f"v_writelane_b32 {vSTAMP}, {sPOLL}, {gs+1}")

    def poll2(self, groups, acc, fs=None, vfs=None, plain=False, mid=None, keep=False, gs=None, mb=12, after0=None):
        a = self.a
        L = a.newlabel("L_pq")
        D = a.newlabel("L_pqd")
        E = a.newlabel("L_pqe")
        M = [f"s[{mb+2*g}:{mb+2*g+1}]" for g in range(len(groups))]

        def chk(g, waits=None):
            first = True
            for n, (t, r, cnt) in enumerate(groups[g]):
                if waits is not None:
                    a(f"s_waitcnt vmcnt({waits-n})")
                for i in range(cnt):
                    if first:
                        a(f"v_xor_b32 v{acc}, {sT}, v{r+i}")
                        first = False
                    else:
                        a(f"v_bitop3_b32 v{acc}, v{r+i}, v{acc}, {sT} bitop3:0xde")
            a(f"v_and_b32 v{acc}, {vFF}, v{acc}")
            a(f"v_cmp_ne_u32 {M[g]}, 0, v{acc}")

        def orall():
            if len(M) == 1:
                a(f"s_cmp_lg_u64 {M[0]}, 0")
                return
            a(f"s_or_b64 s[82:83], {M[0]}, {M[1]}")
            for m in M[2:]:
                a(f"s_or_b64 s[82:83], s[82:83], {m}")
        if fs and not keep:
            for so, base in fs:
                a(f"s_add_u32 {so}, {base}, {FS}")
        n = sum(len(g) for g in groups)
        for g in groups:
            for t, _, _ in g:
                a(t.replace(" sc1", "") if plain else t)
        if mid:
            mid()
        a(f"s_mov_b32 {sPOLL}, {self.poll_limit | 7}")
        for g in range(len(groups)):
            chk(g, n - 1)
            n -= len(groups[g])
            if g == 0 and after0:
                after0()
        orall()
        a(f"s_cbranch_scc0 {D}")
        a.label(L)
        if fs or vfs:
            a(f"s_and_b32 s81, {sPOLL}, 7")
            a(f"s_cselect_b32 s81, {FS}, 0")
            for so, base in (fs or []):
                a(f"s_add_u32 {so}, {base}, s81")
            if vfs:
                a("s_mov_b64 exec, -1")
                a(f"v_mad_u32_u24 v{vfs[0]}, v{vfs[1]}, s81, v{vfs[2]}")
        for g in range(len(groups)):
            S = a.newlabel("L_pqs")
            a(f"s_mov_b64 exec, {M[g]}")
            a(f"s_cbranch_execz {S}")
            for t, _, _ in groups[g]:
                a(t)
            a.label(S)
        a(f"s_sub_u32 {sPOLL}, {sPOLL}, 1")
        a(f"s_cbranch_scc1 {E}")
        a("s_waitcnt vmcnt(0)")
        for g in range(len(groups)):
            S = a.newlabel("L_pqc")
            a(f"s_mov_b64 exec, {M[g]}")
            a(f"s_cbranch_execz {S}")
            chk(g)
            a.label(S)
        orall()
        a(f"s_cbranch_scc1 {L}")
        a.label(E)
        a("s_waitcnt vmcnt(0)")
        a("s_mov_b64 exec, -1")
        if after0:
            after0()
        a.label(D)
        if gs is not None and self.stamps:
            a(f"v_writelane_b32 {vSTAMP}, {sPOLL}, {gs+1}")

    def gate(self, mask, ld, acc, fs=None, hook=None, gs=None):
        a = self.a
        a(f"s_mov_b32 exec_lo, 0x{mask & 0xffffffff:x}")
        a(f"s_mov_b32 exec_hi, 0x{mask >> 32:x}")
        self.poll([ld], acc, fs=fs, lhook=hook)
        a("s_mov_b64 exec, -1")
        if gs is not None:
            self.stamp(gs)

    def last_begin(self, cnt, reg):
        a = self.a
        a("s_mov_b64 exec, 1")
        a(f"ds_add_rtn_u32 v{reg}, {vZ}, {vONE} offset:{4*CNT[cnt]}")
        a("s_mov_b64 exec, -1")

    def flag(self, reg, soff, both=True):
        a = self.a
        a(f"v_mov_b32 v{reg}, {sT}")
        a(f"v_mov_b32 v{reg+1}, {FS}")
        a("s_mov_b64 exec, 1")
        if both:
            a(f"buffer_store_dword v{reg}, v{reg+1}, {WS_}, {soff} offen")
        a(f"buffer_store_dword v{reg}, off, {WS_}, {soff} sc1")
        a("s_mov_b64 exec, -1")

    def last_flag(self, reg, n, soff):
        a = self.a
        S = a.newlabel("L_nl")
        a(f"v_readfirstlane_b32 s67, v{reg}")
        a(f"s_cmp_lg_u32 s67, {n-1}")
        a(f"s_cbranch_scc1 {S}")
        self.flag(reg, soff)
        a.label(S)

    def tag(self, regs):
        for r in regs:
            self.a(f"v_bfi_b32 v{r}, {vFF}, {sT}, v{r}")

    def bump(self, cnt, val=vONE):
        a = self.a
        a("s_mov_b64 exec, 1")
        a(f"ds_add_u32 {vZ}, {val} offset:{4*cnt}")
        a("s_mov_b64 exec, -1")

    def lds_wait(self, cnt, need, reads=(), tmp=16, slow=0, rl=False):
        a = self.a
        L = a.newlabel("L_lw")
        D = a.newlabel("L_lwd")
        E = a.newlabel("L_lwe")
        rd = f"ds_read_b32 v{tmp}, {vZ} offset:{4*cnt}"
        nr = len([t for t in reads if t.startswith("ds_")])
        if rl and self.cfg.get("rl", 1):
            a(f"s_mov_b32 {sPOLL}, {self.poll_limit * 8}")
            a.label(L)
            a(rd)
            for t in reads:
                a(t)
            a(f"s_sub_u32 {sPOLL}, {sPOLL}, 1")
            a(f"s_cbranch_scc1 {E}")
            a(f"s_waitcnt lgkmcnt({min(nr, 15)})")
            a(f"v_cmp_le_i32 vcc, {need}, v{tmp}")
            a(f"s_cbranch_vccz {L}")
            a.label(E)
            return
        if reads:
            a(rd)
            for t in reads:
                a(t)
            a(f"s_waitcnt lgkmcnt({min(nr, 15)})")
            a(f"v_cmp_le_i32 vcc, {need}, v{tmp}")
            a(f"s_cbranch_vccnz {E}")
        a(f"s_mov_b32 {sPOLL}, {self.poll_limit * 8}")
        a.label(L)
        a(rd)
        a(f"s_waitcnt lgkmcnt(0)")
        a(f"v_cmp_le_i32 vcc, {need}, v{tmp}")
        a(f"s_sub_u32 {sPOLL}, {sPOLL}, 1")
        a(f"s_cbranch_vccnz {D}")
        for _ in range(slow):
            a("s_nop 15")
        a(f"s_cmp_lg_u32 {sPOLL}, 0")
        a(f"s_cbranch_scc1 {L}")
        a.label(D)
        for t in reads:
            a(t)
        a.label(E)

    def early_pull(self, flag, need, reads, mask):
        a = self.a

        def hook():
            S = a.newlabel("L_hk")
            a(f"s_cmp_lg_u32 {flag}, 0")
            a(f"s_cbranch_scc1 {S}")
            a(f"ds_read_b32 v16, {vZ} offset:{4*C_LANDED}")
            a("s_waitcnt lgkmcnt(0)")
            a(f"v_cmp_le_i32 vcc, {need}, v16")
            a(f"s_cbranch_vccz {S}")
            a("s_mov_b64 exec, -1")
            for t in reads:
                if t[0] == "@":
                    a.label(t[1:])
                else:
                    a(t)
            a(f"s_mov_b32 exec_lo, 0x{mask & 0xffffffff:x}")
            a(f"s_mov_b32 exec_hi, 0x{mask >> 32:x}")
            a(f"s_mov_b32 {flag}, 1")
            a.label(S)
        return hook

    def late_pull(self, flag, need, reads):
        a = self.a
        S = a.newlabel("L_lp")
        a(f"s_cmp_lg_u32 {flag}, 0")
        a(f"s_cbranch_scc1 {S}")
        self.lds_wait(C_LANDED, need, reads, tmp=24)
        a.label(S)

    def slot_of(self, base, sdst, sunit):
        a = self.a
        a(f"s_add_u32 {sdst}, {sW}, {base}")
        a(f"s_add_u32 {sunit}, {sdst}, 1")
        a(f"s_and_b32 {sdst}, {sdst}, {NS-1}")
        a(f"s_lshl_b32 {sdst}, {sdst}, 13")

    def release(self, sslot, n=8):
        a = self.a
        a(f"s_lshr_b32 s67, {sslot}, 11")
        a(f"v_add_u32 v16, s67, {vZ}")
        a(f"v_mov_b32 v17, {n}")
        a("s_mov_b64 exec, 1")
        a(f"ds_add_u32 v16, v17 offset:{4*C_FREE}")
        a("s_mov_b64 exec, -1")

    def release_run(self, slot0, n, val=vONE):
        a = self.a
        a(f"v_add_u32 v16, {vL4}, {vZ}")
        a(f"s_mov_b64 exec, 0x{(1 << n) - 1:x}")
        a(f"ds_add_u32 v16, {val} offset:{4*(C_FREE+slot0)}")
        a("s_mov_b64 exec, -1")

    def pull(self, base, dst, release=False, red=None):
        a = self.a
        self.slot_of(base, "s78", "s79")
        for cg in range(4):
            a(f"v_add_u32 v{TRA+cg}, s78, v{TR+cg}")
        if red:
            self.red_addr(base, red)
        self.lds_wait(C_LANDED, "s79", slow=self.cfg["slow"])
        for cg in range(4):
            for hi in range(2):
                for q in range(2):
                    a(f"ds_read_b64_tr_b16 {v(dst+8*cg+4*hi+2*q,2)}, v{TRA+cg} offset:{(32*hi+16*q)*128}")
        a("s_waitcnt lgkmcnt(0)")
        if release:
            self.release("s78")

    def red_addr(self, base, kind):
        a = self.a
        a(f"v_mul_u32_u24 v16, {SB}, {vB}")
        a(f"v_lshl_add_u32 v16, {vG}, 4, v16")
        a(f"v_add_u32 {vRW}, s78, v16")
        if isinstance(base, int):
            a(f"s_mov_b32 s67, {(base % NS) * SLOTB}")
        else:
            a(f"s_and_b32 s67, {base}, {NS-1}")
            a(f"s_lshl_b32 s67, s67, 13")
        if kind == "row":
            a(f"s_mul_i32 s77, {sW}, {SB}")
            a(f"s_add_u32 s67, s67, s77")
            a(f"v_add_u32 {vRR}, s67, {vL4}")
        else:
            a(f"v_bfe_u32 v16, v0, 2, 3")
            a(f"v_mul_u32_u24 v16, {SB}, v16")
            a(f"v_bfe_u32 v17, v0, 5, 1")
            a(f"v_lshl_add_u32 v16, v17, 7, v16")
            a(f"v_and_b32 v17, 3, v0")
            a(f"v_lshl_add_u32 v16, v17, 2, v16")
            a(f"v_bfe_u32 v17, v0, 6, 2")
            a(f"v_lshl_add_u32 v16, v17, 4, v16")
            a(f"v_bfe_u32 v17, v0, 8, 1")
            a(f"v_lshl_add_u32 v16, v17, 6, v16")
            a(f"v_add_u32 {vRR}, s67, v16")

    def tail(self, tbs, nw, cnt, epilogue, acc=32, slow=0, BB=BB):
        a = self.a
        Lskip = a.newlabel("L_nomm")
        if nw < 8:
            a(f"s_cmp_ge_u32 {sW}, {nw}")
            a(f"s_cbranch_scc1 {Lskip}")
        first = True
        for u, tb in enumerate(tbs):
            for cg in range(4):
                c = "0" if first else v(acc + 4 * cg, 4)
                a(f"v_mfma_f32_16x16x32_bf16 {v(acc+4*cg,4)}, {v(tb+8*cg,4)}, {v(BB+8*u,4)}, {c}")
                a(f"v_mov_b32_dpp v{BB+8*u+4+cg}, v{BB+8*u+cg} row_ror:8 row_mask:0xf bank_mask:0xf")
            first = False
        for u, tb in enumerate(tbs):
            for cg in range(4):
                a(f"v_mfma_f32_16x16x32_bf16 {v(acc+4*cg,4)}, {v(tb+8*cg+4,4)}, {v(BB+8*u+4,4)}, {v(acc+4*cg,4)}")
        a(f"s_mov_b64 exec, {sM8}")
        for cg in range(4):
            a(f"ds_write_b128 {vRW}, {v(acc+4*cg,4)} offset:{64*cg}")
        self.bump(CNT[cnt])
        if cnt in ("P4", "P3"):
            self.xs(5)
        a.label(Lskip)
        np_ = (nw + 1) // 2
        rd = []
        for p in range(np_):
            if 2 * p + 1 < nw:
                rd.append(f"ds_read2st64_b32 {v(16+2*p,2)}, {vRR} offset0:{64*p} offset1:{64*p+32}")
            else:
                rd.append(f"ds_read_b32 v{16+2*p}, {vRR} offset:{SLOTB*2*p}")
        self.lds_wait(CNT[cnt], nw, rd, tmp=24, slow=slow, rl=not slow)
        for p in range(np_):
            a(f"s_waitcnt lgkmcnt({np_-1-p})")
            if p == 0:
                a("v_add_f32 v16, v16, v17")
            else:
                a(f"v_add_f32 v16, v16, v{16+2*p}")
                if 2 * p + 1 < nw:
                    a(f"v_add_f32 v16, v16, v{17+2*p}")
        epilogue()

    def publish1(self, voff, soff, fast=None):
        a = self.a
        self.tag([16])
        if fast:
            a(f"buffer_store_dword v16, {voff}, {WS_}, {fast} offen")
        a(f"buffer_store_dword v16, {voff}, {WS_}, {soff} offen sc1")

    def ln_consts(self, m, var, t):
        a = self.a
        self.bf16r_pairs([m, var], t)
        a(f"v_add_f32 v{var}, 0x{EPS:x}, v{var}")
        self.bf16r1(var)
        a(f"v_sqrt_f32 v{var}, v{var}")
        self.bf16r1(var)
        a(f"v_rcp_f32 v{var}, v{var}")

    def silu_c(self, src, dst):
        a = self.a
        self.unpack_bf16(src, 32, 4)
        for e in range(8):
            a(f"v_mul_f32 v{40+e}, 0x{LOG2E ^ 0x80000000:x}, v{32+e}")
        for e in range(8):
            a(f"v_exp_f32 v{40+e}, v{40+e}")
        for e in range(8):
            a(f"v_add_f32 v{40+e}, 1.0, v{40+e}")
        for e in range(8):
            a(f"v_rcp_f32 v{40+e}, v{40+e}")
        for e in range(8):
            a(f"v_mul_f32 v{32+e}, v{32+e}, v{40+e}")
        for p in range(4):
            a(f"v_cvt_pk_bf16_f32 v{dst+p}, v{32+2*p}, v{32+2*p+1}")

    def rot_addr(self, sh, c, dst):
        a = self.a
        a(f"v_lshrrev_b32 v16, 5, {vLANE}")
        a(f"v_sub_u32 v{dst+5}, 1, v16")
        a(f"v_add_u32 v16, {sX}, v16")
        for i in range(4):
            r = dst + 4 if i == 0 else dst + i
            a(f"v_add_u32 v17, {2*i}, v16")
            a(f"v_and_b32 v17, 7, v17")
            a(f"v_lshlrev_b32 v17, {sh}, v17")
            a(f"v_lshl_add_u32 v{r}, v{c}, 4, v17")
        a(f"v_lshl_add_u32 v{dst}, v{dst+5}, 22, v{dst+4}")

    def rm_task(self, k0, cg=None):
        a = self.a
        a(f"s_and_b32 {k0}, {sL}, 1")
        a(f"s_lshl_b32 {k0}, {k0}, 1")
        a(f"s_and_b32 s67, {sL}, 3")
        a(f"s_cmp_lt_u32 {sL}, 24")
        a(f"s_cselect_b32 {k0}, {k0}, s67")
        a(f"s_lshl_b32 {k0}, {k0}, 8")
        if cg is None:
            return
        L1 = a.newlabel("L_rmt")
        L2 = a.newlabel("L_rmt")
        a(f"s_bfe_u32 {cg}, {sL}, 0x30001")
        a(f"s_min_u32 {cg}, {cg}, 4")
        a(f"s_mul_i32 s67, {sX}, 5")
        a(f"s_add_u32 {cg}, {cg}, s67")
        a(f"s_cmp_lt_u32 {sL}, 28")
        a(f"s_cbranch_scc1 {L1}")
        a(f"s_lshl3_add_u32 {cg}, {sX}, 3")
        a(f"s_cmp_lt_u32 {sX}, 6")
        a(f"s_cbranch_scc1 {L2}")
        a(f"s_add_u32 {cg}, {sX}, 34")
        a.label(L1)
        a(f"s_add_u32 s67, {cg}, 4")
        a(f"s_mul_i32 s67, s67, 37")
        a(f"s_lshr_b32 s67, s67, 8")
        a(f"s_add_u32 {cg}, {cg}, s67")
        a.label(L2)

    def p4_cg(self, d):
        a = self.a
        a(f"s_add_u32 {d}, {sX}, 3")
        a(f"s_and_b32 {d}, {d}, 7")
        a(f"s_lshr_b32 s67, {sL}, 1")
        a(f"s_add_u32 {d}, {d}, s67")
        a(f"s_add_u32 {d}, {d}, 1")
        for _ in range(2):
            a(f"s_cmp_ge_u32 {d}, 7")
            a(f"s_cselect_b32 s67, 7, 0")
            a(f"s_sub_u32 {d}, {d}, s67")
        a(f"s_mul_i32 s67, {sX}, 7")
        a(f"s_add_u32 {d}, {d}, s67")

    def swap_j(self, d, p, q):
        a = self.a
        a(f"s_sub_u32 {d}, {sL}, 16")
        if not self.cfg.get("swap", 1):
            return
        a(f"s_cmp_eq_u32 {sL}, {16+p}")
        a(f"s_cselect_b32 {d}, {q}, {d}")
        a(f"s_cmp_eq_u32 {sL}, {16+q}")
        a(f"s_cselect_b32 {d}, {p}, {d}")

    def koff(self, dst):
        a = self.a
        a(f"v_lshlrev_b32 v{dst}, 11, {vB}")
        a(f"v_lshl_add_u32 v{dst}, {vHI}, 6, v{dst}")
        a(f"v_lshl_add_u32 v{dst}, {vG}, 3, v{dst}")

    def load_bfrag(self, dst, srd, soff, extra=0):
        a = self.a
        a(f"buffer_load_dwordx2 {v(dst,2)}, v8, {srd}, {soff} offen offset:{extra}")
        a(f"buffer_load_dwordx2 {v(dst+2,2)}, v8, {srd}, {soff} offen offset:{extra+32}")

    def p0a_regs(self):
        if self.cfg.get("pb"):
            return dict(c=62, T=44, BF=64, wa=8, tr=56, pa=59, fr=57, sp="s76", ss="s82", sf="s83", u0=-4)
        return dict(c=28, T=32, BF=96, wa=8, tr=9, pa=10, fr=30, sp="s71", ss="s70", sf="s72", u0=0)

    def p0a_early(self):
        a = self.a
        R = self.p0a_regs()
        a(f"v_bfe_u32 v8, {vLANE}, 1, 3")
        a(f"v_lshlrev_b32 v8, 11, v8")
        a(f"v_lshl_add_u32 v8, {vG}, 3, v8")
        a(f"v_and_b32 v9, 1, {vLANE}")
        a(f"v_lshl_add_u32 v8, v9, 5, v8")
        a(f"s_and_b32 {R['sp']}, {sL}, 3")
        a(f"s_lshl_b32 s67, {R['sp']}, 9")
        a(f"s_lshl_b32 s70, {sW}, 6")
        a(f"s_add_u32 s67, s67, s70")
        a("s_waitcnt lgkmcnt(0)")
        a(f"buffer_load_dwordx2 {v(R['c'],2)}, v8, {C_}, s67 offen")

    def p0a_pre(self, vm=0):
        a = self.a
        R = self.p0a_regs()
        sb = SLOT["P0A"]
        ss, T = R["ss"], R["T"]
        a(f"s_lshl_b32 s67, {sW}, 9")
        a(f"v_lshl_add_u32 v8, {vLANE}, 3, {vZ}")
        a(f"v_add_u32 v8, s67, v8")
        a(f"s_lshl_b32 {ss}, {sX}, 15")
        a(f"s_bfe_u32 s67, {sL}, 0x20002")
        a(f"s_lshl_b32 s67, s67, 13")
        a(f"s_add_u32 {ss}, {ss}, s67")
        a(f"s_lshl_b32 s67, {sW}, 11")
        a(f"s_add_u32 {ss}, {ss}, s67")
        a(f"s_lshl_b32 s67, {R['sp']}, 9")
        a(f"s_add_u32 {ss}, {ss}, s67")
        a(f"s_add_u32 {ss}, {ss}, {WS_SAC}")
        a(f"s_add_u32 {R['sf']}, {ss}, {FS}")
        a(f"v_lshlrev_b32 v{R['pa']}, 4, {vB}")
        a(f"v_lshl_add_u32 v{R['pa']}, {vG}, 7, v{R['pa']}")
        a(f"v_add_u32 v{R['fr']}, v{R['pa']}, {vZ}")
        a(f"s_lshl_b32 s67, {sW}, 5")
        a(f"v_xor_b32 v{R['tr']}, s67, v{TR}")
        if R["u0"]:
            a(f"v_add_u32 v{R['tr']}, {(R['u0'] % NS) * SLOTB}, v{R['tr']}")
        a(f"s_waitcnt vmcnt({vm})")
        self.unpack_bf16(R["c"], T, 2)
        for e in range(4):
            a(f"v_mul_f32 v{40+e}, 0x{LOG2E ^ 0x80000000:x}, v{T+e}")
        for e in range(4):
            a(f"v_exp_f32 v{40+e}, v{40+e}")
        for e in range(4):
            a(f"v_add_f32 v{40+e}, 1.0, v{40+e}")
        for e in range(4):
            a(f"v_rcp_f32 v{40+e}, v{40+e}")
        for e in range(4):
            a(f"v_mul_f32 v{T+e}, v{T+e}, v{40+e}")
        for p in range(2):
            a(f"v_cvt_pk_bf16_f32 v{T+p}, v{T+2*p}, v{T+1+2*p}")
        if not R["u0"]:
            self.epoch()
        self.stamp(sb)
        a(f"ds_write_b64 v8, {v(T,2)} offset:{L_P-L_AUX}")
        self.bump(CNT["S1"])

    def p0a_mm(self, skip):
        a = self.a
        R = self.p0a_regs()
        sb = SLOT["P0A"]
        BF, AF = R["BF"], 128
        a(f"s_cmp_ge_u32 {sW}, 4")
        a(f"s_cbranch_scc1 {skip}")
        self.lds_wait(CNT["S1"], 8, [f"ds_read_b128 {v(BF+4*st,4)}, v{R['fr']} offset:{L_P-L_AUX+512*st}" for st in range(8)], tmp=24)
        a("s_waitcnt lgkmcnt(0)")
        self.stamp(sb + 1)
        for u in range(4):
            rd = [f"ds_read_b64_tr_b16 {v(AF+8*u+4*hi+2*q,2)}, v{R['tr']} offset:{u*SLOTB+(32*hi+16*q)*128}" for hi in range(2) for q in range(2)]
            self.lds_wait(C_LANDED, R["u0"] + u + 1, rd, tmp=24)
            for hi in range(2):
                a(f"s_waitcnt lgkmcnt({2-2*hi})")
                c = "0" if u == 0 else v(16 + 4 * hi, 4)
                a(f"v_mfma_f32_16x16x32_bf16 {v(16+4*hi,4)}, {v(AF+8*u+4*hi,4)}, {v(BF+8*u+4*hi,4)}, {c}")
        for r in range(4):
            a(f"v_add_f32 v{16+r}, v{16+r}, v{20+r}")
        self.tag([16, 17, 18, 19])
        a(f"s_mov_b64 exec, {sM8}")
        a(f"buffer_store_dwordx4 v[16:19], v{R['pa']}, {WS_}, {R['sf']} offen")
        a(f"buffer_store_dwordx4 v[16:19], v{R['pa']}, {WS_}, {R['ss']} offen sc1")
        self.bump(CNT["P0P"])
        self.stamp(sb + 3)
        if not R["u0"]:
            a("v_mov_b32 v20, 2")
            self.release_run(0, 4, "v20")

    def p0a(self):
        self.p0a_pre()
        self.p0a_mm("L_att")

    def rm(self, tb):
        a = self.a
        name = "RM"
        self.stamp(SLOT[name])
        self.rm_task("s69", "s72")
        a(f"s_cmp_ge_u32 {sL}, 24")
        a(f"s_cselect_b32 s70, 1, 0")
        a(f"s_lshl_b32 s70, s69, s70")
        a(f"s_mul_i32 s70, s70, {MODS//512}")
        a("s_lshl_b32 s67, s72, 8")
        a("s_add_u32 s70, s70, s67")
        a(f"s_mul_i32 s67, {sW}, {3072*4}")
        a("s_add_u32 s70, s70, s67")
        a(f"s_add_u32 s70, s70, {WS_MOD}")
        self.touch("P3")
        self.touch("R3")
        self.touch("P5")
        Lr = a.newlabel("L_rmr")
        Le = a.newlabel("L_rme")
        a(f"s_cmp_ge_u32 {sL}, 24")
        a(f"s_cbranch_scc1 {Lr}")
        self.pull(8, tb, red="row")
        self.stamp(SLOT[name] + 1)
        self.tail([tb], 8, name, lambda: self.publish1(vL4, "s70"), slow=self.cfg["slow"], BB=100)
        self.release_run(8, 8)
        a(f"s_branch {Le}")
        a.label(Lr)
        self.slot_of(12, "s78", "s79")
        self.red_addr(12, "row")
        Ls = a.newlabel("L_rms")
        a(f"s_cmp_ge_u32 {sW}, 4")
        a(f"s_cbranch_scc1 {Ls}")
        self.pull(12, tb)
        self.stamp(SLOT[name] + 1)
        a.label(Ls)
        self.tail([tb], 4, name, lambda: self.publish1(vL4, "s70"), slow=self.cfg["slow"], BB=100)
        self.release_run(12, 4)
        a.label(Le)
        self.stamp(SLOT[name] + 3)

    def p1_early(self):
        a = self.a
        a(f"v_lshlrev_b32 v9, 4, {vLANE}")
        a(f"s_lshl_b32 s70, {sW}, 11")
        a(f"v_bfe_u32 v10, {vLANE}, 3, 2")
        a(f"v_lshlrev_b32 v8, 11, {vB}")
        a(f"v_lshl_add_u32 v8, v10, 3, v8")
        a(f"v_lshrrev_b32 v10, 5, {vLANE}")
        a(f"v_lshl_add_u32 v8, v10, 2, v8")
        a(f"s_lshl_b32 s69, {sX}, 8")
        a(f"s_lshl_b32 s67, {sW}, 5")
        a(f"s_add_u32 s69, s69, s67")
        a("s_waitcnt lgkmcnt(0)")
        a(f"buffer_load_dwordx4 v[32:35], v9, {X_}, s70 offen")
        a(f"buffer_load_dwordx4 v[36:39], v9, {X_}, s70 offen offset:1024")
        a(f"buffer_load_dword v58, v8, {X_}, s69 offen")
        self.rm_task("s69")
        a(f"s_lshl_b32 s67, {sW}, 6")
        a("s_add_u32 s69, s69, s67")
        a("s_and_b32 s69, s69, 1023")
        a("s_lshl_b32 s69, s69, 1")
        self.koff(8)
        self.load_bfrag(96, C_, "s69")

    def p1(self, tb):
        a = self.a
        sb = SLOT["P1"]
        Y = [60, 61]
        pb = self.cfg.get("pb")
        S1 = CNT["S2" if pb else "S1"]
        if pb:
            self.p0a_pre(5)
        a(f"s_lshl_b32 s70, {sX}, 17")
        a(f"s_lshl_b32 s67, s68, 10")
        a(f"s_add_u32 s70, s70, s67")
        a(f"s_lshl_b32 s67, {sW}, 7")
        a(f"s_add_u32 s70, s70, s67")
        a(f"s_add_u32 s70, s70, {WS_QP}")
        a(f"s_add_u32 s71, s70, {FS}")
        a(f"v_lshlrev_b32 v31, 14, {vB}")
        a(f"v_lshl_add_u32 v31, {vHI}, 6, v31")
        a(f"v_lshl_add_u32 v31, {vG}, 4, v31")
        a(f"v_and_b32 v30, 31, {vLANE}")
        a(f"v_lshl_add_u32 v28, v30, 4, {vZ}")
        a(f"s_lshr_b32 s67, {sW}, 1")
        a(f"s_lshl_b32 s67, s67, 9")
        a(f"s_and_b32 s72, {sW}, 1")
        a(f"s_lshl_b32 s72, s72, 3")
        a(f"s_add_u32 s67, s67, s72")
        a(f"v_add_u32 v28, s67, v28")
        a(f"v_lshl_add_u32 v29, {vB}, 4, {vZ}")
        a(f"v_lshl_add_u32 v29, {vG}, 7, v29")
        a(f"v_lshrrev_b32 v27, 5, {vLANE}")
        a(f"v_lshl_add_u32 v28, v27, 2, v28")
        a(f"v_lshlrev_b32 v27, 14, v27")
        a(f"v_lshl_add_u32 v27, v30, 4, v27")
        a(f"s_and_b32 s67, {sW}, 3")
        a(f"s_lshl_b32 s67, s67, 9")
        a(f"v_add_u32 v26, s67, v27")
        a(f"s_lshl_b32 s73, {sX}, 15")
        a(f"s_lshl_b32 s67, {sW}, 11")
        a(f"s_add_u32 s73, s73, s67")
        a(f"s_add_u32 s73, s73, {WS_SAC}")
        a("s_waitcnt vmcnt(3)")
        self.unpack_bf16(32, 40, 8)
        a("v_add_f32 v18, v40, v41")
        for e in range(2, 16):
            a(f"v_add_f32 v18, v18, v{40+e}")
        self.allred_wave([18], [19])
        a("v_mul_f32 v18, 0x3a800000, v18")
        a("v_mov_b32 v16, 0")
        for e in range(16):
            a(f"v_sub_f32 v17, v{40+e}, v18")
            a(f"v_fmac_f32 v16, v17, v17")
        self.allred_wave([16], [19])
        a("v_mul_f32 v19, 0x3a800000, v16")
        self.ln_consts(18, 19, 16)
        a(f"s_lshl_b32 s67, {sW}, 3")
        a(f"v_add_u32 v16, s67, {vZ}")
        self.epoch()
        self.stamp(sb)
        if not pb:
            a("s_barrier")
        a(f"ds_write_b64 v16, v[18:19] offset:{L_ST-L_AUX}")
        self.bump(S1)
        a("s_waitcnt vmcnt(0)")
        if pb:
            self.p0a_mm("L_p0s")
            a.label("L_p0s")
        a(f"v_lshl_add_u32 v17, {vB}, 3, {vZ}")
        self.unpack_bf16(58, 60, 1)
        self.silu_c(96, 100)
        self.lds_wait(S1, 8, [f"ds_read_b64 v[18:19], v17 offset:{L_ST-L_AUX}"])
        a("s_waitcnt lgkmcnt(0)")
        for y in Y:
            a(f"v_sub_f32 v{y}, v{y}, v18")
        self.bf16r_pairs(Y, 24)
        for y in Y:
            a(f"v_mul_f32 v{y}, v{y}, v19")
        self.bf16r_pairs(Y, 24)
        a(f"s_lshr_b32 s78, {sW}, 1")
        a(f"s_add_u32 s79, s78, 1")
        a(f"s_lshl_b32 s78, s78, 13")
        a(f"s_lshl_b32 s67, s72, 3")
        a(f"v_xor_b32 v16, s67, v{TR}")
        a(f"v_add_u32 v{TRA}, s78, v16")
        a(f"v_xor_b32 v16, s67, v{TR+1}")
        a(f"v_add_u32 v{TRA+1}, s78, v16")
        def wreads(rh):
            return [f"ds_read_b64_tr_b16 {v(tb+16*rh+8*c2+4*hi+2*q,2)}, v{TRA+c2} offset:{4*SLOTB*rh+(32*hi+16*q)*128}"
                    for c2 in range(2) for hi in range(2) for q in range(2)]
        self.touch("P1")
        self.lds_wait(C_LANDED, "s79", slow=self.cfg["slow"])
        for t in wreads(0):
            a(t)
        a(f"s_add_u32 s79, s79, 4")
        a("s_mov_b32 s75, 0")
        self.stamp(sb + 1)
        pl = [(f"buffer_load_dwordx4 {v(32+4*p,4)}, v27, {WS_}, s74 offen offset:{512*p} sc1", 32 + 4 * p, 4) for p in range(4)]
        GM = 0x100000001
        self.poll(pl, 24, gate=(GM, 26, "s74"), fs=[("s74", "s73")], gs=40, hook=self.early_pull("s75", "s79", wreads(1), GM))
        self.tb("P1")
        self.stamp(sb + 2)
        for e in range(4):
            a(f"v_add_f32 v{32+e}, v{32+e}, v{36+e}")
            a(f"v_add_f32 v{40+e}, v{40+e}, v{44+e}")
        for e in range(4):
            a(f"v_add_f32 v{32+e}, v{32+e}, v{40+e}")
        a("v_permlane32_swap_b32 v32, v34")
        a("v_permlane32_swap_b32 v33, v35")
        self.bf16r_pairs([34, 35], 24)
        for e in range(2):
            a(f"v_add_f32 v{34+e}, 1.0, v{34+e}")
        self.bf16r_pairs([34, 35], 24)
        self.bf16r_pairs([32, 33], 25)
        for e in range(2):
            a(f"v_mul_f32 v{34+e}, v{Y[e]}, v{34+e}")
        self.bf16r_pairs([34, 35], 24)
        for e in range(2):
            a(f"v_add_f32 v{32+e}, v{32+e}, v{34+e}")
        a("v_cvt_pk_bf16_f32 v32, v32, v33")
        a(f"ds_write_b32 v28, v32 offset:{L_H-L_AUX}")
        self.bump(CNT["H"])
        self.xs(0)
        self.late_pull("s75", "s79", wreads(1))
        self.lds_wait(CNT["H"], 8, [f"ds_read_b128 {v(32+4*st,4)}, v29 offset:{L_H-L_AUX+512*st}" for st in range(4)], tmp=24, rl=True)
        for st in range(4):
            a(f"s_waitcnt lgkmcnt({3-st})")
            for c2 in range(2):
                c = "0" if st == 0 else v(16 + 4 * c2, 4)
                a(f"v_mfma_f32_16x16x32_bf16 {v(16+4*c2,4)}, {v(tb+16*(st>>1)+8*c2+4*(st&1),4)}, {v(32+4*st,4)}, {c}")
        self.xs(1)
        a(f"s_lshr_b32 s67, s68, 2")
        a(f"s_cmp_lg_u32 s67, {sHKV}")
        for e in range(4):
            a(f"v_cndmask_b32 v{16+e}, v{20+e}, v{16+e}, {sM8}")
        self.tag([16, 17, 18, 19])
        a(f"buffer_store_dwordx4 v[16:19], v31, {WS_}, s70 offen sc1")
        Ln = a.newlabel("L_nopl")
        a(f"s_cbranch_scc1 {Ln}")
        a(f"buffer_store_dwordx4 v[16:19], v31, {WS_}, s71 offen")
        a.label(Ln)
        self.bump(CNT["P1P"])
        self.te("P1")
        self.stamp(sb + 3)
        a(f"s_lshr_b32 s67, s78, 11")
        a(f"v_add_u32 v24, s67, {vZ}")
        a(f"v_mov_b32 v25, 4")
        a("s_mov_b64 exec, 1")
        a(f"ds_add_u32 v24, v25 offset:{4*C_FREE}")
        a(f"ds_add_u32 v24, v25 offset:{4*C_FREE+16}")
        a("s_mov_b64 exec, -1")

    def att(self, uK):
        a = self.a
        sb = SLOT["ATT"]
        uV = uK + 8
        KR, VR, PR = 64, 96, 128
        self.stamp(sb)
        a(f"s_and_b32 s72, s68, 3")
        a(f"s_and_b32 s73, {sX}, 1")
        a(f"s_lshl_b32 s73, s73, 2")
        a(f"s_lshr_b32 s67, s68, 2")
        a(f"s_add_u32 s73, s73, s67")
        a(f"s_mov_b32 s74, {sHKV}")
        a(f"v_and_b32 v8, 31, {vLANE}")
        self.rot_addr(17, 8, 56)
        a(f"s_lshl_b32 s66, s73, 14")
        a(f"s_lshl_b32 s67, s74, 12")
        a(f"s_add_u32 s66, s66, s67")
        a(f"s_lshl_b32 s67, {sW}, 9")
        a(f"s_add_u32 s66, s66, s67")
        a(f"s_add_u32 s66, s66, {WS_QP}")
        a(f"s_mul_i32 s67, {sW}, 272")
        a(f"v_lshl_add_u32 v28, v8, 3, {vZ}")
        a(f"v_add_u32 v28, s67, v28")
        a(f"v_lshrrev_b32 v16, 5, {vLANE}")
        a(f"v_lshl_add_u32 v28, v16, 2, v28")
        a(f"v_mul_u32_u24 v29, 272, {vB}")
        a(f"v_lshl_add_u32 v29, {vG}, 4, v29")
        a(f"v_add_u32 v29, v29, {vZ}")
        a(f"v_lshl_add_u32 v30, {vB}, 4, {vZ}")
        a(f"v_lshl_add_u32 v30, {vG}, 7, v30")
        a(f"s_lshl_b32 s67, {sW}, 9")
        a(f"v_add_u32 v31, s67, v30")
        a(f"v_lshl_add_u32 v31, {vHI}, 3, v31")
        a(f"v_mul_u32_u24 v26, 80, {vB}")
        a(f"v_add_u32 v26, v26, {vZ}")
        a(f"s_lshl_b32 s67, {sW}, 3")
        a(f"v_add_u32 v27, s67, v26")
        a(f"v_lshl_add_u32 v26, {vHI}, 5, v26")
        for r in range(PR, PR + 32):
            a(f"v_mov_b32 v{r}, 0")
        a(f"s_not_b64 s[86:87], {sM8}")
        a(f"s_lshl_b32 s75, s73, 2")
        a(f"s_add_u32 s75, s75, s72")
        a(f"s_lshl_b32 s76, s73, 7")
        a(f"s_lshl2_add_u32 s76, s72, s76")
        a(f"s_lshl_b32 s75, s75, 14")
        a(f"s_lshl_b32 s67, s74, 12")
        a(f"s_add_u32 s75, s75, s67")
        a(f"s_lshl_b32 s67, {sW}, 9")
        a(f"s_add_u32 s75, s75, s67")
        a(f"s_add_u32 s75, s75, {WS_OP}")
        a(f"s_lshl_b32 s67, s74, 10")
        a(f"s_add_u32 s76, s76, s67")
        a(f"s_add_u32 s76, s76, {WS_LSE}")
        a(f"s_add_u32 s89, s76, {WS_FA-WS_LSE}")
        a(f"s_cmp_eq_u32 {sW}, 7")
        a("s_cselect_b32 s92, 1, -1")
        a("s_cselect_b32 s93, 0, -1")
        fa = self.cfg.get("fa", 0)

        def aflag(pt, cmp="s92"):
            if fa != pt and cmp == "s92" or not fa:
                return
            S = a.newlabel("L_naf")
            a(f"s_cmp_lg_u32 s77, {cmp}")
            a(f"s_cbranch_scc1 {S}")
            self.flag(48, "s89", both=False)
            a.label(S)
        a(f"v_sub_u32 v10, v30, {vZ}")
        a(f"v_lshrrev_b32 v16, 2, {vLANE}")
        a(f"v_and_b32 v17, 7, v16")
        a(f"v_xor_b32 v17, {sW}, v17")
        a(f"v_lshlrev_b32 v16, 8, v16")
        a(f"v_lshl_add_u32 v16, v17, 5, v16")
        a(f"v_and_b32 v17, 3, {vLANE}")
        a(f"v_lshl_add_u32 v62, v17, 3, v16")
        a(f"v_add_u32 v63, 0x10000, v62")
        self.touch("ATT")
        self.slot_of(uK, "s78", "s79")
        a(f"v_xor_b32 v16, {vG}, {vI}")
        a(f"v_lshlrev_b32 v16, 4, v16")
        a(f"v_lshl_add_u32 v16, {vI}, 8, v16")
        for st in range(4):
            a(f"v_xor_b32 v17, {64*st}, v16")
            a(f"v_add_u32 v{TRA+st}, s78, v17")
        self.lds_wait(C_LANDED, "s79", slow=self.cfg["slow"])
        for kb in range(2):
            for st in range(4):
                a(f"ds_read_b128 {v(KR+16*kb+4*st,4)}, v{TRA+st} offset:{4096*kb}")
        a("s_waitcnt lgkmcnt(0)")
        self.release("s78")
        vr = []
        for t in range(8):
            sl = (uV + t) % NS
            for q in range(2):
                off = sl * SLOTB + 4096 * q
                vr.append(f"ds_read_b64_tr_b16 {v(VR+4*t+2*q,2)}, v{62 + off//65536} offset:{off % 65536}")
        a("s_mov_b32 s77, 0")
        GM = 0x100000001
        if self.cfg.get("qlate"):
            self.lds_wait(C_LANDED, uV + self.cfg["qlate"], slow=self.cfg["slow"])
            self.stamp(sb + 1)
        self.poll([(f"buffer_load_dwordx4 {v(32+4*i,4)}, v{56+i}, {WS_}, s66 offen sc1", 32 + 4 * i, 4) for i in range(4)], 24,
                  gate=(GM, 58, "s66") if self.cfg.get("qgate", 1) else None, vfs=(56, 61, 60), gs=54,
                  hook=self.early_pull("s77", uV + 8, vr, GM),
                  mid=self.early_pull("s77", uV + 8, vr, (1 << 64) - 1) if self.cfg.get("vp", 3) & 1 else None)
        self.tb("ATT")
        self.stamp(sb + 2)
        for i in range(4):
            a(f"v_add_f32 v{32+i}, v{32+i}, v{36+i}")
            a(f"v_add_f32 v{40+i}, v{40+i}, v{44+i}")
        for i in range(4):
            a(f"v_add_f32 v{32+i}, v{32+i}, v{40+i}")
        a("v_permlane32_swap_b32 v32, v34")
        a("v_permlane32_swap_b32 v33, v35")
        a("v_add_f32 v32, v32, v34")
        a("v_add_f32 v33, v33, v35")
        a("v_cvt_pk_bf16_f32 v32, v32, v33")
        a(f"ds_write_b32 v28, v32 offset:{L_Q-L_AUX}")
        self.bump(CNT["Q"])
        if self.cfg.get("vp", 3) & 2:
            self.early_pull("s77", uV + 8, vr, (1 << 64) - 1)()
        self.lds_wait(CNT["Q"], 8, [f"ds_read_b128 {v(32+4*st,4)}, v29 offset:{L_Q-L_AUX+64*st}" for st in range(4)], tmp=24, rl=True)
        aflag(1)
        for st in range(4):
            a(f"s_waitcnt lgkmcnt({3-st})")
            for kb in range(2):
                c = "0" if st == 0 else v(16 + 4 * kb, 4)
                a(f"v_mfma_f32_16x16x32_bf16 {v(16+4*kb,4)}, {v(KR+16*kb+4*st,4)}, {v(32+4*st,4)}, {c}")
        aflag(2)
        self.xs(0)
        Z = [16, 17, 18, 19]
        for e in range(4):
            a(f"v_cndmask_b32 v{16+e}, v{20+e}, v{16+e}, {sM8}")
        self.bf16r_pairs(Z[:2], 24)
        self.bf16r_pairs(Z[2:], 25)
        for z in Z:
            a(f"v_mul_f32 v{z}, 0x{SCALE:x}, v{z}")
        self.bf16r_pairs(Z[:2], 24)
        self.bf16r_pairs(Z[2:], 25)
        a("v_max3_f32 v32, v16, v17, v18")
        a("v_max_f32 v33, v32, v19")
        a("v_max_f32_dpp v32, v33, v33 row_ror:8 row_mask:0xf bank_mask:0xf")
        self.allred_g([32], "v_max_f32", [33])
        a(f"v_mul_f32 v32, 0x{LOG2E:x}, v32")
        for z in Z:
            a(f"v_fma_f32 v{z}, v{z}, {sLOG}, -v32")
        for z in Z:
            a(f"v_exp_f32 v{z}, v{z}")
        a("v_cvt_pk_bf16_f32 v36, v16, v17")
        a("v_cvt_pk_bf16_f32 v37, v18, v19")
        a(f"ds_write_b64 v31, v[36:37] offset:{L_P-L_AUX}")
        aflag(3)
        a("v_add_f32 v16, v16, v17")
        a("v_add_f32 v18, v18, v19")
        a("v_add_f32 v34, v16, v18")
        a("v_add_f32_dpp v33, v34, v34 row_ror:8 row_mask:0xf bank_mask:0xf")
        self.allred_g([33], "v_add_f32", [34])
        a(f"ds_write_b64 v27, v[32:33] offset:{L_ML-L_AUX}")
        self.bump(CNT["P"])
        aflag(4)
        self.xs(1)
        self.late_pull("s77", uV + 8, vr)
        aflag(-1, "s93")
        self.xs(2)
        rd = [f"ds_read_b128 {v(32+4*i,4)}, v26 offset:{L_ML-L_AUX+16*i}" for i in range(2)]
        rd += [f"s_mov_b64 exec, {sM8}"]
        rd += [f"ds_read_b128 {v(PR+4*t,4)}, v30 offset:{L_P-L_AUX+512*t}" for t in range(4)]
        rd += [f"s_mov_b64 exec, s[86:87]"]
        rd += [f"ds_read_b128 {v(PR+4*t,4)}, v30 offset:{L_P-L_AUX+512*t}" for t in range(4, 8)]
        rd += [f"s_mov_b64 exec, -1"]
        self.lds_wait(CNT["P"], 8, rd, tmp=24, rl=self.cfg.get("rlp", 0))
        self.xs(3)
        a("s_waitcnt lgkmcnt(8)")
        a("v_max3_f32 v16, v32, v34, v36")
        a("v_max_f32 v17, v16, v38")
        a("v_max_f32_dpp v16, v17, v17 row_ror:8 row_mask:0xf bank_mask:0xf")
        if self.cfg.get("lsef", 1):
            for t in range(4):
                a(f"v_sub_f32 v{32+2*t}, v{32+2*t}, v16")
            for t in range(4):
                a(f"v_exp_f32 v{32+2*t}, v{32+2*t}")
            for t in range(4):
                a(f"v_mul_f32 v18, v32, v33" if t == 0 else f"v_fmac_f32 v18, v{32+2*t}, v{33+2*t}")
            Ln = a.newlabel("L_nolse")
            a(f"s_cmp_lg_u32 {sW}, 7")
            a("v_add_f32_dpp v17, v18, v18 row_ror:8 row_mask:0xf bank_mask:0xf")
            a(f"s_cbranch_scc1 {Ln}")
            a("v_log_f32 v18, v17")
            a("s_mov_b64 exec, 0xff")
            a("v_add_f32 v18, v16, v18")
            self.tag([18])
            a(f"buffer_store_dword v18, v10, {WS_}, s76 offen sc1")
            a("s_mov_b64 exec, -1")
            a.label(Ln)
            for t in range(4):
                a(f"s_waitcnt lgkmcnt({7-t})")
                a(f"v_mfma_f32_16x16x32_bf16 {v(KR+4*t,4)}, {v(VR+4*t,4)}, {v(PR+4*t,4)}, 0")
            for t in range(4):
                a(f"s_waitcnt lgkmcnt({3-t})")
                a(f"v_mfma_f32_16x16x32_bf16 {v(KR+4*t,4)}, {v(VR+16+4*t,4)}, {v(PR+16+4*t,4)}, {v(KR+4*t,4)}")
                if t == 0:
                    a("v_rcp_f32 v18, v17")
            for i in range(4):
                a(f"v_mul_f32 v{20+i}, v32, v{KR+i}")
        else:
            for t in range(4):
                a(f"s_waitcnt lgkmcnt({7-t})")
                a(f"v_mfma_f32_16x16x32_bf16 {v(KR+4*t,4)}, {v(VR+4*t,4)}, {v(PR+4*t,4)}, 0")
                a(f"v_sub_f32 v{32+2*t}, v{32+2*t}, v16")
                a(f"v_exp_f32 v{32+2*t}, v{32+2*t}")
            for t in range(4):
                a(f"s_waitcnt lgkmcnt({3-t})")
                a(f"v_mfma_f32_16x16x32_bf16 {v(KR+4*t,4)}, {v(VR+16+4*t,4)}, {v(PR+16+4*t,4)}, {v(KR+4*t,4)}")
                a(f"v_mul_f32 v18, v32, v33" if t == 0 else f"v_fmac_f32 v18, v{32+2*t}, v{33+2*t}")
            a("v_add_f32_dpp v17, v18, v18 row_ror:8 row_mask:0xf bank_mask:0xf")
            a("v_rcp_f32 v18, v17")
            a("v_log_f32 v17, v17")
            for i in range(4):
                a(f"v_mul_f32 v{20+i}, v32, v{KR+i}")
            Ln = a.newlabel("L_nolse")
            a(f"s_cmp_lg_u32 {sW}, 7")
            a(f"s_cbranch_scc1 {Ln}")
            a("v_add_f32 v17, v16, v17")
            self.tag([17])
            a("s_mov_b64 exec, 0xff")
            a(f"buffer_store_dword v17, v10, {WS_}, s76 offen sc1")
            a("s_mov_b64 exec, -1")
            a.label(Ln)
        for t in range(1, 4):
            for i in range(4):
                a(f"v_fmac_f32 v{20+i}, v{32+2*t}, v{KR+4*t+i}")
        for i in range(4):
            a(f"v_add_f32_dpp v{40+i}, v{20+i}, v{20+i} row_ror:8 row_mask:0xf bank_mask:0xf")
        for i in range(4):
            a(f"v_mul_f32 v{40+i}, v{40+i}, v18")
        self.tag([40, 41, 42, 43])
        a(f"s_mov_b64 exec, {sM8}")
        a(f"buffer_store_dwordx4 v[40:43], v10, {WS_}, s75 offen sc1")
        self.bump(CNT["ATTP"])
        self.te("ATT")
        self.stamp(sb + 3)
        self.release_run(uV % NS, NS - uV % NS)
        self.release_run(0, 8 - (NS - uV % NS))

    def p3(self, ubase, tb):
        a = self.a
        sb = SLOT["P3"]
        self.stamp(sb)
        a(f"s_lshl_b32 s70, {sX}, 15")
        a(f"s_lshl_b32 s67, s68, 8")
        a(f"s_add_u32 s70, s70, s67")
        a(f"s_lshl_b32 s67, {sW}, 12")
        a(f"s_add_u32 s70, s70, s67")
        a(f"s_add_u32 s70, s70, {WS_AP}")
        a(f"s_add_u32 s69, s70, {FS}")
        if self.cfg.get("pd", 0) & 4:
            a(f"v_not_b32 v16, {sT}")
            a(f"buffer_store_dword v16, {vL4}, {WS_}, s69 offen")
        a(f"v_lshlrev_b32 v8, 4, {vLANE}")
        a(f"s_lshl_b32 s72, {sX}, 11")
        a(f"s_lshl_b32 s67, {sW}, 16")
        a(f"s_add_u32 s72, s72, s67")
        a(f"s_add_u32 s72, s72, {WS_OP}")
        for i in range(1, 4):
            a(f"s_add_u32 s{72+i}, s72, {16384*i}")
        a(f"v_lshlrev_b32 v9, 4, {vB}")
        a(f"s_lshr_b32 s71, {sX}, 1")
        a(f"s_lshl_b32 s71, s71, 10")
        a(f"s_lshl_b32 s67, {sW}, 7")
        a(f"s_add_u32 s71, s71, s67")
        a(f"s_add_u32 s71, s71, {WS_LSE}")
        a(f"v_bfe_u32 v16, v0, 2, 1")
        a(f"v_lshl_add_u32 v16, {vG}, 1, v16")
        a(f"v_lshl_add_u32 v29, v16, 9, {vZ}")
        a(f"v_xor_b32 v16, {sW}, v16")
        a(f"v_lshl_add_u32 v29, v16, 4, v29")
        a(f"v_and_b32 v16, 1, v0")
        a(f"v_lshl_add_u32 v29, v16, 8, v29")
        a(f"v_lshl_add_u32 v29, {vHI}, 7, v29")
        a(f"v_bfe_u32 v16, v0, 1, 1")
        a(f"v_lshl_add_u32 v29, v16, 3, v29")
        a(f"s_and_b32 s67, {sW}, 3")
        a(f"s_lshl_b32 s67, s67, 1")
        a(f"v_xor_b32 v16, {vHI}, {vB}")
        a(f"v_xor_b32 v16, s67, v16")
        a(f"v_lshl_add_u32 v30, v16, 4, {vZ}")
        a(f"v_lshl_add_u32 v30, {vG}, 7, v30")
        a(f"v_lshl_add_u32 v30, {vHI}, 9, v30")
        a(f"s_lshl_b32 s67, {sW}, 10")
        a(f"v_add_u32 v30, s67, v30")
        self.slot_of(ubase, "s78", "s79")
        for cg in range(4):
            a(f"v_add_u32 v{TRA+cg}, s78, v{TR+cg}")
        self.red_addr(ubase, "row")
        wr = [f"ds_read_b64_tr_b16 {v(tb+8*cg+4*hi+2*q,2)}, v{TRA+cg} offset:{(32*hi+16*q)*128}" for cg in range(4) for hi in range(2) for q in range(2)]
        a("s_mov_b32 s77, 0")
        self.mod_addr()
        Lnm = a.newlabel("L_nomod")
        self.stamp(sb + 1)
        fa = self.cfg.get("fa", 0)
        lse = (f"buffer_load_dwordx4 v[32:35], v9, {WS_}, s71 offen sc1", 32, 4)
        if fa:
            a(f"s_add_u32 s66, s71, {WS_FA-WS_LSE}")
            self.gate(1, (f"buffer_load_dwordx4 v[32:35], off, {WS_}, s66 sc1", 32, 4), 24, hook=self.early_pull("s77", "s79", wr, 1))
        else:
            self.poll([lse], 24, lhook=self.early_pull("s77", "s79", wr, (1 << 64) - 1))
        self.stamp(42)
        G0 = 128
        pl = []
        for sp in range(4):
            for i in range(2):
                r = G0 + 8 * sp + 4 * i
                pl.append((f"buffer_load_dwordx4 {v(r,4)}, v8, {WS_}, s{72+sp} offen offset:{1024*i} sc1", r, 4))

        def weights():
            a("v_max3_f32 v36, v32, v33, v34")
            a("v_max_f32 v36, v36, v35")
            for w in range(32, 36):
                a(f"v_sub_f32 v{w+8}, v{w}, v36")
            for w in range(40, 44):
                a(f"v_exp_f32 v{w}, v{w}")
            a("v_add_f32 v36, v40, v41")
            a("v_add_f32 v37, v42, v43")
            a("v_add_f32 v36, v36, v37")
            a("v_rcp_f32 v36, v36")
            for w in range(40, 44):
                a(f"v_mul_f32 v{w}, v{w}, v36")
        if fa:
            self.poll2([[lse]] + [pl[2*sp:2*sp+2] for sp in range(4)], 24, plain=self.cfg["plain"], after0=weights)
        elif self.cfg.get("pq", 0) & 1:
            self.poll2([pl[2*sp:2*sp+2] for sp in range(4)], 24, plain=self.cfg["plain"], mid=weights)
        else:
            self.poll(pl, 24, plain=self.cfg["plain"], mid=weights)
        if self.stamps:
            a(f"v_writelane_b32 {vSTAMP}, {sPOLL}, 43")
        self.tb("P3")
        self.stamp(sb + 2)
        for e in range(8):
            a(f"v_mul_f32 v{G0+e}, v40, v{G0+e}")
        for sp in range(1, 4):
            for e in range(8):
                a(f"v_fmac_f32 v{G0+e}, v{40+sp}, v{G0+8*sp+e}")
        for p in range(4):
            a(f"v_cvt_pk_bf16_f32 v{16+p}, v{G0+2*p}, v{G0+1+2*p}")
        a(f"ds_write_b64 v29, v[16:17] offset:{L_OB-L_AUX}")
        a(f"ds_write_b64 v29, v[18:19] offset:{L_OB-L_AUX+4096}")
        self.bump(CNT["P3G"])
        self.late_pull("s77", "s79", wr)
        self.lds_wait(CNT["P3G"], 8, [f"ds_read_b128 {v(BB,4)}, v30 offset:{L_OB-L_AUX}"], tmp=24, rl=True)
        if self.cfg.get("hmod", 2) == 2:
            a(f"s_cmp_lt_u32 {sL}, 24")
            a(f"s_cbranch_scc1 {Lnm}")
            for t, _, _ in self.mod_loads():
                self.emit(t)
            a.label(Lnm)
        a("s_waitcnt lgkmcnt(0)")
        self.xs(2)
        self.tail([tb], 8, "P3", lambda: self.publish1(vL4, "s70", fast="s69"))
        self.bump(CNT["P3P"])
        self.te("P3")
        self.stamp(sb + 3)

    def mod_addr(self):
        a = self.a
        a(f"v_and_b32 v16, 31, {vLANE}")
        a(f"v_lshlrev_b32 v16, 4, v16")
        a(f"v_lshrrev_b32 v17, 5, {vLANE}")
        a(f"v_mul_u32_u24 v112, {MODS}, v17")
        a(f"v_add_u32 v112, v112, v16")
        a(f"v_add_u32 v113, {2*MODS}, v112")
        a(f"s_and_b32 s97, {sL}, 7")
        a(f"s_lshl_b32 s67, {sW}, 9")
        a(f"s_mul_i32 s94, s97, {3072*4}")
        a(f"s_add_u32 s94, s94, s67")
        a(f"s_add_u32 s94, s94, {WS_MOD}")
        a(f"s_add_u32 s95, s94, 4096")
        a(f"s_add_u32 s96, s94, 8192")
        a(f"v_not_b32 v96, {sT}")
        a(f"s_mov_b32 s36, 0x{QMASK & 0xffffffff:x}")
        a(f"s_mov_b32 s37, 0x{QMASK >> 32:x}")
        a(f"s_lshl_b32 s67, {sW}, 1")
        a(f"s_lshr_b64 s[36:37], s[36:37], s67")
        for m in range(3):
            a(f"s_bitcmp1_b64 s[36:37], {16*m}")
            a(f"s_cselect_b32 s{30+2*m}, 0xffff, 0")
            a(f"s_bitcmp1_b64 s[36:37], {16*m+1}")
            a(f"s_cselect_b32 s67, 0xffff0000, 0")
            a(f"s_or_b32 s{30+2*m}, s{30+2*m}, s67")
            a(f"s_mov_b32 s{31+2*m}, s{30+2*m}")
        for r in range(116, 128):
            a(f"v_mov_b32 v{r}, {sT}")

    def mod_loads(self):
        L = []
        for m in range(3):
            S = self.a.newlabel("L_mq")
            L.append(([";@nopad", f"s_mov_b64 exec, s[{30+2*m}:{31+2*m}]", f"s_cbranch_execz {S}",
                       f"buffer_load_dwordx4 {v(116+4*m,4)}, v113, {WS_}, s{94+m} offen sc1", f"@{S}"] + (["s_mov_b64 exec, -1", ";@pad"] if m == 2 else []),
                      116 + 4 * m, 4))
        return L + [(f"buffer_load_dwordx4 {v(96+4*m,4)}, v112, {WS_}, s{94+m} offen sc1", 96 + 4 * m, 4) for m in range(3)]

    def emit(self, t):
        for x in ([t] if isinstance(t, str) else t):
            if x[0] == "@":
                self.a.label(x[1:])
            else:
                self.a(x)

    def r3(self):
        a = self.a
        sb = SLOT["R3"]
        a(f"v_and_b32 v8, 31, {vLANE}")
        a(f"v_lshlrev_b32 v9, 4, v8")
        a(f"s_lshl_b32 s67, {sW}, 9")
        a(f"s_lshl_b32 s71, s69, 12")
        a(f"s_add_u32 s71, s71, s67")
        ml = self.mod_loads()
        a(f"v_lshrrev_b32 v16, 1, v9")
        a(f"s_lshr_b32 s67, s71, 1")
        a(f"buffer_load_dwordx2 v[28:29], v16, {X_}, s67 offen")
        self.rot_addr(15, 8, 64)
        a(f"s_add_u32 s77, s71, {WS_AP}")
        a(f"s_lshl_b32 s67, {sX}, 15")
        a(f"s_add_u32 s71, s71, s67")
        a(f"s_lshl_b32 s70, {sX}, 3")
        a(f"s_add_u32 s70, s70, s69")
        a(f"s_mul_i32 s70, s70, {H2R}")
        a(f"s_lshl_b32 s67, {sW}, 9")
        a(f"s_add_u32 s70, s70, s67")
        a(f"s_add_u32 s70, s70, {WS_H2}")
        a(f"s_add_u32 s76, s70, {FS}")
        a(f"s_add_u32 s71, s71, {WS_X1}")
        a(f"s_lshl_b32 s67, {sW}, 3")
        a(f"v_add_u32 v10, s67, {vZ}")
        gate = self.cfg.get("r3gate")

        def mod():
            Lok = a.newlabel("L_modok")
            a(f"s_waitcnt vmcnt({3 if gate else 7})")
            a(f"v_xor_b32 v25, {sT}, v96")
            for r in list(range(97, 108)) + list(range(116, 128)):
                a(f"v_bitop3_b32 v25, v{r}, v25, {sT} bitop3:0xde")
            a(f"v_and_b32 v25, {vFF}, v25")
            a(f"v_cmp_ne_u32 vcc, 0, v25")
            a(f"s_cbranch_vccz {Lok}")
            self.poll(ml, 25)
            a.label(Lok)
            M = list(range(96, 108))
            T = list(range(116, 128))
            for r, t in zip(M, T):
                a(f"v_add_f32 v{r}, v{r}, v{t}")
            for r, t in zip(M, T):
                a(f"v_mov_b32 v{t}, v{r}")
            for r, t in zip(M, T):
                a(f"v_permlane32_swap_b32 v{r}, v{t}")
            for r, t in zip(M, T):
                a(f"v_add_f32 v{r}, v{r}, v{t}")
            self.bf16r_pairs(M, 25)
            for i in range(4):
                a(f"v_add_f32 v{104+i}, 1.0, v{104+i}")
            self.bf16r_pairs([104, 105, 106, 107], 25)
            a(f"s_waitcnt vmcnt({0 if gate else 4})")
            self.unpack_bf16(28, 108, 2)
            self.stamp(sb + 1)
        self.stamp(sb)
        if gate:
            mod()
        rl = [(f"buffer_load_dwordx4 {v(32+4*k,4)}, v{64+k}, {WS_}, s77 offen sc1", 32 + 4 * k, 4) for k in range(4)]
        if self.cfg.get("pq", 0) & 2:
            self.poll2([[t] for t in rl], 24, vfs=(64, 69, 68), mid=mod)
        else:
            self.poll(rl, 24, vfs=(64, 69, 68), gate=(0x100000001, 66, "s77") if gate else None, gs=56 if gate else None, mid=None if gate else mod)
        fr = self.cfg.get("fr", 0)
        if fr:
            self.last_begin("R3G", 26)
            a(f"s_lshl_b32 s72, {sX}, 7")
            a(f"s_lshl2_add_u32 s72, s69, s72")
            a(f"s_add_u32 s72, s72, {WS_FR}")
        self.tb("R3")
        self.stamp(sb + 2)
        for i in range(4):
            a(f"v_add_f32 v{32+i}, v{32+i}, v{36+i}")
            a(f"v_add_f32 v{40+i}, v{40+i}, v{44+i}")
        for i in range(4):
            a(f"v_add_f32 v{32+i}, v{32+i}, v{40+i}")
        for i in range(4):
            a(f"v_mov_b32 v{36+i}, v{32+i}")
        for i in range(4):
            a(f"v_permlane32_swap_b32 v{32+i}, v{36+i}")
        for i in range(4):
            a(f"v_add_f32 v{32+i}, v{32+i}, v{36+i}")
        if fr:
            a("s_waitcnt lgkmcnt(0)")
            self.last_flag(26, 8, "s72")
        X = [32, 33, 34, 35]
        self.bf16r_pairs(X, 24)
        for i in range(4):
            a(f"v_mul_f32 v{32+i}, v{32+i}, v{96+i}")
        self.bf16r_pairs(X, 24)
        for i in range(4):
            a(f"v_add_f32 v{32+i}, v{32+i}, v{108+i}")
        self.bf16r_pairs(X, 24)
        a("v_add_f32 v16, v32, v33")
        a("v_mul_f32 v17, v32, v32")
        a("v_add_f32 v18, v34, v35")
        a("v_fmac_f32 v17, v33, v33")
        a("v_add_f32 v16, v16, v18")
        a("v_fmac_f32 v17, v34, v34")
        a("v_fmac_f32 v17, v35, v35")
        self.allred_wave([16, 17], [18, 19], n32=True)
        a(f"ds_write_b64 v10, v[16:17] offset:{L_ST+64-L_AUX}")
        self.bump(CNT["R3"])
        self.xs(3)
        for i in range(4):
            a(f"v_bfi_b32 v{36+i}, {vFF}, {sT}, v{32+i}")
        a("s_mov_b32 exec_hi, 0")
        a(f"buffer_store_dwordx4 v[36:39], v9, {WS_}, s71 offen sc1")
        a("s_mov_b32 exec_hi, -1")
        self.lds_wait(CNT["R3"], 8, [f"ds_read_b128 {v(16+4*q,4)}, {vZ} offset:{L_ST+64-L_AUX+16*q}" for q in range(4)], tmp=40)
        a("s_waitcnt lgkmcnt(2)")
        a("v_add_f32 v16, v16, v18")
        a("v_add_f32 v17, v17, v19")
        a("v_add_f32 v20, v20, v22")
        a("v_add_f32 v21, v21, v23")
        a("s_waitcnt lgkmcnt(0)")
        a("v_add_f32 v24, v24, v26")
        a("v_add_f32 v25, v25, v27")
        a("v_add_f32 v28, v28, v30")
        a("v_add_f32 v29, v29, v31")
        a("v_add_f32 v16, v16, v20")
        a("v_add_f32 v17, v17, v21")
        a("v_add_f32 v24, v24, v28")
        a("v_add_f32 v25, v25, v29")
        a("v_add_f32 v16, v16, v24")
        a("v_add_f32 v17, v17, v25")
        a("v_mul_f32 v16, 0x3a800000, v16")
        a("v_mul_f32 v17, 0x3a800000, v17")
        a("v_fma_f32 v17, -v16, v16, v17")
        a("v_max_f32 v17, 0, v17")
        self.ln_consts(16, 17, 18)
        for x in X:
            a(f"v_sub_f32 v{x}, v{x}, v16")
        self.bf16r_pairs(X, 24)
        for x in X:
            a(f"v_mul_f32 v{x}, v{x}, v17")
        self.bf16r_pairs(X, 24)
        for i in range(4):
            a(f"v_mul_f32 v{32+i}, v{32+i}, v{104+i}")
        self.bf16r_pairs(X, 24)
        for i in range(4):
            a(f"v_add_f32 v{32+i}, v{32+i}, v{100+i}")
        self.bf16r_pairs(X, 24)
        self.tag(X)
        a("s_mov_b32 exec_hi, 0")
        a(f"buffer_store_dwordx4 v[32:35], v9, {WS_}, s76 offen")
        a(f"buffer_store_dwordx4 v[32:35], v9, {WS_}, s70 offen sc1")
        self.bump(CNT["R3P"])
        self.te("R3")
        self.stamp(sb + 3)

    def p4(self):
        a = self.a
        sb = SLOT["P4"]
        self.stamp(sb)
        self.p4_cg("s72")
        a(f"s_and_b32 s71, s68, 1")
        a(f"s_mul_i32 s89, {sX}, 9")
        a(f"s_add_u32 s89, s89, s72")
        a(f"s_lshl1_add_u32 s89, s89, s71")
        a(f"s_lshl_b32 s89, s89, 2")
        a(f"s_add_u32 s89, s89, {WS_FG}")
        a(f"s_mul_i32 s70, s71, {56*2048}")
        a(f"s_lshl_b32 s67, s72, 11")
        a(f"s_add_u32 s70, s70, s67")
        a(f"s_lshl_b32 s67, {sW}, 8")
        a(f"s_add_u32 s70, s70, s67")
        a(f"s_add_u32 s70, s70, {WS_GU}")
        a(f"s_add_u32 s69, s70, {FS}")
        if self.cfg.get("pd", 0) & 2:
            a(f"v_not_b32 v16, {sT}")
            a(f"buffer_store_dword v16, {vL4}, {WS_}, s69 offen")
        a(f"v_lshrrev_b32 v8, 5, {vLANE}")
        a(f"v_mul_u32_u24 v9, {H2R}, v8")
        a(f"v_lshl_add_u32 v9, {vI}, 4, v9")
        a(f"v_bfe_u32 v10, {vLANE}, 4, 1")
        a(f"v_lshl_add_u32 v9, v10, 11, v9")
        a(f"v_mul_u32_u24 v26, {H2R}, {vLANE}")
        a(f"s_and_b32 s67, s68, 1")
        a(f"s_lshl_b32 s67, s67, 11")
        a(f"v_add_u32 v26, s67, v26")
        self.slot_of(4, "s78", "s79")
        self.red_addr(4, "frag")
        a(f"s_add_u32 s67, s78, 4096")
        a(f"v_mul_u32_u24 v29, 272, v8")
        a(f"v_bfe_u32 v30, v0, 3, 2")
        a(f"v_lshl_add_u32 v29, v30, 6, v29")
        a(f"v_and_b32 v30, 3, v0")
        a(f"v_lshl_add_u32 v29, v30, 4, v29")
        a(f"v_bfe_u32 v30, v0, 2, 1")
        a(f"v_lshl_add_u32 v29, v30, 3, v29")
        a(f"v_add_u32 v29, s67, v29")
        a(f"v_mul_u32_u24 v30, 272, {vB}")
        a(f"v_lshl_add_u32 v30, {vHI}, 6, v30")
        a(f"v_lshl_add_u32 v30, {vG}, 4, v30")
        a(f"v_add_u32 v30, s67, v30")
        self.touch("P4")
        self.pull(20, A[0])
        self.pull(28, A[1])
        a(f"s_mul_i32 s72, {sX}, {8*H2R}")
        a(f"s_lshl_b32 s67, {sW}, 8")
        a(f"s_add_u32 s72, s72, s67")
        a(f"s_add_u32 s72, s72, {WS_H2}")
        for i in range(1, 4):
            a(f"s_add_u32 s{72+i}, s72, {2*H2R*i}")
        self.stamp(sb + 1)
        pl = []
        for i in range(4):
            r = 32 + 4 * i
            pl.append((f"buffer_load_dwordx4 {v(r,4)}, v9, {WS_}, s{76+i} offen sc1", r, 4))
        fs4 = [(f"s{76+i}", f"s{72+i}") for i in range(4)]
        if self.cfg.get("fr", 0):
            a(f"s_lshl_b32 s66, {sX}, 7")
            a(f"s_add_u32 s66, s66, {WS_FR}")
            self.gate(self.cfg.get("frm", 0xff), (f"buffer_load_dword v25, {vL4}, {WS_}, s76 offen sc1", 25, 1), 24, fs=[("s76", "s66")], gs=44)
            self.poll2([[t] for t in pl], 24, fs=fs4, gs=44)
        elif self.cfg.get("pq", 0) & 4:
            self.gate(self.cfg["p4gate"], (f"buffer_load_dword v25, v26, {WS_}, s76 offen sc1", 25, 1), 24, fs=fs4, gs=44)
            self.poll2([[t] for t in pl], 24, fs=fs4, gs=44, keep=True)
        else:
            self.poll(pl, 24, gate=(self.cfg["p4gate"], 26, "s76"), fs=fs4, gs=44)
        fg = self.cfg.get("fg", 0)
        if fg:
            self.last_begin("QG", 26)
        self.tb("P4")
        self.stamp(sb + 2)
        for p in range(8):
            a(f"v_perm_b32 v{16+p}, v{33+2*p}, v{32+2*p}, {sSEL1}")
        for i in range(4):
            a(f"ds_write_b64 v29, {v(16+2*i,2)} offset:{544*i}")
        for u in range(2):
            a(f"ds_read_b128 {v(BB+8*u,4)}, v30 offset:{128*u}")
        if fg:
            a("s_waitcnt lgkmcnt(6)")
            self.last_flag(26, 8, "s89")
        a("s_waitcnt lgkmcnt(0)")
        self.xs(4)

        def epi():
            self.bf16r1(16)
            Lu = a.newlabel("L_p4up")
            a("s_cmp_lg_u32 s71, 0")
            a(f"s_cbranch_scc1 {Lu}")
            a(f"v_mul_f32 v17, 0x{LOG2E ^ 0x80000000:x}, v16")
            a(f"v_exp_f32 v17, v17")
            a(f"v_add_f32 v17, 1.0, v17")
            a(f"v_rcp_f32 v17, v17")
            a(f"v_mul_f32 v16, v16, v17")
            self.bf16r1(16)
            a.label(Lu)
            self.publish1(vL4, "s70", fast="s69")
        self.tail([A[0], A[1]], 8, "P4", epi)
        self.te("P4")
        self.stamp(sb + 3)

    def p5(self, ubase, tb):
        a = self.a
        sb = SLOT["P5"]
        self.stamp(sb)
        a(f"s_lshl_b32 s70, {sX}, 15")
        a(f"s_lshl_b32 s67, s68, 8")
        a(f"s_add_u32 s70, s70, s67")
        a(f"s_lshl_b32 s67, {sW}, 12")
        a(f"s_add_u32 s70, s70, s67")
        a(f"s_add_u32 s70, s70, {WS_DP}")
        a(f"s_add_u32 s69, s70, {FS}")
        if self.cfg.get("pd", 0) & 8:
            a(f"v_not_b32 v16, {sT}")
            a(f"buffer_store_dword v16, {vL4}, {WS_}, s69 offen")
        a(f"v_lshlrev_b32 v8, 4, {vLANE}")
        a(f"s_mul_i32 s73, {sX}, {7*2048}")
        a(f"s_lshl_b32 s67, {sW}, 11")
        a(f"s_add_u32 s73, s73, s67")
        a(f"s_add_u32 s73, s73, {WS_GU}")
        a(f"s_add_u32 s74, s73, {56*2048}")
        a(f"v_mul_u32_u24 v26, {56*2048}, {vLANE}")
        a(f"s_lshl_b32 s67, s68, 7")
        a(f"v_add_u32 v26, s67, v26")
        self.slot_of(ubase, "s78", "s79")
        self.red_addr(ubase, "row")
        Lsk = a.newlabel("L_p5skip")
        a(f"s_cmp_ge_u32 {sW}, 7")
        a(f"s_cbranch_scc1 {Lsk}")
        self.pull(ubase, tb)
        self.stamp(sb + 1)
        pl = []
        for m, so in enumerate(("s75", "s76")):
            for q in range(2):
                r = 32 + 8 * m + 4 * q
                pl.append((f"buffer_load_dwordx4 {v(r,4)}, v8, {WS_}, {so} offen offset:{1024*q} sc1", r, 4))
        fs5 = [("s75", "s73"), ("s76", "s74")]
        if self.cfg.get("fg", 0):
            a(f"s_lshl_b32 s66, {sX}, 7")
            a(f"s_lshl3_add_u32 s66, {sW}, s66")
            a(f"s_add_u32 s66, s66, {WS_FG}")
            self.gate(3, (f"buffer_load_dword v25, {vL4}, {WS_}, s76 offen sc1", 25, 1), 24, fs=[("s76", "s66")], gs=46)
            self.poll2([pl[:2], pl[2:]], 24, fs=fs5, gs=46)
        else:
            self.poll(pl, 24, gate=(0x3, 26, "s75"), fs=fs5, gs=46)
        self.tb("P5")
        self.stamp(sb + 2)
        for e in range(16):
            a(f"v_and_b32 v{32+e}, 0xffff0000, v{32+e}")
        for e in range(8):
            a(f"v_mul_f32 v{32+e}, v{32+e}, v{40+e}")
        for p in range(4):
            a(f"v_cvt_pk_bf16_f32 v{BB+p}, v{32+2*p}, v{33+2*p}")
        a.label(Lsk)
        self.tail([tb], 7, "P5", lambda: self.publish1(vL4, "s70", fast="s69"))
        self.te("P5")
        self.stamp(sb + 3)

    def gb_r5(self):
        a = self.a
        sb = SLOT["GB"]
        self.stamp(sb)
        self.koff(8)
        a(f"s_lshl_b32 s67, {sW}, 7")
        self.load_bfrag(24, C_, "s67")
        self.load_bfrag(28, C_, "s67", 1024)
        a("s_waitcnt vmcnt(0)")
        self.silu_c(24, BB)
        self.silu_c(28, BB + 8)
        self.slot_of(4, "s78", "s79")
        self.red_addr(4, "row")
        self.touch("R5")
        self.pull(20, A[0])
        self.pull(28, A[1])
        self.stamp(sb + 1)

        def epi():
            self.bf16r1(16)
            a("v_mov_b32 v31, v16")
        self.tail([A[0], A[1]], 8, "GB", epi, slow=self.cfg["slow"])
        self.stamp(sb + 3)
        sb = SLOT["R5"]
        self.stamp(sb)
        a(f"s_lshl_b32 s69, s68, 8")
        a(f"s_lshl_b32 s67, {sW}, 12")
        a(f"s_add_u32 s69, s69, s67")
        a(f"s_add_u32 s67, {sX}, 1")
        a(f"s_and_b32 s67, s67, 7")
        a(f"s_lshl_b32 s67, s67, 15")
        a(f"s_add_u32 s70, s69, s67")
        a(f"s_add_u32 s70, s70, {WS_X1}")
        self.poll([(f"buffer_load_dword v30, {vL4}, {WS_}, s70 offen sc1", 30, 1)], 24)
        a("v_and_b32 v30, 0xffff0000, v30")
        a(f"s_add_u32 s70, s69, {WS_DP}")
        for k in range(8):
            a(f"s_add_u32 s67, {sX}, {k}")
            a(f"s_and_b32 s67, s67, 7")
            a(f"s_lshl_b32 s67, s67, 15")
            a(f"s_add_u32 s{72+k if k else 71}, s70, s67")
        a(f"v_lshlrev_b32 v10, 1, {vLANE}")
        a(f"s_lshr_b32 s69, s69, 1")
        self.stamp(sb + 1)
        self.poll([(f"buffer_load_dword v{32+k}, {vL4}, {WS_}, s{72+k} offen sc1", 32 + k, 1) for k in range(8)], 24,
                  fs=[("s72", "s71")], gate=(1, 13, "s76") if self.cfg.get("r5gate") else None, gfs=False)
        self.tb("R5")
        self.stamp(sb + 2)
        for k in range(4):
            a(f"v_add_f32 v{32+k}, v{32+k}, v{36+k}")
        a("v_add_f32 v32, v32, v33")
        a("v_add_f32 v34, v34, v35")
        a("v_add_f32 v32, v32, v34")
        self.bf16r1(32)
        a("v_mul_f32 v32, v32, v31")
        self.bf16r1(32)
        a("v_add_f32 v32, v32, v30")
        a("v_cvt_pk_bf16_f32 v32, v32, v32")
        a(f"buffer_store_short v32, v10, {OUT_}, s69 offen")
        Lnb = a.newlabel("L_nobump")
        a(f"s_or_b32 s67, s68, {sW}")
        a("s_cmp_lg_u32 s67, 0")
        a(f"s_cbranch_scc1 {Lnb}")
        a(f"s_add_u32 s67, {sEP}, 1")
        a("v_mov_b32 v33, s67")
        a("v_mov_b32 v34, 0")
        a("s_mov_b64 exec, 1")
        a(f"buffer_store_dword v33, v34, {WS_}, 0 offen")
        a("s_mov_b64 exec, -1")
        a.label(Lnb)
        self.te("R5")
        self.stamp(sb + 3)

    def l_signal(self, lag):
        a = self.a
        a(f"s_sub_u32 s67, s72, {lag}")
        a("v_mov_b32 v20, s67")
        a(f"ds_max_i32 v19, v20 offset:{4*C_LANDED}")
        if self.stamps and self.cfg.get("ls"):
            S = a.newlabel("L_ls")
            a("s_cmp_le_i32 s67, s93")
            a(f"s_cbranch_scc1 {S}")
            self.l_flush()
            a("s_mov_b32 s93, s67")
            a("s_memrealtime s[98:99]")
            a.label(S)

    def l_flush(self):
        a = self.a
        if self.stamps and self.cfg.get("ls"):
            a("s_mov_b32 s92, m0")
            a("s_mov_b32 m0, s93")
            a("s_waitcnt lgkmcnt(1)")
            a("v_writelane_b32 v41, s98, m0")
            a("s_mov_b32 m0, s92")

    def l_drain(self):
        a = self.a
        for t in reversed(range((self.lD + 7) // 8)):
            a(f"s_waitcnt vmcnt({8*t})")
            if self.stamps and self.cfg.get("ls"):
                a("s_waitcnt lgkmcnt(0)")
            self.l_signal(t)
        self.lD = 0

    def l_wait(self, cnt, need, drain=1):
        if drain:
            self.l_drain()
        self.lds_wait(CNT[cnt], need)

    def l_seg(self, srd, n, D, step, barrier=False, until=None):
        a = self.a
        credit = self.lU + n > NS
        wrap = self.lU + n >= NS
        if n > 1:
            a(f"s_mov_b32 s75, {-n}")
        if credit:
            a("s_lshr_b32 s67, s73, 11")
            a(f"v_add_u32 v22, s67, {vZ}")
            a(f"ds_read_b32 v21, v22 offset:{4*C_FREE}")
        if until:
            a(f"ds_read_b32 v23, {vZ} offset:{4*CNT[until[0]]}")
        E = a.newlabel("L_sege")
        L2 = a.newlabel("L_seg2")
        for ph, D in enumerate([D] + ([until[2]] if until else [])):
            assert D % 4 == 0 and D >= 4
            L = a.newlabel("L_seg") if ph == 0 else L2
            hs, lag = (1, D // 8 - 1) if D % 8 == 0 else (0, (D - 4) // 8)
            a.label(L)
            if credit or (until and ph == 0):
                a("s_waitcnt lgkmcnt(0)")
            if until and ph == 0:
                a(f"v_cmp_le_i32 vcc, {until[1]}, v23")
                a(f"s_cbranch_vccnz {L2}")
            if credit:
                Lok = a.newlabel("L_cok")
                Lsp = a.newlabel("L_csp")
                a("v_cmp_le_i32 vcc, s74, v21")
                a(f"s_cbranch_vccnz {Lok}")
                a(f"ds_read_b32 v21, v22 offset:{4*C_FREE}")
                a("s_waitcnt lgkmcnt(0)")
                a("v_cmp_le_i32 vcc, s74, v21")
                a(f"s_cbranch_vccnz {Lok}")
                a("s_waitcnt vmcnt(0)")
                self.l_signal(0)
                a(f"s_mov_b32 {sPOLL}, {self.poll_limit*8}")
                a.label(Lsp)
                a(f"ds_read_b32 v21, v22 offset:{4*C_FREE}")
                a("s_waitcnt lgkmcnt(0)")
                a("v_cmp_le_i32 vcc, s74, v21")
                a(f"s_sub_u32 {sPOLL}, {sPOLL}, 1")
                a(f"s_cbranch_vccnz {Lok}")
                a(f"s_cmp_lg_u32 {sPOLL}, 0")
                a(f"s_cbranch_scc1 {Lsp}")
                a.label(Lok)
            for h in range(2):
                a("s_add_u32 m0, s73, 4096" if h else "s_mov_b32 m0, s73")
                if not barrier:
                    a(f"s_waitcnt vmcnt({D-4})")
                    if h == hs:
                        self.l_signal(lag)
                for j in range(4):
                    a(f"buffer_load_dwordx4 v{24+4*h+j}, {srd}, s66 offen offset:{1024*j} nt lds")
                    if h == 1 and j == 0:
                        a(f"s_add_u32 s73, s73, {SLOTB}")
                        if wrap:
                            a(f"s_cmp_ge_u32 s73, {NS*SLOTB}")
                            a("s_cselect_b32 s73, 0, s73")
                            a("s_cselect_b32 s67, 8, 0")
                            a("s_add_u32 s74, s74, s67")
                    if h == 1 and j == 1 and n > 1:
                        if credit:
                            a("s_lshr_b32 s67, s73, 11")
                            a(f"v_add_u32 v22, s67, {vZ}")
                            a(f"ds_read_b32 v21, v22 offset:{4*C_FREE}")
                        if until and ph == 0:
                            a(f"ds_read_b32 v23, {vZ} offset:{4*CNT[until[0]]}")
                    if h == 1 and j == 2:
                        a("s_add_u32 s72, s72, 1")
            if step < 0:
                a(f"s_add_u32 s67, s66, {-step}")
                a(f"s_and_b32 s67, s67, {-step * 7}")
                a(f"s_andn2_b32 s66, s66, {-step * 7}")
                a(f"s_or_b32 s66, s66, s67")
            else:
                a(f"s_add_u32 s66, s66, {step}")
            if n > 1:
                a("s_add_u32 s75, s75, 1")
                a(f"s_cbranch_scc0 {L}")
            if until and ph == 0:
                a(f"s_branch {E}")
                D1 = D
        if until:
            a.label(E)
            D = max(D, D1)
        self.lU += n
        self.lD = D if not barrier else 8 * n

    def l_tile(self, srd, segs, kind, RS=0, first=False, stamp=None, setup=True):
        a = self.a
        if stamp is not None:
            self.stamp(stamp)
        if kind in ("w", "wq", "wo"):
            js = (128 if kind == "wo" else 8) * RS
            step = {"w": 64 * RS, "wq": 128, "wo": 8 * RS}[kind]
            if setup:
                a(f"v_mul_u32_u24 v24, {RS}, v8")
                a(f"v_add_u32 v24, v24, v9")
                for j in range(1, 8):
                    a(f"v_add_u32 v{24+j}, {js*j - 1024*(j%4)}, v24")
        else:
            ns = self.cfg.get("ns", 1)
            step = 8192 // ns
            kvp = self.cfg.get("kvp")
            if kvp:
                ns, step = 8, kvp[3] * 1024
            if kind == "k":
                a(f"v_xor_b32 v16, {vI}, {vG}")
            else:
                a(f"v_lshlrev_b32 v16, 1, {vG}")
                a(f"v_xor_b32 v16, {vI}, v16")
            a(f"v_lshlrev_b32 v16, 4, v16")
            if ns == 16:
                a(f"v_and_b32 v17, 1, {vG}")
                a(f"v_lshl_add_u32 v16, v17, 8, v16")
                a(f"v_lshrrev_b32 v17, 1, {vG}")
                a(f"v_lshl_add_u32 v24, v17, 14, v16")
            else:
                a(f"v_lshl_add_u32 v24, {vG}, {13 if ns == 32 else 8}, v16")
            for j in range(1, 8):
                if ns == 1:
                    a(f"v_xor_b32 v{24+j}, {(64*(j%4) if kind == 'k' else 128*(j%2)) + 4096*(j//4)}, v24")
                else:
                    a(f"v_xor_b32 v{24+j}, {(64*(j%4) if kind == 'k' else 128*(j%2))}, v24")
                    if kvp:
                        a(f"v_add_u32 v{24+j}, {j * kvp[0] * 1024 - (j % 4) * 1024}, v{24+j}")
                    elif ns <= 8:
                        a(f"v_add_u32 v{24+j}, {(j % ns) * (262144 // ns) + (j // ns) * 1024 - (j % 4) * 1024}, v{24+j}")
                    else:
                        a(f"v_add_u32 v{24+j}, {j * 32768 - (j % 4) * 1024}, v{24+j}")
            if self.cfg.get("rot"):
                step = -step
        for sg in segs:
            if isinstance(sg[0], str):
                self.l_wait(*sg)
                continue
            n, D = sg[:2]
            if first:
                n0 = min(n, max(1, D // 8))
                self.l_seg(srd, n0, D, step, barrier=True)
                a("s_barrier")
                n -= n0
                first = False
            if n:
                self.l_seg(srd, n, D, step, until=sg[2:] or None)

    def l_pf(self, prog, two=False):
        a = self.a
        st = self.cfg.get("pfs", 128)
        mod = self.cfg.get("pfm", "")
        a(f"s_and_b32 s69, {sX}, 1")
        a(f"s_lshl_b32 s69, s69, 2")
        a(f"s_bfe_u32 s67, {sL}, {0x20001 if two else 0x20002}")
        a(f"s_add_u32 s69, s69, s67")
        a(f"s_lshl_b32 s69, s69, 2")
        a(f"s_add_u32 s69, s69, {sHKV}")
        a(f"s_lshl_b32 s69, s69, 20")
        a(f"s_and_b32 s67, {sL}, {1 if two else 3}")
        a(f"s_lshl_b32 s67, s67, {17 if two else 16}")
        a(f"s_add_u32 s69, s69, s67")
        a(f"s_add_u32 s69, s69, {3072*256}")
        a(f"v_mul_u32_u24 v23, {st}, {vLANE}")
        k = 0
        for it in prog:
            if isinstance(it[0], str):
                self.lds_wait(CNT[it[0]], it[1])
                continue
            u0, n, D = it
            for u, o in [(u, o) for u in range(u0, u0 + n) for o in ((0, 65536) if two else (0,))]:
                for h in range(128 // st):
                    a(f"s_add_u32 s68, s69, {(u % 8) * 8192 + h * 64 * st + o}")
                    if k >= D:
                        a(f"s_waitcnt vmcnt({D-1})")
                    if st == 16:
                        a(f"buffer_load_dwordx4 {v(44 + 4 * (k % 8), 4)}, v23, {K_ if u < 8 else V_}, s68 offen {mod}")
                    else:
                        a(f"buffer_load_dword v{32 + k % 8}, v23, {K_ if u < 8 else V_}, s68 offen {mod}")
                    k += 1

    def loader(self):
        a = self.a
        cfg = self.cfg
        a("s_setprio 3")
        a("s_mov_b32 s93, 0")
        if cfg.get("pre"):
            a("s_getpc_b64 s[66:67]")
            a.label("L_pc")
            a(f"s_lshl_b32 s68, {sL}, 10")
            a(f"v_lshl_add_u32 v8, {vLANE}, 7, s68")
            a("v_min_u32 v8, L_exit-L_pc, v8")
            a("s_mov_b64 exec, 0xff")
            a("global_load_dword v40, v8, s[66:67]")
            a("s_mov_b64 exec, -1")
        a(f"v_lshrrev_b32 v8, 3, {vLANE}")
        a(f"v_lshlrev_b32 v9, 1, {vG}")
        a(f"v_xor_b32 v9, v9, {vB}")
        a("v_lshlrev_b32 v9, 4, v9")
        if cfg.get("pb"):
            a(f"v_lshlrev_b32 v19, 2, {vLANE}")
            a(f"v_add_u32 v19, {LDS_BYTES-256}, v19")
            a("s_mov_b32 s63, 0x20000")
            a(f"v_writelane_b32 v19, s63, 0")
            a("s_mov_b32 s74, 0")
            a(f"s_cmp_lt_u32 {sL}, 16")
            a("s_cbranch_scc1 L_lrest")
            a(f"s_and_b32 s67, {sL}, 3")
            a(f"s_mul_i32 s66, s67, {256*12288}")
            a(f"s_bfe_u32 s67, {sL}, 0x10003")
            a(f"s_lshl_b32 s67, s67, 11")
            a(f"s_add_u32 s66, s66, s67")
            a(f"s_lshl_b32 s67, {sX}, 8")
            a(f"s_add_u32 s66, s66, s67")
            a(f"s_bfe_u32 s67, {sL}, 0x10002")
            a(f"s_lshl_b32 s67, s67, 7")
            a(f"s_add_u32 s66, s66, s67")
            a("s_mov_b32 s72, -4")
            a(f"s_mov_b32 s73, {12*SLOTB}")
            self.lU, self.lD = 0, 0
            a("s_waitcnt lgkmcnt(0)")
            self.l_tile(WM_, [(4, 32)], "w", 12288, first=True, stamp=48)
            a("s_mov_b32 s73, 0")
            self.lU = 0
            a(f"s_lshl_b32 s66, {sX}, 11")
            a(f"s_add_u32 s66, s66, {sL}")
            a(f"s_sub_u32 s66, s66, 16")
            a(f"s_lshl_b32 s66, s66, 9")
            self.l_tile(WQ_, cfg["P1a"], "wq", 8192)
            a(f"s_add_u32 s66, s66, {64*8192-512}")
            self.l_tile(WQ_, cfg["P1b"], "wq", 8192, setup=False)
            self.lDB = self.lD
            a("s_branch L_LB")
            return
        a(f"s_and_b32 s67, {sL}, 3")
        a(f"s_mul_i32 s66, s67, {256*12288}")
        a(f"s_lshr_b32 s67, {sL}, 3")
        a(f"s_lshl_b32 s67, s67, 11")
        a(f"s_add_u32 s66, s66, s67")
        a(f"s_lshl_b32 s67, {sX}, 8")
        a(f"s_add_u32 s66, s66, s67")
        a(f"s_bfe_u32 s67, {sL}, 0x10002")
        a(f"s_lshl_b32 s67, s67, 7")
        a(f"s_add_u32 s66, s66, s67")
        a(f"s_lshl_b32 s70, {sX}, 11")
        a(f"s_add_u32 s70, s70, {sL}")
        a(f"s_sub_u32 s70, s70, 16")
        a(f"s_lshl_b32 s70, s70, 9")
        a(f"s_cmp_ge_u32 {sL}, 16")
        a("s_cselect_b32 s66, s70, s66")
        a("s_cselect_b32 s70, 8192, 12288" if False else "s_cselect_b32 s70, 2, 3")
        a(f"s_cselect_b32 s71, 128, {64*12288}" if False else "s_cselect_b32 s71, 1, 6144")
        a("s_cselect_b32 s77, -2, -1")
        a("s_cselect_b32 s62, s22, s46")
        a("s_mov_b32 s63, 0x20000")
        a("s_lshl_b32 s71, s71, 7")
        a("s_lshl_b32 s70, s70, 12")
        a("v_mad_u32_u24 v24, v8, s70, v9")
        a("s_lshl_b32 s67, s70, 5")
        a("v_add_u32 v28, s67, v24")
        a("s_lshl_b32 s67, s70, 3")
        a("s_sub_u32 s67, s67, 1024")
        for j in (1, 2, 3, 5, 6, 7):
            a(f"v_add_u32 v{24+j}, s67, v{23+j}")
        a("s_mov_b32 s73, 0")
        a("s_mov_b32 s75, -4")
        a(f"s_cmp_ge_u32 {sL}, 16")
        a("s_waitcnt lgkmcnt(0)")
        a("s_cselect_b32 s60, s20, s44")
        a("s_cselect_b32 s61, s21, s45")
        self.stamp(48)
        a.label("L_l0")
        for h in range(2):
            a("s_add_u32 m0, s73, 4096" if h else "s_mov_b32 m0, s73")
            a(f"s_waitcnt vmcnt({cfg.get('D0', 56)-4})")
            for j in range(4):
                a(f"buffer_load_dwordx4 v{24+4*h+j}, {W_}, s66 offen offset:{1024*j} nt lds")
        a(f"s_add_u32 s73, s73, {SLOTB}")
        a("s_add_u32 s66, s66, s71")
        a("s_add_u32 s75, s75, 1")
        a("s_cbranch_scc0 L_l0")
        a(f"s_add_u32 s66, s66, {64*8192-512}")
        a("s_mov_b32 s75, -4")
        a("s_add_u32 s77, s77, 1")
        a("s_cbranch_scc0 L_l0")
        a(f"v_lshlrev_b32 v19, 2, {vLANE}")
        a(f"v_add_u32 v19, {LDS_BYTES-256}, v19")
        a(f"v_writelane_b32 v19, s63, 0")
        a("s_lshr_b32 s72, s73, 13")
        a("s_mov_b32 s74, 0")
        a(f"s_cmp_ge_u32 {sL}, 16")
        a("s_cbranch_scc1 L_LB")
        a("s_barrier")
        a("s_branch L_lrest")

    def loader_rest(self):
        a = self.a
        cfg = self.cfg
        a.label("L_lrest")

        def wait(key):
            if cfg.get(key):
                self.l_wait(*cfg[key])
        self.lU, self.lD = 4, 32
        a(f"s_and_b32 s69, {sX}, 1")
        a(f"s_lshl_b32 s69, s69, 2")
        a(f"s_lshr_b32 s67, {sL}, 2")
        a(f"s_add_u32 s69, s69, s67")
        a(f"s_lshl_b32 s69, s69, 2")
        a(f"s_add_u32 s69, s69, {sHKV}")
        a(f"s_lshl_b32 s69, s69, 20")
        kvp = cfg.get("kvp")
        if kvp:
            a(f"s_and_b32 s67, {sL}, 1")
            a(f"s_mul_i32 s67, s67, {kvp[1] * 1024}")
            a(f"s_add_u32 s69, s69, s67")
            a(f"s_bfe_u32 s67, {sL}, 0x10001")
            a(f"s_mul_i32 s67, s67, {kvp[2] * 1024}")
        else:
            a(f"s_and_b32 s67, {sL}, 3")
            a(f"s_mul_i32 s67, s67, {65536 // cfg.get('ns', 1)}")
        a(f"s_add_u32 s69, s69, s67")
        a(f"s_add_u32 s69, s69, {3072*256}")
        if cfg.get("rot"):
            if cfg["rot"] == 1:
                a(f"s_lshr_b32 s67, {sL}, 1")
                a(f"s_add_u32 s67, s67, {sX}")
            elif cfg["rot"] == 2:
                a(f"s_lshl_b32 s67, {sL}, 1")
            else:
                a(f"s_mov_b32 s67, {sX}")
            a(f"s_and_b32 s67, s67, 7")
            a(f"s_mul_i32 s67, s67, {kvp[3] * 1024 if kvp else 8192 // cfg.get('ns', 1)}")
            a(f"s_add_u32 s69, s69, s67")
        if cfg.get("pb"):
            a("s_mov_b32 s72, 4")
            a(f"s_mov_b32 s73, {4*SLOTB}")
            a("s_mov_b32 s66, s69")
            a("s_waitcnt lgkmcnt(0)")
            self.stamp(48)
            self.l_tile(K_, cfg["K"], "k", first=True)
        else:
            wait("wK")
            a("s_mov_b32 s66, s69")
            self.l_tile(K_, cfg["K"], "k", stamp=49)
        a("s_mov_b32 s66, s69")
        self.l_tile(V_, cfg["V"], "v", stamp=50)
        if cfg.get("wP4s"):
            self.l_drain()
            a(f"s_cmp_lt_u32 {sL}, 12")
            a(f"s_cbranch_scc1 L_lw4")
            a(f"s_cmp_lt_u32 {sL}, 14")
            a(f"s_cbranch_scc1 L_lw3")
            a(f"s_and_b32 s67, s2, 0x7b")
            a(f"s_cmp_lg_u32 s67, {0x79 if cfg.get('gbs', 1) else 0}")
            a(f"s_cbranch_scc1 L_lw4")
            a.label("L_lw3")
            wait("wP4s")
            a("s_branch L_lw5")
            a.label("L_lw4")
        wait("wP4")
        a.label("L_lw5")
        st = (self.lU, self.lD)
        a(f"s_cmp_ge_u32 {sL}, 14")
        a(f"s_cbranch_scc1 L_lgb")
        self.p4_cg("s66")
        a(f"s_lshl_b32 s66, s66, 7")
        a(f"s_and_b32 s67, {sL}, 1")
        a("s_cselect_b32 s60, s32, s28")
        a("s_cselect_b32 s61, s33, s29")
        a("s_mov_b32 s62, 7340032")
        a("s_mov_b32 s63, 0x20000")
        self.l_tile(W_, cfg["P4"], "w", 7168, stamp=51)
        self.l_drain()
        a("s_branch L_done")
        a.label("L_lgb")
        self.lU, self.lD = st
        a(f"s_lshl_b32 s66, {sX}, 1")
        a(f"s_add_u32 s66, s66, {sL}")
        a(f"s_lshl_b32 s66, s66, 7")
        a(f"s_add_u32 s66, s66, {5120*2-14*128}")
        self.l_tile(WM_, cfg["GB"], "w", 12288, stamp=51)
        self.l_drain()
        a("s_branch L_done")
        a.label("L_LB")
        self.lU, self.lD = 8, cfg.get("D0", 56)
        if cfg.get("pb"):
            self.lD = self.lDB
        else:
            a("s_barrier")
        self.l_drain()
        if cfg.get("pf"):
            self.l_pf(cfg["pf"])
        self.rm_task("s70", "s71")
        a(f"s_mul_i32 s66, s70, 12288")
        a(f"s_lshl_b32 s71, s71, 7")
        a(f"s_add_u32 s66, s66, s71")
        a(f"s_add_u32 s66, s66, 4096")

        def wotile(key):
            a(f"s_lshr_b32 s66, {sX}, 1")
            a(f"s_lshl_b32 s66, s66, 21")
            a(f"s_and_b32 s67, {sX}, 1")
            a(f"s_lshl_b32 s67, s67, 17")
            a(f"s_add_u32 s66, s66, s67")
            self.swap_j("s69", 3, 9)
            a(f"s_lshl_b32 s69, s69, 7")
            a(f"s_add_u32 s66, s66, s69")
            self.l_tile(WO_, cfg[key], "wo", 2048, stamp=50)

        def wdtile(key):
            a(f"s_mul_i32 s66, {sX}, {448*2048}")
            self.swap_j("s69", 5, 11)
            a(f"s_lshl_b32 s69, s69, 7")
            a(f"s_add_u32 s66, s66, s69")
            self.l_tile(WD_, cfg[key], "w", 2048, stamp=51)
            self.l_drain()
            a("s_branch L_done")
        st = (self.lU, self.lD)
        a(f"s_cmp_ge_u32 {sL}, 24")
        a(f"s_cbranch_scc1 L_lr3")
        wait("wB")
        self.l_tile(WM_, cfg["RM"], "w", 12288, stamp=53)
        wotile("P3")
        wait("wP5")
        wdtile("P5")
        a.label("L_lr3")
        self.lU, self.lD = st
        self.l_drain()
        a("v_mov_b32 v20, 8")
        a(f"v_lshl_add_u32 v22, {vLANE}, 2, {vZ}")
        a("s_mov_b64 exec, 15")
        a(f"ds_add_u32 v22, v20 offset:{4*(C_FREE+8)}")
        a("s_mov_b64 exec, -1")
        a("s_mov_b32 s72, 12")
        a(f"s_mov_b32 s73, {12*SLOTB}")
        self.lU = 12
        wait("wB")
        if cfg.get("pf2"):
            self.l_pf(cfg["pf2"], two=True)
        self.l_tile(WM_, cfg["RMr"], "w", 12288, stamp=53)
        wotile("P3r")
        wait("wP5r")
        wdtile("P5r")

    def build(self):
        a = self.a
        cfg = self.cfg
        hdr = open(os.path.join(os.path.dirname(os.path.abspath(__file__)), "..", "cdna_kernels", NAME + ".s.ref")).read()
        for line in hdr.split("\n"):
            if line.startswith("; @launch"):
                break
            a.raw(line)
        a.raw(f"; @launch grid=(256,1,1) block=(576,1,1) lds={LDS_BYTES}")
        a.raw('.amdgcn_target "amdgcn-amd-amdhsa--gfx950"')
        a.raw(".text")
        a.raw(f".globl {NAME}_kernel")
        a.raw(".p2align 8")
        a.raw(f".type {NAME}_kernel,@function")
        a.raw(f"{NAME}_kernel:")
        a("s_cmp_ge_u32 s2, 256")
        a("s_cbranch_scc1 L_exit")
        if cfg.get("probe") is not None:
            a("s_memrealtime s[100:101]")
            a("s_memrealtime s[96:97]")
        if cfg.get("dbg"):
            a("s_memrealtime s[100:101]")
            a("s_load_dwordx2 s[56:57], s[0:1], 96")
            a("s_mov_b32 s58, 256")
            a("s_mov_b32 s59, 0x20000")
        for (s0, ko, nb) in SRD_INFO:
            a(f"s_load_dwordx2 s[{s0}:{s0+1}], s[0:1], {ko}")
        for (s0, ko, nb) in SRD_INFO:
            a(f"s_mov_b32 s{s0+2}, {nb}")
            a(f"s_mov_b32 s{s0+3}, 0x20000")
        a(f"v_and_b32 {vLANE}, 63, v0")
        a("v_lshrrev_b32 v7, 6, v0")
        a(f"v_lshrrev_b32 {vG}, 4, {vLANE}")
        a(f"v_readfirstlane_b32 {sW}, v7")
        a(f"v_and_b32 {vI}, 15, v0")
        a(f"v_and_b32 {vB}, 7, v0")
        a(f"v_bfe_u32 {vHI}, v0, 3, 1")
        a(f"v_mov_b32 {vSTAMP}, 0")
        if self.stamps:
            a(f"v_mov_b32 v41, 0")
        a(f"v_mov_b32 {vZ}, 0x20000")
        a(f"s_and_b32 {sX}, s2, 7")
        a(f"s_lshr_b32 {sL}, s2, 3")
        a(f"s_lshr_b32 {sHKV}, {sX}, 1")
        a(f"s_xor_b32 {sHKV}, {sHKV}, 1")
        a(f"s_cmp_lt_u32 {sW}, 8")
        a("s_cbranch_scc1 L_compute")
        self.loader()
        a.label("L_compute")
        a(f"v_lshlrev_b32 {vL4}, 2, {vLANE}")
        a("v_mov_b32 v16, 0")
        a(f"v_add_u32 v17, {vL4}, {vZ}")
        if cfg.get("pb"):
            a(f"s_cmp_ge_u32 {sL}, 16")
            a("s_cselect_b32 s66, -4, 0")
            a("s_cselect_b32 s67, 0, 8")
            a("v_writelane_b32 v16, s66, 0")
            for i in range(4):
                a(f"v_writelane_b32 v16, s67, {C_FREE+i}")
            a(f"ds_write_b32 v17, v16 offset:{L_CNT-L_AUX}")
            a("s_cbranch_scc0 L_eA")
            self.p0a_early()
            self.p1_early()
            a.label("L_eA")
            a("s_waitcnt lgkmcnt(0)")
            a(f"s_load_dword {sEP}, s[52:53], 0")
            a("s_barrier")
        else:
            a(f"ds_write_b32 v17, v16 offset:{L_CNT-L_AUX}")
            a(f"s_cmp_ge_u32 {sL}, 16")
            a("s_cbranch_scc1 L_eB")
            self.p0a_early()
            a(f"s_load_dword {sEP}, s[52:53], 0")
            a("s_barrier")
            a("s_branch L_eD")
            a.label("L_eB")
            self.p1_early()
            a(f"s_load_dword {sEP}, s[52:53], 0")
            a.label("L_eD")
        a(f"v_mov_b32 {vFF}, 0xff")
        a(f"v_mov_b32 {vONE}, 1")
        a(f"s_mov_b32 {sSEL1}, 0x07060302")
        a("s_mov_b32 s84, 0x00ff00ff")
        a("s_mov_b32 s85, 0x00ff00ff")
        a(f"s_mov_b32 {sLOG}, 0x{LOG2E:x}")
        a(f"v_lshrrev_b32 v8, 2, {vLANE}")
        a(f"v_lshlrev_b32 v8, 7, v8")
        a(f"v_and_b32 v9, 3, {vLANE}")
        a(f"v_lshl_add_u32 v8, v9, 3, v8")
        a(f"v_bfe_u32 v9, {vLANE}, 3, 2")
        a(f"v_lshl_add_u32 v{TR}, v9, 5, v8")
        for cg in range(1, 4):
            a(f"v_xor_b32 v{TR+cg}, {32*cg}, v{TR}")
        a(f"s_cmp_ge_u32 {sL}, 16")
        a("s_cbranch_scc1 L_B")
        a("; ======== A")
        if cfg.get("pb"):
            self.epoch()
        else:
            self.p0a()
        a("s_branch L_att")
        a.label("L_B")
        a("; ======== B")
        a(f"s_sub_u32 s68, {sL}, 16")
        self.p1(A[0])
        self.rm(A[0])
        self.swap_j("s68", 3, 9)
        self.p3(16, A[0])
        a(f"s_cmp_lt_u32 {sL}, 24")
        a(f"s_cbranch_scc1 L_nor3")
        a(f"s_sub_u32 s69, {sL}, 24")
        self.r3()
        a.label("L_nor3")
        self.swap_j("s68", 5, 11)
        self.p5(24, A[0])
        a("s_branch L_done")
        self.loader_rest()
        a.label("L_att")
        a(f"s_mov_b32 s68, {sL}")
        self.att(4)
        a(f"s_mov_b32 s68, {sL}")
        a(f"s_cmp_lt_u32 {sL}, 14")
        a(f"s_cbranch_scc1 L_P4")
        a(f"s_lshl_b32 s68, {sX}, 1")
        a(f"s_add_u32 s68, s68, {sL}")
        a(f"s_sub_u32 s68, s68, 14")
        self.gb_r5()
        a("s_branch L_done")
        a.label("L_P4")
        self.p4()
        a.label("L_done")
        if cfg.get("probe") is not None:
            a(f"s_cmp_lg_u32 {sL}, {cfg.get('probel', 15)}")
            a("s_cbranch_scc1 L_nopr")
            a(f"s_cmp_lg_u32 {sW}, 0")
            a("s_cbranch_scc1 L_nopr")
            a("s_sub_u32 s66, s96, s100")
            a("s_min_u32 s66, s66, 4000")
            a("s_lshl_b32 s66, s66, 3")
            a("s_add_u32 s66, s66, s100")
            a("s_add_u32 s66, s66, 3000")
            a("s_mov_b32 s67, 200000")
            a.label("L_pr")
            a("s_memrealtime s[90:91]")
            a("s_waitcnt lgkmcnt(0)")
            a("s_sub_u32 s67, s67, 1")
            a("s_cbranch_scc1 L_nopr")
            a("s_sub_u32 s68, s90, s66")
            a("s_cmp_lt_i32 s68, 0")
            a("s_cbranch_scc1 L_pr")
            a.label("L_nopr")
        if cfg.get("dbg"):
            a(f"s_cmp_lg_u32 {sL}, 15")
            a("s_cbranch_scc1 L_nodbg")
            a(f"s_cmp_lg_u32 {sW}, 0")
            a("s_cbranch_scc1 L_nodbg")
            a("s_memrealtime s[90:91]")
            a("s_waitcnt lgkmcnt(0)")
            a("v_mov_b32 v16, s100")
            a("v_mov_b32 v17, s90")
            a(f"s_lshl_b32 s66, {sX}, 2")
            a("v_mov_b32 v18, 0")
            a("s_mov_b64 exec, 1")
            a(f"buffer_store_dword v16, v18, {DBG_}, s66 offen")
            a(f"buffer_store_dword v17, v18, {DBG_}, s66 offen offset:32")
            a("s_mov_b64 exec, -1")
            a.label("L_nodbg")
        if self.stamps:
            self.stamp(52)
            a(f"s_lshl_b32 s66, s2, 4")
            a(f"s_add_u32 s66, s66, {sW}")
            a(f"s_lshl_b32 s66, s66, 8")
            a(f"s_add_u32 s66, s66, {WS_STAMP}")
            a(f"v_lshlrev_b32 v8, 2, {vLANE}")
            a(f"buffer_store_dword {vSTAMP}, v8, {WS_}, s66 offen sc1")
            a(f"s_cmp_lt_u32 {sW}, 8")
            a("s_cbranch_scc1 L_exit")
            self.l_flush()
            a(f"buffer_store_dword v41, v8, {WS_}, s66 offen offset:256 sc1")
        a.label("L_exit")
        a("s_endpgm")
        a.raw('.section .rodata,"a"')
        a.raw(".p2align 6")
        a.raw(f".amdhsa_kernel {NAME}_kernel")
        a.raw(f"  .amdhsa_next_free_vgpr {NVGPR}")
        a.raw("  .amdhsa_next_free_sgpr 102")
        a.raw(f"  .amdhsa_accum_offset {NVGPR}")
        a.raw("  .amdhsa_group_segment_fixed_size 0")
        a.raw("  .amdhsa_kernarg_size 112")
        a.raw("  .amdhsa_user_sgpr_count 2")
        a.raw("  .amdhsa_user_sgpr_kernarg_segment_ptr 1")
        a.raw("  .amdhsa_system_sgpr_workgroup_id_x 1")
        a.raw(".end_amdhsa_kernel")
        return a.text(cfg.get("padb", 64))


DEFAULT = dict(rot=1, kvp=(32, 1, 2, 4), slow=3, plain=True, p4gate=1, r3gate=0, wP4s=("Q", 8),
               P0A=[(4, 32)], wK=("P0P", 4), K=[(8, 56)], V=[(8, 56)], wP4=("ATTP", 8), P4=[(3, 24), ("ATTP", 8, 0), (13, 56)], GB=[(2, 16), ("ATTP", 8, 0), (14, 32)],
               P1a=[(4, 32)], P1b=[(4, 56)], wB=("P1P", 8), RM=[(3, 16), (5, 56)], P3=[(8, 56)], wP5=("P3P", 8), P5=[(7, 56)],
               RMr=[(3, 16), (1, 56)], P3r=[(8, 56)], P5r=[("R3P", 8), (7, 56)])

if __name__ == "__main__":
    cfg = dict(DEFAULT)
    out = sys.argv[1]
    for arg in sys.argv[2:]:
        k, _, val = arg.partition("=")
        cfg[k] = eval(val) if val else True
    open(out, "w").write(Gen(cfg).build())
    print("wrote", out)
```

```python
import sys, os, struct
sys.path.insert(0, os.path.dirname(os.path.abspath(__file__)))
from asmlib import Asm

NAME = "adaLN_cond__sliding_block_cached__swiglu_ffn__decode"

FS = 4 << 20
WS_SAC = 4096
WS_MOD = WS_SAC + 8 * 32768
MODS = 8 * 3072 * 4
WS_QP = WS_MOD + 4 * MODS
WS_OP = WS_QP + 8 * 8 * 4096 * 4
WS_LSE = WS_OP + 8 * 4 * 32 * 128 * 4
WS_AP = WS_LSE + 4096
WS_X1 = WS_AP + 8 * 8 * 1024 * 4
WS_DP = WS_X1 + 8 * 8 * 1024 * 4
H2R = 4096 + 128
WS_H2 = WS_DP + 8 * 8 * 1024 * 4
WS_GU = WS_H2 + 8 * 8 * H2R + 1024 * 8
WS_FA = WS_GU + 2 * 8 * 3584 * 4
WS_FR = WS_FA + 4096
WS_FG = WS_FR + 1024
assert WS_FG + 1024 <= FS
WS_STAMP = 2 * FS
WS_END = WS_STAMP + 256 * 16 * 64 * 4

X_, K_, V_, WQ_, WO_, WG_, WU_, WD_, C_, WM_, OUT_, WS_, DBG_, W_ = [f"s[{8+4*i}:{11+4*i}]" for i in range(14)]
SRD_INFO = [
    (44, 80, 12582912), (20, 24, 8388608), (12, 8, 33554432), (40, 72, 16384), (8, 0, 16384), (52, 104, WS_END),
    (16, 16, 33554432), (24, 32, 8388608), (28, 48, 7340032), (32, 56, 7340032), (36, 64, 7340032),
    (48, 88, 16384)]

sW, sT, sX, sL, sSEL1 = "s3", "s4", "s5", "s6", "s7"
sEP = "s64"
sPOLL = "s80"
sLOG = "s88"
sHKV = "s65"
sM8 = "s[84:85]"
NS = 16
SLOTB = 8192
L_AUX = NS * SLOTB
L_CNT = L_AUX
L_ST = L_AUX + 256
L_Q = L_AUX + 512
L_P = L_Q + 8 * 272
L_ML = L_P + 4096
L_H = L_AUX + 512
L_OB = L_H + 2048
LDS_BYTES = L_AUX + 12288
assert L_OB + 8192 <= LDS_BYTES - 256 and L_ML + 640 <= LDS_BYTES - 256
SB = 272
C_LANDED, C_FREE = 0, 1
CNT = dict(S1=20, H=21, P1P=22, Q=23, P=24, ATTP=25, RM=26, P3=27, P3P=28, R3=29, R3P=30, P4=31, P5=32, GB=33, P0P=34,
           QG=35, P3G=36, R3G=37, S2=38)

A = [64, 96, 128]
ACC, BB = 160, 48
vLANE, vG, vI, vB, vHI, vFF, vSTAMP = "v1", "v2", "v3", "v4", "v5", "v6", "v7"
vRW, vRR, vL4, vZ, vONE = "v11", "v12", "v13", "v14", "v15"
NVGPR = 168
TR = 160
TRA = 164
LOG2E = 0x3FB8AA3B
SCALE = struct.unpack("<I", struct.pack("<f", 128 ** -0.5))[0]
EPS = struct.unpack("<I", struct.pack("<f", 1e-5))[0]
SLOT = dict(P0A=0, P1=4, ATT=8, RM=12, P3=16, R3=20, P4=24, P5=28, GB=32, R5=36)


QMASK = 0
for _x in range(8):
    for _n in (5 * _x + 4, _x + 34 if _x >= 6 else None):
        if _n is not None:
            QMASK |= 1 << (_n + ((_n + 4) * 37 >> 8))
    if _x < 6:
        QMASK |= 1 << (8 * _x + 3)


def v(n, cnt=1):
    return f"v{n}" if cnt == 1 else f"v[{n}:{n+cnt-1}]"


class Gen:
    def __init__(self, cfg):
        self.cfg = cfg
        self.a = Asm()
        self.stamps = cfg.get("stamps", False)
        self.poll_limit = cfg.get("poll_limit", 20000)

    def stamp(self, slot):
        if self.cfg.get("probe") == slot:
            self.a("s_memrealtime s[96:97]")
            self.a("s_waitcnt lgkmcnt(0)")
        if not self.stamps:
            return
        a = self.a
        a("s_memrealtime s[90:91]")
        a("s_waitcnt lgkmcnt(0)")
        a(f"v_writelane_b32 {vSTAMP}, s90, {slot}")

    def tb(self, name):
        if name in self.cfg.get("tc", ()):
            self.a(f";@tb {name}")

    def te(self, name):
        if name in self.cfg.get("tc", ()):
            self.a(f";@te T_{name}_ret")

    def touch(self, name):
        if name in self.cfg.get("tc", ()):
            a = self.a
            a(";@nopad")
            a("s_mov_b64 exec, 0")
            a(f"s_branch T_{name}_0")
            a.label(f"T_{name}_ret")
            a("s_mov_b64 exec, -1")
            a(";@pad")

    def epoch(self):
        a = self.a
        a("s_waitcnt lgkmcnt(0)")
        a(f"s_add_u32 {sT}, {sEP}, 1")
        a(f"s_and_b32 {sT}, {sT}, 0xff")

    def xs(self, n):
        if self.cfg.get("xs"):
            self.stamp(58 + n)

    def bf16r_pairs(self, regs, tmp):
        a = self.a
        for i in range(0, len(regs), 2):
            a(f"v_cvt_pk_bf16_f32 v{tmp}, v{regs[i]}, v{regs[i+1]}")
            a(f"v_lshlrev_b32 v{regs[i]}, 16, v{tmp}")
            a(f"v_and_b32 v{regs[i+1]}, 0xffff0000, v{tmp}")

    def bf16r1(self, r):
        a = self.a
        a(f"v_cvt_pk_bf16_f32 v{r}, v{r}, v{r}")
        a(f"v_lshlrev_b32 v{r}, 16, v{r}")

    def unpack_bf16(self, src, dst, n):
        a = self.a
        for i in range(n):
            a(f"v_lshlrev_b32 v{dst+2*i}, 16, v{src+i}")
            a(f"v_and_b32 v{dst+2*i+1}, 0xffff0000, v{src+i}")

    def allred_g(self, regs, op, tmp):
        a = self.a
        for r, t in zip(regs, tmp):
            a(f"v_mov_b32 v{t}, v{r}")
        for r, t in zip(regs, tmp):
            a(f"v_permlane16_swap_b32 v{r}, v{t}")
        for r, t in zip(regs, tmp):
            a(f"{op} v{t}, v{r}, v{t}")
        for r, t in zip(regs, tmp):
            a(f"v_mov_b32 v{r}, v{t}")
        for r, t in zip(regs, tmp):
            a(f"v_permlane32_swap_b32 v{r}, v{t}")
        for r, t in zip(regs, tmp):
            a(f"{op} v{r}, v{r}, v{t}")

    def allred_wave(self, regs, tmp, op="v_add_f32", n32=False):
        a = self.a
        for r, t in zip(regs, tmp):
            a(f"{op}_dpp v{t}, v{r}, v{r} quad_perm:[1,0,3,2] row_mask:0xf bank_mask:0xf")
        for r, t in zip(regs, tmp):
            a(f"{op}_dpp v{r}, v{t}, v{t} quad_perm:[2,3,0,1] row_mask:0xf bank_mask:0xf")
        for r, t in zip(regs, tmp):
            a(f"{op}_dpp v{t}, v{r}, v{r} row_half_mirror row_mask:0xf bank_mask:0xf")
        for r, t in zip(regs, tmp):
            a(f"{op}_dpp v{r}, v{t}, v{t} row_ror:8 row_mask:0xf bank_mask:0xf")
        for r, t in zip(regs, tmp):
            a(f"v_mov_b32 v{t}, v{r}")
        for r, t in zip(regs, tmp):
            a(f"v_permlane16_swap_b32 v{r}, v{t}")
        for r, t in zip(regs, tmp):
            a(f"{op} v{r}, v{r}, v{t}")
        if n32:
            return
        for r, t in zip(regs, tmp):
            a(f"v_mov_b32 v{t}, v{r}")
        for r, t in zip(regs, tmp):
            a(f"v_permlane32_swap_b32 v{r}, v{t}")
        for r, t in zip(regs, tmp):
            a(f"{op} v{r}, v{r}, v{t}")

    def check(self, loads, acc, mid=None):
        a = self.a
        for t, _, _ in loads:
            self.emit(t)
        if mid:
            mid()
        first = True
        for n, (t, r, cnt) in enumerate(loads):
            a(f"s_waitcnt vmcnt({len(loads)-1-n})")
            for i in range(cnt):
                if first:
                    a(f"v_xor_b32 v{acc}, {sT}, v{r+i}")
                    first = False
                else:
                    a(f"v_bitop3_b32 v{acc}, v{r+i}, v{acc}, {sT} bitop3:0xde")
        a(f"v_and_b32 v{acc}, {vFF}, v{acc}")
        a(f"v_cmp_ne_u32 vcc, 0, v{acc}")

    def poll(self, loads, acc, gate=None, fs=None, vfs=None, gs=None, plain=False, mid=None, keep=False, gfs=True, hook=None, lhook=None, gbump=None):
        a = self.a
        if gate is not None:
            mask, greg, gsoff = gate
            a(f"s_mov_b32 exec_lo, 0x{mask & 0xffffffff:x}")
            a(f"s_mov_b32 exec_hi, 0x{mask >> 32:x}")
            self.poll([(f"buffer_load_dword v25, v{greg}, {WS_}, {gsoff} offen sc1", 25, 1)], acc, fs=fs if gfs else None, lhook=hook)
            a("s_mov_b64 exec, -1")
            keep = gfs
            if gs is not None:
                self.stamp(gs)
        L = a.newlabel("L_poll")
        D = a.newlabel("L_pdone")
        if fs and not keep:
            for so, base in fs:
                a(f"s_add_u32 {so}, {base}, {FS}")
        if gbump:
            mid = lambda: self.bump(CNT[gbump])
        if plain or mid:
            self.check([(t.replace(" sc1", "") if plain else t, r, c) for t, r, c in loads], acc, mid)
            a(f"s_mov_b32 {sPOLL}, {self.poll_limit | 7}")
            a(f"s_cbranch_vccz {D}")
        else:
            a(f"s_mov_b32 {sPOLL}, {self.poll_limit | 7}")
        a.label(L)
        self.check(loads, acc, lhook)
        a(f"s_sub_u32 {sPOLL}, {sPOLL}, 1")
        a(f"s_cbranch_vccz {D}")
        if fs or vfs:
            a(f"s_and_b32 s81, {sPOLL}, 7")
            a(f"s_cselect_b32 s81, {FS}, 0")
            for so, base in (fs or []):
                a(f"s_add_u32 {so}, {base}, s81")
            if vfs:
                a(f"v_mad_u32_u24 v{vfs[0]}, v{vfs[1]}, s81, v{vfs[2]}")
        a(f"s_cmp_lg_u32 {sPOLL}, 0")
        a(f"s_cbranch_scc1 {L}")
        a.label(D)
        if gs is not None and self.stamps:
            a(f"v_writelane_b32 {vSTAMP}, {sPOLL}, {gs+1}")

    def poll2(self, groups, acc, fs=None, vfs=None, plain=False, mid=None, keep=False, gs=None, mb=12, after0=None):
        a = self.a
        L = a.newlabel("L_pq")
        D = a.newlabel("L_pqd")
        E = a.newlabel("L_pqe")
        M = [f"s[{mb+2*g}:{mb+2*g+1}]" for g in range(len(groups))]

        def chk(g, waits=None):
            first = True
            for n, (t, r, cnt) in enumerate(groups[g]):
                if waits is not None:
                    a(f"s_waitcnt vmcnt({waits-n})")
                for i in range(cnt):
                    if first:
                        a(f"v_xor_b32 v{acc}, {sT}, v{r+i}")
                        first = False
                    else:
                        a(f"v_bitop3_b32 v{acc}, v{r+i}, v{acc}, {sT} bitop3:0xde")
            a(f"v_and_b32 v{acc}, {vFF}, v{acc}")
            a(f"v_cmp_ne_u32 {M[g]}, 0, v{acc}")

        def orall():
            if len(M) == 1:
                a(f"s_cmp_lg_u64 {M[0]}, 0")
                return
            a(f"s_or_b64 s[82:83], {M[0]}, {M[1]}")
            for m in M[2:]:
                a(f"s_or_b64 s[82:83], s[82:83], {m}")
        if fs and not keep:
            for so, base in fs:
                a(f"s_add_u32 {so}, {base}, {FS}")
        n = sum(len(g) for g in groups)
        for g in groups:
            for t, _, _ in g:
                a(t.replace(" sc1", "") if plain else t)
        if mid:
            mid()
        a(f"s_mov_b32 {sPOLL}, {self.poll_limit | 7}")
        for g in range(len(groups)):
            chk(g, n - 1)
            n -= len(groups[g])
            if g == 0 and after0:
                after0()
        orall()
        a(f"s_cbranch_scc0 {D}")
        a.label(L)
        if fs or vfs:
            a(f"s_and_b32 s81, {sPOLL}, 7")
            a(f"s_cselect_b32 s81, {FS}, 0")
            for so, base in (fs or []):
                a(f"s_add_u32 {so}, {base}, s81")
            if vfs:
                a("s_mov_b64 exec, -1")
                a(f"v_mad_u32_u24 v{vfs[0]}, v{vfs[1]}, s81, v{vfs[2]}")
        for g in range(len(groups)):
            S = a.newlabel("L_pqs")
            a(f"s_mov_b64 exec, {M[g]}")
            a(f"s_cbranch_execz {S}")
            for t, _, _ in groups[g]:
                a(t)
            a.label(S)
        a(f"s_sub_u32 {sPOLL}, {sPOLL}, 1")
        a(f"s_cbranch_scc1 {E}")
        a("s_waitcnt vmcnt(0)")
        for g in range(len(groups)):
            S = a.newlabel("L_pqc")
            a(f"s_mov_b64 exec, {M[g]}")
            a(f"s_cbranch_execz {S}")
            chk(g)
            a.label(S)
        orall()
        a(f"s_cbranch_scc1 {L}")
        a.label(E)
        a("s_waitcnt vmcnt(0)")
        a("s_mov_b64 exec, -1")
        if after0:
            after0()
        a.label(D)
        if gs is not None and self.stamps:
            a(f"v_writelane_b32 {vSTAMP}, {sPOLL}, {gs+1}")

    def gate(self, mask, ld, acc, fs=None, hook=None, gs=None):
        a = self.a
        a(f"s_mov_b32 exec_lo, 0x{mask & 0xffffffff:x}")
        a(f"s_mov_b32 exec_hi, 0x{mask >> 32:x}")
        self.poll([ld], acc, fs=fs, lhook=hook)
        a("s_mov_b64 exec, -1")
        if gs is not None:
            self.stamp(gs)

    def last_begin(self, cnt, reg):
        a = self.a
        a("s_mov_b64 exec, 1")
        a(f"ds_add_rtn_u32 v{reg}, {vZ}, {vONE} offset:{4*CNT[cnt]}")
        a("s_mov_b64 exec, -1")

    def flag(self, reg, soff, both=True):
        a = self.a
        a(f"v_mov_b32 v{reg}, {sT}")
        a(f"v_mov_b32 v{reg+1}, {FS}")
        a("s_mov_b64 exec, 1")
        if both:
            a(f"buffer_store_dword v{reg}, v{reg+1}, {WS_}, {soff} offen")
        a(f"buffer_store_dword v{reg}, off, {WS_}, {soff} sc1")
        a("s_mov_b64 exec, -1")

    def last_flag(self, reg, n, soff):
        a = self.a
        S = a.newlabel("L_nl")
        a(f"v_readfirstlane_b32 s67, v{reg}")
        a(f"s_cmp_lg_u32 s67, {n-1}")
        a(f"s_cbranch_scc1 {S}")
        self.flag(reg, soff)
        a.label(S)

    def tag(self, regs):
        for r in regs:
            self.a(f"v_bfi_b32 v{r}, {vFF}, {sT}, v{r}")

    def bump(self, cnt, val=vONE):
        a = self.a
        a("s_mov_b64 exec, 1")
        a(f"ds_add_u32 {vZ}, {val} offset:{4*cnt}")
        a("s_mov_b64 exec, -1")

    def lds_wait(self, cnt, need, reads=(), tmp=16, slow=0, rl=False, pg=False):
        a = self.a
        L = a.newlabel("L_lw")
        D = a.newlabel("L_lwd")
        E = a.newlabel("L_lwe")
        rd = f"ds_read_b32 v{tmp}, {vZ} offset:{4*cnt}"
        nr = len([t for t in reads if t.startswith("ds_")])
        if rl and self.cfg.get("rl", 1):
            a(f"s_mov_b32 {sPOLL}, {self.poll_limit * 8}")
            a.label(L)
            a(rd)
            for t in reads:
                a(t)
            a(f"s_sub_u32 {sPOLL}, {sPOLL}, 1")
            a(f"s_cbranch_scc1 {E}")
            a(f"s_waitcnt lgkmcnt({min(nr, 15)})")
            a(f"v_cmp_le_i32 vcc, {need}, v{tmp}")
            a(f"s_cbranch_vccz {L}")
            a.label(E)
            return
        if reads:
            a(rd)
            for t in reads:
                a(t)
            a(f"s_waitcnt lgkmcnt({min(nr, 15)})")
            a(f"v_cmp_le_i32 vcc, {need}, v{tmp}")
            a(f"s_cbranch_vccnz {E}")
        a(f"s_mov_b32 {sPOLL}, {self.poll_limit * 8}")
        a.label(L)
        a(rd)
        a(f"s_waitcnt lgkmcnt(0)")
        a(f"v_cmp_le_i32 vcc, {need}, v{tmp}")
        a(f"s_sub_u32 {sPOLL}, {sPOLL}, 1")
        a(f"s_cbranch_vccnz {D}")
        if pg:
            self.pg_issue()
        for _ in range(slow):
            a("s_nop 15")
        a(f"s_cmp_lg_u32 {sPOLL}, 0")
        a(f"s_cbranch_scc1 {L}")
        a.label(D)
        for t in reads:
            a(t)
        a.label(E)

    def early_pull(self, flag, need, reads, mask):
        a = self.a

        def hook():
            S = a.newlabel("L_hk")
            a(f"s_cmp_lg_u32 {flag}, 0")
            a(f"s_cbranch_scc1 {S}")
            a(f"ds_read_b32 v16, {vZ} offset:{4*C_LANDED}")
            a("s_waitcnt lgkmcnt(0)")
            a(f"v_cmp_le_i32 vcc, {need}, v16")
            a(f"s_cbranch_vccz {S}")
            a("s_mov_b64 exec, -1")
            for t in reads:
                if t[0] == "@":
                    a.label(t[1:])
                else:
                    a(t)
            a(f"s_mov_b32 exec_lo, 0x{mask & 0xffffffff:x}")
            a(f"s_mov_b32 exec_hi, 0x{mask >> 32:x}")
            a(f"s_mov_b32 {flag}, 1")
            a.label(S)
        return hook

    def late_pull(self, flag, need, reads):
        a = self.a
        S = a.newlabel("L_lp")
        a(f"s_cmp_lg_u32 {flag}, 0")
        a(f"s_cbranch_scc1 {S}")
        self.lds_wait(C_LANDED, need, reads, tmp=24)
        a.label(S)

    def slot_of(self, base, sdst, sunit):
        a = self.a
        a(f"s_add_u32 {sdst}, {sW}, {base}")
        a(f"s_add_u32 {sunit}, {sdst}, 1")
        a(f"s_and_b32 {sdst}, {sdst}, {NS-1}")
        a(f"s_lshl_b32 {sdst}, {sdst}, 13")

    def release(self, sslot, n=8):
        a = self.a
        a(f"s_lshr_b32 s67, {sslot}, 11")
        a(f"v_add_u32 v16, s67, {vZ}")
        a(f"v_mov_b32 v17, {n}")
        a("s_mov_b64 exec, 1")
        a(f"ds_add_u32 v16, v17 offset:{4*C_FREE}")
        a("s_mov_b64 exec, -1")

    def release_run(self, slot0, n, val=vONE):
        a = self.a
        a(f"v_add_u32 v16, {vL4}, {vZ}")
        a(f"s_mov_b64 exec, 0x{(1 << n) - 1:x}")
        a(f"ds_add_u32 v16, {val} offset:{4*(C_FREE+slot0)}")
        a("s_mov_b64 exec, -1")

    def pull(self, base, dst, release=False, red=None, pg=None):
        a = self.a
        self.slot_of(base, "s78", "s79")
        for cg in range(4):
            a(f"v_add_u32 v{TRA+cg}, s78, v{TR+cg}")
        if red:
            self.red_addr(base, red)
        if pg:
            a(f"s_min_u32 s67, s79, {pg}")
            self.lds_wait(C_LANDED, "s67", slow=self.cfg["slow"])
        self.lds_wait(C_LANDED, "s79", slow=self.cfg["slow"], pg=pg)
        for cg in range(4):
            for hi in range(2):
                for q in range(2):
                    a(f"ds_read_b64_tr_b16 {v(dst+8*cg+4*hi+2*q,2)}, v{TRA+cg} offset:{(32*hi+16*q)*128}")
        a("s_waitcnt lgkmcnt(0)")
        if release:
            self.release("s78")

    def red_addr(self, base, kind):
        a = self.a
        a(f"v_mul_u32_u24 v16, {SB}, {vB}")
        a(f"v_lshl_add_u32 v16, {vG}, 4, v16")
        a(f"v_add_u32 {vRW}, s78, v16")
        if isinstance(base, int):
            a(f"s_mov_b32 s67, {(base % NS) * SLOTB}")
        else:
            a(f"s_and_b32 s67, {base}, {NS-1}")
            a(f"s_lshl_b32 s67, s67, 13")
        if kind == "row":
            a(f"s_mul_i32 s77, {sW}, {SB}")
            a(f"s_add_u32 s67, s67, s77")
            a(f"v_add_u32 {vRR}, s67, {vL4}")
        else:
            a(f"v_bfe_u32 v16, v0, 2, 3")
            a(f"v_mul_u32_u24 v16, {SB}, v16")
            a(f"v_bfe_u32 v17, v0, 5, 1")
            a(f"v_lshl_add_u32 v16, v17, 7, v16")
            a(f"v_and_b32 v17, 3, v0")
            a(f"v_lshl_add_u32 v16, v17, 2, v16")
            a(f"v_bfe_u32 v17, v0, 6, 2")
            a(f"v_lshl_add_u32 v16, v17, 4, v16")
            a(f"v_bfe_u32 v17, v0, 8, 1")
            a(f"v_lshl_add_u32 v16, v17, 6, v16")
            a(f"v_add_u32 {vRR}, s67, v16")

    def tail(self, tbs, nw, cnt, epilogue, acc=32, slow=0, BB=BB, pg=None):
        a = self.a
        Lskip = a.newlabel("L_nomm")
        if nw < 8:
            a(f"s_cmp_ge_u32 {sW}, {nw}")
            a(f"s_cbranch_scc1 {Lskip}")
        first = True
        for u, tb in enumerate(tbs):
            for cg in range(4):
                c = "0" if first else v(acc + 4 * cg, 4)
                a(f"v_mfma_f32_16x16x32_bf16 {v(acc+4*cg,4)}, {v(tb+8*cg,4)}, {v(BB+8*u,4)}, {c}")
                a(f"v_mov_b32_dpp v{BB+8*u+4+cg}, v{BB+8*u+cg} row_ror:8 row_mask:0xf bank_mask:0xf")
            first = False
        for u, tb in enumerate(tbs):
            for cg in range(4):
                a(f"v_mfma_f32_16x16x32_bf16 {v(acc+4*cg,4)}, {v(tb+8*cg+4,4)}, {v(BB+8*u+4,4)}, {v(acc+4*cg,4)}")
        a(f"s_mov_b64 exec, {sM8}")
        for cg in range(4):
            a(f"ds_write_b128 {vRW}, {v(acc+4*cg,4)} offset:{64*cg}")
        self.bump(CNT[cnt])
        if cnt in ("P4", "P3"):
            self.xs(5)
        a.label(Lskip)
        np_ = (nw + 1) // 2
        rd = []
        for p in range(np_):
            if 2 * p + 1 < nw:
                rd.append(f"ds_read2st64_b32 {v(16+2*p,2)}, {vRR} offset0:{64*p} offset1:{64*p+32}")
            else:
                rd.append(f"ds_read_b32 v{16+2*p}, {vRR} offset:{SLOTB*2*p}")
        if pg:
            self.lds_wait(C_LANDED, pg, tmp=24, slow=slow)
        self.lds_wait(CNT[cnt], nw, rd, tmp=24, slow=slow, rl=not slow, pg=pg)
        for p in range(np_):
            a(f"s_waitcnt lgkmcnt({np_-1-p})")
            if p == 0:
                a("v_add_f32 v16, v16, v17")
            else:
                a(f"v_add_f32 v16, v16, v{16+2*p}")
                if 2 * p + 1 < nw:
                    a(f"v_add_f32 v16, v16, v{17+2*p}")
        epilogue()

    def publish1(self, voff, soff, fast=None):
        a = self.a
        self.tag([16])
        if fast:
            a(f"buffer_store_dword v16, {voff}, {WS_}, {fast} offen")
        a(f"buffer_store_dword v16, {voff}, {WS_}, {soff} offen sc1")

    def ln_consts(self, m, var, t):
        a = self.a
        self.bf16r_pairs([m, var], t)
        a(f"v_add_f32 v{var}, 0x{EPS:x}, v{var}")
        self.bf16r1(var)
        a(f"v_sqrt_f32 v{var}, v{var}")
        self.bf16r1(var)
        a(f"v_rcp_f32 v{var}, v{var}")

    def silu_c(self, src, dst):
        a = self.a
        self.unpack_bf16(src, 32, 4)
        for e in range(8):
            a(f"v_mul_f32 v{40+e}, 0x{LOG2E ^ 0x80000000:x}, v{32+e}")
        for e in range(8):
            a(f"v_exp_f32 v{40+e}, v{40+e}")
        for e in range(8):
            a(f"v_add_f32 v{40+e}, 1.0, v{40+e}")
        for e in range(8):
            a(f"v_rcp_f32 v{40+e}, v{40+e}")
        for e in range(8):
            a(f"v_mul_f32 v{32+e}, v{32+e}, v{40+e}")
        for p in range(4):
            a(f"v_cvt_pk_bf16_f32 v{dst+p}, v{32+2*p}, v{32+2*p+1}")

    def rot_addr(self, sh, c, dst):
        a = self.a
        a(f"v_lshrrev_b32 v16, 5, {vLANE}")
        a(f"v_sub_u32 v{dst+5}, 1, v16")
        a(f"v_add_u32 v16, {sX}, v16")
        for i in range(4):
            r = dst + 4 if i == 0 else dst + i
            a(f"v_add_u32 v17, {2*i}, v16")
            a(f"v_and_b32 v17, 7, v17")
            a(f"v_lshlrev_b32 v17, {sh}, v17")
            a(f"v_lshl_add_u32 v{r}, v{c}, 4, v17")
        a(f"v_lshl_add_u32 v{dst}, v{dst+5}, 22, v{dst+4}")

    def rm_task(self, k0, cg=None):
        a = self.a
        sL, sX = "s6", "s5"
        if self.cfg.get("rmp"):
            sL, sX = "s76", "s77"
            a("s_cmp_lt_u32 s6, 24")
            a("s_cselect_b32 s67, 1, 3")
            a("s_cselect_b32 s77, 1, 2")
            a(f"s_lshr_b32 {k0}, s5, s77")
            a("s_sub_u32 s77, 3, s77")
            a("s_and_b32 s76, s6, s67")
            a("s_lshl_b32 s77, s76, s77")
            a(f"s_or_b32 s77, s77, {k0}")
            a("s_andn2_b32 s76, s6, s67")
            a("s_and_b32 s67, s5, s67")
            a("s_or_b32 s76, s76, s67")
        a(f"s_and_b32 {k0}, {sL}, 1")
        a(f"s_lshl_b32 {k0}, {k0}, 1")
        a(f"s_and_b32 s67, {sL}, 3")
        a(f"s_cmp_lt_u32 {sL}, 24")
        a(f"s_cselect_b32 {k0}, {k0}, s67")
        a(f"s_lshl_b32 {k0}, {k0}, 8")
        if cg is None:
            return
        L1 = a.newlabel("L_rmt")
        L2 = a.newlabel("L_rmt")
        a(f"s_bfe_u32 {cg}, {sL}, 0x30001")
        a(f"s_min_u32 {cg}, {cg}, 4")
        a(f"s_mul_i32 s67, {sX}, 5")
        a(f"s_add_u32 {cg}, {cg}, s67")
        a(f"s_cmp_lt_u32 {sL}, 28")
        a(f"s_cbranch_scc1 {L1}")
        a(f"s_lshl3_add_u32 {cg}, {sX}, 3")
        a(f"s_cmp_lt_u32 {sX}, 6")
        a(f"s_cbranch_scc1 {L2}")
        a(f"s_add_u32 {cg}, {sX}, 34")
        a.label(L1)
        a(f"s_add_u32 s67, {cg}, 4")
        a(f"s_mul_i32 s67, s67, 37")
        a(f"s_lshr_b32 s67, s67, 8")
        a(f"s_add_u32 {cg}, {cg}, s67")
        a.label(L2)

    def p4_cg(self, d):
        a = self.a
        a(f"s_add_u32 {d}, {sX}, 3")
        a(f"s_and_b32 {d}, {d}, 7")
        a(f"s_lshr_b32 s67, {sL}, 1")
        a(f"s_add_u32 {d}, {d}, s67")
        a(f"s_add_u32 {d}, {d}, 1")
        for _ in range(2):
            a(f"s_cmp_ge_u32 {d}, 7")
            a(f"s_cselect_b32 s67, 7, 0")
            a(f"s_sub_u32 {d}, {d}, s67")
        a(f"s_mul_i32 s67, {sX}, 7")
        a(f"s_add_u32 {d}, {d}, s67")

    def swap_j(self, d, p, q):
        a = self.a
        a(f"s_sub_u32 {d}, {sL}, 16")
        if not self.cfg.get("swap", 1):
            return
        a(f"s_cmp_eq_u32 {sL}, {16+p}")
        a(f"s_cselect_b32 {d}, {q}, {d}")
        a(f"s_cmp_eq_u32 {sL}, {16+q}")
        a(f"s_cselect_b32 {d}, {p}, {d}")

    def koff(self, dst):
        a = self.a
        a(f"v_lshlrev_b32 v{dst}, 11, {vB}")
        a(f"v_lshl_add_u32 v{dst}, {vHI}, 6, v{dst}")
        a(f"v_lshl_add_u32 v{dst}, {vG}, 3, v{dst}")

    def load_bfrag(self, dst, srd, soff, extra=0):
        a = self.a
        a(f"buffer_load_dwordx2 {v(dst,2)}, v8, {srd}, {soff} offen offset:{extra}")
        a(f"buffer_load_dwordx2 {v(dst+2,2)}, v8, {srd}, {soff} offen offset:{extra+32}")

    def p0a_regs(self):
        if self.cfg.get("pb"):
            return dict(c=62, T=44, BF=64, wa=8, tr=56, pa=59, fr=57, sp="s76", ss="s82", sf="s83", u0=-4)
        return dict(c=28, T=32, BF=96, wa=8, tr=9, pa=10, fr=30, sp="s71", ss="s70", sf="s72", u0=0)

    def p0a_early(self):
        a = self.a
        R = self.p0a_regs()
        a(f"v_bfe_u32 v8, {vLANE}, 1, 3")
        a(f"v_lshlrev_b32 v8, 11, v8")
        a(f"v_lshl_add_u32 v8, {vG}, 3, v8")
        a(f"v_and_b32 v9, 1, {vLANE}")
        a(f"v_lshl_add_u32 v8, v9, 5, v8")
        a(f"s_and_b32 {R['sp']}, {sL}, 3")
        a(f"s_lshl_b32 s67, {R['sp']}, 9")
        a(f"s_lshl_b32 s70, {sW}, 6")
        a(f"s_add_u32 s67, s67, s70")
        a("s_waitcnt lgkmcnt(0)")
        a(f"buffer_load_dwordx2 {v(R['c'],2)}, v8, {C_}, s67 offen")
        self.ws_touch(50)

    def ws_touch(self, r):
        if self.cfg.get("tws"):
            a = self.a
            a(f"s_lshl_b32 s67, {sW}, 13")
            a("s_add_u32 s67, s67, s2")
            a("s_lshl_b32 s67, s67, 7")
            a(f"buffer_load_dword v{r}, off, {WS_}, s67 sc1")

    def p0a_pre(self, vm=0):
        a = self.a
        R = self.p0a_regs()
        sb = SLOT["P0A"]
        ss, T = R["ss"], R["T"]
        a(f"s_lshl_b32 s67, {sW}, 9")
        a(f"v_lshl_add_u32 v8, {vLANE}, 3, {vZ}")
        a(f"v_add_u32 v8, s67, v8")
        px = self.cfg.get("p0x")
        w3 = sW
        if px:
            w3 = "s74"
            a(f"s_and_b32 s74, {sW}, 3")
            a(f"s_and_b32 s73, {sW}, 4")
            a(f"s_add_u32 {ss}, {sX}, s73")
            a(f"s_lshl_b32 {ss}, {ss}, 15")
            a(f"s_sub_u32 s73, s73, 3")
        else:
            a(f"s_lshl_b32 {ss}, {sX}, 15")
        a(f"s_bfe_u32 s67, {sL}, 0x20002")
        a(f"s_lshl_b32 s67, s67, 13")
        a(f"s_add_u32 {ss}, {ss}, s67")
        a(f"s_lshl_b32 s67, {w3}, 11")
        a(f"s_add_u32 {ss}, {ss}, s67")
        a(f"s_lshl_b32 s67, {R['sp']}, 9")
        a(f"s_add_u32 {ss}, {ss}, s67")
        a(f"s_add_u32 {ss}, {ss}, {WS_SAC}")
        a(f"s_add_u32 {R['sf']}, {ss}, {FS}")
        a(f"v_lshlrev_b32 v{R['pa']}, 4, {vB}")
        a(f"v_lshl_add_u32 v{R['pa']}, {vG}, 7, v{R['pa']}")
        a(f"v_add_u32 v{R['fr']}, v{R['pa']}, {vZ}")
        a(f"s_lshl_b32 s67, {w3}, 5")
        a(f"v_xor_b32 v{R['tr']}, s67, v{TR}")
        if px:
            a(f"s_cmp_lt_u32 {sW}, 4")
            a(f"s_cselect_b32 s67, {12 * SLOTB}, 0")
            a(f"v_add_u32 v{R['tr']}, s67, v{R['tr']}")
        if R["u0"]:
            a(f"v_add_u32 v{R['tr']}, {(R['u0'] % NS) * SLOTB}, v{R['tr']}")
        a(f"s_waitcnt vmcnt({vm})")
        self.unpack_bf16(R["c"], T, 2)
        for e in range(4):
            a(f"v_mul_f32 v{40+e}, 0x{LOG2E ^ 0x80000000:x}, v{T+e}")
        for e in range(4):
            a(f"v_exp_f32 v{40+e}, v{40+e}")
        for e in range(4):
            a(f"v_add_f32 v{40+e}, 1.0, v{40+e}")
        for e in range(4):
            a(f"v_rcp_f32 v{40+e}, v{40+e}")
        for e in range(4):
            a(f"v_mul_f32 v{T+e}, v{T+e}, v{40+e}")
        for p in range(2):
            a(f"v_cvt_pk_bf16_f32 v{T+p}, v{T+2*p}, v{T+1+2*p}")
        if not R["u0"]:
            self.epoch()
        self.stamp(sb)
        a(f"ds_write_b64 v8, {v(T,2)} offset:{L_P-L_AUX}")
        self.bump(CNT["S1"])

    def p0a_mm(self, skip):
        a = self.a
        R = self.p0a_regs()
        sb = SLOT["P0A"]
        BF, AF = R["BF"], 128
        px = self.cfg.get("p0x")
        if not px:
            a(f"s_cmp_ge_u32 {sW}, 4")
            a(f"s_cbranch_scc1 {skip}")
        self.lds_wait(CNT["S1"], 8, [f"ds_read_b128 {v(BF+4*st,4)}, v{R['fr']} offset:{L_P-L_AUX+512*st}" for st in range(8)], tmp=24)
        a("s_waitcnt lgkmcnt(0)")
        self.stamp(sb + 1)
        for u in range(4):
            rd = [f"ds_read_b64_tr_b16 {v(AF+8*u+4*hi+2*q,2)}, v{R['tr']} offset:{u*SLOTB+(32*hi+16*q)*128}" for hi in range(2) for q in range(2)]
            self.lds_wait(C_LANDED, "s73" if px else R["u0"] + u + 1, rd, tmp=24)
            if px:
                a("s_add_u32 s73, s73, 1")
            for hi in range(2):
                a(f"s_waitcnt lgkmcnt({2-2*hi})")
                c = "0" if u == 0 else v(16 + 4 * hi, 4)
                a(f"v_mfma_f32_16x16x32_bf16 {v(16+4*hi,4)}, {v(AF+8*u+4*hi,4)}, {v(BF+8*u+4*hi,4)}, {c}")
        for r in range(4):
            a(f"v_add_f32 v{16+r}, v{16+r}, v{20+r}")
        self.tag([16, 17, 18, 19])
        a(f"s_mov_b64 exec, {sM8}")
        if px:
            a(f"s_cmp_ge_u32 {sW}, 4")
            a("s_cbranch_scc1 L_p0b")
        a(f"buffer_store_dwordx4 v[16:19], v{R['pa']}, {WS_}, {R['sf']} offen")
        a(f"buffer_store_dwordx4 v[16:19], v{R['pa']}, {WS_}, {R['ss']} offen sc1")
        self.bump(CNT["P0P"])
        self.stamp(sb + 3)
        if px:
            a(f"s_branch {skip}")
            a.label("L_p0b")
            a(f"buffer_store_dwordx4 v[16:19], v{R['pa']}, {WS_}, {R['sf']} offen sc1")
            a(f"buffer_store_dwordx4 v[16:19], v{R['pa']}, {WS_}, {R['ss']} offen sc1")
            self.bump(CNT["P0P"])
            self.stamp(sb + 2)
        if not R["u0"]:
            a("v_mov_b32 v20, 2")
            self.release_run(0, 4, "v20")

    def p0a(self):
        self.p0a_pre(1 if self.cfg.get("tws") else 0)
        self.p0a_mm("L_att")

    def rm(self, tb):
        a = self.a
        name = "RM"
        self.stamp(SLOT[name])
        self.rm_task("s69", "s72")
        a(f"s_cmp_ge_u32 {sL}, 24")
        a(f"s_cselect_b32 s70, 1, 0")
        a(f"s_lshl_b32 s70, s69, s70")
        a(f"s_mul_i32 s70, s70, {MODS//512}")
        a("s_lshl_b32 s67, s72, 8")
        a("s_add_u32 s70, s70, s67")
        a(f"s_mul_i32 s67, {sW}, {3072*4}")
        a("s_add_u32 s70, s70, s67")
        a(f"s_add_u32 s70, s70, {WS_MOD}")
        if self.cfg.get("pg"):
            self.swap_j("s68", 3, 9)
            self.p3_pre()
        self.touch("P3")
        self.touch("R3")
        self.touch("P5")
        Lr = a.newlabel("L_rmr")
        Le = a.newlabel("L_rme")
        a(f"s_cmp_ge_u32 {sL}, 24")
        a(f"s_cbranch_scc1 {Lr}")
        t1, t2 = self.cfg.get("pgt", (13, 16)) if self.cfg.get("pg", 0) >= 3 else (None, None)
        self.pull(8, tb, red="row", pg=t1)
        self.p3_pg()
        self.stamp(SLOT[name] + 1)
        self.tail([tb], 8, name, lambda: self.publish1(vL4, "s70"), slow=self.cfg["slow"], BB=100, pg=t1)
        self.release_run(8, 8)
        a(f"s_branch {Le}")
        a.label(Lr)
        self.slot_of(12, "s78", "s79")
        self.red_addr(12, "row")
        Ls = a.newlabel("L_rms")
        a(f"s_cmp_ge_u32 {sW}, 4")
        a(f"s_cbranch_scc1 {Ls}")
        self.pull(12, tb, pg=t2)
        self.stamp(SLOT[name] + 1)
        a.label(Ls)
        self.p3_pg()
        self.tail([tb], 4, name, lambda: self.publish1(vL4, "s70"), slow=self.cfg["slow"], BB=100, pg=t2)
        self.release_run(12, 4)
        a.label(Le)
        self.stamp(SLOT[name] + 3)

    def p1_early(self):
        a = self.a
        a(f"v_lshlrev_b32 v9, 4, {vLANE}")
        a(f"s_lshl_b32 s70, {sW}, 11")
        a(f"v_bfe_u32 v10, {vLANE}, 3, 2")
        a(f"v_lshlrev_b32 v8, 11, {vB}")
        a(f"v_lshl_add_u32 v8, v10, 3, v8")
        a(f"v_lshrrev_b32 v10, 5, {vLANE}")
        a(f"v_lshl_add_u32 v8, v10, 2, v8")
        a(f"s_lshl_b32 s69, {sX}, 8")
        a(f"s_lshl_b32 s67, {sW}, 5")
        a(f"s_add_u32 s69, s69, s67")
        a("s_waitcnt lgkmcnt(0)")
        a(f"buffer_load_dwordx4 v[32:35], v9, {X_}, s70 offen")
        a(f"buffer_load_dwordx4 v[36:39], v9, {X_}, s70 offen offset:1024")
        a(f"buffer_load_dword v58, v8, {X_}, s69 offen")
        self.rm_task("s69")
        a(f"s_lshl_b32 s67, {sW}, 6")
        a("s_add_u32 s69, s69, s67")
        a("s_and_b32 s69, s69, 1023")
        a("s_lshl_b32 s69, s69, 1")
        self.koff(8)
        self.load_bfrag(96, C_, "s69")
        self.ws_touch(63)

    def p1(self, tb):
        a = self.a
        sb = SLOT["P1"]
        Y = [60, 61]
        pb = self.cfg.get("pb")
        S1 = CNT["S2" if pb else "S1"]
        if pb:
            self.p0a_pre(5)
        a(f"s_lshl_b32 s70, {sX}, 17")
        a(f"s_lshl_b32 s67, s68, 10")
        a(f"s_add_u32 s70, s70, s67")
        a(f"s_lshl_b32 s67, {sW}, 7")
        a(f"s_add_u32 s70, s70, s67")
        a(f"s_add_u32 s70, s70, {WS_QP}")
        a(f"s_add_u32 s71, s70, {FS}")
        a(f"v_lshlrev_b32 v31, 14, {vB}")
        a(f"v_lshl_add_u32 v31, {vHI}, 6, v31")
        a(f"v_lshl_add_u32 v31, {vG}, 4, v31")
        a(f"v_and_b32 v30, 31, {vLANE}")
        a(f"v_lshl_add_u32 v28, v30, 4, {vZ}")
        a(f"s_lshr_b32 s67, {sW}, 1")
        a(f"s_lshl_b32 s67, s67, 9")
        a(f"s_and_b32 s72, {sW}, 1")
        a(f"s_lshl_b32 s72, s72, 3")
        a(f"s_add_u32 s67, s67, s72")
        a(f"v_add_u32 v28, s67, v28")
        a(f"v_lshl_add_u32 v29, {vB}, 4, {vZ}")
        a(f"v_lshl_add_u32 v29, {vG}, 7, v29")
        a(f"v_lshrrev_b32 v27, 5, {vLANE}")
        a(f"v_lshl_add_u32 v28, v27, 2, v28")
        a(f"v_lshlrev_b32 v27, 14, v27")
        a(f"v_lshl_add_u32 v27, v30, 4, v27")
        a(f"s_and_b32 s67, {sW}, 3")
        a(f"s_lshl_b32 s67, s67, 9")
        a(f"v_add_u32 v26, s67, v27")
        a(f"s_lshl_b32 s73, {sX}, 15")
        a(f"s_lshl_b32 s67, {sW}, 11")
        a(f"s_add_u32 s73, s73, s67")
        a(f"s_add_u32 s73, s73, {WS_SAC}")
        a(f"s_waitcnt vmcnt({4 if self.cfg.get('tws') else 3})")
        self.unpack_bf16(32, 40, 8)
        a("v_add_f32 v18, v40, v41")
        for e in range(2, 16):
            a(f"v_add_f32 v18, v18, v{40+e}")
        self.allred_wave([18], [19])
        a("v_mul_f32 v18, 0x3a800000, v18")
        a("v_mov_b32 v16, 0")
        for e in range(16):
            a(f"v_sub_f32 v17, v{40+e}, v18")
            a(f"v_fmac_f32 v16, v17, v17")
        self.allred_wave([16], [19])
        a("v_mul_f32 v19, 0x3a800000, v16")
        self.ln_consts(18, 19, 16)
        a(f"s_lshl_b32 s67, {sW}, 3")
        a(f"v_add_u32 v16, s67, {vZ}")
        self.epoch()
        self.stamp(sb)
        if not pb:
            a("s_barrier")
        a(f"ds_write_b64 v16, v[18:19] offset:{L_ST-L_AUX}")
        self.bump(S1)
        a(f"s_waitcnt vmcnt({1 if self.cfg.get('tws') else 0})")
        if pb:
            self.p0a_mm("L_p0s")
            a.label("L_p0s")
        a(f"v_lshl_add_u32 v17, {vB}, 3, {vZ}")
        self.unpack_bf16(58, 60, 1)
        self.silu_c(96, 100)
        self.lds_wait(S1, 8, [f"ds_read_b64 v[18:19], v17 offset:{L_ST-L_AUX}"])
        a("s_waitcnt lgkmcnt(0)")
        for y in Y:
            a(f"v_sub_f32 v{y}, v{y}, v18")
        self.bf16r_pairs(Y, 24)
        for y in Y:
            a(f"v_mul_f32 v{y}, v{y}, v19")
        self.bf16r_pairs(Y, 24)
        a(f"s_lshr_b32 s78, {sW}, 1")
        a(f"s_add_u32 s79, s78, 1")
        a(f"s_lshl_b32 s78, s78, 13")
        a(f"s_lshl_b32 s67, s72, 3")
        a(f"v_xor_b32 v16, s67, v{TR}")
        a(f"v_add_u32 v{TRA}, s78, v16")
        a(f"v_xor_b32 v16, s67, v{TR+1}")
        a(f"v_add_u32 v{TRA+1}, s78, v16")
        def wreads(rh):
            return [f"ds_read_b64_tr_b16 {v(tb+16*rh+8*c2+4*hi+2*q,2)}, v{TRA+c2} offset:{4*SLOTB*rh+(32*hi+16*q)*128}"
                    for c2 in range(2) for hi in range(2) for q in range(2)]
        self.touch("P1")
        self.lds_wait(C_LANDED, "s79", slow=self.cfg["slow"])
        for t in wreads(0):
            a(t)
        a(f"s_add_u32 s79, s79, 4")
        a("s_mov_b32 s75, 0")
        self.stamp(sb + 1)
        pl = [(f"buffer_load_dwordx4 {v(32+4*p,4)}, v27, {WS_}, s74 offen offset:{512*p} sc1", 32 + 4 * p, 4) for p in range(4)]
        GM = 0x100000001
        self.poll(pl, 24, gate=(GM, 26, "s74"), fs=[("s74", "s73")], gs=40, hook=self.early_pull("s75", "s79", wreads(1), GM))
        self.tb("P1")
        self.stamp(sb + 2)
        for e in range(4):
            a(f"v_add_f32 v{32+e}, v{32+e}, v{36+e}")
            a(f"v_add_f32 v{40+e}, v{40+e}, v{44+e}")
        for e in range(4):
            a(f"v_add_f32 v{32+e}, v{32+e}, v{40+e}")
        a("v_permlane32_swap_b32 v32, v34")
        a("v_permlane32_swap_b32 v33, v35")
        self.bf16r_pairs([34, 35], 24)
        for e in range(2):
            a(f"v_add_f32 v{34+e}, 1.0, v{34+e}")
        self.bf16r_pairs([34, 35], 24)
        self.bf16r_pairs([32, 33], 25)
        for e in range(2):
            a(f"v_mul_f32 v{34+e}, v{Y[e]}, v{34+e}")
        self.bf16r_pairs([34, 35], 24)
        for e in range(2):
            a(f"v_add_f32 v{32+e}, v{32+e}, v{34+e}")
        a("v_cvt_pk_bf16_f32 v32, v32, v33")
        a(f"ds_write_b32 v28, v32 offset:{L_H-L_AUX}")
        self.bump(CNT["H"])
        self.xs(0)
        self.late_pull("s75", "s79", wreads(1))
        self.lds_wait(CNT["H"], 8, [f"ds_read_b128 {v(32+4*st,4)}, v29 offset:{L_H-L_AUX+512*st}" for st in range(4)], tmp=24, rl=True)
        for st in range(4):
            a(f"s_waitcnt lgkmcnt({3-st})")
            for c2 in range(2):
                c = "0" if st == 0 else v(16 + 4 * c2, 4)
                a(f"v_mfma_f32_16x16x32_bf16 {v(16+4*c2,4)}, {v(tb+16*(st>>1)+8*c2+4*(st&1),4)}, {v(32+4*st,4)}, {c}")
        self.xs(1)
        a(f"s_lshr_b32 s67, s68, 2")
        a(f"s_cmp_lg_u32 s67, {sHKV}")
        for e in range(4):
            a(f"v_cndmask_b32 v{16+e}, v{20+e}, v{16+e}, {sM8}")
        self.tag([16, 17, 18, 19])
        a(f"buffer_store_dwordx4 v[16:19], v31, {WS_}, s70 offen sc1")
        Ln = a.newlabel("L_nopl")
        a(f"s_cbranch_scc1 {Ln}")
        a(f"buffer_store_dwordx4 v[16:19], v31, {WS_}, s71 offen")
        a.label(Ln)
        self.bump(CNT["P1P"])
        self.te("P1")
        self.stamp(sb + 3)
        a(f"s_lshr_b32 s67, s78, 11")
        a(f"v_add_u32 v24, s67, {vZ}")
        a(f"v_mov_b32 v25, 4")
        a("s_mov_b64 exec, 1")
        a(f"ds_add_u32 v24, v25 offset:{4*C_FREE}")
        a(f"ds_add_u32 v24, v25 offset:{4*C_FREE+16}")
        a("s_mov_b64 exec, -1")

    def att(self, uK):
        a = self.a
        sb = SLOT["ATT"]
        uV = uK + 8
        KR, VR, PR = 64, 96, 128
        self.stamp(sb)
        a(f"s_and_b32 s72, s68, 3")
        a(f"s_and_b32 s73, {sX}, 1")
        a(f"s_lshl_b32 s73, s73, 2")
        a(f"s_lshr_b32 s67, s68, 2")
        a(f"s_add_u32 s73, s73, s67")
        a(f"s_mov_b32 s74, {sHKV}")
        if self.cfg.get("tk"):
            a(f"s_cmp_lg_u32 {sW}, {self.cfg['tk']}")
            a("s_cbranch_scc1 L_ntk")
            a("s_lshl2_add_u32 s66, s73, s74")
            a("s_lshl_b32 s66, s66, 20")
            a(f"s_add_u32 s66, s66, {3072*256}")
            a(f"v_and_b32 v16, 3, {vLANE}")
            a("v_lshlrev_b32 v16, 16, v16")
            a(f"buffer_load_dword v40, v16, {K_}, s66 offen nt")
            a(f"buffer_load_dword v42, v16, {V_}, s66 offen nt")
            a.label("L_ntk")
        if self.cfg.get("tw"):
            a(f"s_cmp_lg_u32 {sW}, {self.cfg['tw']}")
            a("s_cbranch_scc1 L_ntw")
            a(f"s_cmp_ge_u32 {sL}, {self.cfg.get('twl', 8)}")
            a("s_cbranch_scc1 L_ntw")
            a(f"v_and_b32 v16, {self.cfg.get('twm', 63)}, {vLANE}")
            a("s_cmp_ge_u32 s72, 2")
            a("s_cbranch_scc1 L_tw2")
            a("v_lshlrev_b32 v16, 17, v16")
            a("s_cmp_eq_u32 s72, 0")
            a("s_cbranch_scc1 L_tw0")
            a(f"buffer_load_dword v40, v16, {WU_}, 0 offen nt")
            a("s_branch L_ntw")
            a.label("L_tw0")
            a(f"buffer_load_dword v40, v16, {WG_}, 0 offen nt")
            a("s_branch L_ntw")
            a.label("L_tw2")
            a("v_lshrrev_b32 v16, 2, v16")
            a("v_lshlrev_b32 v16, 17, v16")
            a(f"s_lshr_b32 s66, {sX}, 1")
            a("s_lshl_b32 s66, s66, 21")
            a(f"buffer_load_dword v40, v16, {WO_}, s66 offen nt")
            a("v_lshrrev_b32 v16, 1, v16")
            a(f"s_mul_i32 s66, {sX}, {448*2048}")
            a(f"buffer_load_dword v42, v16, {WD_}, s66 offen nt")
            a.label("L_ntw")
        a(f"v_and_b32 v8, 31, {vLANE}")
        self.rot_addr(17, 8, 56)
        a(f"s_lshl_b32 s66, s73, 14")
        a(f"s_lshl_b32 s67, s74, 12")
        a(f"s_add_u32 s66, s66, s67")
        a(f"s_lshl_b32 s67, {sW}, 9")
        a(f"s_add_u32 s66, s66, s67")
        a(f"s_add_u32 s66, s66, {WS_QP}")
        a(f"s_mul_i32 s67, {sW}, 272")
        a(f"v_lshl_add_u32 v28, v8, 3, {vZ}")
        a(f"v_add_u32 v28, s67, v28")
        a(f"v_lshrrev_b32 v16, 5, {vLANE}")
        a(f"v_lshl_add_u32 v28, v16, 2, v28")
        a(f"v_mul_u32_u24 v29, 272, {vB}")
        a(f"v_lshl_add_u32 v29, {vG}, 4, v29")
        a(f"v_add_u32 v29, v29, {vZ}")
        a(f"v_lshl_add_u32 v30, {vB}, 4, {vZ}")
        a(f"v_lshl_add_u32 v30, {vG}, 7, v30")
        a(f"s_lshl_b32 s67, {sW}, 9")
        a(f"v_add_u32 v31, s67, v30")
        a(f"v_lshl_add_u32 v31, {vHI}, 3, v31")
        a(f"v_mul_u32_u24 v26, 80, {vB}")
        a(f"v_add_u32 v26, v26, {vZ}")
        a(f"s_lshl_b32 s67, {sW}, 3")
        a(f"v_add_u32 v27, s67, v26")
        a(f"v_lshl_add_u32 v26, {vHI}, 5, v26")
        for r in range(PR, PR + 32):
            a(f"v_mov_b32 v{r}, 0")
        a(f"s_not_b64 s[86:87], {sM8}")
        a(f"s_lshl_b32 s75, s73, 2")
        a(f"s_add_u32 s75, s75, s72")
        a(f"s_lshl_b32 s76, s73, 7")
        a(f"s_lshl2_add_u32 s76, s72, s76")
        a(f"s_lshl_b32 s75, s75, 14")
        a(f"s_lshl_b32 s67, s74, 12")
        a(f"s_add_u32 s75, s75, s67")
        a(f"s_lshl_b32 s67, {sW}, 9")
        a(f"s_add_u32 s75, s75, s67")
        a(f"s_add_u32 s75, s75, {WS_OP}")
        a(f"s_lshl_b32 s67, s74, 10")
        a(f"s_add_u32 s76, s76, s67")
        a(f"s_add_u32 s76, s76, {WS_LSE}")
        a(f"s_add_u32 s89, s76, {WS_FA-WS_LSE}")
        a(f"s_cmp_eq_u32 {sW}, 7")
        a("s_cselect_b32 s92, 1, -1")
        a("s_cselect_b32 s93, 0, -1")
        fa = self.cfg.get("fa", 0)

        def aflag(pt, cmp="s92"):
            if fa != pt and cmp == "s92" or not fa:
                return
            S = a.newlabel("L_naf")
            a(f"s_cmp_lg_u32 s77, {cmp}")
            a(f"s_cbranch_scc1 {S}")
            self.flag(48, "s89", both=False)
            a.label(S)
        a(f"v_sub_u32 v10, v30, {vZ}")
        a(f"v_lshrrev_b32 v16, 2, {vLANE}")
        a(f"v_and_b32 v17, 7, v16")
        a(f"v_xor_b32 v17, {sW}, v17")
        a(f"v_lshlrev_b32 v16, 8, v16")
        a(f"v_lshl_add_u32 v16, v17, 5, v16")
        a(f"v_and_b32 v17, 3, {vLANE}")
        a(f"v_lshl_add_u32 v62, v17, 3, v16")
        a(f"v_add_u32 v63, 0x10000, v62")
        self.touch("ATT")
        self.slot_of(uK, "s78", "s79")
        a(f"v_xor_b32 v16, {vG}, {vI}")
        a(f"v_lshlrev_b32 v16, 4, v16")
        a(f"v_lshl_add_u32 v16, {vI}, 8, v16")
        for st in range(4):
            a(f"v_xor_b32 v17, {64*st}, v16")
            a(f"v_add_u32 v{TRA+st}, s78, v17")
        self.lds_wait(C_LANDED, "s79", slow=self.cfg["slow"])
        for kb in range(2):
            for st in range(4):
                a(f"ds_read_b128 {v(KR+16*kb+4*st,4)}, v{TRA+st} offset:{4096*kb}")
        a("s_waitcnt lgkmcnt(0)")
        self.release("s78")
        vr = []
        for t in range(8):
            sl = (uV + t) % NS
            for q in range(2):
                off = sl * SLOTB + 4096 * q
                vr.append(f"ds_read_b64_tr_b16 {v(VR+4*t+2*q,2)}, v{62 + off//65536} offset:{off % 65536}")
        a("s_mov_b32 s77, 0")
        GM = 0x100000001
        if self.cfg.get("qlate"):
            self.lds_wait(C_LANDED, uV + self.cfg["qlate"], slow=self.cfg["slow"])
            self.stamp(sb + 1)
        self.poll([(f"buffer_load_dwordx4 {v(32+4*i,4)}, v{56+i}, {WS_}, s66 offen sc1", 32 + 4 * i, 4) for i in range(4)], 24,
                  gate=(GM, 58, "s66") if self.cfg.get("qgate", 1) else None, vfs=(56, 61, 60), gs=54,
                  hook=self.early_pull("s77", uV + 8, vr, GM),
                  mid=self.early_pull("s77", uV + 8, vr, (1 << 64) - 1) if self.cfg.get("vp", 3) & 1 else None)
        self.tb("ATT")
        self.stamp(sb + 2)
        for i in range(4):
            a(f"v_add_f32 v{32+i}, v{32+i}, v{36+i}")
            a(f"v_add_f32 v{40+i}, v{40+i}, v{44+i}")
        for i in range(4):
            a(f"v_add_f32 v{32+i}, v{32+i}, v{40+i}")
        a("v_permlane32_swap_b32 v32, v34")
        a("v_permlane32_swap_b32 v33, v35")
        a("v_add_f32 v32, v32, v34")
        a("v_add_f32 v33, v33, v35")
        a("v_cvt_pk_bf16_f32 v32, v32, v33")
        a(f"ds_write_b32 v28, v32 offset:{L_Q-L_AUX}")
        self.bump(CNT["Q"])
        if self.cfg.get("vp", 3) & 2:
            self.early_pull("s77", uV + 8, vr, (1 << 64) - 1)()
        self.lds_wait(CNT["Q"], 8, [f"ds_read_b128 {v(32+4*st,4)}, v29 offset:{L_Q-L_AUX+64*st}" for st in range(4)], tmp=24, rl=True)
        aflag(1)
        for st in range(4):
            a(f"s_waitcnt lgkmcnt({3-st})")
            for kb in range(2):
                c = "0" if st == 0 else v(16 + 4 * kb, 4)
                a(f"v_mfma_f32_16x16x32_bf16 {v(16+4*kb,4)}, {v(KR+16*kb+4*st,4)}, {v(32+4*st,4)}, {c}")
        aflag(2)
        self.xs(0)
        Z = [16, 17, 18, 19]
        for e in range(4):
            a(f"v_cndmask_b32 v{16+e}, v{20+e}, v{16+e}, {sM8}")
        self.bf16r_pairs(Z[:2], 24)
        self.bf16r_pairs(Z[2:], 25)
        for z in Z:
            a(f"v_mul_f32 v{z}, 0x{SCALE:x}, v{z}")
        self.bf16r_pairs(Z[:2], 24)
        self.bf16r_pairs(Z[2:], 25)
        a("v_max3_f32 v32, v16, v17, v18")
        a("v_max_f32 v33, v32, v19")
        a("v_max_f32_dpp v32, v33, v33 row_ror:8 row_mask:0xf bank_mask:0xf")
        self.allred_g([32], "v_max_f32", [33])
        a(f"v_mul_f32 v32, 0x{LOG2E:x}, v32")
        for z in Z:
            a(f"v_fma_f32 v{z}, v{z}, {sLOG}, -v32")
        for z in Z:
            a(f"v_exp_f32 v{z}, v{z}")
        a("v_cvt_pk_bf16_f32 v36, v16, v17")
        a("v_cvt_pk_bf16_f32 v37, v18, v19")
        a(f"ds_write_b64 v31, v[36:37] offset:{L_P-L_AUX}")
        aflag(3)
        a("v_add_f32 v16, v16, v17")
        a("v_add_f32 v18, v18, v19")
        a("v_add_f32 v34, v16, v18")
        a("v_add_f32_dpp v33, v34, v34 row_ror:8 row_mask:0xf bank_mask:0xf")
        self.allred_g([33], "v_add_f32", [34])
        a(f"ds_write_b64 v27, v[32:33] offset:{L_ML-L_AUX}")
        self.bump(CNT["P"])
        aflag(4)
        self.xs(1)
        self.late_pull("s77", uV + 8, vr)
        aflag(-1, "s93")
        self.xs(2)
        rd = [f"ds_read_b128 {v(32+4*i,4)}, v26 offset:{L_ML-L_AUX+16*i}" for i in range(2)]
        rd += [f"s_mov_b64 exec, {sM8}"]
        rd += [f"ds_read_b128 {v(PR+4*t,4)}, v30 offset:{L_P-L_AUX+512*t}" for t in range(4)]
        rd += [f"s_mov_b64 exec, s[86:87]"]
        rd += [f"ds_read_b128 {v(PR+4*t,4)}, v30 offset:{L_P-L_AUX+512*t}" for t in range(4, 8)]
        rd += [f"s_mov_b64 exec, -1"]
        self.lds_wait(CNT["P"], 8, rd, tmp=24, rl=self.cfg.get("rlp", 0))
        self.xs(3)
        a("s_waitcnt lgkmcnt(8)")
        a("v_max3_f32 v16, v32, v34, v36")
        a("v_max_f32 v17, v16, v38")
        a("v_max_f32_dpp v16, v17, v17 row_ror:8 row_mask:0xf bank_mask:0xf")
        if self.cfg.get("lsef", 1):
            for t in range(4):
                a(f"v_sub_f32 v{32+2*t}, v{32+2*t}, v16")
            for t in range(4):
                a(f"v_exp_f32 v{32+2*t}, v{32+2*t}")
            for t in range(4):
                a(f"v_mul_f32 v18, v32, v33" if t == 0 else f"v_fmac_f32 v18, v{32+2*t}, v{33+2*t}")
            Ln = a.newlabel("L_nolse")
            a(f"s_cmp_lg_u32 {sW}, 7")
            a("v_add_f32_dpp v17, v18, v18 row_ror:8 row_mask:0xf bank_mask:0xf")
            a(f"s_cbranch_scc1 {Ln}")
            a("v_log_f32 v18, v17")
            a("s_mov_b64 exec, 0xff")
            a("v_add_f32 v18, v16, v18")
            self.tag([18])
            a(f"buffer_store_dword v18, v10, {WS_}, s76 offen sc1")
            a("s_mov_b64 exec, -1")
            a.label(Ln)
            for t in range(4):
                a(f"s_waitcnt lgkmcnt({7-t})")
                a(f"v_mfma_f32_16x16x32_bf16 {v(KR+4*t,4)}, {v(VR+4*t,4)}, {v(PR+4*t,4)}, 0")
            for t in range(4):
                a(f"s_waitcnt lgkmcnt({3-t})")
                a(f"v_mfma_f32_16x16x32_bf16 {v(KR+4*t,4)}, {v(VR+16+4*t,4)}, {v(PR+16+4*t,4)}, {v(KR+4*t,4)}")
                if t == 0:
                    a("v_rcp_f32 v18, v17")
            for i in range(4):
                a(f"v_mul_f32 v{20+i}, v32, v{KR+i}")
        else:
            for t in range(4):
                a(f"s_waitcnt lgkmcnt({7-t})")
                a(f"v_mfma_f32_16x16x32_bf16 {v(KR+4*t,4)}, {v(VR+4*t,4)}, {v(PR+4*t,4)}, 0")
                a(f"v_sub_f32 v{32+2*t}, v{32+2*t}, v16")
                a(f"v_exp_f32 v{32+2*t}, v{32+2*t}")
            for t in range(4):
                a(f"s_waitcnt lgkmcnt({3-t})")
                a(f"v_mfma_f32_16x16x32_bf16 {v(KR+4*t,4)}, {v(VR+16+4*t,4)}, {v(PR+16+4*t,4)}, {v(KR+4*t,4)}")
                a(f"v_mul_f32 v18, v32, v33" if t == 0 else f"v_fmac_f32 v18, v{32+2*t}, v{33+2*t}")
            a("v_add_f32_dpp v17, v18, v18 row_ror:8 row_mask:0xf bank_mask:0xf")
            a("v_rcp_f32 v18, v17")
            a("v_log_f32 v17, v17")
            for i in range(4):
                a(f"v_mul_f32 v{20+i}, v32, v{KR+i}")
            Ln = a.newlabel("L_nolse")
            a(f"s_cmp_lg_u32 {sW}, 7")
            a(f"s_cbranch_scc1 {Ln}")
            a("v_add_f32 v17, v16, v17")
            self.tag([17])
            a("s_mov_b64 exec, 0xff")
            a(f"buffer_store_dword v17, v10, {WS_}, s76 offen sc1")
            a("s_mov_b64 exec, -1")
            a.label(Ln)
        for t in range(1, 4):
            for i in range(4):
                a(f"v_fmac_f32 v{20+i}, v{32+2*t}, v{KR+4*t+i}")
        for i in range(4):
            a(f"v_add_f32_dpp v{40+i}, v{20+i}, v{20+i} row_ror:8 row_mask:0xf bank_mask:0xf")
        for i in range(4):
            a(f"v_mul_f32 v{40+i}, v{40+i}, v18")
        self.tag([40, 41, 42, 43])
        a(f"s_mov_b64 exec, {sM8}")
        a(f"buffer_store_dwordx4 v[40:43], v10, {WS_}, s75 offen sc1")
        self.bump(CNT["ATTP"])
        self.te("ATT")
        self.stamp(sb + 3)
        self.release_run(uV % NS, NS - uV % NS)
        self.release_run(0, 8 - (NS - uV % NS))

    def p3_pre(self):
        a = self.a
        sP, sF = ("s82", "s83") if self.cfg.get("pg") else ("s70", "s69")
        a(f"s_lshl_b32 {sP}, {sX}, 15")
        a(f"s_lshl_b32 s67, s68, 8")
        a(f"s_add_u32 {sP}, {sP}, s67")
        a(f"s_lshl_b32 s67, {sW}, 12")
        a(f"s_add_u32 {sP}, {sP}, s67")
        a(f"s_add_u32 {sP}, {sP}, {WS_AP}")
        a(f"s_add_u32 {sF}, {sP}, {FS}")
        if self.cfg.get("pd", 0) & 4:
            a(f"v_not_b32 v16, {sT}")
            a(f"buffer_store_dword v16, {vL4}, {WS_}, {sF} offen")
        a(f"v_lshlrev_b32 v8, 4, {vLANE}")
        a(f"s_lshl_b32 s72, {sX}, 11")
        a(f"s_lshl_b32 s67, {sW}, 16")
        a(f"s_add_u32 s72, s72, s67")
        a(f"s_add_u32 s72, s72, {WS_OP}")
        for i in range(1, 4):
            a(f"s_add_u32 s{72+i}, s72, {16384*i}")
        a(f"v_lshlrev_b32 v9, 4, {vB}")
        a(f"s_lshr_b32 s71, {sX}, 1")
        a(f"s_lshl_b32 s71, s71, 10")
        a(f"s_lshl_b32 s67, {sW}, 7")
        a(f"s_add_u32 s71, s71, s67")
        a(f"s_add_u32 s71, s71, {WS_LSE}")
        a(f"v_bfe_u32 v16, v0, 2, 1")
        a(f"v_lshl_add_u32 v16, {vG}, 1, v16")
        a(f"v_lshl_add_u32 v29, v16, 9, {vZ}")
        a(f"v_xor_b32 v16, {sW}, v16")
        a(f"v_lshl_add_u32 v29, v16, 4, v29")
        a(f"v_and_b32 v16, 1, v0")
        a(f"v_lshl_add_u32 v29, v16, 8, v29")
        a(f"v_lshl_add_u32 v29, {vHI}, 7, v29")
        a(f"v_bfe_u32 v16, v0, 1, 1")
        a(f"v_lshl_add_u32 v29, v16, 3, v29")
        a(f"s_and_b32 s67, {sW}, 3")
        a(f"s_lshl_b32 s67, s67, 1")
        a(f"v_xor_b32 v16, {vHI}, {vB}")
        a(f"v_xor_b32 v16, s67, v16")
        a(f"v_lshl_add_u32 v30, v16, 4, {vZ}")
        a(f"v_lshl_add_u32 v30, {vG}, 7, v30")
        a(f"v_lshl_add_u32 v30, {vHI}, 9, v30")
        a(f"s_lshl_b32 s67, {sW}, 10")
        a(f"v_add_u32 v30, s67, v30")
        self.mod_addr()
        if self.cfg.get("pg", 0) >= 2:
            for r in range(52, 56):
                a(f"v_not_b32 v{r}, {sT}")

    def pg_issue(self):
        a = self.a
        S = a.newlabel("L_pgs")
        a(f"s_and_b32 s81, {sPOLL}, {self.cfg.get('pgm', 3)}")
        a(f"s_cbranch_scc1 {S}")
        a(f"buffer_load_dwordx4 v[52:55], v9, {WS_}, s71 offen sc1")
        a.label(S)

    def p3_pg(self):
        if self.cfg.get("pg", 0) == 2:
            self.a(f"buffer_load_dwordx4 v[52:55], v9, {WS_}, s71 offen sc1")

    def p3(self, ubase, tb):
        a = self.a
        sb = SLOT["P3"]
        pg = self.cfg.get("pg", 0)
        sP, sF = ("s82", "s83") if pg else ("s70", "s69")
        self.stamp(sb)
        if not pg:
            self.p3_pre()
        self.slot_of(ubase, "s78", "s79")
        for cg in range(4):
            a(f"v_add_u32 v{TRA+cg}, s78, v{TR+cg}")
        self.red_addr(ubase, "row")
        wr = [f"ds_read_b64_tr_b16 {v(tb+8*cg+4*hi+2*q,2)}, v{TRA+cg} offset:{(32*hi+16*q)*128}" for cg in range(4) for hi in range(2) for q in range(2)]
        a("s_mov_b32 s77, 0")
        Lnm = a.newlabel("L_nomod")
        self.stamp(sb + 1)
        fa = self.cfg.get("fa", 0)
        lse = (f"buffer_load_dwordx4 v[32:35], v9, {WS_}, s71 offen sc1", 32, 4)
        if fa:
            a(f"s_add_u32 s66, s71, {WS_FA-WS_LSE}")
            self.gate(1, (f"buffer_load_dwordx4 v[32:35], off, {WS_}, s66 sc1", 32, 4), 24, hook=self.early_pull("s77", "s79", wr, 1))
        else:
            if pg >= 3:
                a(f"s_mov_b32 {sPOLL}, {self.poll_limit * 8 + 1}")
                a.label("L_p3l")
            if pg >= 2:
                if pg == 2:
                    a("s_waitcnt vmcnt(1)")
                for r in range(4):
                    a(f"v_mov_b32 v{32+r}, v{52+r}")
                a(f"v_xor_b32 v24, {sT}, v32")
                for r in range(1, 4):
                    a(f"v_bitop3_b32 v24, v{32+r}, v24, {sT} bitop3:0xde")
                a(f"v_and_b32 v24, {vFF}, v24")
                a("v_cmp_ne_u32 vcc, 0, v24")
                a("s_cbranch_vccz L_p3g")
            if pg >= 3:
                a(f"s_sub_u32 {sPOLL}, {sPOLL}, 1")
                a("s_cbranch_scc1 L_p3g")
                self.pg_issue()
                self.early_pull("s77", "s79", wr, (1 << 64) - 1)()
                for _ in range(self.cfg.get("pgn", 3)):
                    a("s_nop 15")
                a("s_branch L_p3l")
            else:
                self.poll([lse], 24, lhook=self.early_pull("s77", "s79", wr, (1 << 64) - 1))
            a.label("L_p3g")
        self.stamp(42)
        G0 = 128
        pl = []
        for sp in range(4):
            for i in range(2):
                r = G0 + 8 * sp + 4 * i
                pl.append((f"buffer_load_dwordx4 {v(r,4)}, v8, {WS_}, s{72+sp} offen offset:{1024*i} sc1", r, 4))

        def weights():
            a("v_max3_f32 v36, v32, v33, v34")
            a("v_max_f32 v36, v36, v35")
            for w in range(32, 36):
                a(f"v_sub_f32 v{w+8}, v{w}, v36")
            for w in range(40, 44):
                a(f"v_exp_f32 v{w}, v{w}")
            a("v_add_f32 v36, v40, v41")
            a("v_add_f32 v37, v42, v43")
            a("v_add_f32 v36, v36, v37")
            a("v_rcp_f32 v36, v36")
            for w in range(40, 44):
                a(f"v_mul_f32 v{w}, v{w}, v36")
        if fa:
            self.poll2([[lse]] + [pl[2*sp:2*sp+2] for sp in range(4)], 24, plain=self.cfg["plain"], after0=weights)
        elif self.cfg.get("pq", 0) & 1:
            self.poll2([pl[2*sp:2*sp+2] for sp in range(4)], 24, plain=self.cfg["plain"], mid=weights)
        else:
            self.poll(pl, 24, plain=self.cfg["plain"], mid=weights)
        if self.stamps:
            a(f"v_writelane_b32 {vSTAMP}, {sPOLL}, 43")
        self.tb("P3")
        self.stamp(sb + 2)
        for e in range(8):
            a(f"v_mul_f32 v{G0+e}, v40, v{G0+e}")
        for sp in range(1, 4):
            for e in range(8):
                a(f"v_fmac_f32 v{G0+e}, v{40+sp}, v{G0+8*sp+e}")
        for p in range(4):
            a(f"v_cvt_pk_bf16_f32 v{16+p}, v{G0+2*p}, v{G0+1+2*p}")
        a(f"ds_write_b64 v29, v[16:17] offset:{L_OB-L_AUX}")
        a(f"ds_write_b64 v29, v[18:19] offset:{L_OB-L_AUX+4096}")
        self.bump(CNT["P3G"])
        self.late_pull("s77", "s79", wr)
        self.lds_wait(CNT["P3G"], 8, [f"ds_read_b128 {v(BB,4)}, v30 offset:{L_OB-L_AUX}"], tmp=24, rl=True)
        if self.cfg.get("hmod", 2) == 2:
            a(f"s_cmp_lt_u32 {sL}, 24")
            a(f"s_cbranch_scc1 {Lnm}")
            for t, _, _ in self.mod_loads():
                self.emit(t)
            a.label(Lnm)
        a("s_waitcnt lgkmcnt(0)")
        self.xs(2)
        self.tail([tb], 8, "P3", lambda: self.publish1(vL4, sP, fast=sF))
        self.bump(CNT["P3P"])
        self.te("P3")
        self.stamp(sb + 3)

    def mod_addr(self):
        a = self.a
        a(f"v_and_b32 v16, 31, {vLANE}")
        a(f"v_lshlrev_b32 v16, 4, v16")
        a(f"v_lshrrev_b32 v17, 5, {vLANE}")
        a(f"v_mul_u32_u24 v112, {MODS}, v17")
        a(f"v_add_u32 v112, v112, v16")
        a(f"v_add_u32 v113, {2*MODS}, v112")
        a(f"s_and_b32 s97, {sL}, 7")
        a(f"s_lshl_b32 s67, {sW}, 9")
        a(f"s_mul_i32 s94, s97, {3072*4}")
        a(f"s_add_u32 s94, s94, s67")
        a(f"s_add_u32 s94, s94, {WS_MOD}")
        a(f"s_add_u32 s95, s94, 4096")
        a(f"s_add_u32 s96, s94, 8192")
        a(f"v_not_b32 v96, {sT}")
        a(f"s_mov_b32 s36, 0x{QMASK & 0xffffffff:x}")
        a(f"s_mov_b32 s37, 0x{QMASK >> 32:x}")
        a(f"s_lshl_b32 s67, {sW}, 1")
        a(f"s_lshr_b64 s[36:37], s[36:37], s67")
        for m in range(3):
            a(f"s_bitcmp1_b64 s[36:37], {16*m}")
            a(f"s_cselect_b32 s{30+2*m}, 0xffff, 0")
            a(f"s_bitcmp1_b64 s[36:37], {16*m+1}")
            a(f"s_cselect_b32 s67, 0xffff0000, 0")
            a(f"s_or_b32 s{30+2*m}, s{30+2*m}, s67")
            a(f"s_mov_b32 s{31+2*m}, s{30+2*m}")
        for r in range(116, 128):
            a(f"v_mov_b32 v{r}, {sT}")

    def mod_loads(self):
        L = []
        for m in range(3):
            S = self.a.newlabel("L_mq")
            L.append(([";@nopad", f"s_mov_b64 exec, s[{30+2*m}:{31+2*m}]", f"s_cbranch_execz {S}",
                       f"buffer_load_dwordx4 {v(116+4*m,4)}, v113, {WS_}, s{94+m} offen sc1", f"@{S}"] + (["s_mov_b64 exec, -1", ";@pad"] if m == 2 else []),
                      116 + 4 * m, 4))
        return L + [(f"buffer_load_dwordx4 {v(96+4*m,4)}, v112, {WS_}, s{94+m} offen sc1", 96 + 4 * m, 4) for m in range(3)]

    def emit(self, t):
        for x in ([t] if isinstance(t, str) else t):
            if x[0] == "@":
                self.a.label(x[1:])
            else:
                self.a(x)

    def r3(self):
        a = self.a
        sb = SLOT["R3"]
        a(f"v_and_b32 v8, 31, {vLANE}")
        a(f"v_lshlrev_b32 v9, 4, v8")
        a(f"s_lshl_b32 s67, {sW}, 9")
        a(f"s_lshl_b32 s71, s69, 12")
        a(f"s_add_u32 s71, s71, s67")
        ml = self.mod_loads()
        a(f"v_lshrrev_b32 v16, 1, v9")
        a(f"s_lshr_b32 s67, s71, 1")
        a(f"buffer_load_dwordx2 v[28:29], v16, {X_}, s67 offen")
        self.rot_addr(15, 8, 64)
        a(f"s_add_u32 s77, s71, {WS_AP}")
        a(f"s_lshl_b32 s67, {sX}, 15")
        a(f"s_add_u32 s71, s71, s67")
        a(f"s_lshl_b32 s70, {sX}, 3")
        a(f"s_add_u32 s70, s70, s69")
        a(f"s_mul_i32 s70, s70, {H2R}")
        a(f"s_lshl_b32 s67, {sW}, 9")
        a(f"s_add_u32 s70, s70, s67")
        a(f"s_add_u32 s70, s70, {WS_H2}")
        a(f"s_add_u32 s76, s70, {FS}")
        a(f"s_add_u32 s71, s71, {WS_X1}")
        a(f"s_lshl_b32 s67, {sW}, 3")
        a(f"v_add_u32 v10, s67, {vZ}")
        gate = self.cfg.get("r3gate")

        def mod():
            Lok = a.newlabel("L_modok")
            a(f"s_waitcnt vmcnt({3 if gate else 7})")
            a(f"v_xor_b32 v25, {sT}, v96")
            for r in list(range(97, 108)) + list(range(116, 128)):
                a(f"v_bitop3_b32 v25, v{r}, v25, {sT} bitop3:0xde")
            a(f"v_and_b32 v25, {vFF}, v25")
            a(f"v_cmp_ne_u32 vcc, 0, v25")
            a(f"s_cbranch_vccz {Lok}")
            self.poll(ml, 25)
            a.label(Lok)
            M = list(range(96, 108))
            T = list(range(116, 128))
            for r, t in zip(M, T):
                a(f"v_add_f32 v{r}, v{r}, v{t}")
            for r, t in zip(M, T):
                a(f"v_mov_b32 v{t}, v{r}")
            for r, t in zip(M, T):
                a(f"v_permlane32_swap_b32 v{r}, v{t}")
            for r, t in zip(M, T):
                a(f"v_add_f32 v{r}, v{r}, v{t}")
            self.bf16r_pairs(M, 25)
            for i in range(4):
                a(f"v_add_f32 v{104+i}, 1.0, v{104+i}")
            self.bf16r_pairs([104, 105, 106, 107], 25)
            a(f"s_waitcnt vmcnt({0 if gate else 4})")
            self.unpack_bf16(28, 108, 2)
            self.stamp(sb + 1)
        self.stamp(sb)
        if gate:
            mod()
        rl = [(f"buffer_load_dwordx4 {v(32+4*k,4)}, v{64+k}, {WS_}, s77 offen sc1", 32 + 4 * k, 4) for k in range(4)]
        if self.cfg.get("pq", 0) & 2:
            self.poll2([[t] for t in rl], 24, vfs=(64, 69, 68), mid=mod)
        else:
            self.poll(rl, 24, vfs=(64, 69, 68), gate=(0x100000001, 66, "s77") if gate else None, gs=56 if gate else None, mid=None if gate else mod)
        fr = self.cfg.get("fr", 0)
        if fr:
            self.last_begin("R3G", 26)
            a(f"s_lshl_b32 s72, {sX}, 7")
            a(f"s_lshl2_add_u32 s72, s69, s72")
            a(f"s_add_u32 s72, s72, {WS_FR}")
        self.tb("R3")
        self.stamp(sb + 2)
        for i in range(4):
            a(f"v_add_f32 v{32+i}, v{32+i}, v{36+i}")
            a(f"v_add_f32 v{40+i}, v{40+i}, v{44+i}")
        for i in range(4):
            a(f"v_add_f32 v{32+i}, v{32+i}, v{40+i}")
        for i in range(4):
            a(f"v_mov_b32 v{36+i}, v{32+i}")
        for i in range(4):
            a(f"v_permlane32_swap_b32 v{32+i}, v{36+i}")
        for i in range(4):
            a(f"v_add_f32 v{32+i}, v{32+i}, v{36+i}")
        if fr:
            a("s_waitcnt lgkmcnt(0)")
            self.last_flag(26, 8, "s72")
        X = [32, 33, 34, 35]
        self.bf16r_pairs(X, 24)
        for i in range(4):
            a(f"v_mul_f32 v{32+i}, v{32+i}, v{96+i}")
        self.bf16r_pairs(X, 24)
        for i in range(4):
            a(f"v_add_f32 v{32+i}, v{32+i}, v{108+i}")
        self.bf16r_pairs(X, 24)
        a("v_add_f32 v16, v32, v33")
        a("v_mul_f32 v17, v32, v32")
        a("v_add_f32 v18, v34, v35")
        a("v_fmac_f32 v17, v33, v33")
        a("v_add_f32 v16, v16, v18")
        a("v_fmac_f32 v17, v34, v34")
        a("v_fmac_f32 v17, v35, v35")
        self.allred_wave([16, 17], [18, 19], n32=True)
        a(f"ds_write_b64 v10, v[16:17] offset:{L_ST+64-L_AUX}")
        self.bump(CNT["R3"])
        self.xs(3)
        for i in range(4):
            a(f"v_bfi_b32 v{36+i}, {vFF}, {sT}, v{32+i}")
        a("s_mov_b32 exec_hi, 0")
        a(f"buffer_store_dwordx4 v[36:39], v9, {WS_}, s71 offen sc1")
        a("s_mov_b32 exec_hi, -1")
        self.lds_wait(CNT["R3"], 8, [f"ds_read_b128 {v(16+4*q,4)}, {vZ} offset:{L_ST+64-L_AUX+16*q}" for q in range(4)], tmp=40)
        a("s_waitcnt lgkmcnt(2)")
        a("v_add_f32 v16, v16, v18")
        a("v_add_f32 v17, v17, v19")
        a("v_add_f32 v20, v20, v22")
        a("v_add_f32 v21, v21, v23")
        a("s_waitcnt lgkmcnt(0)")
        a("v_add_f32 v24, v24, v26")
        a("v_add_f32 v25, v25, v27")
        a("v_add_f32 v28, v28, v30")
        a("v_add_f32 v29, v29, v31")
        a("v_add_f32 v16, v16, v20")
        a("v_add_f32 v17, v17, v21")
        a("v_add_f32 v24, v24, v28")
        a("v_add_f32 v25, v25, v29")
        a("v_add_f32 v16, v16, v24")
        a("v_add_f32 v17, v17, v25")
        a("v_mul_f32 v16, 0x3a800000, v16")
        a("v_mul_f32 v17, 0x3a800000, v17")
        a("v_fma_f32 v17, -v16, v16, v17")
        a("v_max_f32 v17, 0, v17")
        self.ln_consts(16, 17, 18)
        for x in X:
            a(f"v_sub_f32 v{x}, v{x}, v16")
        self.bf16r_pairs(X, 24)
        for x in X:
            a(f"v_mul_f32 v{x}, v{x}, v17")
        self.bf16r_pairs(X, 24)
        for i in range(4):
            a(f"v_mul_f32 v{32+i}, v{32+i}, v{104+i}")
        self.bf16r_pairs(X, 24)
        for i in range(4):
            a(f"v_add_f32 v{32+i}, v{32+i}, v{100+i}")
        self.bf16r_pairs(X, 24)
        self.tag(X)
        a("s_mov_b32 exec_hi, 0")
        a(f"buffer_store_dwordx4 v[32:35], v9, {WS_}, s76 offen")
        a(f"buffer_store_dwordx4 v[32:35], v9, {WS_}, s70 offen sc1")
        self.bump(CNT["R3P"])
        self.te("R3")
        self.stamp(sb + 3)

    def p4(self):
        a = self.a
        sb = SLOT["P4"]
        self.stamp(sb)
        self.p4_cg("s72")
        a(f"s_and_b32 s71, s68, 1")
        a(f"s_mul_i32 s89, {sX}, 9")
        a(f"s_add_u32 s89, s89, s72")
        a(f"s_lshl1_add_u32 s89, s89, s71")
        a(f"s_lshl_b32 s89, s89, 2")
        a(f"s_add_u32 s89, s89, {WS_FG}")
        a(f"s_mul_i32 s70, s71, {56*2048}")
        a(f"s_lshl_b32 s67, s72, 11")
        a(f"s_add_u32 s70, s70, s67")
        a(f"s_lshl_b32 s67, {sW}, 8")
        a(f"s_add_u32 s70, s70, s67")
        a(f"s_add_u32 s70, s70, {WS_GU}")
        a(f"s_add_u32 s69, s70, {FS}")
        if self.cfg.get("pd", 0) & 2:
            a(f"v_not_b32 v16, {sT}")
            a(f"buffer_store_dword v16, {vL4}, {WS_}, s69 offen")
        a(f"v_lshrrev_b32 v8, 5, {vLANE}")
        a(f"v_mul_u32_u24 v9, {H2R}, v8")
        a(f"v_lshl_add_u32 v9, {vI}, 4, v9")
        a(f"v_bfe_u32 v10, {vLANE}, 4, 1")
        a(f"v_lshl_add_u32 v9, v10, 11, v9")
        a(f"v_mul_u32_u24 v26, {H2R}, {vLANE}")
        a(f"s_and_b32 s67, s68, 1")
        a(f"s_lshl_b32 s67, s67, 11")
        a(f"v_add_u32 v26, s67, v26")
        self.slot_of(4, "s78", "s79")
        self.red_addr(4, "frag")
        a(f"s_add_u32 s67, s78, 4096")
        a(f"v_mul_u32_u24 v29, 272, v8")
        a(f"v_bfe_u32 v30, v0, 3, 2")
        a(f"v_lshl_add_u32 v29, v30, 6, v29")
        a(f"v_and_b32 v30, 3, v0")
        a(f"v_lshl_add_u32 v29, v30, 4, v29")
        a(f"v_bfe_u32 v30, v0, 2, 1")
        a(f"v_lshl_add_u32 v29, v30, 3, v29")
        a(f"v_add_u32 v29, s67, v29")
        a(f"v_mul_u32_u24 v30, 272, {vB}")
        a(f"v_lshl_add_u32 v30, {vHI}, 6, v30")
        a(f"v_lshl_add_u32 v30, {vG}, 4, v30")
        a(f"v_add_u32 v30, s67, v30")
        self.touch("P4")
        self.pull(20, A[0])
        self.pull(28, A[1])
        a(f"s_mul_i32 s72, {sX}, {8*H2R}")
        a(f"s_lshl_b32 s67, {sW}, 8")
        a(f"s_add_u32 s72, s72, s67")
        a(f"s_add_u32 s72, s72, {WS_H2}")
        for i in range(1, 4):
            a(f"s_add_u32 s{72+i}, s72, {2*H2R*i}")
        self.stamp(sb + 1)
        pl = []
        for i in range(4):
            r = 32 + 4 * i
            pl.append((f"buffer_load_dwordx4 {v(r,4)}, v9, {WS_}, s{76+i} offen sc1", r, 4))
        fs4 = [(f"s{76+i}", f"s{72+i}") for i in range(4)]
        if self.cfg.get("fr", 0):
            a(f"s_lshl_b32 s66, {sX}, 7")
            a(f"s_add_u32 s66, s66, {WS_FR}")
            self.gate(self.cfg.get("frm", 0xff), (f"buffer_load_dword v25, {vL4}, {WS_}, s76 offen sc1", 25, 1), 24, fs=[("s76", "s66")], gs=44)
            self.poll2([[t] for t in pl], 24, fs=fs4, gs=44)
        elif self.cfg.get("pq", 0) & 4:
            self.gate(self.cfg["p4gate"], (f"buffer_load_dword v25, v26, {WS_}, s76 offen sc1", 25, 1), 24, fs=fs4, gs=44)
            self.poll2([[t] for t in pl], 24, fs=fs4, gs=44, keep=True)
        else:
            self.poll(pl, 24, gate=(self.cfg["p4gate"], 26, "s76"), fs=fs4, gs=44)
        fg = self.cfg.get("fg", 0)
        if fg:
            self.last_begin("QG", 26)
        self.tb("P4")
        self.stamp(sb + 2)
        for p in range(8):
            a(f"v_perm_b32 v{16+p}, v{33+2*p}, v{32+2*p}, {sSEL1}")
        for i in range(4):
            a(f"ds_write_b64 v29, {v(16+2*i,2)} offset:{544*i}")
        for u in range(2):
            a(f"ds_read_b128 {v(BB+8*u,4)}, v30 offset:{128*u}")
        if fg:
            a("s_waitcnt lgkmcnt(6)")
            self.last_flag(26, 8, "s89")
        a("s_waitcnt lgkmcnt(0)")
        self.xs(4)

        def epi():
            self.bf16r1(16)
            Lu = a.newlabel("L_p4up")
            a("s_cmp_lg_u32 s71, 0")
            a(f"s_cbranch_scc1 {Lu}")
            a(f"v_mul_f32 v17, 0x{LOG2E ^ 0x80000000:x}, v16")
            a(f"v_exp_f32 v17, v17")
            a(f"v_add_f32 v17, 1.0, v17")
            a(f"v_rcp_f32 v17, v17")
            a(f"v_mul_f32 v16, v16, v17")
            self.bf16r1(16)
            a.label(Lu)
            self.publish1(vL4, "s70", fast="s69")
        self.tail([A[0], A[1]], 8, "P4", epi)
        self.te("P4")
        self.stamp(sb + 3)

    def p5(self, ubase, tb):
        a = self.a
        sb = SLOT["P5"]
        self.stamp(sb)
        a(f"s_lshl_b32 s70, {sX}, 15")
        a(f"s_lshl_b32 s67, s68, 8")
        a(f"s_add_u32 s70, s70, s67")
        a(f"s_lshl_b32 s67, {sW}, 12")
        a(f"s_add_u32 s70, s70, s67")
        a(f"s_add_u32 s70, s70, {WS_DP}")
        a(f"s_add_u32 s69, s70, {FS}")
        if self.cfg.get("pd", 0) & 8:
            a(f"v_not_b32 v16, {sT}")
            a(f"buffer_store_dword v16, {vL4}, {WS_}, s69 offen")
        a(f"v_lshlrev_b32 v8, 4, {vLANE}")
        a(f"s_mul_i32 s73, {sX}, {7*2048}")
        a(f"s_lshl_b32 s67, {sW}, 11")
        a(f"s_add_u32 s73, s73, s67")
        a(f"s_add_u32 s73, s73, {WS_GU}")
        a(f"s_add_u32 s74, s73, {56*2048}")
        a(f"v_mul_u32_u24 v26, {56*2048}, {vLANE}")
        a(f"s_lshl_b32 s67, s68, 7")
        a(f"v_add_u32 v26, s67, v26")
        self.slot_of(ubase, "s78", "s79")
        self.red_addr(ubase, "row")
        Lsk = a.newlabel("L_p5skip")
        a(f"s_cmp_ge_u32 {sW}, 7")
        a(f"s_cbranch_scc1 {Lsk}")
        self.pull(ubase, tb)
        self.stamp(sb + 1)
        pl = []
        for m, so in enumerate(("s75", "s76")):
            for q in range(2):
                r = 32 + 8 * m + 4 * q
                pl.append((f"buffer_load_dwordx4 {v(r,4)}, v8, {WS_}, {so} offen offset:{1024*q} sc1", r, 4))
        fs5 = [("s75", "s73"), ("s76", "s74")]
        if self.cfg.get("fg", 0):
            a(f"s_lshl_b32 s66, {sX}, 7")
            a(f"s_lshl3_add_u32 s66, {sW}, s66")
            a(f"s_add_u32 s66, s66, {WS_FG}")
            self.gate(3, (f"buffer_load_dword v25, {vL4}, {WS_}, s76 offen sc1", 25, 1), 24, fs=[("s76", "s66")], gs=46)
            self.poll2([pl[:2], pl[2:]], 24, fs=fs5, gs=46)
        else:
            self.poll(pl, 24, gate=(0x3, 26, "s75"), fs=fs5, gs=46)
        self.tb("P5")
        self.stamp(sb + 2)
        for e in range(16):
            a(f"v_and_b32 v{32+e}, 0xffff0000, v{32+e}")
        for e in range(8):
            a(f"v_mul_f32 v{32+e}, v{32+e}, v{40+e}")
        for p in range(4):
            a(f"v_cvt_pk_bf16_f32 v{BB+p}, v{32+2*p}, v{33+2*p}")
        a.label(Lsk)
        self.tail([tb], 7, "P5", lambda: self.publish1(vL4, "s70", fast="s69"))
        self.te("P5")
        self.stamp(sb + 3)

    def gb_r5(self):
        a = self.a
        sb = SLOT["GB"]
        self.stamp(sb)
        self.koff(8)
        a(f"s_lshl_b32 s67, {sW}, 7")
        self.load_bfrag(24, C_, "s67")
        self.load_bfrag(28, C_, "s67", 1024)
        a("s_waitcnt vmcnt(0)")
        self.silu_c(24, BB)
        self.silu_c(28, BB + 8)
        self.slot_of(4, "s78", "s79")
        self.red_addr(4, "row")
        self.touch("R5")
        self.pull(20, A[0])
        self.pull(28, A[1])
        self.stamp(sb + 1)

        def epi():
            self.bf16r1(16)
            a("v_mov_b32 v31, v16")
        self.tail([A[0], A[1]], 8, "GB", epi, slow=self.cfg["slow"])
        self.stamp(sb + 3)
        sb = SLOT["R5"]
        self.stamp(sb)
        a(f"s_lshl_b32 s69, s68, 8")
        a(f"s_lshl_b32 s67, {sW}, 12")
        a(f"s_add_u32 s69, s69, s67")
        a(f"s_add_u32 s67, {sX}, 1")
        a(f"s_and_b32 s67, s67, 7")
        a(f"s_lshl_b32 s67, s67, 15")
        a(f"s_add_u32 s70, s69, s67")
        a(f"s_add_u32 s70, s70, {WS_X1}")
        self.poll([(f"buffer_load_dword v30, {vL4}, {WS_}, s70 offen sc1", 30, 1)], 24)
        a("v_and_b32 v30, 0xffff0000, v30")
        a(f"s_add_u32 s70, s69, {WS_DP}")
        for k in range(8):
            a(f"s_add_u32 s67, {sX}, {k}")
            a(f"s_and_b32 s67, s67, 7")
            a(f"s_lshl_b32 s67, s67, 15")
            a(f"s_add_u32 s{72+k if k else 71}, s70, s67")
        a(f"v_lshlrev_b32 v10, 1, {vLANE}")
        a(f"s_lshr_b32 s69, s69, 1")
        self.stamp(sb + 1)
        self.poll([(f"buffer_load_dword v{32+k}, {vL4}, {WS_}, s{72+k} offen sc1", 32 + k, 1) for k in range(8)], 24,
                  fs=[("s72", "s71")], gate=(1, 13, "s76") if self.cfg.get("r5gate") else None, gfs=False)
        self.tb("R5")
        self.stamp(sb + 2)
        for k in range(4):
            a(f"v_add_f32 v{32+k}, v{32+k}, v{36+k}")
        a("v_add_f32 v32, v32, v33")
        a("v_add_f32 v34, v34, v35")
        a("v_add_f32 v32, v32, v34")
        self.bf16r1(32)
        a("v_mul_f32 v32, v32, v31")
        self.bf16r1(32)
        a("v_add_f32 v32, v32, v30")
        a("v_cvt_pk_bf16_f32 v32, v32, v32")
        a(f"buffer_store_short v32, v10, {OUT_}, s69 offen")
        Lnb = a.newlabel("L_nobump")
        a(f"s_or_b32 s67, s68, {sW}")
        a("s_cmp_lg_u32 s67, 0")
        a(f"s_cbranch_scc1 {Lnb}")
        a(f"s_add_u32 s67, {sEP}, 1")
        a("v_mov_b32 v33, s67")
        a("v_mov_b32 v34, 0")
        a("s_mov_b64 exec, 1")
        a(f"buffer_store_dword v33, v34, {WS_}, 0 offen")
        a("s_mov_b64 exec, -1")
        a.label(Lnb)
        self.te("R5")
        self.stamp(sb + 3)

    def l_signal(self, lag):
        a = self.a
        a(f"s_sub_u32 s67, s72, {lag}")
        a("v_mov_b32 v20, s67")
        a(f"ds_max_i32 v19, v20 offset:{4*C_LANDED}")
        if self.stamps and self.cfg.get("ls"):
            S = a.newlabel("L_ls")
            a("s_cmp_le_i32 s67, s93")
            a(f"s_cbranch_scc1 {S}")
            self.l_flush()
            a("s_mov_b32 s93, s67")
            a("s_memrealtime s[98:99]")
            a.label(S)

    def l_flush(self):
        a = self.a
        if self.stamps and self.cfg.get("ls"):
            a("s_mov_b32 s92, m0")
            a("s_mov_b32 m0, s93")
            a("s_waitcnt lgkmcnt(1)")
            a("v_writelane_b32 v41, s98, m0")
            a("s_mov_b32 m0, s92")

    def l_drain(self):
        a = self.a
        for t in reversed(range((self.lD + 7) // 8)):
            a(f"s_waitcnt vmcnt({8*t})")
            if self.stamps and self.cfg.get("ls"):
                a("s_waitcnt lgkmcnt(0)")
            self.l_signal(t)
        self.lD = 0

    def l_wait(self, cnt, need, drain=1):
        if drain:
            self.l_drain()
        self.lds_wait(CNT[cnt], need)

    def l_seg(self, srd, n, D, step, barrier=False, until=None):
        a = self.a
        credit = self.lU + n > NS
        wrap = self.lU + n >= NS
        if n > 1:
            a(f"s_mov_b32 s75, {-n}")
        if credit:
            a("s_lshr_b32 s67, s73, 11")
            a(f"v_add_u32 v22, s67, {vZ}")
            a(f"ds_read_b32 v21, v22 offset:{4*C_FREE}")
        if until:
            a(f"ds_read_b32 v23, {vZ} offset:{4*CNT[until[0]]}")
        E = a.newlabel("L_sege")
        L2 = a.newlabel("L_seg2")
        for ph, D in enumerate([D] + ([until[2]] if until else [])):
            assert D % 4 == 0 and D >= 4
            L = a.newlabel("L_seg") if ph == 0 else L2
            hs, lag = (1, D // 8 - 1) if D % 8 == 0 else (0, (D - 4) // 8)
            a.label(L)
            if credit or (until and ph == 0):
                a("s_waitcnt lgkmcnt(0)")
            if until and ph == 0:
                a(f"v_cmp_le_i32 vcc, {until[1]}, v23")
                a(f"s_cbranch_vccnz {L2}")
            if credit:
                Lok = a.newlabel("L_cok")
                Lsp = a.newlabel("L_csp")
                a("v_cmp_le_i32 vcc, s74, v21")
                a(f"s_cbranch_vccnz {Lok}")
                a(f"ds_read_b32 v21, v22 offset:{4*C_FREE}")
                a("s_waitcnt lgkmcnt(0)")
                a("v_cmp_le_i32 vcc, s74, v21")
                a(f"s_cbranch_vccnz {Lok}")
                a("s_waitcnt vmcnt(0)")
                self.l_signal(0)
                a(f"s_mov_b32 {sPOLL}, {self.poll_limit*8}")
                a.label(Lsp)
                a(f"ds_read_b32 v21, v22 offset:{4*C_FREE}")
                a("s_waitcnt lgkmcnt(0)")
                a("v_cmp_le_i32 vcc, s74, v21")
                a(f"s_sub_u32 {sPOLL}, {sPOLL}, 1")
                a(f"s_cbranch_vccnz {Lok}")
                a(f"s_cmp_lg_u32 {sPOLL}, 0")
                a(f"s_cbranch_scc1 {Lsp}")
                a.label(Lok)
            for h in range(2):
                a("s_add_u32 m0, s73, 4096" if h else "s_mov_b32 m0, s73")
                if not barrier:
                    a(f"s_waitcnt vmcnt({D-4})")
                    if h == hs:
                        self.l_signal(lag)
                for j in range(4):
                    a(f"buffer_load_dwordx4 v{24+4*h+j}, {srd}, s66 offen offset:{1024*j} nt lds")
                    if h == 1 and j == 0:
                        a(f"s_add_u32 s73, s73, {SLOTB}")
                        if wrap:
                            a(f"s_cmp_ge_u32 s73, {NS*SLOTB}")
                            a("s_cselect_b32 s73, 0, s73")
                            a("s_cselect_b32 s67, 8, 0")
                            a("s_add_u32 s74, s74, s67")
                    if h == 1 and j == 1 and n > 1:
                        if credit:
                            a("s_lshr_b32 s67, s73, 11")
                            a(f"v_add_u32 v22, s67, {vZ}")
                            a(f"ds_read_b32 v21, v22 offset:{4*C_FREE}")
                        if until and ph == 0:
                            a(f"ds_read_b32 v23, {vZ} offset:{4*CNT[until[0]]}")
                    if h == 1 and j == 2:
                        a("s_add_u32 s72, s72, 1")
            if step < 0:
                a(f"s_add_u32 s67, s66, {-step}")
                a(f"s_and_b32 s67, s67, {-step * 7}")
                a(f"s_andn2_b32 s66, s66, {-step * 7}")
                a(f"s_or_b32 s66, s66, s67")
            else:
                a(f"s_add_u32 s66, s66, {step}")
            if n > 1:
                a("s_add_u32 s75, s75, 1")
                a(f"s_cbranch_scc0 {L}")
            if until and ph == 0:
                a(f"s_branch {E}")
                D1 = D
        if until:
            a.label(E)
            D = max(D, D1)
        self.lU += n
        self.lD = D if not barrier else 8 * n

    def l_tile(self, srd, segs, kind, RS=0, first=False, stamp=None, setup=True):
        a = self.a
        if stamp is not None:
            self.stamp(stamp)
        if kind in ("w", "wq", "wo"):
            js = (128 if kind == "wo" else 8) * RS
            step = {"w": 64 * RS, "wq": 128, "wo": 8 * RS}[kind]
            if setup:
                a(f"v_mul_u32_u24 v24, {RS}, v8")
                a(f"v_add_u32 v24, v24, v9")
                for j in range(1, 8):
                    a(f"v_add_u32 v{24+j}, {js*j - 1024*(j%4)}, v24")
        else:
            ns = self.cfg.get("ns", 1)
            step = 8192 // ns
            kvp = self.cfg.get("kvp")
            if kvp:
                ns, step = 8, kvp[3] * 1024
            if kind == "k":
                a(f"v_xor_b32 v16, {vI}, {vG}")
            else:
                a(f"v_lshlrev_b32 v16, 1, {vG}")
                a(f"v_xor_b32 v16, {vI}, v16")
            a(f"v_lshlrev_b32 v16, 4, v16")
            if ns == 16:
                a(f"v_and_b32 v17, 1, {vG}")
                a(f"v_lshl_add_u32 v16, v17, 8, v16")
                a(f"v_lshrrev_b32 v17, 1, {vG}")
                a(f"v_lshl_add_u32 v24, v17, 14, v16")
            else:
                a(f"v_lshl_add_u32 v24, {vG}, {13 if ns == 32 else 8}, v16")
            for j in range(1, 8):
                if ns == 1:
                    a(f"v_xor_b32 v{24+j}, {(64*(j%4) if kind == 'k' else 128*(j%2)) + 4096*(j//4)}, v24")
                else:
                    a(f"v_xor_b32 v{24+j}, {(64*(j%4) if kind == 'k' else 128*(j%2))}, v24")
                    if kvp:
                        a(f"v_add_u32 v{24+j}, {j * kvp[0] * 1024 - (j % 4) * 1024}, v{24+j}")
                    elif ns <= 8:
                        a(f"v_add_u32 v{24+j}, {(j % ns) * (262144 // ns) + (j // ns) * 1024 - (j % 4) * 1024}, v{24+j}")
                    else:
                        a(f"v_add_u32 v{24+j}, {j * 32768 - (j % 4) * 1024}, v{24+j}")
            if self.cfg.get("rot"):
                step = -step
        for sg in segs:
            if isinstance(sg[0], str):
                self.l_wait(*sg)
                continue
            n, D = sg[:2]
            if first:
                n0 = min(n, max(1, D // 8))
                self.l_seg(srd, n0, D, step, barrier=True)
                a("s_barrier")
                n -= n0
                first = False
            if n:
                self.l_seg(srd, n, D, step, until=sg[2:] or None)

    def l_wb(self, key):
        if self.cfg.get(key) is not None:
            a = self.a
            a(f"s_cmp_lg_u32 {sL}, {self.cfg[key]}")
            a("s_cbranch_scc1 L_done")
            a.raw("    buffer_wbl2 sc1")
            a("s_waitcnt vmcnt(0)")

    def l_pf(self, prog, two=False):
        a = self.a
        st = self.cfg.get("pfs", 128)
        mod = self.cfg.get("pfm", "")
        a(f"s_and_b32 s69, {sX}, 1")
        a(f"s_lshl_b32 s69, s69, 2")
        a(f"s_bfe_u32 s67, {sL}, {0x20001 if two else 0x20002}")
        a(f"s_add_u32 s69, s69, s67")
        a(f"s_lshl_b32 s69, s69, 2")
        a(f"s_add_u32 s69, s69, {sHKV}")
        a(f"s_lshl_b32 s69, s69, 20")
        a(f"s_and_b32 s67, {sL}, {1 if two else 3}")
        a(f"s_lshl_b32 s67, s67, {17 if two else 16}")
        a(f"s_add_u32 s69, s69, s67")
        a(f"s_add_u32 s69, s69, {3072*256}")
        a(f"v_mul_u32_u24 v23, {st}, {vLANE}")
        k = 0
        for it in prog:
            if isinstance(it[0], str):
                self.lds_wait(CNT[it[0]], it[1])
                continue
            u0, n, D = it
            for u, o in [(u, o) for u in range(u0, u0 + n) for o in ((0, 65536) if two else (0,))]:
                for h in range(128 // st):
                    a(f"s_add_u32 s68, s69, {(u % 8) * 8192 + h * 64 * st + o}")
                    if k >= D:
                        a(f"s_waitcnt vmcnt({D-1})")
                    if st == 16:
                        a(f"buffer_load_dwordx4 {v(44 + 4 * (k % 8), 4)}, v23, {K_ if u < 8 else V_}, s68 offen {mod}")
                    else:
                        a(f"buffer_load_dword v{32 + k % 8}, v23, {K_ if u < 8 else V_}, s68 offen {mod}")
                    k += 1

    def loader(self):
        a = self.a
        cfg = self.cfg
        a("s_setprio 3")
        a("s_mov_b32 s93, 0")
        if cfg.get("pre") == 1:
            a("s_getpc_b64 s[66:67]")
            a.label("L_pc")
            a(f"s_lshl_b32 s68, {sL}, 10")
            a(f"v_lshl_add_u32 v8, {vLANE}, 7, s68")
            a("v_min_u32 v8, L_exit-L_pc, v8")
            a("s_mov_b64 exec, 0xff")
            a("global_load_dword v40, v8, s[66:67]")
            a("s_mov_b64 exec, -1")
        a(f"v_lshrrev_b32 v8, 3, {vLANE}")
        a(f"v_lshlrev_b32 v9, 1, {vG}")
        a(f"v_xor_b32 v9, v9, {vB}")
        a("v_lshlrev_b32 v9, 4, v9")
        if cfg.get("pb"):
            a(f"v_lshlrev_b32 v19, 2, {vLANE}")
            a(f"v_add_u32 v19, {LDS_BYTES-256}, v19")
            a("s_mov_b32 s63, 0x20000")
            a(f"v_writelane_b32 v19, s63, 0")
            a("s_mov_b32 s74, 0")
            a(f"s_cmp_lt_u32 {sL}, 16")
            a("s_cbranch_scc1 L_lrest")
            a(f"s_and_b32 s67, {sL}, 3")
            a(f"s_mul_i32 s66, s67, {256*12288}")
            a(f"s_bfe_u32 s67, {sL}, 0x10003")
            a(f"s_lshl_b32 s67, s67, 11")
            a(f"s_add_u32 s66, s66, s67")
            a(f"s_lshl_b32 s67, {sX}, 8")
            a(f"s_add_u32 s66, s66, s67")
            a(f"s_bfe_u32 s67, {sL}, 0x10002")
            a(f"s_lshl_b32 s67, s67, 7")
            a(f"s_add_u32 s66, s66, s67")
            a("s_mov_b32 s72, -4")
            a(f"s_mov_b32 s73, {12*SLOTB}")
            self.lU, self.lD = 0, 0
            a("s_waitcnt lgkmcnt(0)")
            self.l_tile(WM_, [(4, 32)], "w", 12288, first=True, stamp=48)
            a("s_mov_b32 s73, 0")
            self.lU = 0
            a(f"s_lshl_b32 s66, {sX}, 11")
            a(f"s_add_u32 s66, s66, {sL}")
            a(f"s_sub_u32 s66, s66, 16")
            a(f"s_lshl_b32 s66, s66, 9")
            self.l_tile(WQ_, cfg["P1a"], "wq", 8192)
            a(f"s_add_u32 s66, s66, {64*8192-512}")
            self.l_tile(WQ_, cfg["P1b"], "wq", 8192, setup=False)
            self.lDB = self.lD
            a("s_branch L_LB")
            return
        a(f"s_and_b32 s67, {sL}, 3")
        a(f"s_mul_i32 s66, s67, {256*12288}")
        a(f"s_lshr_b32 s67, {sL}, 3")
        a(f"s_lshl_b32 s67, s67, 11")
        a(f"s_add_u32 s66, s66, s67")
        a(f"s_lshl_b32 s67, {sX}, 8")
        a(f"s_add_u32 s66, s66, s67")
        a(f"s_bfe_u32 s67, {sL}, 0x10002")
        a(f"s_lshl_b32 s67, s67, 7")
        a(f"s_add_u32 s66, s66, s67")
        a(f"s_lshl_b32 s70, {sX}, 11")
        a(f"s_add_u32 s70, s70, {sL}")
        a(f"s_sub_u32 s70, s70, 16")
        a(f"s_lshl_b32 s70, s70, 9")
        a(f"s_cmp_ge_u32 {sL}, 16")
        a("s_cselect_b32 s66, s70, s66")
        a("s_cselect_b32 s70, 8192, 12288" if False else "s_cselect_b32 s70, 2, 3")
        a(f"s_cselect_b32 s71, 128, {64*12288}" if False else "s_cselect_b32 s71, 1, 6144")
        a("s_cselect_b32 s77, -2, -1")
        a("s_cselect_b32 s62, s22, s46")
        a("s_mov_b32 s63, 0x20000")
        a("s_lshl_b32 s71, s71, 7")
        a("s_lshl_b32 s70, s70, 12")
        a("v_mad_u32_u24 v24, v8, s70, v9")
        a("s_lshl_b32 s67, s70, 5")
        a("v_add_u32 v28, s67, v24")
        a("s_lshl_b32 s67, s70, 3")
        a("s_sub_u32 s67, s67, 1024")
        for j in (1, 2, 3, 5, 6, 7):
            a(f"v_add_u32 v{24+j}, s67, v{23+j}")
        a("s_mov_b32 s73, 0")
        a("s_mov_b32 s75, -4")
        a(f"s_cmp_ge_u32 {sL}, 16")
        if cfg.get("p0x"):
            a(f"s_cselect_b32 s73, 0, {12*SLOTB}")
        a("s_waitcnt lgkmcnt(0)")
        a("s_cselect_b32 s60, s20, s44")
        a("s_cselect_b32 s61, s21, s45")
        self.stamp(48)
        if cfg.get("p0x"):
            a("s_and_b32 s67, s2, 0x84")
            a("s_cmp_eq_u32 s67, 4")
            a("s_cbranch_scc1 L_l1")
        a.label("L_l0")
        for h in range(2):
            a("s_add_u32 m0, s73, 4096" if h else "s_mov_b32 m0, s73")
            a(f"s_waitcnt vmcnt({cfg.get('D0', 56)-4})")
            for j in range(4):
                a(f"buffer_load_dwordx4 v{24+4*h+j}, {W_}, s66 offen offset:{1024*j} nt lds")
        a(f"s_add_u32 s73, s73, {SLOTB}")
        a("s_add_u32 s66, s66, s71")
        a("s_add_u32 s75, s75, 1")
        a("s_cbranch_scc0 L_l0")
        a(f"s_add_u32 s66, s66, {64*8192-512}")
        a("s_mov_b32 s75, -4")
        a("s_add_u32 s77, s77, 1")
        a("s_cbranch_scc0 L_l0")
        a.label("L_l1")
        a(f"v_lshlrev_b32 v19, 2, {vLANE}")
        a(f"v_add_u32 v19, {LDS_BYTES-256}, v19")
        a(f"v_writelane_b32 v19, s63, 0")
        a("s_lshr_b32 s72, s73, 13")
        a("s_mov_b32 s74, 0")
        a(f"s_cmp_ge_u32 {sL}, 16")
        a("s_cbranch_scc1 L_LB")
        a("s_barrier")
        a("s_branch L_lrest")

    def loader_rest(self):
        a = self.a
        cfg = self.cfg
        a.label("L_lrest")

        def wait(key):
            if cfg.get(key):
                self.l_wait(*cfg[key])
        self.lU, self.lD = 4, 32
        a(f"s_and_b32 s69, {sX}, 1")
        a(f"s_lshl_b32 s69, s69, 2")
        a(f"s_lshr_b32 s67, {sL}, 2")
        a(f"s_add_u32 s69, s69, s67")
        a(f"s_lshl_b32 s69, s69, 2")
        a(f"s_add_u32 s69, s69, {sHKV}")
        a(f"s_lshl_b32 s69, s69, 20")
        kvp = cfg.get("kvp")
        if kvp:
            a(f"s_and_b32 s67, {sL}, 1")
            a(f"s_mul_i32 s67, s67, {kvp[1] * 1024}")
            a(f"s_add_u32 s69, s69, s67")
            a(f"s_bfe_u32 s67, {sL}, 0x10001")
            a(f"s_mul_i32 s67, s67, {kvp[2] * 1024}")
        else:
            a(f"s_and_b32 s67, {sL}, 3")
            a(f"s_mul_i32 s67, s67, {65536 // cfg.get('ns', 1)}")
        a(f"s_add_u32 s69, s69, s67")
        a(f"s_add_u32 s69, s69, {3072*256}")
        if cfg.get("rot"):
            if cfg["rot"] == 1:
                a(f"s_lshr_b32 s67, {sL}, 1")
                a(f"s_add_u32 s67, s67, {sX}")
            elif cfg["rot"] == 2:
                a(f"s_lshl_b32 s67, {sL}, 1")
            else:
                a(f"s_mov_b32 s67, {sX}")
            a(f"s_and_b32 s67, s67, 7")
            a(f"s_mul_i32 s67, s67, {kvp[3] * 1024 if kvp else 8192 // cfg.get('ns', 1)}")
            a(f"s_add_u32 s69, s69, s67")
        if cfg.get("pb"):
            a("s_mov_b32 s72, 4")
            a(f"s_mov_b32 s73, {4*SLOTB}")
            a("s_mov_b32 s66, s69")
            a("s_waitcnt lgkmcnt(0)")
            self.stamp(48)
            self.l_tile(K_, cfg["K"], "k", first=True)
        else:
            if cfg.get("p0x"):
                a("s_mov_b32 s72, 4")
                a(f"s_mov_b32 s73, {4*SLOTB}")
                a(f"s_cmp_ge_u32 {sX}, 4")
                a("s_cbranch_scc1 L_lk")
                a("s_mov_b32 s72, 0")
                a("s_mov_b32 s73, 0")
                a(f"s_sub_u32 s66, s66, {64*8192-512+256*12288-1024}")
                self.lU = 0
                self.l_tile(W_, cfg["P0B"], "w", 12288, setup=False)
            wait("wK")
            a.label("L_lk")
            a("s_mov_b32 s66, s69")
            self.l_tile(K_, cfg["K"], "k", stamp=49)
            if cfg.get("p0x") and cfg["wK"][1] < 8:
                a(f"s_cmp_ge_u32 {sX}, 4")
                a("s_cbranch_scc1 L_lv")
                self.l_wait("P0P", 8, 0)
                a.label("L_lv")
        a("s_mov_b32 s66, s69")
        self.l_tile(V_, cfg["V"], "v", stamp=50)
        if cfg.get("wP4s"):
            self.l_drain()
            a(f"s_cmp_lt_u32 {sL}, 12")
            a(f"s_cbranch_scc1 L_lw4")
            a(f"s_cmp_lt_u32 {sL}, 14")
            a(f"s_cbranch_scc1 L_lw3")
            a(f"s_and_b32 s67, s2, 0x7b")
            a(f"s_cmp_lg_u32 s67, {0x79 if cfg.get('gbs', 1) else 0}")
            a(f"s_cbranch_scc1 L_lw4")
            a.label("L_lw3")
            wait("wP4s")
            a("s_branch L_lw5")
            a.label("L_lw4")
        wait("wP4")
        a.label("L_lw5")
        st = (self.lU, self.lD)
        a(f"s_cmp_ge_u32 {sL}, 14")
        a(f"s_cbranch_scc1 L_lgb")
        self.p4_cg("s66")
        a(f"s_lshl_b32 s66, s66, 7")
        a(f"s_and_b32 s67, {sL}, 1")
        a("s_cselect_b32 s60, s32, s28")
        a("s_cselect_b32 s61, s33, s29")
        a("s_mov_b32 s62, 7340032")
        a("s_mov_b32 s63, 0x20000")
        self.l_tile(W_, cfg["P4"], "w", 7168, stamp=51)
        self.l_drain()
        self.l_wb("wbP4")
        a("s_branch L_done")
        a.label("L_lgb")
        self.lU, self.lD = st
        a(f"s_lshl_b32 s66, {sX}, 1")
        a(f"s_add_u32 s66, s66, {sL}")
        a(f"s_lshl_b32 s66, s66, 7")
        a(f"s_add_u32 s66, s66, {5120*2-14*128}")
        self.l_tile(WM_, cfg["GB"], "w", 12288, stamp=51)
        self.l_drain()
        a("s_branch L_done")
        a.label("L_LB")
        self.lU, self.lD = 8, cfg.get("D0", 56)
        if cfg.get("pb"):
            self.lD = self.lDB
        else:
            a("s_barrier")
        self.l_drain()
        if cfg.get("pf"):
            self.l_pf(cfg["pf"])
        self.rm_task("s70", "s71")
        a(f"s_mul_i32 s66, s70, 12288")
        a(f"s_lshl_b32 s71, s71, 7")
        a(f"s_add_u32 s66, s66, s71")
        a(f"s_add_u32 s66, s66, 4096")

        def wotile(key):
            a(f"s_lshr_b32 s66, {sX}, 1")
            a(f"s_lshl_b32 s66, s66, 21")
            a(f"s_and_b32 s67, {sX}, 1")
            a(f"s_lshl_b32 s67, s67, 17")
            a(f"s_add_u32 s66, s66, s67")
            self.swap_j("s69", 3, 9)
            a(f"s_lshl_b32 s69, s69, 7")
            a(f"s_add_u32 s66, s66, s69")
            self.l_tile(WO_, cfg[key], "wo", 2048, stamp=50)

        def wdtile(key):
            a(f"s_mul_i32 s66, {sX}, {448*2048}")
            self.swap_j("s69", 5, 11)
            a(f"s_lshl_b32 s69, s69, 7")
            a(f"s_add_u32 s66, s66, s69")
            self.l_tile(WD_, cfg[key], "w", 2048, stamp=51)
            self.l_drain()
            self.l_wb("wb" + key)
            a("s_branch L_done")
        st = (self.lU, self.lD)
        a(f"s_cmp_ge_u32 {sL}, 24")
        a(f"s_cbranch_scc1 L_lr3")
        wait("wB")
        self.l_tile(WM_, cfg["RM"], "w", 12288, stamp=53)
        wotile("P3")
        wait("wP5")
        wdtile("P5")
        a.label("L_lr3")
        self.lU, self.lD = st
        self.l_drain()
        a("v_mov_b32 v20, 8")
        a(f"v_lshl_add_u32 v22, {vLANE}, 2, {vZ}")
        a("s_mov_b64 exec, 15")
        a(f"ds_add_u32 v22, v20 offset:{4*(C_FREE+8)}")
        a("s_mov_b64 exec, -1")
        a("s_mov_b32 s72, 12")
        a(f"s_mov_b32 s73, {12*SLOTB}")
        self.lU = 12
        wait("wB")
        if cfg.get("pf2"):
            self.l_pf(cfg["pf2"], two=True)
        self.l_tile(WM_, cfg["RMr"], "w", 12288, stamp=53)
        wotile("P3r")
        wait("wP5r")
        wdtile("P5r")

    def build(self):
        a = self.a
        cfg = self.cfg
        hdr = open(os.path.join(os.path.dirname(os.path.abspath(__file__)), "..", "cdna_kernels", NAME + ".s.ref")).read()
        for line in hdr.split("\n"):
            if line.startswith("; @launch"):
                break
            a.raw(line)
        a.raw(f"; @launch grid=(256,1,1) block=(576,1,1) lds={LDS_BYTES}")
        a.raw('.amdgcn_target "amdgcn-amd-amdhsa--gfx950"')
        a.raw(".text")
        a.raw(f".globl {NAME}_kernel")
        a.raw(".p2align 8")
        a.raw(f".type {NAME}_kernel,@function")
        a.raw(f"{NAME}_kernel:")
        a("s_cmp_ge_u32 s2, 256")
        a("s_cbranch_scc1 L_exit")
        if cfg.get("pre") == 2:
            nb = cfg.get("prb", 2)
            a("s_getpc_b64 s[66:67]")
            a.label("L_pc")
            a(f"s_bfe_u32 s68, s2, 0x{nb}0003")
            a("s_lshl_b32 s68, s68, 7")
            a(f"v_subrev_u32 v8, {64 * cfg.get('prw', 0)}, v0")
            a(f"v_cmp_gt_u32 vcc, {256 >> nb}, v8")
            a("s_cbranch_vccz L_npre")
            a(f"v_lshl_add_u32 v8, v8, {7 + nb}, s68")
            a("v_min_u32 v8, L_exit-L_pc, v8")
            a("global_load_dword v40, v8, s[66:67]")
            a.label("L_npre")
        if cfg.get("probe") is not None:
            a("s_memrealtime s[100:101]")
            a("s_memrealtime s[96:97]")
        if cfg.get("dbg"):
            a("s_memrealtime s[100:101]")
            a("s_load_dwordx2 s[56:57], s[0:1], 96")
            a("s_mov_b32 s58, 256")
            a("s_mov_b32 s59, 0x20000")
        for (s0, ko, nb) in SRD_INFO:
            a(f"s_load_dwordx2 s[{s0}:{s0+1}], s[0:1], {ko}")
        for (s0, ko, nb) in SRD_INFO:
            a(f"s_mov_b32 s{s0+2}, {nb}")
            a(f"s_mov_b32 s{s0+3}, 0x20000")
        a(f"v_and_b32 {vLANE}, 63, v0")
        a("v_lshrrev_b32 v7, 6, v0")
        a(f"v_lshrrev_b32 {vG}, 4, {vLANE}")
        a(f"v_readfirstlane_b32 {sW}, v7")
        a(f"v_and_b32 {vI}, 15, v0")
        a(f"v_and_b32 {vB}, 7, v0")
        a(f"v_bfe_u32 {vHI}, v0, 3, 1")
        a(f"v_mov_b32 {vSTAMP}, 0")
        if self.stamps:
            a(f"v_mov_b32 v41, 0")
        a(f"v_mov_b32 {vZ}, 0x20000")
        a(f"s_and_b32 {sX}, s2, 7")
        a(f"s_lshr_b32 {sL}, s2, 3")
        a(f"s_lshr_b32 {sHKV}, {sX}, 1")
        a(f"s_xor_b32 {sHKV}, {sHKV}, 1")
        a(f"s_cmp_lt_u32 {sW}, 8")
        a("s_cbranch_scc1 L_compute")
        self.loader()
        a.label("L_compute")
        a(f"v_lshlrev_b32 {vL4}, 2, {vLANE}")
        a("v_mov_b32 v16, 0")
        a(f"v_add_u32 v17, {vL4}, {vZ}")
        if cfg.get("pb"):
            a(f"s_cmp_ge_u32 {sL}, 16")
            a("s_cselect_b32 s66, -4, 0")
            a("s_cselect_b32 s67, 0, 8")
            a("v_writelane_b32 v16, s66, 0")
            for i in range(4):
                a(f"v_writelane_b32 v16, s67, {C_FREE+i}")
            a(f"ds_write_b32 v17, v16 offset:{L_CNT-L_AUX}")
            a("s_cbranch_scc0 L_eA")
            self.p0a_early()
            self.p1_early()
            a.label("L_eA")
            a("s_waitcnt lgkmcnt(0)")
            a(f"s_load_dword {sEP}, s[52:53], 0")
            a("s_barrier")
        else:
            if cfg.get("p0x"):
                a("s_and_b32 s66, s2, 0x84")
                a("s_cselect_b32 s67, 0, -4")
                a("v_writelane_b32 v16, s67, 0")
                a("s_cmp_eq_u32 s66, 4")
                a("s_cselect_b32 s67, 8, 0")
                for i in range(4):
                    a(f"v_writelane_b32 v16, s67, {C_FREE+i}")
            a(f"ds_write_b32 v17, v16 offset:{L_CNT-L_AUX}")
            a(f"s_cmp_ge_u32 {sL}, 16")
            a("s_cbranch_scc1 L_eB")
            self.p0a_early()
            a(f"s_load_dword {sEP}, s[52:53], 0")
            a("s_barrier")
            a("s_branch L_eD")
            a.label("L_eB")
            self.p1_early()
            a(f"s_load_dword {sEP}, s[52:53], 0")
            a.label("L_eD")
        a(f"v_mov_b32 {vFF}, 0xff")
        a(f"v_mov_b32 {vONE}, 1")
        a(f"s_mov_b32 {sSEL1}, 0x07060302")
        a("s_mov_b32 s84, 0x00ff00ff")
        a("s_mov_b32 s85, 0x00ff00ff")
        a(f"s_mov_b32 {sLOG}, 0x{LOG2E:x}")
        a(f"v_lshrrev_b32 v8, 2, {vLANE}")
        a(f"v_lshlrev_b32 v8, 7, v8")
        a(f"v_and_b32 v9, 3, {vLANE}")
        a(f"v_lshl_add_u32 v8, v9, 3, v8")
        a(f"v_bfe_u32 v9, {vLANE}, 3, 2")
        a(f"v_lshl_add_u32 v{TR}, v9, 5, v8")
        for cg in range(1, 4):
            a(f"v_xor_b32 v{TR+cg}, {32*cg}, v{TR}")
        a(f"s_cmp_ge_u32 {sL}, 16")
        a("s_cbranch_scc1 L_B")
        a("; ======== A")
        if cfg.get("pb"):
            self.epoch()
        else:
            if cfg.get("p0x"):
                a(f"s_cmp_lt_u32 {sX}, 4")
                a("s_cbranch_scc1 L_p0e")
                self.epoch()
                a("s_waitcnt vmcnt(0)")
                a("s_branch L_att")
                a.label("L_p0e")
            self.p0a()
        a("s_branch L_att")
        a.label("L_B")
        a("; ======== B")
        a(f"s_sub_u32 s68, {sL}, 16")
        self.p1(A[0])
        self.rm(A[0])
        self.swap_j("s68", 3, 9)
        self.p3(16, A[0])
        a(f"s_cmp_lt_u32 {sL}, 24")
        a(f"s_cbranch_scc1 L_nor3")
        a(f"s_sub_u32 s69, {sL}, 24")
        self.r3()
        a.label("L_nor3")
        self.swap_j("s68", 5, 11)
        self.p5(24, A[0])
        a("s_branch L_done")
        self.loader_rest()
        a.label("L_att")
        a(f"s_mov_b32 s68, {sL}")
        self.att(4)
        a(f"s_mov_b32 s68, {sL}")
        a(f"s_cmp_lt_u32 {sL}, 14")
        a(f"s_cbranch_scc1 L_P4")
        a(f"s_lshl_b32 s68, {sX}, 1")
        a(f"s_add_u32 s68, s68, {sL}")
        a(f"s_sub_u32 s68, s68, 14")
        self.gb_r5()
        a("s_branch L_done")
        a.label("L_P4")
        self.p4()
        a.label("L_done")
        if cfg.get("probe") is not None:
            a(f"s_cmp_lg_u32 {sL}, {cfg.get('probel', 15)}")
            a("s_cbranch_scc1 L_nopr")
            a(f"s_cmp_lg_u32 {sW}, 0")
            a("s_cbranch_scc1 L_nopr")
            a("s_sub_u32 s66, s96, s100")
            a("s_min_u32 s66, s66, 4000")
            a("s_lshl_b32 s66, s66, 3")
            a("s_add_u32 s66, s66, s100")
            a("s_add_u32 s66, s66, 3000")
            a("s_mov_b32 s67, 200000")
            a.label("L_pr")
            a("s_memrealtime s[90:91]")
            a("s_waitcnt lgkmcnt(0)")
            a("s_sub_u32 s67, s67, 1")
            a("s_cbranch_scc1 L_nopr")
            a("s_sub_u32 s68, s90, s66")
            a("s_cmp_lt_i32 s68, 0")
            a("s_cbranch_scc1 L_pr")
            a.label("L_nopr")
        if cfg.get("dbg"):
            a(f"s_cmp_lg_u32 {sL}, 15")
            a("s_cbranch_scc1 L_nodbg")
            a(f"s_cmp_lg_u32 {sW}, 0")
            a("s_cbranch_scc1 L_nodbg")
            a("s_memrealtime s[90:91]")
            a("s_waitcnt lgkmcnt(0)")
            a("v_mov_b32 v16, s100")
            a("v_mov_b32 v17, s90")
            a(f"s_lshl_b32 s66, {sX}, 2")
            a("v_mov_b32 v18, 0")
            a("s_mov_b64 exec, 1")
            a(f"buffer_store_dword v16, v18, {DBG_}, s66 offen")
            a(f"buffer_store_dword v17, v18, {DBG_}, s66 offen offset:32")
            a("s_mov_b64 exec, -1")
            a.label("L_nodbg")
        if self.stamps:
            self.stamp(52)
            a(f"s_lshl_b32 s66, s2, 4")
            a(f"s_add_u32 s66, s66, {sW}")
            a(f"s_lshl_b32 s66, s66, 8")
            a(f"s_add_u32 s66, s66, {WS_STAMP}")
            a(f"v_lshlrev_b32 v8, 2, {vLANE}")
            a(f"buffer_store_dword {vSTAMP}, v8, {WS_}, s66 offen sc1")
            a(f"s_cmp_lt_u32 {sW}, 8")
            a("s_cbranch_scc1 L_exit")
            self.l_flush()
            a(f"buffer_store_dword v41, v8, {WS_}, s66 offen offset:256 sc1")
        a.label("L_exit")
        a("s_endpgm")
        a.raw('.section .rodata,"a"')
        a.raw(".p2align 6")
        a.raw(f".amdhsa_kernel {NAME}_kernel")
        a.raw(f"  .amdhsa_next_free_vgpr {NVGPR}")
        a.raw("  .amdhsa_next_free_sgpr 102")
        a.raw(f"  .amdhsa_accum_offset {NVGPR}")
        a.raw("  .amdhsa_group_segment_fixed_size 0")
        a.raw("  .amdhsa_kernarg_size 112")
        a.raw("  .amdhsa_user_sgpr_count 2")
        a.raw("  .amdhsa_user_sgpr_kernarg_segment_ptr 1")
        a.raw("  .amdhsa_system_sgpr_workgroup_id_x 1")
        a.raw(".end_amdhsa_kernel")
        return a.text(cfg.get("padb", 64))


DEFAULT = dict(pre=2, rot=1, kvp=(32, 1, 2, 4), slow=3, plain=True, p4gate=1, r3gate=0, wP4s=("Q", 8),
               P0A=[(4, 32)], wK=("P0P", 4), K=[(8, 56)], V=[(8, 56)], wP4=("ATTP", 8), P4=[(3, 24), ("ATTP", 8, 0), (13, 56)], GB=[(2, 16), ("ATTP", 8, 0), (14, 32)],
               P1a=[(4, 32)], P1b=[(4, 56)], wB=("P1P", 8), RM=[(3, 16), (5, 56)], P3=[(8, 56)], wP5=("P3P", 8), P5=[(7, 56)],
               RMr=[(3, 16), (1, 56)], P3r=[(8, 56)], P5r=[("R3P", 8), (7, 56)])

if __name__ == "__main__":
    cfg = dict(DEFAULT)
    out = sys.argv[1]
    for arg in sys.argv[2:]:
        k, _, val = arg.partition("=")
        cfg[k] = eval(val) if val else True
    open(out, "w").write(Gen(cfg).build())
    print("wrote", out)
```
